```python
import torch

def _softmax(x, axis=-1):
    return torch.softmax(x, dim=axis)
def _gelu(x):
    return torch.nn.functional.gelu(x, approximate="tanh")
def _silu(x):
    return torch.nn.functional.silu(x)
def _sigmoid(x):
    return torch.sigmoid(x)
def _layernorm(x, axis=-1, eps=1e-5):
    m = x.mean(dim=axis, keepdim=True)
    v = x.var(dim=axis, keepdim=True, unbiased=False)
    return (x - m) / torch.sqrt(v + eps)
def _scatter_add(tgt, idx, src, axis=0):
    return tgt.clone().index_add_(axis, idx, src)
def _segment_sum(src, seg, n):
    out = torch.zeros((n,) + src.shape[1:], dtype=src.dtype)
    return out.index_add_(0, seg, src)
def _pad(x, pw):
    flat = tuple(v for pair in reversed(pw) for v in pair)
    return torch.nn.functional.pad(x, flat)

kernel_name = 'concat_heads__sliding_block__softmax_full_mha__prompt'

def setup_inputs():

    _w = (lambda a: (lambda t: t.to(torch.bfloat16) if t.is_floating_point() else t)(torch.as_tensor(a)))
    def _A_setup():
        B, S, D = 1, 2048, 640
        return {
            "x": _w((lambda *s: torch.randn(*s, dtype=torch.bfloat16) * 0.4)(B, S, D)),
            "wqkv": _w((lambda *s: torch.randn(*s, dtype=torch.bfloat16) * 0.4)(D, 3 * D)),
            "wo": _w((lambda *s: torch.randn(*s, dtype=torch.bfloat16) * 0.05)(D, D)),
        }
    _A_in = _A_setup()

    def _B_setup():
        B, S, D = 1, 2048, 640
        return {
            "x": _w((lambda *s: torch.randn(*s, dtype=torch.bfloat16) * 0.2)(B, S, D)),
            "wqkv": _w((lambda *s: torch.randn(*s, dtype=torch.bfloat16) * 0.4)(D, 3 * D)),
            "wo": _w((lambda *s: torch.randn(*s, dtype=torch.bfloat16) * 0.1)(D, D)),
        }
    _B_in = _B_setup()

    return {
        "A_x": _A_in["x"],
        "A_wqkv": _A_in["wqkv"],
        "A_wo": _A_in["wo"],
        "B_x": _B_in["x"],
        "B_wqkv": _B_in["wqkv"],
        "B_wo": _B_in["wo"],
    }

def reference(A_x, A_wqkv, A_wo, B_x, B_wqkv, B_wo):
    def _A_ref(x, wqkv, wo):
        B, S, D = x.shape
        H = 32; Dh = D // H; W = 256
        qkv = (lambda x, *d: x.permute(*d))((x @ wqkv).reshape(B, S, 3, H, Dh), 2, 0, 3, 1, 4)
        q, k, v = qkv[0], qkv[1], qkv[2]
        scores = torch.einsum("bhqd,bhkd->bhqk", q, k) * (Dh ** -0.5)
        idx = torch.arange(S)
        mask = (idx[:, None] - idx[None, :] >= 0) & (idx[:, None] - idx[None, :] < W)
        scores = torch.where(mask[None, None], scores, -1e9)
        p = _softmax(scores, axis=-1)
        o = torch.einsum("bhqk,bhkd->bhqd", p, v)
        return (lambda x, *d: x.permute(*d))(o, 0, 2, 1, 3).reshape(B, S, D) @ wo

    def _B_ref(x, wqkv, wo):
        B, S, D = x.shape
        H = 32; Dh = D // H
        qkv = (lambda x, *d: x.permute(*d))((x @ wqkv).reshape(B, S, 3, H, Dh), 2, 0, 3, 1, 4)
        q, k, v = qkv[0], qkv[1], qkv[2]
        scale = Dh ** -0.5
        scores = torch.einsum("bhqd,bhkd->bhqk", q, k) * scale
        p = _softmax(scores, axis=-1)
        o = torch.einsum("bhqk,bhkd->bhqd", p, v)
        return (lambda x, *d: x.permute(*d))(o, 0, 2, 1, 3).reshape(B, S, D) @ wo

    a = _A_ref(A_x, A_wqkv, A_wo)
    b = _B_ref(B_x, B_wqkv, B_wo)
    return torch.concatenate([a, b], axis=-1)
```

```python
import sys, struct

NAME = "concat_heads__sliding_block__softmax_full_mha__prompt"
KNAME = NAME + "_kernel"

QW_OFF = 0x000000
KV_OFF = 0x500000
OW_OFF = 0xF00000
FL_OFF = 0x1400000
WP_OFF = 0x1500000
WS_USED = 0x1700000
X_BYTES = 2048 * 640 * 2
WQKV_BYTES = 640 * 1920 * 2
WO_BYTES = 640 * 640 * 2
OUT_BYTES = 2048 * 1280 * 2
SRD3 = 0x00020000
LDS_BYTES = 163840
K = 1024

STAMPS = False
STAMP_OFF = 0x2000000
SB = 72
OPT = {}


def f32bits(x):
    return struct.unpack("<I", struct.pack("<f", x))[0]


NEGBIG = f32bits(-1e30)
CSCALE = f32bits((20 ** -0.5) * 1.4426950408889634)


class Asm:
    def __init__(self):
        self.l = []
        self.n = 0

    def __call__(self, s):
        if isinstance(s, (list, tuple)):
            for x in s:
                self(x)
            return
        for line in s.strip("\n").split("\n"):
            line = line.strip()
            if line:
                self.l.append(("" if line.endswith(":") else "    ") + line)

    def label(self, s):
        self.l.append(s + ":")

    def raw(self, s):
        self.l.append(s)

    def uniq(self, p):
        self.n += 1
        return f"{p}_{self.n}"

    def text(self):
        return "\n".join(self.l) + "\n"


def vr(a, n):
    return f"v[{a}:{a + n - 1}]"


def mfma32(d, a_, b_, c):
    cs = vr(c, 16) if c is not None else "0"
    return f"v_mfma_f32_32x32x16_bf16 {vr(d,16)}, {vr(a_,4)}, {vr(b_,4)}, {cs}"


def mfma32k8(d, a_, b_, c):
    return f"v_mfma_f32_32x32x8_bf16 {vr(d,16)}, {vr(a_,2)}, {vr(b_,2)}, {vr(c,16)}"


def mfma16(d, a_, b_, c):
    cs = vr(c, 4) if c is not None else "0"
    return f"v_mfma_f32_16x16x32_bf16 {vr(d,4)}, {vr(a_,4)}, {vr(b_,4)}, {cs}"


def stamp(a, i, mode=0):
    if STAMPS and (i == 0 or OPT.get("sm", 0) == mode):
        a(f"s_memrealtime s[{SB+2*i}:{SB+2*i+1}]")


SX = [4, 12]
SW = [8, 16]
SWS, SDBG = 20, 24
SWO = [28, 32]
SOUT = 36
sWAVE, sCW, sTB, sM, sKS, sXB, sWB, sLP = 40, 41, 42, 43, 44, 45, 46, 47
T0, T1, T2, T3, T4, T5 = 48, 49, 50, 51, 52, 53
sEQ, sEK = 54, 55
sHEAD, sQB, sQT, sW1K = 56, 57, 58, 59
sVM, sLO = 60, 62
sCS, sONE, sKVB, sXCD, sJ, sROT = 64, 65, 66, 67, 68, 69
sCNT = 70


def srd(n):
    return f"s[{n}:{n+3}]"


HS = "sc1"
HST = "sc1"


def gen(a):
    a.raw(f".globl {KNAME}\n.p2align 8\n.type {KNAME},@function")
    a.label(KNAME)
    a(f"""
    s_cmp_ge_u32 s2, 256
    s_cbranch_scc1 L_done
    """)
    stamp(a, 0)
    a(f"""
    s_load_dwordx2 s[{SX[0]}:{SX[0]+1}], s[0:1], 0
    s_load_dwordx2 s[{SW[0]}:{SW[0]+1}], s[0:1], 8
    s_load_dwordx2 s[{SX[1]}:{SX[1]+1}], s[0:1], 24
    s_load_dwordx2 s[{SW[1]}:{SW[1]+1}], s[0:1], 32
    s_load_dwordx2 s[{SWO[0]}:{SWO[0]+1}], s[0:1], 16
    s_load_dwordx2 s[{SWO[1]}:{SWO[1]+1}], s[0:1], 40
    s_load_dwordx2 s[{SOUT}:{SOUT+1}], s[0:1], 48
    s_load_dwordx2 s[{SDBG}:{SDBG+1}], s[0:1], 56
    s_load_dwordx2 s[{SWS}:{SWS+1}], s[0:1], 64
    v_lshrrev_b32 v1, 6, v0
    v_and_b32 v0, 63, v0
    s_and_b32 s{sXCD}, s2, 7
    v_readfirstlane_b32 s{sWAVE}, v1
    s_lshr_b32 s{sJ}, s2, 3
    s_and_b32 s{T0}, s{sXCD}, 1
    s_lshl_b32 s{T0}, s{T0}, 3
    s_and_b32 s{T1}, s{sJ}, 7
    s_add_u32 s{sTB}, s{T0}, s{T1}
    s_lshr_b32 s{T0}, s{sXCD}, 1
    s_lshl_b32 s{T0}, s{T0}, 2
    s_lshr_b32 s{T2}, s{sJ}, 3
    s_add_u32 s{sM}, s{T0}, s{T2}
    """)
    rm = OPT.get("rot", 1)
    if rm == 0:
        a(f"s_mov_b32 s{sROT}, 0")
    elif rm == 1:
        a(f"""
        s_mul_i32 s{T2}, s{T2}, 3
        s_add_u32 s{sROT}, s{T1}, s{T2}
        s_cmp_ge_u32 s{sROT}, 10
        s_cselect_b32 s{T0}, 10, 0
        s_sub_u32 s{sROT}, s{sROT}, s{T0}
        """)
    else:
        a(f"""
        s_add_u32 s{sROT}, s{T1}, s{T2}
        s_and_b32 s{sROT}, s{sROT}, 1
        s_mul_i32 s{sROT}, s{sROT}, 5
        """)
    a(f"""
    s_and_b32 s{sCW}, s{sWAVE}, 3
    """)
    for n, size in ((SX[0], X_BYTES), (SW[0], WQKV_BYTES), (SX[1], X_BYTES), (SW[1], WQKV_BYTES), (SWO[0], WO_BYTES),
                    (SWO[1], WO_BYTES), (SOUT, OUT_BYTES), (SDBG, 256), (SWS, 0x4000000 if STAMPS else WS_USED)):
        a(f"s_mov_b32 s{n+2}, {size}\ns_mov_b32 s{n+3}, {SRD3}")
    a(f"""
    v_lshrrev_b32 v6, 3, v0
    v_mul_u32_u24 v2, 1280, v6
    v_lshrrev_b32 v7, 4, v0
    v_and_b32 v8, 7, v0
    v_xor_b32 v8, v8, v7
    v_lshl_add_u32 v2, v8, 4, v2
    v_xor_b32 v3, 64, v2
    v_mul_u32_u24 v9, 3840, v7
    v_and_b32 v8, 15, v0
    v_lshlrev_b32 v10, 1, v7
    v_xor_b32 v8, v8, v10
    """)
    a("""
    v_lshl_add_u32 v4, v8, 4, v9
    v_xor_b32 v5, 128, v4
    """)
    a(f"""
    s_lshl_b32 s{T0}, s{sTB}, 7
    s_lshl_b32 s{T1}, s{sCW}, 5
    s_add_u32 s{T0}, s{T0}, s{T1}
    s_mul_i32 s{sXB}, s{T0}, 1280
    s_mul_i32 s{sWB}, s{sCW}, {16*3840}
    s_lshl_b32 s{T0}, s{sM}, 8
    s_add_u32 s{sWB}, s{sWB}, s{T0}
    s_lshl_b32 s{sLP}, s{sCW}, 12
    s_lshr_b32 s{T3}, s{sWAVE}, 2              ; group
    s_add_u32 s{sKS}, s{sROT}, s{T3}
    s_cmp_eq_u32 s{sKS}, 10
    s_cselect_b32 s{sKS}, 0, s{sKS}
    s_lshl_b32 s{T3}, s{T3}, 15
    s_add_u32 s{T3}, s{T3}, s{sLP}
    """)

    def dma_stage(n, sLP=sLP):
        p = n // 10
        slot = (n % 5) * 32 * K
        out = [f"s_lshl_b32 s{T0}, s{sKS}, 7",
               f"s_add_u32 s{T0}, s{T0}, s{sXB}",
               f"s_mul_i32 s{T1}, s{sKS}, {64*3840}",
               f"s_add_u32 s{T1}, s{T1}, s{sWB}"]
        for i in range(4):
            out += [f"s_add_u32 m0, s{sLP}, {slot + i*1024}",
                    f"s_add_u32 s{T2}, s{T0}, {i*8*1280}",
                    f"buffer_load_dwordx4 v{2 + (i & 1)}, {srd(SX[p])}, s{T2} offen lds",
                    f"s_add_u32 m0, s{sLP}, {slot + 16*K + i*1024}",
                    f"s_add_u32 s{T2}, s{T1}, {i*4*3840}",
                    f"buffer_load_dwordx4 v{4 + (i >> 1)}, {srd(SW[p])}, s{T2} offen lds"]
        out += [f"s_add_u32 s{sKS}, s{sKS}, 1",
                f"s_cmp_eq_u32 s{sKS}, 10",
                f"s_cselect_b32 s{sKS}, 0, s{sKS}"]
        return out

    a("s_waitcnt lgkmcnt(0)")
    a(f"s_cmp_eq_u32 s{sM}, 15")
    a("s_cbranch_scc1 L_setup1")
    a(dma_stage(0, T3))
    a(f"s_cmp_lt_u32 s{sWAVE}, 4")
    a("s_cbranch_scc1 L_setup1")
    for n in (2, 3):
        a(dma_stage(n))
    a.label("L_setup1")
    a(f"""
    s_lshl_b32 s{T0}, s{sXCD}, 2
    s_and_b32 s{T1}, s{sJ}, 3
    s_add_u32 s{sHEAD}, s{T0}, s{T1}
    s_lshr_b32 s{sQB}, s{sJ}, 2
    s_cmp_ge_u32 s{sWAVE}, 4
    s_cbranch_scc1 L_setup2
    s_lshl_b32 s{T0}, s{sM}, 8
    s_lshl_b32 s{T1}, s{sTB}, 2
    s_add_u32 s{T0}, s{T0}, s{T1}
    s_lshl_b32 s{T1}, s{sWAVE}, 12
    s_add_u32 s{T0}, s{T0}, s{T1}
    s_lshl_b32 s{T1}, s{sQB}, 8
    s_lshl_b32 s{T2}, s{sHEAD}, 2
    s_add_u32 s{T1}, s{T1}, s{T2}
    s_lshl_b32 s{T2}, s{sWAVE}, 11
    s_add_u32 s{T1}, s{T1}, s{T2}
    s_add_u32 s{T1}, s{T1}, 4096
    s_cmp_lt_u32 s{sWAVE}, 2
    s_cselect_b32 s{T0}, s{T0}, s{T1}
    s_add_u32 s{T0}, s{T0}, {FL_OFF}
    v_mov_b32 v1, 0
    s_mov_b64 exec, 1
    buffer_store_dword v1, off, {srd(SWS)}, s{T0} sc1
    s_mov_b64 exec, -1
    """)
    a.label("L_setup2")

    XA = lambda sg, kk: 14 + sg * 6 + kk
    WA = lambda sg, ct: 14 + sg * 6 + 2 + ct
    a(f"""
    v_and_b32 v6, 15, v0
    v_lshrrev_b32 v8, 1, v6                ; f(row)
    v_xor_b32 v8, v8, v7                   ; o ^ f
    v_lshlrev_b32 v8, 4, v8
    v_lshl_add_u32 v8, v6, 7, v8
    s_lshr_b32 s{T0}, s{sCW}, 1
    s_lshl_b32 s{T0}, s{T0}, 13
    v_add_u32 v{XA(0,0)}, s{T0}, v8
    v_xor_b32 v{XA(0,1)}, 64, v{XA(0,0)}
    v_lshrrev_b32 v8, 2, v0
    v_and_b32 v8, 3, v8                    ; r
    v_lshl_add_u32 v9, v7, 3, v8           ; krow = 8o + r
    v_lshlrev_b32 v9, 8, v9
    v_add_u32 v9, {16*K}, v9
    v_and_b32 v10, 1, v7
    v_lshl_add_u32 v10, v10, 2, v8
    v_lshlrev_b32 v10, 1, v10              ; sigma
    v_bfe_u32 v11, v0, 1, 1                ; c>>1
    s_and_b32 s{T0}, s{sCW}, 1
    s_lshl_b32 s{T0}, s{T0}, 3
    v_or_b32 v11, s{T0}, v11               ; 8cg + (c>>1)
    v_xor_b32 v11, v11, v10
    v_lshl_add_u32 v11, v11, 4, v9
    v_and_b32 v12, 1, v0
    v_lshl_add_u32 v{WA(0,0)}, v12, 3, v11
    v_xor_b32 v{WA(0,1)}, 32, v{WA(0,0)}
    v_xor_b32 v{WA(0,2)}, 64, v{WA(0,0)}
    v_xor_b32 v{WA(0,3)}, 96, v{WA(0,0)}
    """)
    for sg in (1, 2):
        for i in range(6):
            a(f"v_add_u32 v{14+sg*6+i}, {sg*64*K}, v{14+i}")
    EA = [196, 197, 198, 199]
    a(f"""
    s_lshl_b32 s{T0}, s{sTB}, 2
    s_and_b32 s{T1}, s{sCW}, 2
    s_add_u32 s{T0}, s{T0}, s{T1}
    s_lshr_b32 s{T1}, s{sWAVE}, 2
    s_lshl_b32 s{T1}, s{T1}, 11                ; p*32*64
    s_add_u32 s{T0}, s{T0}, s{T1}
    s_cmp_ge_u32 s{sM}, 5
    s_cselect_b32 s{T2}, 1, 0                  ; K or V
    s_lshl_b32 s{T3}, 1280, s{T2}
    s_mul_i32 s{sEQ}, s{T0}, s{T3}
    s_mul_i32 s{T0}, s{T2}, {KV_OFF}
    s_add_u32 s{sEQ}, s{sEQ}, s{T0}
    s_add_u32 s{sEK}, s{sEQ}, s{T3}
    s_lshl_b32 s{T3}, s{T3}, 6
    s_and_b32 s{T1}, s{sCW}, 1
    s_cmp_ge_u32 s{sM}, 10
    s_cbranch_scc1 L_ea1
    s_mul_i32 s{T0}, s{T2}, 5
    s_sub_u32 s{T0}, s{sM}, s{T0}
    s_lshl_b32 s{T0}, s{T0}, 5
    s_lshl_b32 s{T1}, s{T1}, 4
    s_add_u32 s{T0}, s{T0}, s{T1}
    v_add_u32 v8, s{T0}, v7
    v_lshlrev_b32 v10, 4, v6
    """)
    for ct in range(4):
        a(f"""
        v_add_u32 v9, {4*ct}, v8
        v_mul_u32_u24 v11, 205, v9
        v_lshrrev_b32 v11, 10, v11
        v_mul_u32_u24 v12, 5, v11
        v_sub_u32 v12, v9, v12
        v_mul_lo_u32 v11, v11, s{T3}
        v_lshl_add_u32 v12, v12, 8, v10
        v_add_u32 v{EA[ct]}, v11, v12
        """)
    a(f"""
    s_branch L_ea2
    L_ea1:
    s_sub_u32 s{T0}, s{sM}, 10
    s_lshl_b32 s{T0}, s{T0}, 7
    s_lshl_b32 s{T1}, s{T1}, 6
    s_add_u32 s{T0}, s{T0}, s{T1}
    v_add_u32 v8, s{T0}, v6
    v_mul_u32_u24 v10, 320, v7
    v_add_u32 v10, 1280, v10
    """)
    for ct in range(4):
        a(f"""
        v_add_u32 v9, {16*ct}, v8
        v_mul_u32_u24 v11, 3277, v9
        v_lshrrev_b32 v11, 16, v11
        v_mul_u32_u24 v12, 20, v11
        v_sub_u32 v12, v9, v12
        v_mul_lo_u32 v11, v11, s{T3}
        v_lshl_add_u32 v12, v12, 4, v10
        v_add_u32 v{EA[ct]}, v11, v12
        """)
    a.label("L_ea2")
    a(f"""
    s_lshl_b32 s{sQT}, s{sQB}, 3
    s_add_u32 s{sQT}, s{sQT}, s{sWAVE}
    s_lshl_b32 s{sW1K}, s{sWAVE}, 10
    s_mov_b32 s{sVM}, 0x000fffff
    s_mov_b32 s{sVM+1}, 0x000fffff
    s_mov_b32 s{sLO}, -1
    s_mov_b32 s{sLO+1}, 0
    s_mov_b32 s{sCS}, {CSCALE}
    s_mov_b32 s{sONE}, 0x3f80
    s_mul_i32 s{sKVB}, s{sHEAD}, 163840
    s_add_u32 s{sKVB}, s{sKVB}, {KV_OFF}
    """)

    ACC = lambda ct, tt: 128 + (ct * 4 + tt) * 4
    XF = lambda buf, tt: 64 + buf * 32 + tt * 4
    WF = lambda buf, ct: 64 + buf * 32 + 16 + ct * 4

    def g1reads(i, kk):
        slot = i % 5
        sg, so = slot >> 1, (slot & 1) * 32 * K
        r = []
        for q in range(4):
            r.append(f"ds_read_b128 {vr(XF(kk,q),4)}, v{XA(sg,kk)} offset:{so + q*2048}")
            for rd in range(2):
                r.append(f"ds_read_b64_tr_b16 {vr(WF(kk,q)+2*rd,2)}, v{WA(sg,q)} offset:{so + kk*8192 + rd*1024}")
        return r

    VPG0, VPG1, VPO = 202, 203, 204

    def own_flag(kind, p, dst):
        if kind == 0:
            return [f"s_lshl_b32 s{dst}, s{sM}, 8", f"s_lshl_b32 s{T5}, s{sTB}, 2", f"s_add_u32 s{dst}, s{dst}, s{T5}",
                    f"s_add_u32 s{dst}, s{dst}, {FL_OFF + p*4096}"]
        return [f"s_lshl_b32 s{dst}, s{sQB}, 8", f"s_lshl_b32 s{T5}, s{sHEAD}, 2", f"s_add_u32 s{dst}, s{dst}, s{T5}",
                f"s_add_u32 s{dst}, s{dst}, {FL_OFF + 8192 + p*2048}"]

    def only_wave(wave):
        lab = a.uniq("L_w")
        a(f"s_cmp_lg_u32 s{sWAVE}, {wave}")
        a(f"s_cbranch_scc1 {lab}")
        return lab

    def publish(kind, p, wave):
        lab = only_wave(wave)
        a(own_flag(kind, p, T4))
        a(f"""
        v_mov_b32 v1, 1
        s_mov_b64 exec, 1
        buffer_store_dword v1, off, {srd(SWS)}, s{T4} sc1
        s_mov_b64 exec, -1
        """)
        a.label(lab)

    def poll_loads(kind, p):
        if kind == 0:
            return [f"s_mov_b32 s{T3}, {FL_OFF + p*4096}",
                    f"buffer_load_dword v1, v{VPG0}, {srd(SWS)}, s{T3} offen sc1",
                    f"buffer_load_dword v205, v{VPG1}, {srd(SWS)}, s{T3} offen sc1"]
        if kind == 1:
            return [f"s_mov_b32 s{T3}, {FL_OFF + 8192 + p*2048}",
                    f"buffer_load_dword v1, v{VPO}, {srd(SWS)}, s{T3} offen sc1"]
        return [f"buffer_load_dword v1, v206, {srd(SDBG)}, 0 offen sc1"]

    def poll_issue(kind, p):
        lab = only_wave(0)
        a(poll_loads(kind, p))
        a.label(lab)

    def poll_check(kind, p, sleep=8):
        lab = only_wave(0)
        loop = a.uniq("L_spin")
        a(f"s_mov_b32 s{sCNT}, 0x20000")
        a.label(loop)
        a("s_waitcnt vmcnt(0)")
        if kind == 0:
            a("v_and_b32 v1, v1, v205")
        a(f"v_cmp_eq_u32 vcc, {64 if kind == 2 else 1}, v1")
        a(f"""
        s_cmp_eq_u64 vcc, -1
        s_cbranch_scc1 {lab}
        s_sleep {sleep}
        """)
        a(poll_loads(kind, p))
        a(f"""
        s_sub_u32 s{sCNT}, s{sCNT}, 1
        s_cmp_lg_u32 s{sCNT}, 0
        s_cbranch_scc1 {loop}
        s_waitcnt vmcnt(0)
        """)
        a.label(lab)

    a(f"""
    s_mul_i32 s{T0}, s{sHEAD}, 20
    s_add_u32 s{T1}, s{T0}, 19
    s_lshr_b32 s{T0}, s{T0}, 7
    s_lshr_b32 s{T1}, s{T1}, 7
    s_lshl_b32 s{T0}, s{T0}, 8
    s_lshl_b32 s{T1}, s{T1}, 8
    v_mul_u32_u24 v8, 1280, v7
    v_lshl_add_u32 v8, v6, 2, v8
    v_add_u32 v{VPG0}, s{T0}, v8
    v_add_u32 v{VPG1}, s{T1}, v8
    v_cmp_eq_u32 vcc, 3, v7
    s_nop 1
    v_cndmask_b32 v{VPG0}, v{VPG0}, v8, vcc
    v_cndmask_b32 v{VPG1}, v{VPG1}, v8, vcc
    v_and_b32 v8, 31, v0
    v_lshlrev_b32 v8, 2, v8
    s_lshl_b32 s{T0}, s{sXCD}, 8
    v_add_u32 v{VPO}, s{T0}, v8
    v_and_b32 v8, 3, v0
    v_lshlrev_b32 v206, 6, v8
    """)
    def count_in():
        lab = only_wave(0)
        a(f"""
        s_and_b32 s{T4}, s2, 3
        s_lshl_b32 s{T4}, s{T4}, 6
        v_mov_b32 v1, 1
        s_mov_b64 exec, 1
        buffer_atomic_add v1, off, {srd(SDBG)}, s{T4} sc1
        s_mov_b64 exec, -1
        """)
        a.label(lab)

    a(f"s_cmp_eq_u32 s{sM}, 15")
    a("s_cbranch_scc1 L_idle")

    a(f"s_cmp_lt_u32 s{sWAVE}, 4")
    a("s_cbranch_scc1 L_xstart")
    for n in range(11):
        a("s_waitcnt vmcnt(24)")
        a("s_barrier")
        if n <= 9:
            a(dma_stage(n + 4))
    a("s_branch L_compute")
    a.label("L_xstart")
    a(f"""
    s_add_u32 s{sKS}, s{sKS}, 3
    s_cmp_ge_u32 s{sKS}, 10
    s_cselect_b32 s{T0}, 10, 0
    s_sub_u32 s{sKS}, s{sKS}, s{T0}
    s_waitcnt vmcnt(1)
    s_barrier
    """)
    a.label("L_compute")
    stamp(a, 1)
    stamp(a, 1, 1)
    a(g1reads(0, 0))
    a(f"s_cmp_ge_u32 s{sM}, 10")
    a("s_cbranch_scc1 L_comp1")

    def interleave(ms, rs):
        out = []
        ri = 0
        for i, m in enumerate(ms):
            out.append(m)
            if ri < len(rs):
                out.append(rs[ri]); ri += 1
        out += rs[ri:]
        return out

    for cg in range(2):
        if cg == 1:
            a.label("L_comp1")

        def mm(i, kk):
            out = []
            for ct in range(4):
                for tt in range(4):
                    c = None if (i == 0 and kk == 0) else ACC(ct, tt)
                    if cg == 1:
                        out.append(mfma16(ACC(ct, tt), XF(kk, tt), WF(kk, ct), c))
                    else:
                        out.append(mfma16(ACC(ct, tt), WF(kk, ct), XF(kk, tt), c))
            return out
        for i in range(10):
            a("s_waitcnt lgkmcnt(0)")
            a(interleave(mm(i, 0), g1reads(i, 1)))
            a(f"s_waitcnt lgkmcnt(0) vmcnt({[16, 8, 0][i]})" if i < 3 else "s_waitcnt lgkmcnt(0)")
            if i >= 7:
                lab = a.uniq("L_nb")
                a(f"s_cmp_ge_u32 s{sWAVE}, 4")
                a(f"s_cbranch_scc1 {lab}")
                a("s_barrier")
                a.label(lab)
            else:
                a("s_barrier")
            if i == 2:
                count_in()
            if i in (1, 3, 5, 7, 9):
                stamp(a, 2 + i // 2, 1)
            a(interleave(mm(i, 1), g1reads(i + 1, 0) if i < 9 else []))
        if cg == 0:
            a("s_branch L_g1epi")
    a.label("L_g1epi")
    stamp(a, 2)
    lab = a.uniq("L_noload")
    a(f"s_cmp_ge_u32 s{sWAVE}, 4")
    a(f"s_cbranch_scc1 {lab}")
    a(dma_stage(14))
    a("s_barrier")
    a(dma_stage(15))
    a.label(lab)
    stamp(a, 7, 1)
    a("s_nop 7")
    t = 64
    for ct in range(4):
        for tp in range(2):
            for h in range(2):
                s_ = ACC(ct, 2 * tp + h)
                a(f"v_cvt_pk_bf16_f32 v{t+2*h}, v{s_}, v{s_+1}")
                a(f"v_cvt_pk_bf16_f32 v{t+2*h+1}, v{s_+2}, v{s_+3}")
            a(f"buffer_store_dwordx4 {vr(t,4)}, v{EA[ct]}, {srd(SWS)}, s{sEQ if tp == 0 else sEK} offen {HST}")
            t += 4
    a.label("L_g1tail")
    stamp(a, 8, 1)

    S = [32, 48, 64, 80]
    O = 96
    QL, QH = [112, 118], [116, 122]
    KL, KH = [124, 130], [128, 134]
    VF = [136, 144]
    MD, MF = 152, 168
    VK, VV = 4, 6
    VIDX, VDMA, VQ = 7, 8, 9
    A_OFF, QA_OFF = 1 * K, 41 * K
    CH = [80 * K, 120 * K, 40 * K, 0]

    a(f"s_cmp_ge_u32 s{sWAVE}, 4")
    a("s_cbranch_scc1 L_attn_setup")
    a("s_barrier")
    poll_issue(2, 0)
    a(dma_stage(16))
    a("s_barrier")
    stamp(a, 9, 1)
    a("s_waitcnt vmcnt(0)")
    stamp(a, 10, 1)
    poll_check(2, 0)
    a(dma_stage(17))
    a("s_barrier")
    publish(0, 0, 1)
    a(dma_stage(18))
    a("s_barrier")
    a(dma_stage(19))
    a("s_barrier")
    a("v_mov_b32 v10, 0\nds_write_b32 v10, v10")
    a("s_waitcnt vmcnt(0) lgkmcnt(0)")
    a("s_barrier")
    a.label("L_xfree")
    stamp(a, 3)
    stamp(a, 11, 1)
    a(f"v_lshlrev_b32 v{VDMA}, 4, v0")
    a("v_mov_b32 v10, 0")
    poll_issue(0, 0)
    poll_check(0, 0)
    lab = only_wave(0)
    a("v_mov_b32 v11, 1\nds_write_b32 v10, v11")
    a.label(lab)
    loop = a.uniq("L_go")
    a(f"s_mov_b32 s{sCNT}, 0x400000")
    a.label(loop)
    a(f"""
    ds_read_b32 v11, v10
    s_waitcnt lgkmcnt(0)
    v_readfirstlane_b32 s{T0}, v11
    s_cmp_eq_u32 s{T0}, 1
    s_cbranch_scc1 {loop}_ok
    s_sleep 2
    s_sub_u32 s{sCNT}, s{sCNT}, 1
    s_cmp_lg_u32 s{sCNT}, 0
    s_cbranch_scc1 {loop}
    {loop}_ok:
    """)
    stamp(a, 4)
    stamp(a, 12, 1)
    a(f"""
    s_mul_i32 s{T1}, s{sQB}, 20480
    s_sub_u32 s{T1}, s{T1}, 20480
    s_max_i32 s{T0}, s{T1}, 0
    s_add_u32 s{T0}, s{T0}, s{sKVB}
    s_add_u32 s{T0}, s{T0}, s{sW1K}
    s_add_u32 s{T1}, s{T1}, s{sKVB}
    s_add_u32 s{T1}, s{T1}, s{sW1K}
    s_mul_i32 s{T3}, s{sHEAD}, 81920
    s_mul_i32 s{T4}, s{sQB}, 10240
    s_add_u32 s{T3}, s{T3}, s{T4}
    s_add_u32 s{T3}, s{T3}, s{sW1K}
    """)
    for j in range(3):
        lab = None
        if j == 2:
            lab = a.uniq("L_q")
            a(f"s_cmp_ge_u32 s{sWAVE}, 2\ns_cbranch_scc1 {lab}")
        a(f"""
        s_add_u32 m0, s{sW1K}, {QA_OFF + j*4096}
        s_add_u32 s{T2}, s{T3}, {QW_OFF + j*4096}
        buffer_load_dwordx4 v{VDMA}, {srd(SWS)}, s{T2} offen {HS} lds
        """)
        if lab:
            a.label(lab)
    for j in range(10):
        a(f"""
        s_add_u32 m0, s{sW1K}, {A_OFF + j*4096}
        s_add_u32 s{T2}, s{T0 if j < 5 else T1}, {j*4096}
        buffer_load_dwordx4 v{VDMA}, {srd(SWS)}, s{T2} offen {HS} lds
        """)
    a.label("L_attn_setup")
    a(f"""
    v_lshlrev_b32 v{VDMA}, 4, v0
    v_lshrrev_b32 v11, 5, v0               ; h
    v_and_b32 v12, 31, v0                  ; i
    v_and_b32 v13, 3, v12
    v_lshrrev_b32 v14, 3, v12
    v_lshl_add_u32 v13, v14, 2, v13        ; kappa & 15
    v_bfe_u32 v14, v12, 2, 1               ; kappa >> 4
    s_mul_i32 s{T0}, s{sWAVE}, 2560
    s_add_u32 s{T0}, s{T0}, {A_OFF}
    v_lshlrev_b32 v15, 4, v13
    v_lshl_add_u32 v16, v14, 3, v15
    v_lshl_add_u32 v16, v11, 8, v16
    v_add_u32 v{VK}, s{T0}, v16
    v_mul_u32_u24 v16, 20, v11
    v_add_u32 v16, v16, v12
    v_lshlrev_b32 v16, 4, v16
    v_add_u32 v16, 1280, v16
    v_add_u32 v{VV}, s{T0}, v16
    v_and_b32 v15, 15, v12
    v_lshlrev_b32 v15, 4, v15
    v_lshrrev_b32 v16, 4, v12
    v_lshl_add_u32 v15, v16, 3, v15        ; (q&15)*16 + (q>>4)*8
    v_lshl_add_u32 v{VQ}, v11, 8, v15
    v_mov_b32 v{VIDX}, 0xdddddddd
    v_and_b32 v17, 0x1b, v12
    v_cmp_eq_u32 vcc, 24, v17
    v_mov_b32 v16, 0x3f803f80
    v_lshlrev_b32 v13, 4, v11
    v_cndmask_b32 v17, 0, v16, vcc
    v_sub_u32 v13, v12, v13                ; t = q - 16h
    v_mov_b32 v14, {NEGBIG}
    """)
    for b in range(2):
        a(f"v_mov_b32 v{KH[b]}, 0x3f803f80")
        a(f"v_mov_b32 v{KH[b]+1}, 0x00003f80")
        for i in range(8):
            a(f"v_mov_b32 v{VF[b]+i}, v17")
    for r in range(16):
        sp = T0 + 2 * (r & 1)
        a(f"v_cmp_le_i32 s[{sp}:{sp+1}], {r}, v13")
        if r & 1:
            a("s_nop 0")
            for rr in (r - 1, r):
                sp2 = T0 + 2 * (rr & 1)
                a(f"v_cndmask_b32 v{MD+rr}, v14, 0, s[{sp2}:{sp2+1}]")
                a(f"v_cndmask_b32 v{MF+rr}, 0, v14, s[{sp2}:{sp2+1}]")

    def scale_q(p):
        for r in [QL[p] + i for i in range(4)] + [QH[p], QH[p] + 1]:
            a(f"""
            v_lshlrev_b32 v15, 16, v{r}
            v_and_b32 v16, 0xffff0000, v{r}
            v_mul_f32 v15, s{sCS}, v15
            v_mul_f32 v16, s{sCS}, v16
            v_cvt_pk_bf16_f32 v{r}, v15, v16
            """)
        reset_m(p)

    def reset_m(p):
        a(f"""
        v_mov_b32 v15, 0x3f800000
        v_cndmask_b32 v{QH[p]}, 0, v{QH[p]}, s[{sLO}:{sLO+1}]
        v_cndmask_b32 v{QH[p]+1}, v15, v{QH[p]+1}, s[{sLO}:{sLO+1}]
        """)

    def set_m(p, M):
        a(f"""
        v_mov_b32 v15, v{M}
        s_nop 1
        v_permlane32_swap_b32 v15, v{M}
        s_nop 1
        v_max_f32 v15, v15, v{M}
        v_sub_f32 v15, 0, v15                  ; -m
        v_and_b32 v16, 0xffff0000, v15         ; hi
        v_sub_f32 v17, v15, v16
        v_and_b32 v18, 0xffff0000, v17         ; mid
        v_sub_f32 v17, v17, v18                ; lo
        v_lshrrev_b32 v16, 16, v16
        v_or_b32 v16, v16, v18
        v_lshrrev_b32 v17, 16, v17
        v_or_b32 v17, 0x3f800000, v17
        v_cndmask_b32 v{QH[p]}, v16, v{QH[p]}, s[{sLO}:{sLO+1}]
        v_cndmask_b32 v{QH[p]+1}, v17, v{QH[p]+1}, s[{sLO}:{sLO+1}]
        """)

    def kreads(buf, off, restore=True):
        return [f"ds_read2st64_b64 {vr(KL[buf],4)}, v{VK} offset0:{off//512} offset1:{off//512+1}",
                f"s_mov_b64 exec, s[{sLO}:{sLO+1}]",
                f"ds_read_b64 {vr(KH[buf],2)}, v{VK} offset:{off+1024}"] + (["s_mov_b64 exec, -1"] if restore else [])

    def vreads(buf, off):
        return [f"s_mov_b64 exec, s[{sVM}:{sVM+1}]",
                f"ds_read_b128 {vr(VF[buf],4)}, v{VV} offset:{off}",
                f"ds_read_b128 {vr(VF[buf]+4,4)}, v{VV} offset:{off+640}",
                "s_mov_b64 exec, -1"]

    def qk(Sd, buf, p, C=None):
        return [mfma32(Sd, KL[buf], QL[p], C), mfma32k8(Sd, KH[buf], QH[p], Sd)]

    def pv(Ss, buf):
        return [f"v_smfmac_f32_32x32x32_bf16 {vr(O,16)}, {vr(VF[buf],4)}, {vr(Ss,8)}, v{VIDX}",
                f"v_smfmac_f32_32x32x32_bf16 {vr(O,16)}, {vr(VF[buf]+4,4)}, {vr(Ss+8,8)}, v{VIDX}"]

    def exps(Ss):
        return [f"v_exp_f32 v{Ss+i}, v{Ss+i}" for i in range(16)]

    def maxtree(M, Ss, first):
        out = []
        if first:
            out.append(f"v_max3_f32 v{M}, v{Ss}, v{Ss+1}, v{Ss+2}")
            rest = list(range(3, 16))
        else:
            rest = list(range(16))
        while len(rest) >= 2:
            out.append(f"v_max3_f32 v{M}, v{M}, v{Ss+rest[0]}, v{Ss+rest[1]}")
            rest = rest[2:]
        if rest:
            out.append(f"v_max_f32 v{M}, v{M}, v{Ss+rest[0]}")
        return out

    def zero_o():
        for i in range(16):
            a(f"v_mov_b32 v{O+i}, 0")

    def epilogue(p):
        a(f"""
        v_rcp_f32 v15, v{O+12}
        s_mul_i32 s{T0}, s{sQT}, 40960
        s_add_u32 s{T0}, s{T0}, {OW_OFF + p*64*40960}
        s_lshl_b32 s{T1}, s{sHEAD}, 10
        s_add_u32 s{T1}, s{T1}, s{T0}
        s_lshr_b32 s{T2}, s{sHEAD}, 2
        s_add_u32 s{T2}, s{T2}, 32
        s_lshl_b32 s{T2}, s{T2}, 10
        s_add_u32 s{T2}, s{T2}, s{T0}
        s_and_b32 s{T3}, s{sHEAD}, 1
        s_lshl_b32 s{T3}, s{T3}, 9
        s_add_u32 s{T2}, s{T2}, s{T3}
        s_and_b32 s{T3}, s{sHEAD}, 2
        s_lshl_b32 s{T3}, s{T3}, 2
        s_add_u32 s{T2}, s{T2}, s{T3}
        """)
        for i in range(12):
            a(f"v_mul_f32 v{O+i}, v{O+i}, v15")
        for i in range(6):
            a(f"v_cvt_pk_bf16_f32 v{20+i}, v{O+2*i}, v{O+2*i+1}")
        a(f"""
        buffer_store_dwordx4 v[20:23], v{VDMA}, {srd(SWS)}, s{T1} offen {HST}
        s_mov_b64 exec, s[{sLO}:{sLO+1}]
        buffer_store_dwordx2 v[24:25], v{VDMA}, {srd(SWS)}, s{T2} offen {HST}
        s_mov_b64 exec, -1
        """)

    def tile_step(t, n, p, koff, voff, cmask, extra_k=None, hooks=None):
        a("s_waitcnt lgkmcnt(0)")
        rd = []
        if t + 2 < n:
            rd += kreads(t & 1, koff(t + 2), restore=(t >= n))
        if t < n:
            rd += vreads(t & 1, voff(t))
        if extra_k and t + 2 < n:
            rd += extra_k(t & 1, t + 2)
        q = qk(S[(t + 1) & 3], (t + 1) & 1, p, cmask(t + 1)) if t + 1 < n else []
        pp = pv(S[(t - 1) & 3], (t - 1) & 1) if t >= 1 else []
        e = exps(S[t & 3]) if t < n else []
        if t == 0:
            a("s_nop 10")
        ms = q + pp
        if not e:
            a(["s_nop 1"] + ms)
            return
        hooks = hooks or []
        for i in range(4):
            if i < len(ms):
                a(ms[i])
            a(e[4 * i:4 * i + 2])
            if i == 0:
                a(rd)
            elif hooks:
                nh = (len(hooks) + 2) // 3
                for hk in hooks[(i - 1) * nh:i * nh]:
                    a(hk)
            a(e[4 * i + 2:4 * i + 4])

    lab = a.uniq("L_e1")
    a(f"s_cmp_ge_u32 s{sWAVE}, 4\ns_cbranch_scc1 {lab}\ns_waitcnt vmcnt(0)")
    a.label(lab)
    a("s_barrier")
    stamp(a, 5)
    stamp(a, 13, 1)
    a(f"""
    s_mul_i32 s{T0}, s{sWAVE}, 1280
    s_add_u32 s{T0}, s{T0}, {QA_OFF}
    v_add_u32 v15, s{T0}, v{VQ}
    ds_read2st64_b64 {vr(QL[0],4)}, v15 offset0:0 offset1:1
    ds_read_b64 {vr(QH[0],2)}, v15 offset:1024
    """)
    a(kreads(0, 0))
    a("s_waitcnt lgkmcnt(2)")
    scale_q(0)

    def pen(buf, u):
        return [f"s_cmp_ge_u32 s{sQT}, {8 - u}",
                f"s_cselect_b32 s{T0}, s{sONE}, {(NEGBIG & 0xffff0000) | 0x3f80}",
                f"s_not_b64 exec, s[{sLO}:{sLO+1}]",
                f"v_mov_b32 v{KH[buf]+1}, s{T0}",
                "s_mov_b64 exec, -1"]

    def cmaskA(u):
        return MD if u == 8 else (MF if u == 0 else None)
    a(pen(0, 0))
    for u in range(9):
        if u + 1 < 9:
            a(kreads((u + 1) & 1, (u + 1) * 2560))
            a("s_waitcnt lgkmcnt(2)")
        else:
            a("s_waitcnt lgkmcnt(0)")
        a("s_nop 0")
        a(qk(S[u & 3], u & 1, 0, cmaskA(u)))
        if u + 1 < 9:
            a(pen((u + 1) & 1, u + 1))
        if u >= 2:
            a(maxtree(19, S[(u - 2) & 3], u == 2))
    a(kreads(0, 0))
    a(kreads(1, 2560))
    zero_o()
    for u in (7, 8):
        a(maxtree(19, S[u & 3], False))
    set_m(0, 19)
    a(pen(0, 0) + pen(1, 1))
    a("s_waitcnt vmcnt(0)")
    a("s_barrier")
    publish(0, 1, 4)
    stamp(a, 6)
    stamp(a, 14, 1)
    a("s_waitcnt lgkmcnt(2)")
    a(qk(S[0], 0, 0, cmaskA(0)))

    def dmaB(j):
        c, r = j // 5, j % 5
        return [f"s_add_u32 m0, s{sW1K}, {CH[c] + r*8192}",
                f"s_add_u32 s{T2}, s{T1}, {j*8192}",
                f"buffer_load_dwordx4 v{VDMA}, {srd(SWS)}, s{T2} offen {HS} lds"]

    def kvb_base():
        return [f"s_add_u32 s{T1}, s{sKVB}, {32*163840}", f"s_add_u32 s{T1}, s{T1}, s{sW1K}"]

    PI, PC = OPT.get("pi", 4), OPT.get("pc", 6)
    for t in range(10):
        hooks = []
        if t == PI:
            poll_issue(0, 1)
        if t == PC:
            poll_check(0, 1)
            a("s_barrier")
            stamp(a, 7)
            a(f"""
            s_mul_i32 s{T0}, s{sHEAD}, 81920
            s_mul_i32 s{T2}, s{sQT}, 1280
            s_add_u32 s{T0}, s{T0}, s{T2}
            s_add_u32 s{T0}, s{T0}, {QW_OFF + 32*81920}
            buffer_load_dwordx2 {vr(QL[1],2)}, v{VQ}, {srd(SWS)}, s{T0} offen {HS}
            buffer_load_dwordx2 {vr(QL[1]+2,2)}, v{VQ}, {srd(SWS)}, s{T0} offen offset:512 {HS}
            s_mov_b64 exec, s[{sLO}:{sLO+1}]
            buffer_load_dwordx2 {vr(QH[1],2)}, v{VQ}, {srd(SWS)}, s{T0} offen offset:1024 {HS}
            s_mov_b64 exec, -1
            """)
            hooks = [kvb_base()] + [dmaB(j) for j in range(5)]
        if t == PC + 1:
            hooks = [kvb_base()] + [dmaB(j) for j in range(5, 10)]
        tile_step(t, 9, 0, lambda u: u * 2560, lambda u: u * 2560, cmaskA, extra_k=pen, hooks=hooks)
    a("s_nop 15")
    epilogue(0)
    stamp(a, 8)

    a(f"""
    s_mul_i32 s{T0}, s{sWAVE}, 2560
    s_sub_u32 s{T0}, {CH[0] - A_OFF}, s{T0}
    v_add_u32 v{VK}, s{T0}, v{VK}
    v_add_u32 v{VV}, s{T0}, v{VV}
    s_not_b64 exec, s[{sLO}:{sLO+1}]
    v_mov_b32 v{KH[0]+1}, 0x3f80
    v_mov_b32 v{KH[1]+1}, 0x3f80
    s_mov_b64 exec, -1
    s_waitcnt vmcnt(12)
    """)
    scale_q(1)
    zero_o()
    a("s_waitcnt vmcnt(10)")
    a("s_barrier")
    stamp(a, 9)
    a(kreads(0, 0))
    a(kreads(1, 2560))
    a("s_waitcnt lgkmcnt(2)")
    a(qk(S[0], 0, 1))
    a("s_nop 15")
    a(maxtree(19, S[0], True))
    set_m(1, 19)
    a("s_nop 1")
    a(qk(S[0], 0, 1))

    OF = lambda i: 152 + 4 * i
    VOF, VW3, VOUT, VRED = 197, 198, 200, 201
    WOA, WOB = [60 * K, 110 * K], [0, 60 * K]
    SCR = [110 * K, 130 * K]

    def g3_setup():
        return [["v_lshrrev_b32 v10, 4, v0",
                 "v_lshlrev_b32 v11, 9, v10",
                 "v_and_b32 v12, 15, v0",
                 f"v_lshl_add_u32 v{VOF}, v12, 4, v11"],
                ["v_mul_u32_u24 v12, 2560, v12",
                 "v_mul_u32_u24 v10, 40, v10",
                 f"v_add_u32 v{VOUT}, v12, v10"],
                [f"s_lshr_b32 s{T0}, s{sWAVE}, 2",
                 f"s_mul_i32 s{T0}, s{T0}, {50*K}",
                 f"s_add_u32 s{T0}, s{T0}, {WOA[0]}",
                 f"v_add_u32 v{VW3}, s{T0}, v{VDMA}",
                 f"s_mul_i32 s{T0}, s{sCW}, 5120",
                 f"v_add_u32 v{VRED}, s{T0}, v{VDMA}"]]

    def wo_dma_half(p, half, ldsbase):
        out = [[f"s_mul_i32 s{T0}, s{sQB}, 102400",
                f"s_add_u32 s{T0}, s{T0}, s{sW1K}"]]
        for k in range(7):
            o = [f"s_add_u32 m0, s{sW1K}, {ldsbase + k*8192}",
                 f"s_add_u32 s{T1}, s{T0}, {WP_OFF + p*819200 + half*51200 + k*8192}",
                 f"buffer_load_dwordx4 v{VDMA}, {srd(SWS)}, s{T1} offen {HS} lds"]
            if k == 6:
                lab = a.uniq("L_wo")
                o = [f"s_cmp_ge_u32 s{sWAVE}, 2", f"s_cbranch_scc1 {lab}"] + o + [f"{lab}:"]
            out.append(o)
        return out

    def o_loads(p):
        out = [f"s_lshl_b32 s{T0}, s{sHEAD}, 1",
               f"s_lshr_b32 s{T1}, s{sCW}, 1",
               f"s_add_u32 s{T0}, s{T0}, s{T1}",
               f"s_mul_i32 s{T0}, s{T0}, 40960",
               f"s_and_b32 s{T1}, s{sCW}, 1",
               f"s_lshl_b32 s{T1}, s{T1}, 8",
               f"s_add_u32 s{T0}, s{T0}, s{T1}",
               f"s_add_u32 s{T0}, s{T0}, {OW_OFF + p*64*40960}",
               f"s_lshr_b32 s{T1}, s{sWAVE}, 2",
               f"s_lshl_b32 s{T2}, s{T1}, 12",
               f"s_add_u32 s{T2}, s{T2}, s{T0}",
               f"s_add_u32 s{T2}, s{T2}, {16*2048}",
               f"s_lshl_b32 s{T1}, s{T1}, 14",
               f"s_add_u32 s{T0}, s{T0}, s{T1}"]
        for i in range(8):
            out.append(f"buffer_load_dwordx4 {vr(OF(i),4)}, v{VOF}, {srd(SWS)}, s{T0} offen offset:{(i&1)*2048} {HS}")
            if i & 1:
                out.append(f"s_add_u32 s{T0}, s{T0}, 4096")
        for i in range(2):
            out.append(f"buffer_load_dwordx4 {vr(OF(8+i),4)}, v{VOF}, {srd(SWS)}, s{T2} offen offset:{i*2048} {HS}")
        return out

    NT = 64
    for t in range(NT + 1):
        hooks = []
        if t == 4:
            a("s_waitcnt vmcnt(7)\ns_barrier")
            hooks = [kvb_base()] + [dmaB(j) for j in range(10, 15)]
        if t == 5:
            hooks = [kvb_base()] + [dmaB(j) for j in range(15, 20)]
        if t == 14:
            a("s_waitcnt vmcnt(0)\ns_barrier")
            publish(1, 0, 1)
        if t == 20:
            hooks = g3_setup()
        if t == 22:
            hooks = [[f"s_mul_i32 s{T0}, s{sJ}, 25600", f"s_mul_i32 s{T1}, s{sWAVE}, 3200", f"s_add_u32 s{T0}, s{T0}, s{T1}", f"s_add_u32 s{T0}, s{T0}, {WP_OFF + 819200}"] +
                     [f"buffer_load_dwordx4 {vr(OF(i),4)}, v{VDMA}, {srd(SWS)}, s{T0} offen offset:{off} {HS}" for i, off in enumerate((0, 1024, 2048, 2176))]]
        if t == 44:
            poll_issue(1, 0)
        if t == 48:
            stamp(a, 10)
            stamp(a, 1, 2)
            poll_check(1, 0)
            a("s_waitcnt lgkmcnt(0)\ns_barrier")
            stamp(a, 2, 2)
            hooks = wo_dma_half(0, 0, WOA[0])
        if t == 49:
            hooks = wo_dma_half(0, 1, WOA[1])
        if t == 50:
            hooks = [o_loads(0)]
        if t == 52:
            stamp(a, 3, 2)
        if t == 60:
            stamp(a, 4, 2)
            a("s_waitcnt vmcnt(0)\ns_barrier")
            stamp(a, 5, 2)
        if OPT.get("prio", 1):
            pr = {0: 3, 4: 3, 6: 2, 9: 1, 12: 0, 14: 3, 23: 2, 32: 1, 40: 0, 48: 3, 51: 2, 54: 1, 57: 0, 60: 3, 61: 2, 62: 1, 63: 0, 58: 0}
            if t in pr:
                a(f"s_setprio {pr[t]}")
        if (t + 2) % 16 == 0 and t + 2 < NT:
            c = (t + 2) // 16
            d = (CH[c] - CH[c - 1]) & 0xffffffff
            a(f"v_add_u32 v{VK}, {d}, v{VK}")
        if t % 16 == 0 and 0 < t < NT:
            c = t // 16
            d = (CH[c] - CH[c - 1]) & 0xffffffff
            a(f"v_add_u32 v{VV}, {d}, v{VV}")
        tile_step(t, NT, 1, lambda u: (u & 15) * 2560, lambda u: (u & 15) * 2560, lambda u: None, hooks=hooks)
    a("s_nop 15")
    a(f"v_mul_f32 v15, 0, v{O}")
    for i in range(1, 13):
        a(f"v_fmac_f32 v15, 0, v{O+i}")
    a("v_cmp_u_f32 vcc, v15, v15")
    a("s_nop 4")
    a("s_cbranch_vccnz L_slowB")
    a.label("L_epiB")
    stamp(a, 6, 2)
    epilogue(1)
    stamp(a, 11)
    stamp(a, 7, 2)

    GACC = lambda ct: 32 + 4 * ct
    GW = lambda buf, ct: 56 + buf * 20 + 4 * ct

    def g3reads(i):
        return [f"ds_read_b128 {vr(GW(i&1,ct),4)}, v{VW3} offset:{(i*5+ct)*1024}" for ct in range(5)]

    def g3_compute(waits=None):
        a(g3reads(0))
        for i in range(10):
            a("s_waitcnt lgkmcnt(0)" + (f" vmcnt({9-i})" if waits else ""))
            rs = g3reads(i + 1) if i < 9 else []
            for ct in range(5):
                a(mfma16(GACC(ct), GW(i & 1, ct), OF(i), None if i == 0 else GACC(ct)))
                a(rs[ct:ct + 1])

    def g3_finish(p):
        l1, l2 = a.uniq("L_r"), a.uniq("L_r")
        a(f"s_cmp_lt_u32 s{sWAVE}, 4\ns_cbranch_scc1 {l1}")
        a(f"v_add_u32 v10, {SCR[p]}, v{VRED}")
        for ct in range(5):
            a(f"ds_write_b128 v10, {vr(GACC(ct),4)} offset:{ct*1024}")
        a("s_waitcnt lgkmcnt(0)")
        a.label(l1)
        a("s_barrier")
        a(f"s_cmp_ge_u32 s{sWAVE}, 4\ns_cbranch_scc1 {l2}")
        a(f"v_add_u32 v10, {SCR[p]}, v{VRED}")
        for ct in range(5):
            a(f"ds_read_b128 {vr(96+4*ct,4)}, v10 offset:{ct*1024}")
        a(f"""
        s_lshl_b32 s{T0}, s{sHEAD}, 2
        s_add_u32 s{T0}, s{T0}, s{sCW}
        s_mul_i32 s{T0}, s{T0}, {16*2560}
        s_mul_i32 s{T1}, s{sQB}, 160
        s_add_u32 s{T0}, s{T0}, s{T1}
        s_add_u32 s{T0}, s{T0}, {p*1280}
        s_waitcnt lgkmcnt(0)
        """)
        for i in range(20):
            a(f"v_add_f32 v{96+i}, v{96+i}, v{32+i}")
        for i in range(10):
            a(f"v_cvt_pk_bf16_f32 v{116+i}, v{96+2*i}, v{96+2*i+1}")
        a(f"""
        buffer_store_dwordx4 v[116:119], v{VOUT}, {srd(SOUT)}, s{T0} offen
        buffer_store_dwordx4 v[120:123], v{VOUT}, {srd(SOUT)}, s{T0} offen offset:16
        buffer_store_dwordx2 v[124:125], v{VOUT}, {srd(SOUT)}, s{T0} offen offset:32
        """)
        a.label(l2)

    g3_compute()
    stamp(a, 8, 2)
    a("s_waitcnt vmcnt(0)")
    a("s_barrier")
    stamp(a, 9, 2)
    publish(1, 1, 7)
    a(wo_dma_half(1, 0, WOB[0]))
    a(wo_dma_half(1, 1, WOB[1]))
    stamp(a, 10, 2)
    a("s_nop 4")
    g3_finish(0)
    stamp(a, 12)
    stamp(a, 11, 2)
    a(f"""
    s_cmp_lt_u32 s{sWAVE}, 4
    s_mov_b32 s{T0}, {(WOB[1] - WOA[1]) & 0xffffffff}
    s_cselect_b32 s{T0}, {(WOB[0] - WOA[0]) & 0xffffffff}, s{T0}
    v_add_u32 v{VW3}, s{T0}, v{VW3}
    """)
    poll_issue(1, 1)
    poll_check(1, 1, sleep=4)
    a("s_waitcnt vmcnt(0)")
    a("s_barrier")
    stamp(a, 13)
    stamp(a, 12, 2)
    a(o_loads(1))
    g3_compute(waits=True)
    stamp(a, 13, 2)
    a("s_nop 7")
    g3_finish(1)
    if STAMPS:
        a("s_waitcnt vmcnt(0)")
        stamp(a, 14)
        stamp(a, 14, 2)
        a("s_waitcnt lgkmcnt(0)")
        a(f"""
        s_lshl_b32 s{T0}, s2, 4
        s_add_u32 s{T0}, s{T0}, s{sWAVE}
        s_lshl_b32 s{T0}, s{T0}, 7
        s_add_u32 s{T0}, s{T0}, {STAMP_OFF}
        s_mov_b64 exec, 1
        """)
        for i in range(15):
            a(f"v_mov_b32 v1, s{SB+2*i}")
            a(f"buffer_store_dword v1, off, {srd(SWS)}, s{T0} offset:{4*i}")
    a.label("L_done")
    a("s_endpgm")

    a.label("L_idle")
    G3D = [32, 33, 34, 35, 36]
    for i in range(5):
        a([f"v_add_u32 v10, {64*i}, v0",
           "v_mul_u32_u24 v11, 6554, v10",
           "v_lshrrev_b32 v11, 16, v11",
           "v_mul_u32_u24 v12, 10, v11",
           "v_sub_u32 v12, v10, v12",
           "v_mul_u32_u24 v11, 1280, v11",
           f"v_lshl_add_u32 v{G3D[i]}, v12, 4, v11"])
    a(f"""
    s_cmp_ge_u32 s{sTB}, 8
    s_cselect_b32 s{SX[0]}, s{SWO[1]}, s{SWO[0]}
    s_cselect_b32 s{SX[0]+1}, s{SWO[1]+1}, s{SWO[0]+1}
    s_mov_b32 s{SX[0]+2}, {WO_BYTES}
    s_and_b32 s{T0}, s{sTB}, 7
    s_mul_i32 s{T0}, s{T0}, 160
    s_mul_i32 s{T1}, s{sWAVE}, {32*1280}
    s_add_u32 s{T0}, s{T0}, s{T1}
    s_mul_i32 s{T1}, s{sWAVE}, 5120
    """)
    for rnd in range(3):
        lab = a.uniq("L_id")
        if rnd == 2:
            a(f"s_cmp_ge_u32 s{sWAVE}, 4\ns_cbranch_scc1 {lab}")
        a(f"s_add_u32 s{T2}, s{T0}, {rnd*256*1280}")
        for i in range(5):
            a(f"s_add_u32 m0, s{T1}, {K + rnd*8*5120 + i*1024}\ns_nop 0")
            a(f"buffer_load_dwordx4 v{G3D[i]}, {srd(SX[0])}, s{T2} offen lds")
        a.label(lab)
    a(f"""
    v_lshrrev_b32 v10, 5, v0
    v_bfe_u32 v11, v0, 4, 1
    v_bfe_u32 v12, v0, 2, 2
    v_and_b32 v13, 3, v0
    v_mul_u32_u24 v13, 40, v13
    v_add_u32 v13, {K}, v13
    v_mul_u32_u24 v14, 20, v10
    v_lshl_add_u32 v14, v11, 2, v14
    v_add_u32 v14, v14, v12
    v_mul_u32_u24 v14, 160, v14
    v_add_u32 v37, v14, v13
    v_mul_u32_u24 v14, 80, v10
    v_mul_u32_u24 v11, 20, v11
    v_add3_u32 v14, v14, v11, v12
    v_add_u32 v14, 16, v14
    v_mul_u32_u24 v14, 160, v14
    v_add_u32 v38, v14, v13
    s_mul_i32 s{T0}, s{sWAVE}, 6400
    v_add_u32 v37, s{T0}, v37
    s_mul_i32 s{T0}, s{sWAVE}, 25600
    v_add_u32 v38, s{T0}, v38
    v_lshlrev_b32 v39, 4, v0
    v_mov_b32 v10, 0
    ds_write_b32 v10, v10
    s_mul_i32 s{T0}, s{sTB}, 102400
    s_add_u32 s{T0}, s{T0}, {WP_OFF}
    s_mul_i32 s{T1}, s{sWAVE}, 5120
    s_add_u32 s{T1}, s{T1}, s{T0}              ; kh=0, i=w
    s_lshr_b32 s{T2}, s{sWAVE}, 1
    s_mul_i32 s{T2}, s{T2}, 51200
    s_and_b32 s{T3}, s{sWAVE}, 1
    s_mul_i32 s{T3}, s{T3}, 5120
    s_add_u32 s{T2}, s{T2}, s{T3}
    s_add_u32 s{T2}, s{T2}, s{T0}
    s_add_u32 s{T2}, s{T2}, {8*5120}
    s_waitcnt vmcnt(0) lgkmcnt(0)
    s_barrier
    """)
    count_in()
    for rnd in range(3):
        lab = a.uniq("L_id")
        if rnd == 2:
            a(f"s_cmp_ge_u32 s{sWAVE}, 4\ns_cbranch_scc1 {lab}")
        base = 64 + rnd * 20
        for ct in range(5):
            for rd in range(2):
                if rnd < 2:
                    a(f"ds_read_b64_tr_b16 {vr(base+4*ct+2*rd,2)}, v37 offset:{rnd*51200 + rd*1280 + ct*8}")
                else:
                    a(f"ds_read_b64_tr_b16 {vr(base+4*ct+2*rd,2)}, v38 offset:{rd*6400 + ct*8}")
        a("s_waitcnt lgkmcnt(0)")
        if rnd == 1:
            a(f"s_add_u32 s{T1}, s{T1}, 51200")
        sreg = T1 if rnd < 2 else T2
        for ct in range(5):
            if ct == 4:
                a(f"s_add_u32 s{T3}, s{sreg}, 4096")
                a(f"buffer_store_dwordx4 {vr(base+4*ct,4)}, v39, {srd(SWS)}, s{T3} offen {HST}")
            else:
                a(f"buffer_store_dwordx4 {vr(base+4*ct,4)}, v39, {srd(SWS)}, s{sreg} offen offset:{ct*1024} {HST}")
        a.label(lab)
    a("s_waitcnt vmcnt(0)\ns_barrier")
    publish(0, 0, 1)
    publish(0, 1, 2)
    poll_issue(2, 0)
    poll_check(2, 0, sleep=32)
    a(f"s_cmp_ge_u32 s{sWAVE}, 4")
    a("s_cbranch_scc1 L_attn_setup")
    a("s_branch L_xfree")

    a.label("L_slowB")
    reset_m(1)
    a(f"""
    v_mov_b32 v19, 0xff800000
    v_subrev_u32 v10, {CH[3]}, v{VK}
    v_subrev_u32 v12, {CH[3]}, v{VV}
    s_add_u32 s{T0}, s{sKVB}, {32*163840}
    s_add_u32 s{T1}, s{T0}, 163840
    """)

    def gk():
        return f"""
        buffer_load_dwordx2 {vr(KL[0],2)}, v10, {srd(SWS)}, s{T0} offen {HS}
        buffer_load_dwordx2 {vr(KL[0]+2,2)}, v10, {srd(SWS)}, s{T0} offen offset:512 {HS}
        s_mov_b64 exec, s[{sLO}:{sLO+1}]
        buffer_load_dwordx2 {vr(KH[0],2)}, v10, {srd(SWS)}, s{T0} offen offset:1024 {HS}
        """
    a.label("L_slow1")
    a(gk())
    a("s_mov_b64 exec, -1\ns_waitcnt vmcnt(0)")
    a(qk(S[0], 0, 1))
    a("s_nop 15")
    a(maxtree(19, S[0], False))
    a(f"""
    s_add_u32 s{T0}, s{T0}, 2560
    s_cmp_lt_u32 s{T0}, s{T1}
    s_cbranch_scc1 L_slow1
    """)
    set_m(1, 19)
    zero_o()
    a(f"s_sub_u32 s{T0}, s{T1}, 163840")
    a.label("L_slow2")
    a(gk())
    a(f"""
    s_mov_b64 exec, s[{sVM}:{sVM+1}]
    buffer_load_dwordx4 {vr(VF[0],4)}, v12, {srd(SWS)}, s{T0} offen {HS}
    buffer_load_dwordx4 {vr(VF[0]+4,4)}, v12, {srd(SWS)}, s{T0} offen offset:640 {HS}
    s_mov_b64 exec, -1
    s_waitcnt vmcnt(0)
    """)
    a(qk(S[0], 0, 1))
    a("s_nop 15")
    a(exps(S[0]))
    a("s_nop 1")
    a(pv(S[0], 0))
    a(f"""
    s_add_u32 s{T0}, s{T0}, 2560
    s_cmp_lt_u32 s{T0}, s{T1}
    s_cbranch_scc1 L_slow2
    s_nop 15
    s_branch L_epiB
    """)


def main(out):
    global HST, HS
    HST = ["sc1", "", "sc0 sc1", "nt", "sc1 nt"][OPT.get("st", 0)]
    HS = ["sc1", ""][OPT.get("ld", 0)]
    a = Asm()
    hdr = open(f"cdna_kernels/{NAME}.s.ref").read().split("\n")
    keep = [l for l in hdr if l.startswith(";") and "@launch" not in l]
    for l in keep:
        a.raw(l)
    a.raw(f"; @launch grid=(256,1,1) block=(512,1,1) lds={LDS_BYTES}")
    a.raw('.amdgcn_target "amdgcn-amd-amdhsa--gfx950"')
    a.raw(".text")
    gen(a)
    a.raw('.section .rodata,"a"')
    a.raw(".p2align 6")
    a.raw(f""".amdhsa_kernel {KNAME}
  .amdhsa_next_free_vgpr 208
  .amdhsa_next_free_sgpr {102 if STAMPS else 72}
  .amdhsa_accum_offset 208
  .amdhsa_group_segment_fixed_size 0
  .amdhsa_kernarg_size 72
  .amdhsa_user_sgpr_count 2
  .amdhsa_user_sgpr_kernarg_segment_ptr 1
  .amdhsa_system_sgpr_workgroup_id_x 1
.end_amdhsa_kernel""")
    open(out, "w").write(a.text())


if __name__ == "__main__":
    if "--stamps" in sys.argv:
        STAMPS = True
        sys.argv.remove("--stamps")
    for x in list(sys.argv):
        if x.startswith("-D"):
            k, _, v = x[2:].partition("=")
            OPT[k] = int(v) if v else 1
            sys.argv.remove(x)
    main(sys.argv[1] if len(sys.argv) > 1 else f"cdna_kernels/{NAME}.s")
```

```python
import sys, struct

NAME = "concat_heads__sliding_block__softmax_full_mha__prompt"
KNAME = NAME + "_kernel"

QW_OFF = 0x000000
KV_OFF = 0x500000
OW_OFF = 0xF00000
FL_OFF = 0x1400000
WP_OFF = 0x1500000
WS_USED = 0x1700000
X_BYTES = 2048 * 640 * 2
WQKV_BYTES = 640 * 1920 * 2
WO_BYTES = 640 * 640 * 2
OUT_BYTES = 2048 * 1280 * 2
SRD3 = 0x00020000
LDS_BYTES = 163840
K = 1024

STAMPS = False
STAMP_OFF = 0x2000000
SB = 72
OPT = {}


def f32bits(x):
    return struct.unpack("<I", struct.pack("<f", x))[0]


NEGBIG = f32bits(-1e30)
CSCALE = f32bits((20 ** -0.5) * 1.4426950408889634)


class Asm:
    def __init__(self):
        self.l = []
        self.n = 0

    def __call__(self, s):
        if isinstance(s, (list, tuple)):
            for x in s:
                self(x)
            return
        for line in s.strip("\n").split("\n"):
            line = line.strip()
            if line:
                self.l.append(("" if line.endswith(":") else "    ") + line)

    def label(self, s):
        self.l.append(s + ":")

    def raw(self, s):
        self.l.append(s)

    def uniq(self, p):
        self.n += 1
        return f"{p}_{self.n}"

    def text(self):
        return "\n".join(self.l) + "\n"


def vr(a, n):
    return f"v[{a}:{a + n - 1}]"


def mfma32(d, a_, b_, c):
    cs = vr(c, 16) if c is not None else "0"
    return f"v_mfma_f32_32x32x16_bf16 {vr(d,16)}, {vr(a_,4)}, {vr(b_,4)}, {cs}"


def mfma32k8(d, a_, b_, c):
    return f"v_mfma_f32_32x32x8_bf16 {vr(d,16)}, {vr(a_,2)}, {vr(b_,2)}, {vr(c,16)}"


def mfma16(d, a_, b_, c):
    cs = vr(c, 4) if c is not None else "0"
    return f"v_mfma_f32_16x16x32_bf16 {vr(d,4)}, {vr(a_,4)}, {vr(b_,4)}, {cs}"


def stamp(a, i, mode=0):
    if STAMPS and (i == 0 or OPT.get("sm", 0) == mode):
        a(f"s_memrealtime s[{SB+2*i}:{SB+2*i+1}]")


SX = [4, 12]
SW = [8, 16]
SWS, SDBG = 20, 24
SWO = [28, 32]
SOUT = 36
sWAVE, sCW, sTB, sM, sKS, sXB, sWB, sLP = 40, 41, 42, 43, 44, 45, 46, 47
T0, T1, T2, T3, T4, T5 = 48, 49, 50, 51, 52, 53
sEQ, sEK = 54, 55
sHEAD, sQB, sQT, sW1K = 56, 57, 58, 59
sVM, sLO = 60, 62
sCS, sONE, sKVB, sXCD, sJ, sROT = 64, 65, 66, 67, 68, 69
sCNT = 70
sKVS = 71


def srd(n):
    return f"s[{n}:{n+3}]"


HS = "sc1"
HST = "sc1"


def gen(a):
    a.raw(f".globl {KNAME}\n.p2align 8\n.type {KNAME},@function")
    a.label(KNAME)
    a(f"""
    s_cmp_ge_u32 s2, 256
    s_cbranch_scc1 L_done
    """)
    stamp(a, 0)
    a(f"""
    s_load_dwordx2 s[{SX[1]}:{SX[1]+1}], s[0:1], 24
    s_load_dwordx2 s[{SW[1]}:{SW[1]+1}], s[0:1], 32
    s_load_dwordx2 s[{SX[0]}:{SX[0]+1}], s[0:1], 0
    s_load_dwordx2 s[{SW[0]}:{SW[0]+1}], s[0:1], 8
    s_load_dwordx2 s[{SWO[0]}:{SWO[0]+1}], s[0:1], 16
    s_load_dwordx2 s[{SWO[1]}:{SWO[1]+1}], s[0:1], 40
    s_load_dwordx2 s[{SOUT}:{SOUT+1}], s[0:1], 48
    s_load_dwordx2 s[{SDBG}:{SDBG+1}], s[0:1], 56
    s_load_dwordx2 s[{SWS}:{SWS+1}], s[0:1], 64
    v_lshrrev_b32 v1, 6, v0
    v_and_b32 v0, 63, v0
    s_and_b32 s{sXCD}, s2, 7
    v_readfirstlane_b32 s{sWAVE}, v1
    s_lshr_b32 s{sJ}, s2, 3
    s_and_b32 s{T0}, s{sXCD}, 1
    s_lshl_b32 s{T0}, s{T0}, 3
    s_and_b32 s{T1}, s{sJ}, 7
    s_add_u32 s{sTB}, s{T0}, s{T1}
    s_lshr_b32 s{T0}, s{sXCD}, 1
    s_lshl_b32 s{T0}, s{T0}, 2
    s_lshr_b32 s{T2}, s{sJ}, 3
    s_add_u32 s{sM}, s{T0}, s{T2}
    """)
    rm = OPT.get("rot", 1)
    if rm == 0:
        a(f"s_mov_b32 s{sROT}, 0")
    elif rm == 1:
        a(f"""
        s_mul_i32 s{T2}, s{T2}, 3
        s_add_u32 s{sROT}, s{T1}, s{T2}
        s_cmp_ge_u32 s{sROT}, 10
        s_cselect_b32 s{T0}, 10, 0
        s_sub_u32 s{sROT}, s{sROT}, s{T0}
        """)
    else:
        a(f"""
        s_add_u32 s{sROT}, s{T1}, s{T2}
        s_and_b32 s{sROT}, s{sROT}, 1
        s_mul_i32 s{sROT}, s{sROT}, 5
        """)
    a(f"""
    s_and_b32 s{sCW}, s{sWAVE}, 3
    """)
    for n, size in ((SX[0], X_BYTES), (SW[0], WQKV_BYTES), (SX[1], X_BYTES), (SW[1], WQKV_BYTES), (SWO[0], WO_BYTES),
                    (SWO[1], WO_BYTES), (SOUT, OUT_BYTES), (SDBG, 256), (SWS, 0x4000000 if STAMPS else WS_USED)):
        a(f"s_mov_b32 s{n+2}, {size}\ns_mov_b32 s{n+3}, {SRD3}")
    a(f"""
    v_lshrrev_b32 v6, 3, v0
    v_mul_u32_u24 v2, 1280, v6
    v_lshrrev_b32 v7, 4, v0
    v_and_b32 v8, 7, v0
    v_xor_b32 v8, v8, v7
    v_lshl_add_u32 v2, v8, 4, v2
    v_xor_b32 v3, 64, v2
    v_mul_u32_u24 v9, 3840, v7
    v_and_b32 v8, 15, v0
    v_lshlrev_b32 v10, 1, v7
    v_xor_b32 v8, v8, v10
    """)
    a("""
    v_lshl_add_u32 v4, v8, 4, v9
    v_xor_b32 v5, 128, v4
    """)
    a(f"""
    s_lshl_b32 s{T0}, s{sTB}, 7
    s_lshl_b32 s{T1}, s{sCW}, 5
    s_add_u32 s{T0}, s{T0}, s{T1}
    s_mul_i32 s{sXB}, s{T0}, 1280
    s_mul_i32 s{sWB}, s{sCW}, {16*3840}
    s_lshl_b32 s{T0}, s{sM}, 8
    s_add_u32 s{sWB}, s{sWB}, s{T0}
    s_lshl_b32 s{sLP}, s{sCW}, 12
    s_lshr_b32 s{T3}, s{sWAVE}, 2              ; group
    s_add_u32 s{sKS}, s{sROT}, s{T3}
    s_cmp_eq_u32 s{sKS}, 10
    s_cselect_b32 s{sKS}, 0, s{sKS}
    s_lshl_b32 s{T3}, s{T3}, 15
    s_add_u32 s{T3}, s{T3}, s{sLP}
    """)

    def dma_stage(n, sLP=sLP):
        p = 1 - n // 10
        slot = (n % 5) * 32 * K
        out = [f"s_lshl_b32 s{T0}, s{sKS}, 7",
               f"s_add_u32 s{T0}, s{T0}, s{sXB}",
               f"s_mul_i32 s{T1}, s{sKS}, {64*3840}",
               f"s_add_u32 s{T1}, s{T1}, s{sWB}"]
        for i in range(4):
            out += [f"s_add_u32 m0, s{sLP}, {slot + i*1024}",
                    f"s_add_u32 s{T2}, s{T0}, {i*8*1280}",
                    f"buffer_load_dwordx4 v{2 + (i & 1)}, {srd(SX[p])}, s{T2} offen lds",
                    f"s_add_u32 m0, s{sLP}, {slot + 16*K + i*1024}",
                    f"s_add_u32 s{T2}, s{T1}, {i*4*3840}",
                    f"buffer_load_dwordx4 v{4 + (i >> 1)}, {srd(SW[p])}, s{T2} offen lds"]
        out += [f"s_add_u32 s{sKS}, s{sKS}, 1",
                f"s_cmp_eq_u32 s{sKS}, 10",
                f"s_cselect_b32 s{sKS}, 0, s{sKS}"]
        return out

    a("s_waitcnt lgkmcnt(0)")
    a(f"s_cmp_eq_u32 s{sM}, 15")
    a("s_cbranch_scc1 L_setup1")
    a(dma_stage(0, T3))
    a(f"s_cmp_lt_u32 s{sWAVE}, 4")
    a("s_cbranch_scc1 L_setup1")
    for n in (2, 3):
        a(dma_stage(n))
    a.label("L_setup1")
    a("""
    v_lshlrev_b32 v207, 7, v0
    v_lshrrev_b32 v195, 1, v0
    v_min_u32 v195, 19, v195
    v_mul_u32_u24 v195, 3840, v195
    v_and_b32 v8, 1, v0
    v_lshl_add_u32 v195, v8, 7, v195
    """)
    a(f"""
    s_lshl_b32 s{T0}, s{sXCD}, 2
    s_and_b32 s{T1}, s{sJ}, 3
    s_add_u32 s{sHEAD}, s{T0}, s{T1}
    s_lshr_b32 s{sQB}, s{sJ}, 2
    s_cmp_ge_u32 s{sWAVE}, 4
    s_cbranch_scc1 L_setup2
    s_lshl_b32 s{T0}, s{sM}, 8
    s_lshl_b32 s{T1}, s{sTB}, 2
    s_add_u32 s{T0}, s{T0}, s{T1}
    s_lshl_b32 s{T1}, s{sWAVE}, 12
    s_add_u32 s{T0}, s{T0}, s{T1}
    s_lshl_b32 s{T1}, s{sQB}, 8
    s_lshl_b32 s{T2}, s{sHEAD}, 2
    s_add_u32 s{T1}, s{T1}, s{T2}
    s_lshl_b32 s{T2}, s{sWAVE}, 11
    s_add_u32 s{T1}, s{T1}, s{T2}
    s_add_u32 s{T1}, s{T1}, 4096
    s_cmp_lt_u32 s{sWAVE}, 2
    s_cselect_b32 s{T0}, s{T0}, s{T1}
    s_add_u32 s{T0}, s{T0}, {FL_OFF}
    v_mov_b32 v1, 0
    s_mov_b64 exec, 1
    buffer_store_dword v1, off, {srd(SWS)}, s{T0} sc1
    s_mov_b64 exec, -1
    """)
    def touch(p):
        return f"""
        s_mul_i32 s{T0}, s{sTB}, 163840
        s_lshr_b32 s{T1}, s{sJ}, 3
        s_mul_i32 s{T1}, s{T1}, 40960
        s_add_u32 s{T0}, s{T0}, s{T1}
        s_mul_i32 s{T1}, s{sCW}, 10240
        s_add_u32 s{T0}, s{T0}, s{T1}
        buffer_load_dword v192, v207, {srd(SX[p])}, s{T0} offen
        s_add_u32 s{T0}, s{T0}, 8192
        s_mov_b64 exec, 0xffff
        buffer_load_dword v193, v207, {srd(SX[p])}, s{T0} offen
        s_mov_b64 exec, -1
        s_and_b32 s{T0}, s{sJ}, 7
        s_lshl_b32 s{T0}, s{T0}, 2
        s_add_u32 s{T0}, s{T0}, s{sCW}
        s_mul_i32 s{T0}, s{T0}, {20*3840}
        s_lshl_b32 s{T1}, s{sM}, 8
        s_add_u32 s{T0}, s{T0}, s{T1}
        buffer_load_dword v194, v195, {srd(SW[p])}, s{T0} offen
        """
    if OPT.get("touchA", 0):
        a(f"s_cmp_eq_u32 s{sM}, 15\ns_cbranch_scc1 L_setup2")
        a(touch(0))
    a.label("L_setup2")

    XA = lambda sg, kk: 14 + sg * 6 + kk
    WA = lambda sg, ct: 14 + sg * 6 + 2 + ct
    a(f"""
    v_and_b32 v6, 15, v0
    v_lshrrev_b32 v8, 1, v6                ; f(row)
    v_xor_b32 v8, v8, v7                   ; o ^ f
    v_lshlrev_b32 v8, 4, v8
    v_lshl_add_u32 v8, v6, 7, v8
    s_lshr_b32 s{T0}, s{sCW}, 1
    s_lshl_b32 s{T0}, s{T0}, 13
    v_add_u32 v{XA(0,0)}, s{T0}, v8
    v_xor_b32 v{XA(0,1)}, 64, v{XA(0,0)}
    v_lshrrev_b32 v8, 2, v0
    v_and_b32 v8, 3, v8                    ; r
    v_lshl_add_u32 v9, v7, 3, v8           ; krow = 8o + r
    v_lshlrev_b32 v9, 8, v9
    v_add_u32 v9, {16*K}, v9
    v_and_b32 v10, 1, v7
    v_lshl_add_u32 v10, v10, 2, v8
    v_lshlrev_b32 v10, 1, v10              ; sigma
    v_bfe_u32 v11, v0, 1, 1                ; c>>1
    s_and_b32 s{T0}, s{sCW}, 1
    s_lshl_b32 s{T0}, s{T0}, 3
    v_or_b32 v11, s{T0}, v11               ; 8cg + (c>>1)
    v_xor_b32 v11, v11, v10
    v_lshl_add_u32 v11, v11, 4, v9
    v_and_b32 v12, 1, v0
    v_lshl_add_u32 v{WA(0,0)}, v12, 3, v11
    v_xor_b32 v{WA(0,1)}, 32, v{WA(0,0)}
    v_xor_b32 v{WA(0,2)}, 64, v{WA(0,0)}
    v_xor_b32 v{WA(0,3)}, 96, v{WA(0,0)}
    """)
    for sg in (1, 2):
        for i in range(6):
            a(f"v_add_u32 v{14+sg*6+i}, {sg*64*K}, v{14+i}")
    EA = [196, 197, 198, 199]
    a(f"""
    s_lshl_b32 s{T0}, s{sTB}, 2
    s_and_b32 s{T1}, s{sCW}, 2
    s_add_u32 s{T0}, s{T0}, s{T1}
    s_lshr_b32 s{T1}, s{sWAVE}, 2
    s_xor_b32 s{T1}, s{T1}, 1
    s_lshl_b32 s{T1}, s{T1}, 11                ; p*32*64
    s_add_u32 s{T0}, s{T0}, s{T1}
    s_cmp_ge_u32 s{sM}, 5
    s_cselect_b32 s{T2}, 1, 0                  ; K or V
    s_lshl_b32 s{T3}, 1280, s{T2}
    s_mul_i32 s{sEQ}, s{T0}, s{T3}
    s_mul_i32 s{T0}, s{T2}, {KV_OFF}
    s_add_u32 s{sEQ}, s{sEQ}, s{T0}
    s_add_u32 s{sEK}, s{sEQ}, s{T3}
    s_lshl_b32 s{T3}, s{T3}, 6
    s_and_b32 s{T1}, s{sCW}, 1
    s_cmp_ge_u32 s{sM}, 10
    s_cbranch_scc1 L_ea1
    s_mul_i32 s{T0}, s{T2}, 5
    s_sub_u32 s{T0}, s{sM}, s{T0}
    s_lshl_b32 s{T0}, s{T0}, 5
    s_lshl_b32 s{T1}, s{T1}, 4
    s_add_u32 s{T0}, s{T0}, s{T1}
    v_add_u32 v8, s{T0}, v7
    v_lshlrev_b32 v10, 4, v6
    """)
    for ct in range(4):
        a(f"""
        v_add_u32 v9, {4*ct}, v8
        v_mul_u32_u24 v11, 205, v9
        v_lshrrev_b32 v11, 10, v11
        v_mul_u32_u24 v12, 5, v11
        v_sub_u32 v12, v9, v12
        v_mul_lo_u32 v11, v11, s{T3}
        v_lshl_add_u32 v12, v12, 8, v10
        v_add_u32 v{EA[ct]}, v11, v12
        """)
    a(f"""
    s_branch L_ea2
    L_ea1:
    s_sub_u32 s{T0}, s{sM}, 10
    s_lshl_b32 s{T0}, s{T0}, 7
    s_lshl_b32 s{T1}, s{T1}, 6
    s_add_u32 s{T0}, s{T0}, s{T1}
    v_add_u32 v8, s{T0}, v6
    v_mul_u32_u24 v10, 320, v7
    v_add_u32 v10, 1280, v10
    """)
    for ct in range(4):
        a(f"""
        v_add_u32 v9, {16*ct}, v8
        v_mul_u32_u24 v11, 3277, v9
        v_lshrrev_b32 v11, 16, v11
        v_mul_u32_u24 v12, 20, v11
        v_sub_u32 v12, v9, v12
        v_mul_lo_u32 v11, v11, s{T3}
        v_lshl_add_u32 v12, v12, 4, v10
        v_add_u32 v{EA[ct]}, v11, v12
        """)
    a.label("L_ea2")
    a(f"""
    s_lshl_b32 s{sQT}, s{sQB}, 3
    s_add_u32 s{sQT}, s{sQT}, s{sWAVE}
    s_lshl_b32 s{sW1K}, s{sWAVE}, 10
    s_mov_b32 s{sVM}, 0x000fffff
    s_mov_b32 s{sVM+1}, 0x000fffff
    s_mov_b32 s{sLO}, -1
    s_mov_b32 s{sLO+1}, 0
    s_mov_b32 s{sCS}, {CSCALE}
    s_mov_b32 s{sONE}, 0x3f80
    s_mul_i32 s{sKVB}, s{sHEAD}, 163840
    s_add_u32 s{sKVB}, s{sKVB}, {KV_OFF}
    """)

    ACC = lambda ct, tt: 128 + (ct * 4 + tt) * 4
    XF = lambda buf, tt: 64 + buf * 32 + tt * 4
    WF = lambda buf, ct: 64 + buf * 32 + 16 + ct * 4

    def g1reads(i, kk):
        slot = i % 5
        sg, so = slot >> 1, (slot & 1) * 32 * K
        r = []
        for q in range(4):
            r.append(f"ds_read_b128 {vr(XF(kk,q),4)}, v{XA(sg,kk)} offset:{so + q*2048}")
            for rd in range(2):
                r.append(f"ds_read_b64_tr_b16 {vr(WF(kk,q)+2*rd,2)}, v{WA(sg,q)} offset:{so + kk*8192 + rd*1024}")
        return r

    VPG0, VPG1, VPO = 202, 203, 204

    def own_flag(kind, p, dst):
        if kind == 0:
            return [f"s_lshl_b32 s{dst}, s{sM}, 8", f"s_lshl_b32 s{T5}, s{sTB}, 2", f"s_add_u32 s{dst}, s{dst}, s{T5}",
                    f"s_add_u32 s{dst}, s{dst}, {FL_OFF + p*4096}"]
        return [f"s_lshl_b32 s{dst}, s{sQB}, 8", f"s_lshl_b32 s{T5}, s{sHEAD}, 2", f"s_add_u32 s{dst}, s{dst}, s{T5}",
                f"s_add_u32 s{dst}, s{dst}, {FL_OFF + 8192 + p*2048}"]

    def only_wave(wave):
        lab = a.uniq("L_w")
        a(f"s_cmp_lg_u32 s{sWAVE}, {wave}")
        a(f"s_cbranch_scc1 {lab}")
        return lab

    def publish(kind, p, wave):
        lab = only_wave(wave)
        a(own_flag(kind, p, T4))
        a(f"""
        v_mov_b32 v1, 1
        s_mov_b64 exec, 1
        buffer_store_dword v1, off, {srd(SWS)}, s{T4} sc1
        s_mov_b64 exec, -1
        """)
        a.label(lab)

    def poll_loads(kind, p):
        if kind == 0:
            return [f"s_mov_b32 s{T3}, {FL_OFF + p*4096}",
                    f"buffer_load_dword v1, v{VPG0}, {srd(SWS)}, s{T3} offen sc1",
                    f"buffer_load_dword v205, v{VPG1}, {srd(SWS)}, s{T3} offen sc1"]
        if kind == 1:
            return [f"s_mov_b32 s{T3}, {FL_OFF + 8192 + p*2048}",
                    f"buffer_load_dword v1, v{VPO}, {srd(SWS)}, s{T3} offen sc1"]
        return [f"buffer_load_dword v1, v206, {srd(SDBG)}, 0 offen sc1"]

    def poll_issue(kind, p, wave=0):
        lab = only_wave(wave)
        a(poll_loads(kind, p))
        a.label(lab)

    def poll_check(kind, p, sleep=8, wave=0):
        lab = only_wave(wave)
        loop = a.uniq("L_spin")
        a(f"s_mov_b32 s{sCNT}, 0x20000")
        a.label(loop)
        a("s_waitcnt vmcnt(0)")
        if kind == 0:
            a("v_and_b32 v1, v1, v205")
        a("v_cmp_le_u32 vcc, 64, v1" if kind == 2 else "v_cmp_eq_u32 vcc, 1, v1")
        a(f"""
        s_cmp_eq_u64 vcc, -1
        s_cbranch_scc1 {lab}
        s_sleep {sleep}
        """)
        a(poll_loads(kind, p))
        a(f"""
        s_sub_u32 s{sCNT}, s{sCNT}, 1
        s_cmp_lg_u32 s{sCNT}, 0
        s_cbranch_scc1 {loop}
        s_waitcnt vmcnt(0)
        """)
        a.label(lab)

    a(f"""
    s_mul_i32 s{T0}, s{sHEAD}, 20
    s_add_u32 s{T1}, s{T0}, 19
    s_lshr_b32 s{T0}, s{T0}, 7
    s_lshr_b32 s{T1}, s{T1}, 7
    s_lshl_b32 s{T0}, s{T0}, 8
    s_lshl_b32 s{T1}, s{T1}, 8
    v_mul_u32_u24 v8, 1280, v7
    v_lshl_add_u32 v8, v6, 2, v8
    v_add_u32 v{VPG0}, s{T0}, v8
    v_add_u32 v{VPG1}, s{T1}, v8
    v_cmp_eq_u32 vcc, 3, v7
    s_nop 1
    v_cndmask_b32 v{VPG0}, v{VPG0}, v8, vcc
    v_cndmask_b32 v{VPG1}, v{VPG1}, v8, vcc
    v_and_b32 v8, 31, v0
    v_lshlrev_b32 v8, 2, v8
    s_lshl_b32 s{T0}, s{sXCD}, 8
    v_add_u32 v{VPO}, s{T0}, v8
    v_and_b32 v8, 3, v0
    v_lshlrev_b32 v206, 6, v8
    """)
    def count_in():
        lab = only_wave(0)
        a(f"""
        s_and_b32 s{T4}, s2, 3
        s_lshl_b32 s{T4}, s{T4}, 6
        v_mov_b32 v1, 1
        s_mov_b64 exec, 1
        buffer_atomic_add v1, off, {srd(SDBG)}, s{T4} sc1
        s_mov_b64 exec, -1
        """)
        a.label(lab)

    a(f"s_cmp_eq_u32 s{sM}, 15")
    a("s_cbranch_scc1 L_idle")

    a(f"s_cmp_lt_u32 s{sWAVE}, 4")
    a("s_cbranch_scc1 L_xstart")
    for n in range(11):
        a("s_waitcnt vmcnt(24)")
        a("s_barrier")
        if n <= 9:
            a(dma_stage(n + 4))
    a("s_setprio 3")
    a("s_branch L_compute")
    a.label("L_xstart")
    a(f"""
    s_add_u32 s{sKS}, s{sKS}, 3
    s_cmp_ge_u32 s{sKS}, 10
    s_cselect_b32 s{T0}, 10, 0
    s_sub_u32 s{sKS}, s{sKS}, s{T0}
    s_waitcnt vmcnt({4 if OPT.get("touchA", 0) else 1})
    s_barrier
    """)
    a.label("L_compute")
    stamp(a, 1)
    stamp(a, 1, 1)
    a(g1reads(0, 0))
    a(f"s_cmp_ge_u32 s{sM}, 10")
    a("s_cbranch_scc1 L_comp1")

    def interleave(ms, rs):
        out = []
        ri = 0
        for i, m in enumerate(ms):
            out.append(m)
            if ri < len(rs):
                out.append(rs[ri]); ri += 1
        out += rs[ri:]
        return out

    for cg in range(2):
        if cg == 1:
            a.label("L_comp1")

        def mm(i, kk):
            out = []
            for ct in range(4):
                for tt in range(4):
                    c = None if (i == 0 and kk == 0) else ACC(ct, tt)
                    if cg == 1:
                        out.append(mfma16(ACC(ct, tt), XF(kk, tt), WF(kk, ct), c))
                    else:
                        out.append(mfma16(ACC(ct, tt), WF(kk, ct), XF(kk, tt), c))
            return out
        for i in range(10):
            a("s_waitcnt lgkmcnt(0)")
            a(interleave(mm(i, 0), g1reads(i, 1)))
            TB_ = OPT.get("tb", 0)
            if i == TB_:
                lab = a.uniq("L_x")
                a(f"s_cmp_ge_u32 s{sWAVE}, 4\ns_cbranch_scc1 {lab}\ns_waitcnt vmcnt(0)\n{lab}:")
            if i == 2:
                lab = a.uniq("L_y")
                a(f"s_cmp_lt_u32 s{sWAVE}, 4\ns_cbranch_scc1 {lab}\ns_waitcnt vmcnt(0)\n{lab}:")
            a(f"s_waitcnt lgkmcnt(0) vmcnt({[16, 8][i]})" if i < 2 else "s_waitcnt lgkmcnt(0)")
            if i >= 7:
                lab = a.uniq("L_nb")
                a(f"s_cmp_ge_u32 s{sWAVE}, 4")
                a(f"s_cbranch_scc1 {lab}")
                a("s_barrier")
                a.label(lab)
            else:
                a("s_barrier")
            if i == TB_:
                count_in()
                if OPT.get("touchB", 0):
                    lab = a.uniq("L_x")
                    a(f"s_cmp_ge_u32 s{sWAVE}, 4\ns_cbranch_scc1 {lab}")
                    a(touch(1))
                    a.label(lab)
            if i in (1, 3, 5, 7, 9):
                stamp(a, 2 + i // 2, 1)
            a(interleave(mm(i, 1), g1reads(i + 1, 0) if i < 9 else []))
        if cg == 0:
            a("s_branch L_g1epi")
    a.label("L_g1epi")
    stamp(a, 2)
    lab = a.uniq("L_noload")
    a(f"s_cmp_ge_u32 s{sWAVE}, 4")
    a(f"s_cbranch_scc1 {lab}")
    a(dma_stage(14))
    a("s_barrier")
    a(dma_stage(15))
    a(f"s_branch {lab}_j")
    a.label(lab)
    a("v_mov_b32 v10, 0\nv_mov_b32 v11, 1\ns_mov_b64 exec, 1\nds_add_u32 v10, v11 offset:8\ns_mov_b64 exec, -1")
    a.label(lab + "_j")
    stamp(a, 7, 1)
    a("s_nop 7")
    t = 64
    for ct in range(4):
        for tp in range(2):
            for h in range(2):
                s_ = ACC(ct, 2 * tp + h)
                a(f"v_cvt_pk_bf16_f32 v{t+2*h}, v{s_}, v{s_+1}")
                a(f"v_cvt_pk_bf16_f32 v{t+2*h+1}, v{s_+2}, v{s_+3}")
            a(f"buffer_store_dwordx4 {vr(t,4)}, v{EA[ct]}, {srd(SWS)}, s{sEQ if tp == 0 else sEK} offen {HST}")
            t += 4
    a.label("L_g1tail")
    stamp(a, 8, 1)

    S = [32, 48, 64, 80]
    O = 96
    QL, QH = [112, 118], [116, 122]
    KL, KH = [124, 130], [128, 134]
    VF = [136, 144]
    MD, MF = 152, 168
    VK, VV = 4, 6
    VIDX, VDMA, VQ = 7, 8, 9
    QB_OFF = 1 * K
    CH = [11 * K, 51 * K, 91 * K, 1 * K]
    A_OFF = 50 * K
    WOL = [[50 * K, 0], [110 * K, 0]]
    SCR = [130 * K, 110 * K]
    OF = lambda i: 208 + 4 * i
    VOF, VW3, VOUT, VRED = 197, 198, 200, 201

    def lds_wait(off, val, sleep=1):
        loop = a.uniq("L_lw")
        a(f"s_mov_b32 s{sCNT}, 0x400000\nv_mov_b32 v10, 0")
        a.label(loop)
        a(f"""
        ds_read_b32 v11, v10 offset:{off}
        s_waitcnt lgkmcnt(0)
        v_readfirstlane_b32 s{T0}, v11
        s_cmp_eq_u32 s{T0}, {val}
        s_cbranch_scc1 {loop}_ok
        s_sleep {sleep}
        s_sub_u32 s{sCNT}, s{sCNT}, 1
        s_cmp_lg_u32 s{sCNT}, 0
        s_cbranch_scc1 {loop}
        {loop}_ok:
        """)

    a(f"s_cmp_ge_u32 s{sWAVE}, 4")
    a("s_cbranch_scc1 L_attn_setup")
    a("s_barrier")
    poll_issue(2, 0)
    a(dma_stage(16))
    a("s_barrier")
    stamp(a, 9, 1)
    a("s_waitcnt vmcnt(0)")
    stamp(a, 10, 1)
    poll_check(2, 0)
    a(dma_stage(17))
    a("s_barrier")
    publish(0, 1, 1)
    a(dma_stage(18))
    a("s_barrier")
    a(dma_stage(19))
    a("s_barrier")
    a("v_mov_b32 v10, 0\nv_mov_b32 v11, 0\nds_write_b64 v10, v[10:11]\nds_write_b32 v10, v10 offset:8")
    a("s_waitcnt vmcnt(0) lgkmcnt(0)")
    a("s_barrier")
    a.label("L_xfree")
    stamp(a, 3)
    stamp(a, 11, 1)
    a(f"v_lshlrev_b32 v{VDMA}, 4, v0")
    poll_issue(0, 1)
    poll_check(0, 1, sleep=4)
    lab = only_wave(0)
    a("v_mov_b32 v10, 0\nv_mov_b32 v11, 1\nds_write_b32 v10, v11")
    a.label(lab)
    lds_wait(0, 1)
    stamp(a, 4)
    stamp(a, 12, 1)
    a(f"""
    s_mul_i32 s{T3}, s{sHEAD}, 81920
    s_mul_i32 s{T4}, s{sQB}, 10240
    s_add_u32 s{T3}, s{T3}, s{T4}
    s_add_u32 s{T3}, s{T3}, s{sW1K}
    s_add_u32 s{T0}, s{sKVB}, s{sW1K}
    """)
    for j in range(3):
        lab = None
        if j == 2:
            lab = a.uniq("L_q")
            a(f"s_cmp_ge_u32 s{sWAVE}, 2\ns_cbranch_scc1 {lab}")
        a(f"""
        s_add_u32 m0, s{sW1K}, {QB_OFF + j*4096}
        s_add_u32 s{T2}, s{T3}, {QW_OFF + 32*81920 + j*4096}
        buffer_load_dwordx4 v{VDMA}, {srd(SWS)}, s{T2} offen {HS} lds
        """)
        if lab:
            a.label(lab)
    for j in range(10):
        a(f"""
        s_add_u32 m0, s{sW1K}, {CH[0] + j*4096}
        s_add_u32 s{T2}, s{T0}, {32*163840 + j*4096}
        buffer_load_dwordx4 v{VDMA}, {srd(SWS)}, s{T2} offen {HS} lds
        """)
    a.label("L_attn_setup")
    a(f"""
    v_lshlrev_b32 v{VDMA}, 4, v0
    v_lshrrev_b32 v11, 5, v0               ; h
    v_and_b32 v12, 31, v0                  ; i
    v_and_b32 v13, 3, v12
    v_lshrrev_b32 v14, 3, v12
    v_lshl_add_u32 v13, v14, 2, v13        ; kappa & 15
    v_bfe_u32 v14, v12, 2, 1               ; kappa >> 4
    v_lshlrev_b32 v15, 4, v13
    v_lshl_add_u32 v16, v14, 3, v15
    v_lshl_add_u32 v16, v11, 8, v16
    v_add_u32 v{VK}, {CH[0]}, v16
    v_mul_u32_u24 v16, 20, v11
    v_add_u32 v16, v16, v12
    v_lshlrev_b32 v16, 4, v16
    v_add_u32 v{VV}, {CH[0] + 1280}, v16
    v_and_b32 v15, 15, v12
    v_lshlrev_b32 v15, 4, v15
    v_lshrrev_b32 v16, 4, v12
    v_lshl_add_u32 v15, v16, 3, v15        ; (q&15)*16 + (q>>4)*8
    v_lshl_add_u32 v{VQ}, v11, 8, v15
    v_mov_b32 v{VIDX}, 0xdddddddd
    v_and_b32 v17, 0x1b, v12
    v_cmp_eq_u32 vcc, 24, v17
    v_mov_b32 v16, 0x3f803f80
    s_nop 0
    v_cndmask_b32 v17, 0, v16, vcc
    """)
    for b in range(2):
        a(f"v_mov_b32 v{KH[b]}, 0x3f803f80")
        a(f"v_mov_b32 v{KH[b]+1}, 0x00003f80")
        for i in range(8):
            a(f"v_mov_b32 v{VF[b]+i}, v17")

    def mask_setup():
        out = [["v_lshrrev_b32 v13, 5, v0", "v_lshlrev_b32 v13, 4, v13", "v_and_b32 v12, 31, v0",
                "v_sub_u32 v13, v12, v13", f"v_mov_b32 v14, {NEGBIG}"]]
        for r in range(0, 16, 2):
            out.append([f"v_cmp_le_i32 s[{T0}:{T0+1}], {r}, v13",
                        f"v_cmp_le_i32 s[{T2}:{T2+1}], {r+1}, v13",
                        "s_nop 0",
                        f"v_cndmask_b32 v{MD+r}, v14, 0, s[{T0}:{T0+1}]",
                        f"v_cndmask_b32 v{MF+r}, 0, v14, s[{T0}:{T0+1}]",
                        f"v_cndmask_b32 v{MD+r+1}, v14, 0, s[{T2}:{T2+1}]",
                        f"v_cndmask_b32 v{MF+r+1}, 0, v14, s[{T2}:{T2+1}]"])
        return out

    def scale_q(p):
        for r in [QL[p] + i for i in range(4)] + [QH[p], QH[p] + 1]:
            a(f"""
            v_lshlrev_b32 v15, 16, v{r}
            v_and_b32 v16, 0xffff0000, v{r}
            v_mul_f32 v15, s{sCS}, v15
            v_mul_f32 v16, s{sCS}, v16
            v_cvt_pk_bf16_f32 v{r}, v15, v16
            """)
        reset_m(p)

    def reset_m(p):
        a(f"""
        v_mov_b32 v15, 0x3f800000
        v_cndmask_b32 v{QH[p]}, 0, v{QH[p]}, s[{sLO}:{sLO+1}]
        v_cndmask_b32 v{QH[p]+1}, v15, v{QH[p]+1}, s[{sLO}:{sLO+1}]
        """)

    def set_m(p, M):
        a(f"""
        v_mov_b32 v15, v{M}
        s_nop 1
        v_permlane32_swap_b32 v15, v{M}
        s_nop 1
        v_max_f32 v15, v15, v{M}
        v_sub_f32 v15, 0, v15                  ; -m
        v_and_b32 v16, 0xffff0000, v15         ; hi
        v_sub_f32 v17, v15, v16
        v_and_b32 v18, 0xffff0000, v17         ; mid
        v_sub_f32 v17, v17, v18                ; lo
        v_lshrrev_b32 v16, 16, v16
        v_or_b32 v16, v16, v18
        v_lshrrev_b32 v17, 16, v17
        v_or_b32 v17, 0x3f800000, v17
        v_cndmask_b32 v{QH[p]}, v16, v{QH[p]}, s[{sLO}:{sLO+1}]
        v_cndmask_b32 v{QH[p]+1}, v17, v{QH[p]+1}, s[{sLO}:{sLO+1}]
        """)

    def kreads(buf, off, restore=True):
        return [f"ds_read2st64_b64 {vr(KL[buf],4)}, v{VK} offset0:{off//512} offset1:{off//512+1}",
                f"s_mov_b64 exec, s[{sLO}:{sLO+1}]",
                f"ds_read_b64 {vr(KH[buf],2)}, v{VK} offset:{off+1024}"] + (["s_mov_b64 exec, -1"] if restore else [])

    def vreads(buf, off):
        return [f"s_mov_b64 exec, s[{sVM}:{sVM+1}]",
                f"ds_read_b128 {vr(VF[buf],4)}, v{VV} offset:{off}",
                f"ds_read_b128 {vr(VF[buf]+4,4)}, v{VV} offset:{off+640}",
                "s_mov_b64 exec, -1"]

    def qk(Sd, buf, p, C=None):
        return [mfma32(Sd, KL[buf], QL[p], C), mfma32k8(Sd, KH[buf], QH[p], Sd)]

    def pv(Ss, buf):
        return [f"v_smfmac_f32_32x32x32_bf16 {vr(O,16)}, {vr(VF[buf],4)}, {vr(Ss,8)}, v{VIDX}",
                f"v_smfmac_f32_32x32x32_bf16 {vr(O,16)}, {vr(VF[buf]+4,4)}, {vr(Ss+8,8)}, v{VIDX}"]

    def exps(Ss):
        return [f"v_exp_f32 v{Ss+i}, v{Ss+i}" for i in range(16)]

    def maxtree(M, Ss, first):
        out = []
        if first:
            out.append(f"v_max3_f32 v{M}, v{Ss}, v{Ss+1}, v{Ss+2}")
            rest = list(range(3, 16))
        else:
            rest = list(range(16))
        while len(rest) >= 2:
            out.append(f"v_max3_f32 v{M}, v{M}, v{Ss+rest[0]}, v{Ss+rest[1]}")
            rest = rest[2:]
        if rest:
            out.append(f"v_max_f32 v{M}, v{M}, v{Ss+rest[0]}")
        return out

    def zero_o():
        for i in range(16):
            a(f"v_mov_b32 v{O+i}, 0")

    def epilogue(p):
        a(f"""
        v_rcp_f32 v15, v{O+12}
        s_mul_i32 s{T0}, s{sQT}, 40960
        s_add_u32 s{T0}, s{T0}, {OW_OFF + p*64*40960}
        s_lshl_b32 s{T1}, s{sHEAD}, 10
        s_add_u32 s{T1}, s{T1}, s{T0}
        s_lshr_b32 s{T2}, s{sHEAD}, 2
        s_add_u32 s{T2}, s{T2}, 32
        s_lshl_b32 s{T2}, s{T2}, 10
        s_add_u32 s{T2}, s{T2}, s{T0}
        s_and_b32 s{T3}, s{sHEAD}, 1
        s_lshl_b32 s{T3}, s{T3}, 9
        s_add_u32 s{T2}, s{T2}, s{T3}
        s_and_b32 s{T3}, s{sHEAD}, 2
        s_lshl_b32 s{T3}, s{T3}, 2
        s_add_u32 s{T2}, s{T2}, s{T3}
        """)
        for i in range(12):
            a(f"v_mul_f32 v{O+i}, v{O+i}, v15")
        for i in range(6):
            a(f"v_cvt_pk_bf16_f32 v{20+i}, v{O+2*i}, v{O+2*i+1}")
        a(f"""
        buffer_store_dwordx4 v[20:23], v{VDMA}, {srd(SWS)}, s{T1} offen {HST}
        s_mov_b64 exec, s[{sLO}:{sLO+1}]
        buffer_store_dwordx2 v[24:25], v{VDMA}, {srd(SWS)}, s{T2} offen {HST}
        s_mov_b64 exec, -1
        """)

    def tile_step(t, n, p, koff, voff, cmask, extra_k=None, hooks=None):
        a("s_waitcnt lgkmcnt(0)")
        rd = []
        if t + 2 < n:
            rd += kreads(t & 1, koff(t + 2), restore=(t >= n))
        if t < n:
            rd += vreads(t & 1, voff(t))
        if extra_k and t + 2 < n:
            rd += extra_k(t & 1, t + 2)
        q = qk(S[(t + 1) & 3], (t + 1) & 1, p, cmask(t + 1)) if t + 1 < n else []
        pp = pv(S[(t - 1) & 3], (t - 1) & 1) if t >= 1 else []
        e = exps(S[t & 3]) if t < n else []
        if t == 0:
            a("s_nop 10")
        ms = q + pp
        if not e:
            a(["s_nop 1"] + ms)
            return
        hooks = hooks or []
        for i in range(4):
            if i < len(ms):
                a(ms[i])
            a(e[4 * i:4 * i + 2])
            if i == 0:
                a(rd)
            elif hooks:
                nh = (len(hooks) + 2) // 3
                for hk in hooks[(i - 1) * nh:i * nh]:
                    a(hk)
            a(e[4 * i + 2:4 * i + 4])

    def g3_setup():
        return [["v_lshrrev_b32 v10, 4, v0",
                 "v_lshlrev_b32 v11, 9, v10",
                 "v_and_b32 v12, 15, v0",
                 f"v_lshl_add_u32 v{VOF}, v12, 4, v11"],
                ["v_mul_u32_u24 v12, 2560, v12",
                 "v_mul_u32_u24 v10, 40, v10",
                 f"v_add_u32 v{VOUT}, v12, v10"],
                [f"s_cmp_lt_u32 s{sWAVE}, 4",
                 f"s_cselect_b32 s{T0}, {WOL[1][0]}, {WOL[1][1]}",
                 f"v_add_u32 v{VW3}, s{T0}, v{VDMA}",
                 f"s_mul_i32 s{T0}, s{sCW}, 5120",
                 f"v_add_u32 v{VRED}, s{T0}, v{VDMA}"]]

    def wo_piece(p, q0, ldsbase, cond=None):
        o = [f"s_add_u32 m0, s{sW1K}, {ldsbase & 0xffffffff}",
             f"s_add_u32 s{T1}, s{sKVS}, {WP_OFF + p*819200 + q0*1024}",
             f"buffer_load_dwordx4 v{VDMA}, {srd(SWS)}, s{T1} offen {HS} lds"]
        if cond is not None:
            lab = a.uniq("L_wo")
            o = [f"s_cmp_ge_u32 s{sWAVE}, {cond}", f"s_cbranch_scc1 {lab}"] + o + [f"{lab}:"]
        return o

    def wo_half(p, kh):
        return [wo_piece(p, 50 * kh + 8 * k, WOL[p][kh] + 8 * k * 1024, cond=2 if k == 6 else None) for k in range(7)]

    def wo_base():
        return [f"s_mul_i32 s{sKVS}, s{sQB}, 102400", f"s_add_u32 s{sKVS}, s{sKVS}, s{sW1K}"]

    def o_base(p):
        return [f"s_lshl_b32 s{T0}, s{sHEAD}, 1",
                f"s_lshr_b32 s{T1}, s{sCW}, 1",
                f"s_add_u32 s{T0}, s{T0}, s{T1}",
                f"s_mul_i32 s{T0}, s{T0}, 40960",
                f"s_and_b32 s{T1}, s{sCW}, 1",
                f"s_lshl_b32 s{T1}, s{T1}, 8",
                f"s_add_u32 s{T0}, s{T0}, s{T1}",
                f"s_add_u32 s{T0}, s{T0}, {OW_OFF + p*64*40960}",
                f"s_lshr_b32 s{T1}, s{sWAVE}, 2",
                f"s_lshl_b32 s{sEK}, s{T1}, 12",
                f"s_add_u32 s{sEK}, s{sEK}, s{T0}",
                f"s_add_u32 s{sEK}, s{sEK}, {16*2048}",
                f"s_lshl_b32 s{T1}, s{T1}, 14",
                f"s_add_u32 s{sEQ}, s{T0}, s{T1}"]

    def o_load(i):
        if i < 8:
            out = [f"buffer_load_dwordx4 {vr(OF(i),4)}, v{VOF}, {srd(SWS)}, s{sEQ} offen offset:{(i&1)*2048} {HS}"]
            if i & 1:
                out.append(f"s_add_u32 s{sEQ}, s{sEQ}, 4096")
            return out
        return [f"buffer_load_dwordx4 {vr(OF(i),4)}, v{VOF}, {srd(SWS)}, s{sEK} offen offset:{(i-8)*2048} {HS}"]

    zero_o()
    lab = a.uniq("L_xl")
    a(f"s_cmp_ge_u32 s{sWAVE}, 4\ns_cbranch_scc1 {lab}")
    a("s_waitcnt vmcnt(0)\nv_mov_b32 v10, 0\nv_mov_b32 v11, 1\ns_mov_b64 exec, 1\nds_add_u32 v10, v11 offset:4\ns_mov_b64 exec, -1")
    a(f"s_branch {lab}_j")
    a.label(lab)
    lds_wait(8, 4)
    a.label(lab + "_j")
    lds_wait(4, 4)
    stamp(a, 5)
    stamp(a, 13, 1)
    a(f"""
    s_mul_i32 s{T0}, s{sWAVE}, 1280
    s_add_u32 s{T0}, s{T0}, {QB_OFF}
    v_add_u32 v15, s{T0}, v{VQ}
    ds_read2st64_b64 {vr(QL[1],4)}, v15 offset0:0 offset1:1
    ds_read_b64 {vr(QH[1],2)}, v15 offset:1024
    s_add_u32 s{sKVS}, s{sKVB}, s{sW1K}
    """)
    a(kreads(0, 0))
    a(kreads(1, 2560))
    a("s_waitcnt lgkmcnt(4)")
    scale_q(1)
    a("s_waitcnt lgkmcnt(2)")
    a(qk(S[0], 0, 1))
    a("s_nop 15")
    a(maxtree(19, S[0], True))
    set_m(1, 19)
    a("s_nop 1")
    a(qk(S[0], 0, 1))

    def dmaY(j):
        lab = a.uniq("L_dy")
        return [f"s_cmp_lt_u32 s{sWAVE}, 4", f"s_cbranch_scc1 {lab}",
                f"s_add_u32 m0, s{sW1K}, {CH[1] + j*4096 - 4096}",
                f"s_add_u32 s{T2}, s{sKVS}, {32*163840 + 40960 + j*4096 - 4096}",
                f"buffer_load_dwordx4 v{VDMA}, {srd(SWS)}, s{T2} offen {HS} lds", f"{lab}:"]

    def dma3(r):
        return [f"s_add_u32 m0, s{sW1K}, {CH[3] + r*8192}",
                f"s_add_u32 s{T2}, s{sKVS}, {32*163840 + 3*40960 + r*8192}",
                f"buffer_load_dwordx4 v{VDMA}, {srd(SWS)}, s{T2} offen {HS} lds"]

    def dmaA(j):
        out = [f"s_mul_i32 s{T1}, s{sQB}, 20480", f"s_sub_u32 s{T1}, s{T1}, 20480"]
        if j < 2:
            out += [f"s_max_i32 s{T1}, s{T1}, 0"]
        elif j == 2:
            out += [f"s_max_i32 s{T0}, s{T1}, 0", f"s_cmp_lt_u32 s{sWAVE}, 4", f"s_cselect_b32 s{T1}, s{T0}, s{T1}"]
        out += [f"s_add_u32 s{T1}, s{T1}, s{sKVS}", f"s_add_u32 m0, s{sW1K}, {A_OFF + j*8192}",
                f"s_add_u32 s{T1}, s{T1}, {j*8192}",
                f"buffer_load_dwordx4 v{VDMA}, {srd(SWS)}, s{T1} offen {HS} lds"]
        return out

    qa_loads = [f"s_mul_i32 s{T0}, s{sHEAD}, 81920",
                f"s_mul_i32 s{T2}, s{sQT}, 1280",
                f"s_add_u32 s{T0}, s{T0}, s{T2}",
                f"buffer_load_dwordx2 {vr(QL[0],2)}, v{VQ}, {srd(SWS)}, s{T0} offen {HS}",
                f"buffer_load_dwordx2 {vr(QL[0]+2,2)}, v{VQ}, {srd(SWS)}, s{T0} offen offset:512 {HS}",
                f"s_mov_b64 exec, s[{sLO}:{sLO+1}]",
                f"buffer_load_dwordx2 {vr(QH[0],2)}, v{VQ}, {srd(SWS)}, s{T0} offen offset:1024 {HS}",
                "s_mov_b64 exec, -1"]
    assert QW_OFF == 0

    NT = 64
    ms = mask_setup()
    for t in range(NT + 1):
        hooks = []
        if t < 10:
            hooks = [dmaY(2 * t), dmaY(2 * t + 1)]
        if t == 14:
            a("s_waitcnt vmcnt(0) lgkmcnt(0)\ns_barrier")
            stamp(a, 6)
            stamp(a, 14, 1)
            publish(0, 0, 4)
        if 14 <= t < 19:
            hooks = [dma3(t - 14)]
        if t == 20:
            hooks = g3_setup()
        if t == 22:
            hooks = [[f"s_mul_i32 s{T0}, s{sJ}, 25600", f"s_mul_i32 s{T1}, s{sWAVE}, 3200", f"s_add_u32 s{T0}, s{T0}, s{T1}", f"s_add_u32 s{T0}, s{T0}, {WP_OFF}"] +
                     [f"buffer_load_dwordx4 {vr(OF(i),4)}, v{VDMA}, {srd(SWS)}, s{T0} offen offset:{off} {HS}" for i, off in enumerate((0, 1024, 2048, 2176))]]
        if 23 <= t < 26:
            hooks = ms[3 * (t - 23):3 * (t - 22)]
        if t == 29:
            poll_issue(0, 0)
        if t == 33:
            poll_check(0, 0)
            a("s_waitcnt vmcnt(0) lgkmcnt(0)\ns_barrier")
            stamp(a, 7)
        if 33 <= t < 38:
            hooks = [dmaA(t - 33)]
        if t == 38:
            hooks = [qa_loads]
        if t == 40:
            hooks = [wo_base()]
        if t == 49:
            a("s_waitcnt vmcnt(0) lgkmcnt(0)\ns_barrier")
            stamp(a, 8)
        if 49 <= t < 56:
            hooks = [wo_half(1, 0)[t - 49]]
        if OPT.get("prio", 1):
            pr = {14: 3, 19: 2, 24: 1, 29: 0, 33: 3, 37: 2, 41: 1, 45: 0, 49: 3, 53: 2, 57: 1, 61: 0}
            if t in pr:
                a(f"s_setprio {pr[t]}")
        if (t + 2) % 16 == 0 and t + 2 < NT:
            c = (t + 2) // 16
            a(f"v_add_u32 v{VK}, {(CH[c] - CH[c - 1]) & 0xffffffff}, v{VK}")
        if t % 16 == 0 and 0 < t < NT:
            c = t // 16
            a(f"v_add_u32 v{VV}, {(CH[c] - CH[c - 1]) & 0xffffffff}, v{VV}")
        tile_step(t, NT, 1, lambda u: (u & 15) * 2560, lambda u: (u & 15) * 2560, lambda u: None, hooks=hooks)
    scale_q(0)
    a(f"v_mul_f32 v15, 0, v{O}")
    for i in range(1, 13):
        a(f"v_fmac_f32 v15, 0, v{O+i}")
    a("v_cmp_u_f32 vcc, v15, v15")
    a("s_nop 4")
    a("s_cbranch_vccnz L_slowB")
    a.label("L_epiB")
    epilogue(1)
    stamp(a, 9)
    stamp(a, 1, 2)

    a(f"""
    s_mul_i32 s{T0}, s{sWAVE}, 2560
    s_add_u32 s{T0}, s{T0}, {A_OFF - CH[3]}
    v_add_u32 v{VK}, s{T0}, v{VK}
    v_add_u32 v{VV}, s{T0}, v{VV}
    """)

    def pen(buf, u):
        return [f"s_cmp_ge_u32 s{sQT}, {8 - u}",
                f"s_cselect_b32 s{T0}, s{sONE}, {(NEGBIG & 0xffff0000) | 0x3f80}",
                f"s_not_b64 exec, s[{sLO}:{sLO+1}]",
                f"v_mov_b32 v{KH[buf]+1}, s{T0}",
                "s_mov_b64 exec, -1"]

    def cmaskA(u):
        return MD if u == 8 else (MF if u == 0 else None)
    a(kreads(0, 0))
    a(pen(0, 0))
    for u in range(9):
        if u + 1 < 9:
            a(kreads((u + 1) & 1, (u + 1) * 2560))
            a("s_waitcnt lgkmcnt(2)")
        else:
            a("s_waitcnt lgkmcnt(0)")
        a("s_nop 0")
        a(qk(S[u & 3], u & 1, 0, cmaskA(u)))
        if u + 1 < 9:
            a(pen((u + 1) & 1, u + 1))
        if u >= 2:
            a(maxtree(19, S[(u - 2) & 3], u == 2))
    a(kreads(0, 0))
    a(kreads(1, 2560))
    zero_o()
    for u in (7, 8):
        a(maxtree(19, S[u & 3], False))
    set_m(0, 19)
    a(pen(0, 0) + pen(1, 1))
    stamp(a, 2, 2)
    a("s_waitcnt vmcnt(0)")
    a("s_barrier")
    publish(1, 1, 4)
    stamp(a, 10)
    stamp(a, 3, 2)
    a("s_waitcnt lgkmcnt(2)")
    a(qk(S[0], 0, 0, cmaskA(0)))
    PI, PC = OPT.get("pi", 5), OPT.get("pc", 7)
    h1 = wo_half(1, 1)
    for t in range(10):
        hooks = []
        if t < 4:
            hooks = h1[2 * t:2 * t + 2]
        if t == 4:
            hooks = [o_base(1)]
        if t == PI:
            poll_issue(1, 1)
        if t == PC:
            poll_check(1, 1, sleep=2)
            a("s_waitcnt vmcnt(0)\ns_barrier")
            stamp(a, 4, 2)
            hooks = [o_load(i) for i in range(5)]
        if t == PC + 1:
            hooks = [o_load(i) for i in range(5, 10)]
        tile_step(t, 9, 0, lambda u: u * 2560, lambda u: u * 2560, cmaskA, extra_k=pen, hooks=hooks)
    a("s_nop 15")
    epilogue(0)
    stamp(a, 11)
    stamp(a, 7, 2)

    GACC = lambda ct: 32 + 4 * ct
    GW = lambda buf, ct: 56 + buf * 20 + 4 * ct

    def g3reads(i):
        return [f"ds_read_b128 {vr(GW(i&1,ct),4)}, v{VW3} offset:{(i*5+ct)*1024}" for ct in range(5)]

    def g3_compute(younger=0, mid=None, hooks=None):
        a(g3reads(0))
        for i in range(10):
            if mid and i == mid[0]:
                mid[1]()
            w = f" vmcnt({9 - i + younger})" if not (mid and i >= mid[0]) else ""
            a("s_waitcnt lgkmcnt(0)" + w)
            rs = g3reads(i + 1) if i < 9 else []
            for ct in range(5):
                a(mfma16(GACC(ct), GW(i & 1, ct), OF(i), None if i == 0 else GACC(ct)))
                a(rs[ct:ct + 1])
            if hooks and i in hooks:
                a(hooks[i])

    def g3_finish(p, after=None):
        l1, l2 = a.uniq("L_r"), a.uniq("L_r")
        a(f"s_cmp_lt_u32 s{sWAVE}, 4\ns_cbranch_scc1 {l1}")
        a(f"v_add_u32 v10, {SCR[p]}, v{VRED}")
        for ct in range(5):
            a(f"ds_write_b128 v10, {vr(GACC(ct),4)} offset:{ct*1024}")
        a("s_waitcnt lgkmcnt(0)")
        a.label(l1)
        a("s_barrier")
        if after:
            after()
        a(f"s_cmp_ge_u32 s{sWAVE}, 4\ns_cbranch_scc1 {l2}")
        a(f"v_add_u32 v10, {SCR[p]}, v{VRED}")
        for ct in range(5):
            a(f"ds_read_b128 {vr(96+4*ct,4)}, v10 offset:{ct*1024}")
        a(f"""
        s_lshl_b32 s{T0}, s{sHEAD}, 2
        s_add_u32 s{T0}, s{T0}, s{sCW}
        s_mul_i32 s{T0}, s{T0}, {16*2560}
        s_mul_i32 s{T1}, s{sQB}, 160
        s_add_u32 s{T0}, s{T0}, s{T1}
        s_add_u32 s{T0}, s{T0}, {p*1280}
        s_waitcnt lgkmcnt(0)
        """)
        for i in range(20):
            a(f"v_add_f32 v{96+i}, v{96+i}, v{32+i}")
        for i in range(10):
            a(f"v_cvt_pk_bf16_f32 v{116+i}, v{96+2*i}, v{96+2*i+1}")
        a(f"""
        buffer_store_dwordx4 v[116:119], v{VOUT}, {srd(SOUT)}, s{T0} offen
        buffer_store_dwordx4 v[120:123], v{VOUT}, {srd(SOUT)}, s{T0} offen offset:16
        buffer_store_dwordx2 v[124:125], v{VOUT}, {srd(SOUT)}, s{T0} offen offset:32
        """)
        a.label(l2)

    MID = OPT.get("mid", 5)

    def mid():
        a("s_waitcnt vmcnt(0)")
        a("s_barrier")
        publish(1, 0, 7)
        stamp(a, 8, 2)
    h0 = wo_half(0, 0)
    per = -(-7 // (10 - MID))
    g3_compute(younger=2, mid=(MID, mid), hooks={MID + i: h0[i * per:(i + 1) * per] for i in range(10 - MID)})
    a("s_barrier")
    stamp(a, 9, 2)
    a("s_nop 4")

    def after():
        lab = a.uniq("L_h1")
        a(f"s_sub_u32 s{T0}, s{sWAVE}, 4\ns_cmp_ge_u32 s{T0}, 3\ns_cbranch_scc1 {lab}")
        for k in range(17):
            a(wo_piece(0, 50 - 4 + 3 * k, WOL[0][1] + (3 * k - 4) * 1024, cond=6 if k == 16 else None))
        a.label(lab)
        poll_issue(1, 0, wave=7)
        poll_check(1, 0, sleep=2, wave=7)
    g3_finish(1, after)
    stamp(a, 12)
    stamp(a, 11, 2)
    a(f"""
    s_cmp_lt_u32 s{sWAVE}, 4
    s_cselect_b32 s{T0}, {(WOL[0][0] - WOL[1][0]) & 0xffffffff}, {WOL[0][1] - WOL[1][1]}
    v_add_u32 v{VW3}, s{T0}, v{VW3}
    """)
    a(o_base(0))
    lab = a.uniq("L_k0")
    a(f"s_waitcnt vmcnt(3)\ns_cmp_lt_u32 s{sWAVE}, 4\ns_cbranch_scc1 {lab}\ns_waitcnt vmcnt(0)\n{lab}:")
    a("s_barrier")
    stamp(a, 13)
    stamp(a, 12, 2)
    for i in range(10):
        a(o_load(i))
    g3_compute()
    stamp(a, 13, 2)
    a("s_nop 7")
    g3_finish(0)
    if STAMPS:
        a("s_waitcnt vmcnt(0)")
        stamp(a, 14)
        stamp(a, 14, 2)
        a("s_waitcnt lgkmcnt(0)")
        a(f"""
        s_lshl_b32 s{T0}, s2, 4
        s_add_u32 s{T0}, s{T0}, s{sWAVE}
        s_lshl_b32 s{T0}, s{T0}, 7
        s_add_u32 s{T0}, s{T0}, {STAMP_OFF}
        s_mov_b64 exec, 1
        """)
        for i in range(15):
            a(f"v_mov_b32 v1, s{SB+2*i}")
            a(f"buffer_store_dword v1, off, {srd(SWS)}, s{T0} offset:{4*i}")
    a.label("L_done")
    a("s_endpgm")

    a.label("L_idle")
    G3D = [32, 33, 34, 35, 36]
    for i in range(5):
        a([f"v_add_u32 v10, {64*i}, v0",
           "v_mul_u32_u24 v11, 6554, v10",
           "v_lshrrev_b32 v11, 16, v11",
           "v_mul_u32_u24 v12, 10, v11",
           "v_sub_u32 v12, v10, v12",
           "v_mul_u32_u24 v11, 1280, v11",
           f"v_lshl_add_u32 v{G3D[i]}, v12, 4, v11"])
    a(f"""
    s_cmp_ge_u32 s{sTB}, 8
    s_cselect_b32 s{SX[0]}, s{SWO[1]}, s{SWO[0]}
    s_cselect_b32 s{SX[0]+1}, s{SWO[1]+1}, s{SWO[0]+1}
    s_mov_b32 s{SX[0]+2}, {WO_BYTES}
    s_and_b32 s{T0}, s{sTB}, 7
    s_mul_i32 s{T0}, s{T0}, 160
    s_mul_i32 s{T1}, s{sWAVE}, {32*1280}
    s_add_u32 s{T0}, s{T0}, s{T1}
    s_mul_i32 s{T1}, s{sWAVE}, 5120
    """)
    for rnd in range(3):
        lab = a.uniq("L_id")
        if rnd == 2:
            a(f"s_cmp_ge_u32 s{sWAVE}, 4\ns_cbranch_scc1 {lab}")
        a(f"s_add_u32 s{T2}, s{T0}, {rnd*256*1280}")
        for i in range(5):
            a(f"s_add_u32 m0, s{T1}, {K + rnd*8*5120 + i*1024}\ns_nop 0")
            a(f"buffer_load_dwordx4 v{G3D[i]}, {srd(SX[0])}, s{T2} offen lds")
        a.label(lab)
    a(f"""
    v_lshrrev_b32 v10, 5, v0
    v_bfe_u32 v11, v0, 4, 1
    v_bfe_u32 v12, v0, 2, 2
    v_and_b32 v13, 3, v0
    v_mul_u32_u24 v13, 40, v13
    v_add_u32 v13, {K}, v13
    v_mul_u32_u24 v14, 20, v10
    v_lshl_add_u32 v14, v11, 2, v14
    v_add_u32 v14, v14, v12
    v_mul_u32_u24 v14, 160, v14
    v_add_u32 v37, v14, v13
    v_mul_u32_u24 v14, 80, v10
    v_mul_u32_u24 v11, 20, v11
    v_add3_u32 v14, v14, v11, v12
    v_add_u32 v14, 16, v14
    v_mul_u32_u24 v14, 160, v14
    v_add_u32 v38, v14, v13
    s_mul_i32 s{T0}, s{sWAVE}, 6400
    v_add_u32 v37, s{T0}, v37
    s_mul_i32 s{T0}, s{sWAVE}, 25600
    v_add_u32 v38, s{T0}, v38
    v_lshlrev_b32 v39, 4, v0
    v_mov_b32 v10, 0
    v_mov_b32 v11, 0
    v_mov_b32 v12, 4
    ds_write_b64 v10, v[10:11]
    ds_write_b32 v10, v12 offset:8
    s_mul_i32 s{T0}, s{sTB}, 102400
    s_add_u32 s{T0}, s{T0}, {WP_OFF}
    s_mul_i32 s{T1}, s{sWAVE}, 5120
    s_add_u32 s{T1}, s{T1}, s{T0}              ; kh=0, i=w
    s_lshr_b32 s{T2}, s{sWAVE}, 1
    s_mul_i32 s{T2}, s{T2}, 51200
    s_and_b32 s{T3}, s{sWAVE}, 1
    s_mul_i32 s{T3}, s{T3}, 5120
    s_add_u32 s{T2}, s{T2}, s{T3}
    s_add_u32 s{T2}, s{T2}, s{T0}
    s_add_u32 s{T2}, s{T2}, {8*5120}
    s_waitcnt vmcnt(0) lgkmcnt(0)
    s_barrier
    """)
    count_in()
    for rnd in range(3):
        lab = a.uniq("L_id")
        if rnd == 2:
            a(f"s_cmp_ge_u32 s{sWAVE}, 4\ns_cbranch_scc1 {lab}")
        base = 64 + rnd * 20
        for ct in range(5):
            for rd in range(2):
                if rnd < 2:
                    a(f"ds_read_b64_tr_b16 {vr(base+4*ct+2*rd,2)}, v37 offset:{rnd*51200 + rd*1280 + ct*8}")
                else:
                    a(f"ds_read_b64_tr_b16 {vr(base+4*ct+2*rd,2)}, v38 offset:{rd*6400 + ct*8}")
        a("s_waitcnt lgkmcnt(0)")
        if rnd == 1:
            a(f"s_add_u32 s{T1}, s{T1}, 51200")
        sreg = T1 if rnd < 2 else T2
        for ct in range(5):
            if ct == 4:
                a(f"s_add_u32 s{T3}, s{sreg}, 4096")
                a(f"buffer_store_dwordx4 {vr(base+4*ct,4)}, v39, {srd(SWS)}, s{T3} offen {HST}")
            else:
                a(f"buffer_store_dwordx4 {vr(base+4*ct,4)}, v39, {srd(SWS)}, s{sreg} offen offset:{ct*1024} {HST}")
        a.label(lab)
    a("s_waitcnt vmcnt(0)\ns_barrier")
    publish(0, 0, 1)
    publish(0, 1, 2)
    poll_issue(2, 0)
    poll_check(2, 0, sleep=32)
    a(f"s_cmp_ge_u32 s{sWAVE}, 4")
    a("s_cbranch_scc1 L_attn_setup")
    a("s_branch L_xfree")

    a.label("L_slowB")
    reset_m(1)
    a(f"""
    v_mov_b32 v19, 0xff800000
    v_subrev_u32 v10, {CH[3]}, v{VK}
    v_subrev_u32 v12, {CH[3]}, v{VV}
    s_add_u32 s{T0}, s{sKVB}, {32*163840}
    s_add_u32 s{T1}, s{T0}, 163840
    """)

    def gk():
        return f"""
        buffer_load_dwordx2 {vr(KL[0],2)}, v10, {srd(SWS)}, s{T0} offen {HS}
        buffer_load_dwordx2 {vr(KL[0]+2,2)}, v10, {srd(SWS)}, s{T0} offen offset:512 {HS}
        s_mov_b64 exec, s[{sLO}:{sLO+1}]
        buffer_load_dwordx2 {vr(KH[0],2)}, v10, {srd(SWS)}, s{T0} offen offset:1024 {HS}
        """
    a.label("L_slow1")
    a(gk())
    a("s_mov_b64 exec, -1\ns_waitcnt vmcnt(0)")
    a(qk(S[0], 0, 1))
    a("s_nop 15")
    a(maxtree(19, S[0], False))
    a(f"""
    s_add_u32 s{T0}, s{T0}, 2560
    s_cmp_lt_u32 s{T0}, s{T1}
    s_cbranch_scc1 L_slow1
    """)
    set_m(1, 19)
    zero_o()
    a(f"s_sub_u32 s{T0}, s{T1}, 163840")
    a.label("L_slow2")
    a(gk())
    a(f"""
    s_mov_b64 exec, s[{sVM}:{sVM+1}]
    buffer_load_dwordx4 {vr(VF[0],4)}, v12, {srd(SWS)}, s{T0} offen {HS}
    buffer_load_dwordx4 {vr(VF[0]+4,4)}, v12, {srd(SWS)}, s{T0} offen offset:640 {HS}
    s_mov_b64 exec, -1
    s_waitcnt vmcnt(0)
    """)
    a(qk(S[0], 0, 1))
    a("s_nop 15")
    a(exps(S[0]))
    a("s_nop 1")
    a(pv(S[0], 0))
    a(f"""
    s_add_u32 s{T0}, s{T0}, 2560
    s_cmp_lt_u32 s{T0}, s{T1}
    s_cbranch_scc1 L_slow2
    s_nop 15
    s_branch L_epiB
    """)


def main(out):
    global HST, HS
    HST = ["sc1", "", "sc0 sc1", "nt", "sc1 nt"][OPT.get("st", 0)]
    HS = ["sc1", ""][OPT.get("ld", 0)]
    a = Asm()
    hdr = open(f"cdna_kernels/{NAME}.s.ref").read().split("\n")
    keep = [l for l in hdr if l.startswith(";") and "@launch" not in l]
    for l in keep:
        a.raw(l)
    a.raw(f"; @launch grid=(256,1,1) block=(512,1,1) lds={LDS_BYTES}")
    a.raw('.amdgcn_target "amdgcn-amd-amdhsa--gfx950"')
    a.raw(".text")
    gen(a)
    a.raw('.section .rodata,"a"')
    a.raw(".p2align 6")
    a.raw(f""".amdhsa_kernel {KNAME}
  .amdhsa_next_free_vgpr 248
  .amdhsa_next_free_sgpr {102 if STAMPS else 72}
  .amdhsa_accum_offset 248
  .amdhsa_group_segment_fixed_size 0
  .amdhsa_kernarg_size 72
  .amdhsa_user_sgpr_count 2
  .amdhsa_user_sgpr_kernarg_segment_ptr 1
  .amdhsa_system_sgpr_workgroup_id_x 1
.end_amdhsa_kernel""")
    open(out, "w").write(a.text())


if __name__ == "__main__":
    if "--stamps" in sys.argv:
        STAMPS = True
        sys.argv.remove("--stamps")
    for x in list(sys.argv):
        if x.startswith("-D"):
            k, _, v = x[2:].partition("=")
            OPT[k] = int(v) if v else 1
            sys.argv.remove(x)
    main(sys.argv[1] if len(sys.argv) > 1 else f"cdna_kernels/{NAME}.s")
```

```python
import sys, struct

NAME = "concat_heads__sliding_block__softmax_full_mha__prompt"
KNAME = NAME + "_kernel"

QW_OFF = 0x000000
KV_OFF = 0x500000
OW_OFF = 0xF00000
FL_OFF = 0x1400000
WP_OFF = 0x1500000
WS_USED = 0x1700000
X_BYTES = 2048 * 640 * 2
WQKV_BYTES = 640 * 1920 * 2
WO_BYTES = 640 * 640 * 2
OUT_BYTES = 2048 * 1280 * 2
SRD3 = 0x00020000
LDS_BYTES = 163840
K = 1024

STAMPS = False
STAMP_OFF = 0x2000000
SB = 72
OPT = {}


def f32bits(x):
    return struct.unpack("<I", struct.pack("<f", x))[0]


NEGBIG = f32bits(-1e30)
CSCALE = f32bits((20 ** -0.5) * 1.4426950408889634)


class Asm:
    def __init__(self):
        self.l = []
        self.n = 0

    def __call__(self, s):
        if isinstance(s, (list, tuple)):
            for x in s:
                self(x)
            return
        for line in s.strip("\n").split("\n"):
            line = line.strip()
            if line:
                self.l.append(("" if line.endswith(":") else "    ") + line)

    def label(self, s):
        self.l.append(s + ":")

    def raw(self, s):
        self.l.append(s)

    def uniq(self, p):
        self.n += 1
        return f"{p}_{self.n}"

    def text(self):
        return "\n".join(self.l) + "\n"


def vr(a, n):
    return f"v[{a}:{a + n - 1}]"


def mfma32(d, a_, b_, c):
    cs = vr(c, 16) if c is not None else "0"
    return f"v_mfma_f32_32x32x16_bf16 {vr(d,16)}, {vr(a_,4)}, {vr(b_,4)}, {cs}"


def mfma32k8(d, a_, b_, c):
    return f"v_mfma_f32_32x32x8_bf16 {vr(d,16)}, {vr(a_,2)}, {vr(b_,2)}, {vr(c,16)}"


def mfma16(d, a_, b_, c):
    cs = vr(c, 4) if c is not None else "0"
    return f"v_mfma_f32_16x16x32_bf16 {vr(d,4)}, {vr(a_,4)}, {vr(b_,4)}, {cs}"


def stamp(a, i, mode=0):
    if STAMPS and (i == 0 or OPT.get("sm", 0) == mode):
        a(f"s_memrealtime s[{SB+2*i}:{SB+2*i+1}]")


SX = [4, 12]
SW = [8, 16]
SWS, SDBG = 20, 24
SWO = [28, 32]
SOUT = 36
sWAVE, sCW, sTB, sM, sKS, sXB, sWB, sLP = 40, 41, 42, 43, 44, 45, 46, 47
T0, T1, T2, T3, T4, T5 = 48, 49, 50, 51, 52, 53
sEQ, sEK = 54, 55
sHEAD, sQB, sQT, sW1K = 56, 57, 58, 59
sVM, sLO = 60, 62
sCS, sONE, sKVB, sXCD, sJ, sROT = 64, 65, 66, 67, 68, 69
sCNT = 70
sKVS = 71


def srd(n):
    return f"s[{n}:{n+3}]"


HS = "sc1"
HST = "sc1"


def gen(a):
    a.raw(f".globl {KNAME}\n.p2align 8\n.type {KNAME},@function")
    a.label(KNAME)
    a(f"""
    s_cmp_ge_u32 s2, 256
    s_cbranch_scc1 L_done
    """)
    stamp(a, 0)
    a(f"""
    s_load_dwordx2 s[{SX[1]}:{SX[1]+1}], s[0:1], 24
    s_load_dwordx2 s[{SW[1]}:{SW[1]+1}], s[0:1], 32
    s_load_dwordx2 s[{SX[0]}:{SX[0]+1}], s[0:1], 0
    s_load_dwordx2 s[{SW[0]}:{SW[0]+1}], s[0:1], 8
    s_load_dwordx2 s[{SWO[0]}:{SWO[0]+1}], s[0:1], 16
    s_load_dwordx2 s[{SWO[1]}:{SWO[1]+1}], s[0:1], 40
    s_load_dwordx2 s[{SOUT}:{SOUT+1}], s[0:1], 48
    s_load_dwordx2 s[{SDBG}:{SDBG+1}], s[0:1], 56
    s_load_dwordx2 s[{SWS}:{SWS+1}], s[0:1], 64
    v_lshrrev_b32 v1, 6, v0
    v_and_b32 v0, 63, v0
    s_and_b32 s{sXCD}, s2, 7
    v_readfirstlane_b32 s{sWAVE}, v1
    s_lshr_b32 s{sJ}, s2, 3
    s_and_b32 s{T0}, s{sXCD}, 1
    s_lshl_b32 s{T0}, s{T0}, 3
    s_and_b32 s{T1}, s{sJ}, 7
    s_add_u32 s{sTB}, s{T0}, s{T1}
    s_lshr_b32 s{T0}, s{sXCD}, 1
    s_lshl_b32 s{T0}, s{T0}, 2
    s_lshr_b32 s{T2}, s{sJ}, 3
    s_add_u32 s{sM}, s{T0}, s{T2}
    """)
    rm = OPT.get("rot", 1)
    if rm == 0:
        a(f"s_mov_b32 s{sROT}, 0")
    elif rm == 1:
        a(f"""
        s_mul_i32 s{T2}, s{T2}, 3
        s_add_u32 s{sROT}, s{T1}, s{T2}
        s_cmp_ge_u32 s{sROT}, 10
        s_cselect_b32 s{T0}, 10, 0
        s_sub_u32 s{sROT}, s{sROT}, s{T0}
        """)
    else:
        a(f"""
        s_add_u32 s{sROT}, s{T1}, s{T2}
        s_and_b32 s{sROT}, s{sROT}, 1
        s_mul_i32 s{sROT}, s{sROT}, 5
        """)
    a(f"""
    s_and_b32 s{sCW}, s{sWAVE}, 3
    """)
    for n, size in ((SX[0], X_BYTES), (SW[0], WQKV_BYTES), (SX[1], X_BYTES), (SW[1], WQKV_BYTES), (SWO[0], WO_BYTES),
                    (SWO[1], WO_BYTES), (SOUT, OUT_BYTES), (SDBG, 256), (SWS, 0x4000000 if STAMPS else WS_USED)):
        a(f"s_mov_b32 s{n+2}, {size}\ns_mov_b32 s{n+3}, {SRD3}")
    a(f"""
    v_lshrrev_b32 v6, 3, v0
    v_mul_u32_u24 v2, 1280, v6
    v_lshrrev_b32 v7, 4, v0
    v_and_b32 v8, 7, v0
    v_xor_b32 v8, v8, v7
    v_lshl_add_u32 v2, v8, 4, v2
    v_xor_b32 v3, 64, v2
    v_mul_u32_u24 v9, 3840, v7
    v_and_b32 v8, 15, v0
    v_lshlrev_b32 v10, 1, v7
    v_xor_b32 v8, v8, v10
    """)
    a("""
    v_lshl_add_u32 v4, v8, 4, v9
    v_xor_b32 v5, 128, v4
    """)
    a(f"""
    s_lshl_b32 s{T0}, s{sTB}, 7
    s_lshl_b32 s{T1}, s{sCW}, 5
    s_add_u32 s{T0}, s{T0}, s{T1}
    s_mul_i32 s{sXB}, s{T0}, 1280
    s_mul_i32 s{sWB}, s{sCW}, {16*3840}
    s_lshl_b32 s{T0}, s{sM}, 8
    s_add_u32 s{sWB}, s{sWB}, s{T0}
    s_lshl_b32 s{sLP}, s{sCW}, 12
    s_lshr_b32 s{T3}, s{sWAVE}, 2              ; group
    s_add_u32 s{sKS}, s{sROT}, s{T3}
    s_cmp_eq_u32 s{sKS}, 10
    s_cselect_b32 s{sKS}, 0, s{sKS}
    s_lshl_b32 s{T3}, s{T3}, 15
    s_add_u32 s{T3}, s{T3}, s{sLP}
    """)

    def dma_stage(n, sLP=sLP):
        p = 1 - n // 10
        slot = (n % 5) * 32 * K
        out = [f"s_lshl_b32 s{T0}, s{sKS}, 7",
               f"s_add_u32 s{T0}, s{T0}, s{sXB}",
               f"s_mul_i32 s{T1}, s{sKS}, {64*3840}",
               f"s_add_u32 s{T1}, s{T1}, s{sWB}"]
        for i in range(4):
            out += [f"s_add_u32 m0, s{sLP}, {slot + i*1024}",
                    f"s_add_u32 s{T2}, s{T0}, {i*8*1280}",
                    f"buffer_load_dwordx4 v{2 + (i & 1)}, {srd(SX[p])}, s{T2} offen lds",
                    f"s_add_u32 m0, s{sLP}, {slot + 16*K + i*1024}",
                    f"s_add_u32 s{T2}, s{T1}, {i*4*3840}",
                    f"buffer_load_dwordx4 v{4 + (i >> 1)}, {srd(SW[p])}, s{T2} offen lds"]
        out += [f"s_add_u32 s{sKS}, s{sKS}, 1",
                f"s_cmp_eq_u32 s{sKS}, 10",
                f"s_cselect_b32 s{sKS}, 0, s{sKS}"]
        return out

    a("s_waitcnt lgkmcnt(0)")
    a(f"s_cmp_eq_u32 s{sM}, 15")
    a("s_cbranch_scc1 L_setup1")
    a(dma_stage(0, T3))
    a(f"s_cmp_lt_u32 s{sWAVE}, 4")
    a("s_cbranch_scc1 L_setup1")
    for n in (2, 3):
        a(dma_stage(n))
    a.label("L_setup1")
    a("""
    v_lshlrev_b32 v207, 7, v0
    v_lshrrev_b32 v195, 1, v0
    v_min_u32 v195, 19, v195
    v_mul_u32_u24 v195, 3840, v195
    v_and_b32 v8, 1, v0
    v_lshl_add_u32 v195, v8, 7, v195
    """)
    a(f"""
    s_lshl_b32 s{T0}, s{sXCD}, 2
    s_and_b32 s{T1}, s{sJ}, 3
    s_add_u32 s{sHEAD}, s{T0}, s{T1}
    s_lshr_b32 s{sQB}, s{sJ}, 2
    s_cmp_ge_u32 s{sWAVE}, 4
    s_cbranch_scc1 L_setup2
    s_lshl_b32 s{T0}, s{sM}, 8
    s_lshl_b32 s{T1}, s{sTB}, 2
    s_add_u32 s{T0}, s{T0}, s{T1}
    s_lshl_b32 s{T1}, s{sWAVE}, 12
    s_add_u32 s{T0}, s{T0}, s{T1}
    s_lshl_b32 s{T1}, s{sQB}, 8
    s_lshl_b32 s{T2}, s{sHEAD}, 2
    s_add_u32 s{T1}, s{T1}, s{T2}
    s_lshl_b32 s{T2}, s{sWAVE}, 11
    s_add_u32 s{T1}, s{T1}, s{T2}
    s_add_u32 s{T1}, s{T1}, 4096
    s_cmp_lt_u32 s{sWAVE}, 2
    s_cselect_b32 s{T0}, s{T0}, s{T1}
    s_add_u32 s{T0}, s{T0}, {FL_OFF}
    v_mov_b32 v1, 0
    s_mov_b64 exec, 1
    buffer_store_dword v1, off, {srd(SWS)}, s{T0} sc1
    s_mov_b64 exec, -1
    """)
    def touch(p):
        return f"""
        s_mul_i32 s{T0}, s{sTB}, 163840
        s_lshr_b32 s{T1}, s{sJ}, 3
        s_mul_i32 s{T1}, s{T1}, 40960
        s_add_u32 s{T0}, s{T0}, s{T1}
        s_mul_i32 s{T1}, s{sCW}, 10240
        s_add_u32 s{T0}, s{T0}, s{T1}
        buffer_load_dword v192, v207, {srd(SX[p])}, s{T0} offen
        s_add_u32 s{T0}, s{T0}, 8192
        s_mov_b64 exec, 0xffff
        buffer_load_dword v193, v207, {srd(SX[p])}, s{T0} offen
        s_mov_b64 exec, -1
        s_and_b32 s{T0}, s{sJ}, 7
        s_lshl_b32 s{T0}, s{T0}, 2
        s_add_u32 s{T0}, s{T0}, s{sCW}
        s_mul_i32 s{T0}, s{T0}, {20*3840}
        s_lshl_b32 s{T1}, s{sM}, 8
        s_add_u32 s{T0}, s{T0}, s{T1}
        buffer_load_dword v194, v195, {srd(SW[p])}, s{T0} offen
        """
    if OPT.get("touchA", 0):
        a(f"s_cmp_eq_u32 s{sM}, 15\ns_cbranch_scc1 L_setup2")
        a(touch(0))
    a.label("L_setup2")

    XA = lambda sg, kk: 14 + sg * 6 + kk
    WA = lambda sg, ct: 14 + sg * 6 + 2 + ct
    a(f"""
    v_and_b32 v6, 15, v0
    v_lshrrev_b32 v8, 1, v6                ; f(row)
    v_xor_b32 v8, v8, v7                   ; o ^ f
    v_lshlrev_b32 v8, 4, v8
    v_lshl_add_u32 v8, v6, 7, v8
    s_lshr_b32 s{T0}, s{sCW}, 1
    s_lshl_b32 s{T0}, s{T0}, 13
    v_add_u32 v{XA(0,0)}, s{T0}, v8
    v_xor_b32 v{XA(0,1)}, 64, v{XA(0,0)}
    v_lshrrev_b32 v8, 2, v0
    v_and_b32 v8, 3, v8                    ; r
    v_lshl_add_u32 v9, v7, 3, v8           ; krow = 8o + r
    v_lshlrev_b32 v9, 8, v9
    v_add_u32 v9, {16*K}, v9
    v_and_b32 v10, 1, v7
    v_lshl_add_u32 v10, v10, 2, v8
    v_lshlrev_b32 v10, 1, v10              ; sigma
    v_bfe_u32 v11, v0, 1, 1                ; c>>1
    s_and_b32 s{T0}, s{sCW}, 1
    s_lshl_b32 s{T0}, s{T0}, 3
    v_or_b32 v11, s{T0}, v11               ; 8cg + (c>>1)
    v_xor_b32 v11, v11, v10
    v_lshl_add_u32 v11, v11, 4, v9
    v_and_b32 v12, 1, v0
    v_lshl_add_u32 v{WA(0,0)}, v12, 3, v11
    v_xor_b32 v{WA(0,1)}, 32, v{WA(0,0)}
    v_xor_b32 v{WA(0,2)}, 64, v{WA(0,0)}
    v_xor_b32 v{WA(0,3)}, 96, v{WA(0,0)}
    """)
    for sg in (1, 2):
        for i in range(6):
            a(f"v_add_u32 v{14+sg*6+i}, {sg*64*K}, v{14+i}")
    EA = [196, 197, 198, 199]
    a(f"""
    s_lshl_b32 s{T0}, s{sTB}, 2
    s_and_b32 s{T1}, s{sCW}, 2
    s_add_u32 s{T0}, s{T0}, s{T1}
    s_lshr_b32 s{T1}, s{sWAVE}, 2
    s_xor_b32 s{T1}, s{T1}, 1
    s_lshl_b32 s{T1}, s{T1}, 11                ; p*32*64
    s_add_u32 s{T0}, s{T0}, s{T1}
    s_cmp_ge_u32 s{sM}, 5
    s_cselect_b32 s{T2}, 1, 0                  ; K or V
    s_lshl_b32 s{T3}, 1280, s{T2}
    s_mul_i32 s{sEQ}, s{T0}, s{T3}
    s_mul_i32 s{T0}, s{T2}, {KV_OFF}
    s_add_u32 s{sEQ}, s{sEQ}, s{T0}
    s_add_u32 s{sEK}, s{sEQ}, s{T3}
    s_lshl_b32 s{T3}, s{T3}, 6
    s_and_b32 s{T1}, s{sCW}, 1
    s_cmp_ge_u32 s{sM}, 10
    s_cbranch_scc1 L_ea1
    s_mul_i32 s{T0}, s{T2}, 5
    s_sub_u32 s{T0}, s{sM}, s{T0}
    s_lshl_b32 s{T0}, s{T0}, 5
    s_lshl_b32 s{T1}, s{T1}, 4
    s_add_u32 s{T0}, s{T0}, s{T1}
    v_add_u32 v8, s{T0}, v7
    v_lshlrev_b32 v10, 4, v6
    """)
    for ct in range(4):
        a(f"""
        v_add_u32 v9, {4*ct}, v8
        v_mul_u32_u24 v11, 205, v9
        v_lshrrev_b32 v11, 10, v11
        v_mul_u32_u24 v12, 5, v11
        v_sub_u32 v12, v9, v12
        v_mul_lo_u32 v11, v11, s{T3}
        v_lshl_add_u32 v12, v12, 8, v10
        v_add_u32 v{EA[ct]}, v11, v12
        """)
    a(f"""
    s_branch L_ea2
    L_ea1:
    s_sub_u32 s{T0}, s{sM}, 10
    s_lshl_b32 s{T0}, s{T0}, 7
    s_lshl_b32 s{T1}, s{T1}, 6
    s_add_u32 s{T0}, s{T0}, s{T1}
    v_add_u32 v8, s{T0}, v6
    v_mul_u32_u24 v10, 320, v7
    v_add_u32 v10, 1280, v10
    """)
    for ct in range(4):
        a(f"""
        v_add_u32 v9, {16*ct}, v8
        v_mul_u32_u24 v11, 3277, v9
        v_lshrrev_b32 v11, 16, v11
        v_mul_u32_u24 v12, 20, v11
        v_sub_u32 v12, v9, v12
        v_mul_lo_u32 v11, v11, s{T3}
        v_lshl_add_u32 v12, v12, 4, v10
        v_add_u32 v{EA[ct]}, v11, v12
        """)
    a.label("L_ea2")
    a(f"""
    s_lshl_b32 s{sQT}, s{sQB}, 3
    s_add_u32 s{sQT}, s{sQT}, s{sWAVE}
    s_lshl_b32 s{sW1K}, s{sWAVE}, 10
    s_mov_b32 s{sVM}, 0x000fffff
    s_mov_b32 s{sVM+1}, 0x000fffff
    s_mov_b32 s{sLO}, -1
    s_mov_b32 s{sLO+1}, 0
    s_mov_b32 s{sCS}, {CSCALE}
    s_mov_b32 s{sONE}, 0x3f80
    s_mul_i32 s{sKVB}, s{sHEAD}, 163840
    s_add_u32 s{sKVB}, s{sKVB}, {KV_OFF}
    """)

    ACC = lambda ct, tt: 128 + (ct * 4 + tt) * 4
    XF = lambda buf, tt: 64 + buf * 32 + tt * 4
    WF = lambda buf, ct: 64 + buf * 32 + 16 + ct * 4

    def g1reads(i, kk):
        slot = i % 5
        sg, so = slot >> 1, (slot & 1) * 32 * K
        r = []
        for q in range(4):
            r.append(f"ds_read_b128 {vr(XF(kk,q),4)}, v{XA(sg,kk)} offset:{so + q*2048}")
            for rd in range(2):
                r.append(f"ds_read_b64_tr_b16 {vr(WF(kk,q)+2*rd,2)}, v{WA(sg,q)} offset:{so + kk*8192 + rd*1024}")
        return r

    VPG0, VPG1, VPO = 202, 203, 204

    def own_flag(kind, p, dst):
        if kind == 0:
            return [f"s_lshl_b32 s{dst}, s{sM}, 8", f"s_lshl_b32 s{T5}, s{sTB}, 2", f"s_add_u32 s{dst}, s{dst}, s{T5}",
                    f"s_add_u32 s{dst}, s{dst}, {FL_OFF + p*4096}"]
        return [f"s_lshl_b32 s{dst}, s{sQB}, 8", f"s_lshl_b32 s{T5}, s{sHEAD}, 2", f"s_add_u32 s{dst}, s{dst}, s{T5}",
                f"s_add_u32 s{dst}, s{dst}, {FL_OFF + 8192 + p*2048}"]

    def only_wave(wave):
        lab = a.uniq("L_w")
        a(f"s_cmp_lg_u32 s{sWAVE}, {wave}")
        a(f"s_cbranch_scc1 {lab}")
        return lab

    def publish(kind, p, wave):
        lab = only_wave(wave)
        a(own_flag(kind, p, T4))
        a(f"""
        v_mov_b32 v1, 1
        s_mov_b64 exec, 1
        buffer_store_dword v1, off, {srd(SWS)}, s{T4} sc1
        s_mov_b64 exec, -1
        """)
        a.label(lab)

    def poll_loads(kind, p):
        if kind == 0:
            return [f"s_mov_b32 s{T3}, {FL_OFF + p*4096}",
                    f"buffer_load_dword v1, v{VPG0}, {srd(SWS)}, s{T3} offen sc1",
                    f"buffer_load_dword v205, v{VPG1}, {srd(SWS)}, s{T3} offen sc1"]
        if kind == 1:
            return [f"s_mov_b32 s{T3}, {FL_OFF + 8192 + p*2048}",
                    f"buffer_load_dword v1, v{VPO}, {srd(SWS)}, s{T3} offen sc1"]
        return [f"buffer_load_dword v1, v206, {srd(SDBG)}, 0 offen sc1"]

    def poll_issue(kind, p, wave=0):
        lab = only_wave(wave)
        a(poll_loads(kind, p))
        a.label(lab)

    def poll_check(kind, p, sleep=8, wave=0):
        lab = only_wave(wave)
        loop = a.uniq("L_spin")
        a(f"s_mov_b32 s{sCNT}, 0x20000")
        a.label(loop)
        a("s_waitcnt vmcnt(0)")
        if kind == 0:
            a("v_and_b32 v1, v1, v205")
        a("v_cmp_le_u32 vcc, 64, v1" if kind == 2 else "v_cmp_eq_u32 vcc, 1, v1")
        a(f"""
        s_cmp_eq_u64 vcc, -1
        s_cbranch_scc1 {lab}
        s_sleep {sleep}
        """)
        a(poll_loads(kind, p))
        a(f"""
        s_sub_u32 s{sCNT}, s{sCNT}, 1
        s_cmp_lg_u32 s{sCNT}, 0
        s_cbranch_scc1 {loop}
        s_waitcnt vmcnt(0)
        """)
        a.label(lab)

    a(f"""
    s_mul_i32 s{T0}, s{sHEAD}, 20
    s_add_u32 s{T1}, s{T0}, 19
    s_lshr_b32 s{T0}, s{T0}, 7
    s_lshr_b32 s{T1}, s{T1}, 7
    s_lshl_b32 s{T0}, s{T0}, 8
    s_lshl_b32 s{T1}, s{T1}, 8
    v_mul_u32_u24 v8, 1280, v7
    v_lshl_add_u32 v8, v6, 2, v8
    v_add_u32 v{VPG0}, s{T0}, v8
    v_add_u32 v{VPG1}, s{T1}, v8
    v_cmp_eq_u32 vcc, 3, v7
    s_nop 1
    v_cndmask_b32 v{VPG0}, v{VPG0}, v8, vcc
    v_cndmask_b32 v{VPG1}, v{VPG1}, v8, vcc
    v_and_b32 v8, 31, v0
    v_lshlrev_b32 v8, 2, v8
    s_lshl_b32 s{T0}, s{sXCD}, 8
    v_add_u32 v{VPO}, s{T0}, v8
    v_and_b32 v8, 3, v0
    v_lshlrev_b32 v206, 6, v8
    """)
    def count_in():
        lab = only_wave(0)
        a(f"""
        s_and_b32 s{T4}, s2, 3
        s_lshl_b32 s{T4}, s{T4}, 6
        v_mov_b32 v1, 1
        s_mov_b64 exec, 1
        buffer_atomic_add v1, off, {srd(SDBG)}, s{T4} sc1
        s_mov_b64 exec, -1
        """)
        a.label(lab)

    a(f"s_cmp_eq_u32 s{sM}, 15")
    a("s_cbranch_scc1 L_idle")

    a(f"s_cmp_lt_u32 s{sWAVE}, 4")
    a("s_cbranch_scc1 L_xstart")
    for n in range(11):
        a("s_waitcnt vmcnt(24)")
        a("s_barrier")
        if n <= 9:
            a(dma_stage(n + 4))
    a("s_setprio 3")
    a("s_branch L_compute")
    a.label("L_xstart")
    a(f"""
    s_add_u32 s{sKS}, s{sKS}, 3
    s_cmp_ge_u32 s{sKS}, 10
    s_cselect_b32 s{T0}, 10, 0
    s_sub_u32 s{sKS}, s{sKS}, s{T0}
    s_waitcnt vmcnt({4 if OPT.get("touchA", 0) else 1})
    s_barrier
    """)
    a.label("L_compute")
    stamp(a, 1)
    stamp(a, 1, 1)
    a(g1reads(0, 0))
    a(f"s_cmp_ge_u32 s{sM}, 10")
    a("s_cbranch_scc1 L_comp1")

    def interleave(ms, rs):
        out = []
        ri = 0
        for i, m in enumerate(ms):
            out.append(m)
            if ri < len(rs):
                out.append(rs[ri]); ri += 1
        out += rs[ri:]
        return out

    for cg in range(2):
        if cg == 1:
            a.label("L_comp1")

        def mm(i, kk):
            out = []
            for ct in range(4):
                for tt in range(4):
                    c = None if (i == 0 and kk == 0) else ACC(ct, tt)
                    if cg == 1:
                        out.append(mfma16(ACC(ct, tt), XF(kk, tt), WF(kk, ct), c))
                    else:
                        out.append(mfma16(ACC(ct, tt), WF(kk, ct), XF(kk, tt), c))
            return out
        for i in range(10):
            a("s_waitcnt lgkmcnt(0)")
            a(interleave(mm(i, 0), g1reads(i, 1)))
            TB_ = OPT.get("tb", 0)
            if i == TB_:
                lab = a.uniq("L_x")
                a(f"s_cmp_ge_u32 s{sWAVE}, 4\ns_cbranch_scc1 {lab}\ns_waitcnt vmcnt(0)\n{lab}:")
            if i == 2:
                lab = a.uniq("L_y")
                a(f"s_cmp_lt_u32 s{sWAVE}, 4\ns_cbranch_scc1 {lab}\ns_waitcnt vmcnt(0)\n{lab}:")
            a(f"s_waitcnt lgkmcnt(0) vmcnt({[16, 8][i]})" if i < 2 else "s_waitcnt lgkmcnt(0)")
            if i >= 7:
                lab = a.uniq("L_nb")
                a(f"s_cmp_ge_u32 s{sWAVE}, 4")
                a(f"s_cbranch_scc1 {lab}")
                a("s_barrier")
                a.label(lab)
            else:
                a("s_barrier")
            if i == TB_:
                count_in()
                if OPT.get("touchB", 0):
                    lab = a.uniq("L_x")
                    a(f"s_cmp_ge_u32 s{sWAVE}, 4\ns_cbranch_scc1 {lab}")
                    a(touch(1))
                    a.label(lab)
            if i in (1, 3, 5, 7, 9):
                stamp(a, 2 + i // 2, 1)
            a(interleave(mm(i, 1), g1reads(i + 1, 0) if i < 9 else []))
        if cg == 0:
            a("s_branch L_g1epi")
    a.label("L_g1epi")
    stamp(a, 2)
    lab = a.uniq("L_noload")
    a(f"s_cmp_ge_u32 s{sWAVE}, 4")
    a(f"s_cbranch_scc1 {lab}")
    a(dma_stage(14))
    a("s_barrier")
    a(dma_stage(15))
    a(f"s_branch {lab}_j")
    a.label(lab)
    a("v_mov_b32 v10, 0\nv_mov_b32 v11, 1\ns_mov_b64 exec, 1\nds_add_u32 v10, v11 offset:8\ns_mov_b64 exec, -1")
    a.label(lab + "_j")
    stamp(a, 7, 1)
    a("s_nop 7")
    t = 64
    for ct in range(4):
        for tp in range(2):
            for h in range(2):
                s_ = ACC(ct, 2 * tp + h)
                a(f"v_cvt_pk_bf16_f32 v{t+2*h}, v{s_}, v{s_+1}")
                a(f"v_cvt_pk_bf16_f32 v{t+2*h+1}, v{s_+2}, v{s_+3}")
            a(f"buffer_store_dwordx4 {vr(t,4)}, v{EA[ct]}, {srd(SWS)}, s{sEQ if tp == 0 else sEK} offen {HST}")
            t += 4
    a.label("L_g1tail")
    stamp(a, 8, 1)

    S = [32, 48, 64, 80]
    O = 96
    QL, QH = [112, 118], [116, 122]
    KL, KH = [124, 130], [128, 134]
    VF = [136, 144]
    MD, MF = 152, 168
    VK, VV = 4, 6
    VIDX, VDMA, VQ = 7, 8, 9
    QB_OFF = 1 * K
    CH = [11 * K, 51 * K, 91 * K, 1 * K]
    A_OFF = 50 * K
    WOL = [[50 * K, 0], [110 * K, 0]]
    SCR = [130 * K, 110 * K]
    OF = lambda i: 208 + 4 * i
    VOF, VW3, VOUT, VRED = 197, 198, 200, 201

    def lds_wait(off, val, sleep=1):
        loop = a.uniq("L_lw")
        a(f"s_mov_b32 s{sCNT}, 0x400000\nv_mov_b32 v10, 0")
        a.label(loop)
        a(f"""
        ds_read_b32 v11, v10 offset:{off}
        s_waitcnt lgkmcnt(0)
        v_readfirstlane_b32 s{T0}, v11
        s_cmp_eq_u32 s{T0}, {val}
        s_cbranch_scc1 {loop}_ok
        s_sleep {sleep}
        s_sub_u32 s{sCNT}, s{sCNT}, 1
        s_cmp_lg_u32 s{sCNT}, 0
        s_cbranch_scc1 {loop}
        {loop}_ok:
        """)

    a(f"s_cmp_ge_u32 s{sWAVE}, 4")
    a("s_cbranch_scc1 L_attn_setup")
    a("s_barrier")
    poll_issue(2, 0)
    a(dma_stage(16))
    a("s_barrier")
    stamp(a, 9, 1)
    a("s_waitcnt vmcnt(0)")
    stamp(a, 10, 1)
    poll_check(2, 0)
    a(dma_stage(17))
    a("s_barrier")
    publish(0, 1, 1)
    a(dma_stage(18))
    a("s_barrier")
    a(dma_stage(19))
    a("s_barrier")
    a("v_mov_b32 v10, 0\nv_mov_b32 v11, 0\nds_write_b64 v10, v[10:11]\nds_write_b32 v10, v10 offset:8")
    a("s_waitcnt vmcnt(0) lgkmcnt(0)")
    a("s_barrier")
    a.label("L_xfree")
    stamp(a, 3)
    stamp(a, 11, 1)
    a(f"v_lshlrev_b32 v{VDMA}, 4, v0")
    poll_issue(0, 1)
    poll_check(0, 1, sleep=4)
    lab = only_wave(0)
    a("v_mov_b32 v10, 0\nv_mov_b32 v11, 1\nds_write_b32 v10, v11")
    a.label(lab)
    lds_wait(0, 1)
    stamp(a, 4)
    stamp(a, 12, 1)
    a(f"""
    s_mul_i32 s{T3}, s{sHEAD}, 81920
    s_mul_i32 s{T4}, s{sQB}, 10240
    s_add_u32 s{T3}, s{T3}, s{T4}
    s_add_u32 s{T3}, s{T3}, s{sW1K}
    s_add_u32 s{T0}, s{sKVB}, s{sW1K}
    """)
    for j in range(3):
        lab = None
        if j == 2:
            lab = a.uniq("L_q")
            a(f"s_cmp_ge_u32 s{sWAVE}, 2\ns_cbranch_scc1 {lab}")
        a(f"""
        s_add_u32 m0, s{sW1K}, {QB_OFF + j*4096}
        s_add_u32 s{T2}, s{T3}, {QW_OFF + 32*81920 + j*4096}
        buffer_load_dwordx4 v{VDMA}, {srd(SWS)}, s{T2} offen {HS} lds
        """)
        if lab:
            a.label(lab)
    for j in range(10):
        a(f"""
        s_add_u32 m0, s{sW1K}, {CH[0] + j*4096}
        s_add_u32 s{T2}, s{T0}, {32*163840 + j*4096}
        buffer_load_dwordx4 v{VDMA}, {srd(SWS)}, s{T2} offen {HS} lds
        """)
    a.label("L_attn_setup")
    a(f"""
    v_lshlrev_b32 v{VDMA}, 4, v0
    v_lshrrev_b32 v11, 5, v0               ; h
    v_and_b32 v12, 31, v0                  ; i
    v_and_b32 v13, 3, v12
    v_lshrrev_b32 v14, 3, v12
    v_lshl_add_u32 v13, v14, 2, v13        ; kappa & 15
    v_bfe_u32 v14, v12, 2, 1               ; kappa >> 4
    v_lshlrev_b32 v15, 4, v13
    v_lshl_add_u32 v16, v14, 3, v15
    v_lshl_add_u32 v16, v11, 8, v16
    v_add_u32 v{VK}, {CH[0]}, v16
    v_mul_u32_u24 v16, 20, v11
    v_add_u32 v16, v16, v12
    v_lshlrev_b32 v16, 4, v16
    v_add_u32 v{VV}, {CH[0] + 1280}, v16
    v_and_b32 v15, 15, v12
    v_lshlrev_b32 v15, 4, v15
    v_lshrrev_b32 v16, 4, v12
    v_lshl_add_u32 v15, v16, 3, v15        ; (q&15)*16 + (q>>4)*8
    v_lshl_add_u32 v{VQ}, v11, 8, v15
    v_mov_b32 v{VIDX}, 0xdddddddd
    v_and_b32 v17, 0x1b, v12
    v_cmp_eq_u32 vcc, 24, v17
    v_mov_b32 v16, 0x3f803f80
    s_nop 0
    v_cndmask_b32 v17, 0, v16, vcc
    """)
    for b in range(2):
        a(f"v_mov_b32 v{KH[b]}, 0x3f803f80")
        a(f"v_mov_b32 v{KH[b]+1}, 0x00003f80")
        for i in range(8):
            a(f"v_mov_b32 v{VF[b]+i}, v17")

    def mask_setup():
        out = [["v_lshrrev_b32 v13, 5, v0", "v_lshlrev_b32 v13, 4, v13", "v_and_b32 v12, 31, v0",
                "v_sub_u32 v13, v12, v13", f"v_mov_b32 v14, {NEGBIG}"]]
        for r in range(0, 16, 2):
            out.append([f"v_cmp_le_i32 s[{T0}:{T0+1}], {r}, v13",
                        f"v_cmp_le_i32 s[{T2}:{T2+1}], {r+1}, v13",
                        "s_nop 0",
                        f"v_cndmask_b32 v{MD+r}, v14, 0, s[{T0}:{T0+1}]",
                        f"v_cndmask_b32 v{MF+r}, 0, v14, s[{T0}:{T0+1}]",
                        f"v_cndmask_b32 v{MD+r+1}, v14, 0, s[{T2}:{T2+1}]",
                        f"v_cndmask_b32 v{MF+r+1}, 0, v14, s[{T2}:{T2+1}]"])
        return out

    def scale_q(p):
        for r in [QL[p] + i for i in range(4)] + [QH[p], QH[p] + 1]:
            a(f"""
            v_lshlrev_b32 v15, 16, v{r}
            v_and_b32 v16, 0xffff0000, v{r}
            v_mul_f32 v15, s{sCS}, v15
            v_mul_f32 v16, s{sCS}, v16
            v_cvt_pk_bf16_f32 v{r}, v15, v16
            """)
        reset_m(p)

    def reset_m(p):
        a(f"""
        v_mov_b32 v15, 0x3f800000
        v_cndmask_b32 v{QH[p]}, 0, v{QH[p]}, s[{sLO}:{sLO+1}]
        v_cndmask_b32 v{QH[p]+1}, v15, v{QH[p]+1}, s[{sLO}:{sLO+1}]
        """)

    def set_m(p, M):
        a(f"""
        v_mov_b32 v15, v{M}
        s_nop 1
        v_permlane32_swap_b32 v15, v{M}
        s_nop 1
        v_max_f32 v15, v15, v{M}
        v_sub_f32 v15, 0, v15                  ; -m
        v_and_b32 v16, 0xffff0000, v15         ; hi
        v_sub_f32 v17, v15, v16
        v_and_b32 v18, 0xffff0000, v17         ; mid
        v_sub_f32 v17, v17, v18                ; lo
        v_lshrrev_b32 v16, 16, v16
        v_or_b32 v16, v16, v18
        v_lshrrev_b32 v17, 16, v17
        v_or_b32 v17, 0x3f800000, v17
        v_cndmask_b32 v{QH[p]}, v16, v{QH[p]}, s[{sLO}:{sLO+1}]
        v_cndmask_b32 v{QH[p]+1}, v17, v{QH[p]+1}, s[{sLO}:{sLO+1}]
        """)

    def kreads(buf, off, restore=True):
        return [f"ds_read2st64_b64 {vr(KL[buf],4)}, v{VK} offset0:{off//512} offset1:{off//512+1}",
                f"s_mov_b64 exec, s[{sLO}:{sLO+1}]",
                f"ds_read_b64 {vr(KH[buf],2)}, v{VK} offset:{off+1024}"] + (["s_mov_b64 exec, -1"] if restore else [])

    def vreads(buf, off):
        return [f"s_mov_b64 exec, s[{sVM}:{sVM+1}]",
                f"ds_read_b128 {vr(VF[buf],4)}, v{VV} offset:{off}",
                f"ds_read_b128 {vr(VF[buf]+4,4)}, v{VV} offset:{off+640}",
                "s_mov_b64 exec, -1"]

    def qk(Sd, buf, p, C=None):
        return [mfma32(Sd, KL[buf], QL[p], C), mfma32k8(Sd, KH[buf], QH[p], Sd)]

    def pv(Ss, buf):
        return [f"v_smfmac_f32_32x32x32_bf16 {vr(O,16)}, {vr(VF[buf],4)}, {vr(Ss,8)}, v{VIDX}",
                f"v_smfmac_f32_32x32x32_bf16 {vr(O,16)}, {vr(VF[buf]+4,4)}, {vr(Ss+8,8)}, v{VIDX}"]

    def exps(Ss):
        return [f"v_exp_f32 v{Ss+i}, v{Ss+i}" for i in range(16)]

    def maxtree(M, Ss, first):
        out = []
        if first:
            out.append(f"v_max3_f32 v{M}, v{Ss}, v{Ss+1}, v{Ss+2}")
            rest = list(range(3, 16))
        else:
            rest = list(range(16))
        while len(rest) >= 2:
            out.append(f"v_max3_f32 v{M}, v{M}, v{Ss+rest[0]}, v{Ss+rest[1]}")
            rest = rest[2:]
        if rest:
            out.append(f"v_max_f32 v{M}, v{M}, v{Ss+rest[0]}")
        return out

    def zero_o():
        for i in range(16):
            a(f"v_mov_b32 v{O+i}, 0")

    def epilogue(p):
        a(f"""
        v_rcp_f32 v15, v{O+12}
        s_mul_i32 s{T0}, s{sQT}, 40960
        s_add_u32 s{T0}, s{T0}, {OW_OFF + p*64*40960}
        s_lshl_b32 s{T1}, s{sHEAD}, 10
        s_add_u32 s{T1}, s{T1}, s{T0}
        s_lshr_b32 s{T2}, s{sHEAD}, 2
        s_add_u32 s{T2}, s{T2}, 32
        s_lshl_b32 s{T2}, s{T2}, 10
        s_add_u32 s{T2}, s{T2}, s{T0}
        s_and_b32 s{T3}, s{sHEAD}, 1
        s_lshl_b32 s{T3}, s{T3}, 9
        s_add_u32 s{T2}, s{T2}, s{T3}
        s_and_b32 s{T3}, s{sHEAD}, 2
        s_lshl_b32 s{T3}, s{T3}, 2
        s_add_u32 s{T2}, s{T2}, s{T3}
        """)
        for i in range(12):
            a(f"v_mul_f32 v{O+i}, v{O+i}, v15")
        for i in range(6):
            a(f"v_cvt_pk_bf16_f32 v{20+i}, v{O+2*i}, v{O+2*i+1}")
        a(f"""
        buffer_store_dwordx4 v[20:23], v{VDMA}, {srd(SWS)}, s{T1} offen {HST}
        s_mov_b64 exec, s[{sLO}:{sLO+1}]
        buffer_store_dwordx2 v[24:25], v{VDMA}, {srd(SWS)}, s{T2} offen {HST}
        s_mov_b64 exec, -1
        """)

    def tile_step(t, n, p, koff, voff, cmask, extra_k=None, hooks=None):
        a("s_waitcnt lgkmcnt(0)")
        rd = []
        if t + 2 < n:
            rd += kreads(t & 1, koff(t + 2), restore=(t >= n))
        if t < n:
            rd += vreads(t & 1, voff(t))
        if extra_k and t + 2 < n:
            rd += extra_k(t & 1, t + 2)
        q = qk(S[(t + 1) & 3], (t + 1) & 1, p, cmask(t + 1)) if t + 1 < n else []
        pp = pv(S[(t - 1) & 3], (t - 1) & 1) if t >= 1 else []
        e = exps(S[t & 3]) if t < n else []
        if t == 0:
            a("s_nop 10")
        ms = q + pp
        if not e:
            a(["s_nop 1"] + ms)
            return
        hooks = hooks or []
        for i in range(4):
            if i < len(ms):
                a(ms[i])
            a(e[4 * i:4 * i + 2])
            if i == 0:
                a(rd)
            elif hooks:
                nh = (len(hooks) + 2) // 3
                for hk in hooks[(i - 1) * nh:i * nh]:
                    a(hk)
            a(e[4 * i + 2:4 * i + 4])

    def g3_setup():
        return [["v_lshrrev_b32 v10, 4, v0",
                 "v_lshlrev_b32 v11, 9, v10",
                 "v_and_b32 v12, 15, v0",
                 f"v_lshl_add_u32 v{VOF}, v12, 4, v11"],
                ["v_mul_u32_u24 v12, 2560, v12",
                 "v_mul_u32_u24 v10, 40, v10",
                 f"v_add_u32 v{VOUT}, v12, v10"],
                [f"s_cmp_lt_u32 s{sWAVE}, 4",
                 f"s_cselect_b32 s{T0}, {WOL[1][0]}, {WOL[1][1]}",
                 f"v_add_u32 v{VW3}, s{T0}, v{VDMA}",
                 f"s_mul_i32 s{T0}, s{sCW}, 5120",
                 f"v_add_u32 v{VRED}, s{T0}, v{VDMA}"]]

    def wo_piece(p, q0, ldsbase, cond=None):
        o = [f"s_add_u32 m0, s{sW1K}, {ldsbase & 0xffffffff}",
             f"s_add_u32 s{T1}, s{sKVS}, {WP_OFF + p*819200 + q0*1024}",
             f"buffer_load_dwordx4 v{VDMA}, {srd(SWS)}, s{T1} offen {HS} lds"]
        if cond is not None:
            lab = a.uniq("L_wo")
            o = [f"s_cmp_ge_u32 s{sWAVE}, {cond}", f"s_cbranch_scc1 {lab}"] + o + [f"{lab}:"]
        return o

    def wo_half(p, kh):
        return [wo_piece(p, 50 * kh + 8 * k, WOL[p][kh] + 8 * k * 1024, cond=2 if k == 6 else None) for k in range(7)]

    def wo_base():
        return [f"s_mul_i32 s{sKVS}, s{sQB}, 102400", f"s_add_u32 s{sKVS}, s{sKVS}, s{sW1K}"]

    def o_base(p):
        return [f"s_lshl_b32 s{T0}, s{sHEAD}, 1",
                f"s_lshr_b32 s{T1}, s{sCW}, 1",
                f"s_add_u32 s{T0}, s{T0}, s{T1}",
                f"s_mul_i32 s{T0}, s{T0}, 40960",
                f"s_and_b32 s{T1}, s{sCW}, 1",
                f"s_lshl_b32 s{T1}, s{T1}, 8",
                f"s_add_u32 s{T0}, s{T0}, s{T1}",
                f"s_add_u32 s{T0}, s{T0}, {OW_OFF + p*64*40960}",
                f"s_lshr_b32 s{T1}, s{sWAVE}, 2",
                f"s_lshl_b32 s{sEK}, s{T1}, 12",
                f"s_add_u32 s{sEK}, s{sEK}, s{T0}",
                f"s_add_u32 s{sEK}, s{sEK}, {16*2048}",
                f"s_lshl_b32 s{T1}, s{T1}, 14",
                f"s_add_u32 s{sEQ}, s{T0}, s{T1}"]

    def o_load(i):
        if i < 8:
            out = [f"buffer_load_dwordx4 {vr(OF(i),4)}, v{VOF}, {srd(SWS)}, s{sEQ} offen offset:{(i&1)*2048} {HS}"]
            if i & 1:
                out.append(f"s_add_u32 s{sEQ}, s{sEQ}, 4096")
            return out
        return [f"buffer_load_dwordx4 {vr(OF(i),4)}, v{VOF}, {srd(SWS)}, s{sEK} offen offset:{(i-8)*2048} {HS}"]

    zero_o()
    lab = a.uniq("L_xl")
    a(f"s_cmp_ge_u32 s{sWAVE}, 4\ns_cbranch_scc1 {lab}")
    a("s_waitcnt vmcnt(0)\nv_mov_b32 v10, 0\nv_mov_b32 v11, 1\ns_mov_b64 exec, 1\nds_add_u32 v10, v11 offset:4\ns_mov_b64 exec, -1")
    a(f"s_branch {lab}_j")
    a.label(lab)
    lds_wait(8, 4)
    a.label(lab + "_j")
    lds_wait(4, 4)
    stamp(a, 5)
    stamp(a, 13, 1)
    a(f"""
    s_mul_i32 s{T0}, s{sWAVE}, 1280
    s_add_u32 s{T0}, s{T0}, {QB_OFF}
    v_add_u32 v15, s{T0}, v{VQ}
    ds_read2st64_b64 {vr(QL[1],4)}, v15 offset0:0 offset1:1
    ds_read_b64 {vr(QH[1],2)}, v15 offset:1024
    s_add_u32 s{sKVS}, s{sKVB}, s{sW1K}
    """)
    a(kreads(0, 0))
    a(kreads(1, 2560))
    a("s_waitcnt lgkmcnt(4)")
    scale_q(1)
    a("s_waitcnt lgkmcnt(2)")
    a(qk(S[0], 0, 1))
    a("s_nop 15")
    a(maxtree(19, S[0], True))
    set_m(1, 19)
    a("s_nop 1")
    a(qk(S[0], 0, 1))

    def dmaY(j):
        lab = a.uniq("L_dy")
        return [f"s_cmp_lt_u32 s{sWAVE}, 4", f"s_cbranch_scc1 {lab}",
                f"s_add_u32 m0, s{sW1K}, {CH[1] + j*4096 - 4096}",
                f"s_add_u32 s{T2}, s{sKVS}, {32*163840 + 40960 + j*4096 - 4096}",
                f"buffer_load_dwordx4 v{VDMA}, {srd(SWS)}, s{T2} offen {HS} lds", f"{lab}:"]

    def dma3(r):
        return [f"s_add_u32 m0, s{sW1K}, {CH[3] + r*8192}",
                f"s_add_u32 s{T2}, s{sKVS}, {32*163840 + 3*40960 + r*8192}",
                f"buffer_load_dwordx4 v{VDMA}, {srd(SWS)}, s{T2} offen {HS} lds"]

    def dmaA(j):
        out = [f"s_mul_i32 s{T1}, s{sQB}, 20480", f"s_sub_u32 s{T1}, s{T1}, 20480"]
        if j < 2:
            out += [f"s_max_i32 s{T1}, s{T1}, 0"]
        elif j == 2:
            out += [f"s_max_i32 s{T0}, s{T1}, 0", f"s_cmp_lt_u32 s{sWAVE}, 4", f"s_cselect_b32 s{T1}, s{T0}, s{T1}"]
        out += [f"s_add_u32 s{T1}, s{T1}, s{sKVS}", f"s_add_u32 m0, s{sW1K}, {A_OFF + j*8192}",
                f"s_add_u32 s{T1}, s{T1}, {j*8192}",
                f"buffer_load_dwordx4 v{VDMA}, {srd(SWS)}, s{T1} offen {HS} lds"]
        return out

    qa_loads = [f"s_mul_i32 s{T0}, s{sHEAD}, 81920",
                f"s_mul_i32 s{T2}, s{sQT}, 1280",
                f"s_add_u32 s{T0}, s{T0}, s{T2}",
                f"buffer_load_dwordx2 {vr(QL[0],2)}, v{VQ}, {srd(SWS)}, s{T0} offen {HS}",
                f"buffer_load_dwordx2 {vr(QL[0]+2,2)}, v{VQ}, {srd(SWS)}, s{T0} offen offset:512 {HS}",
                f"s_mov_b64 exec, s[{sLO}:{sLO+1}]",
                f"buffer_load_dwordx2 {vr(QH[0],2)}, v{VQ}, {srd(SWS)}, s{T0} offen offset:1024 {HS}",
                "s_mov_b64 exec, -1"]
    assert QW_OFF == 0

    NT = 64
    ms = mask_setup()
    for t in range(NT + 1):
        hooks = []
        if t < 10:
            hooks = [dmaY(2 * t), dmaY(2 * t + 1)]
        if t == 14:
            a("s_waitcnt vmcnt(0) lgkmcnt(0)\ns_barrier")
            stamp(a, 6)
            stamp(a, 14, 1)
            publish(0, 0, 4)
        if 14 <= t < 19:
            hooks = [dma3(t - 14)]
        if t == 20:
            hooks = g3_setup()
        if t == 22:
            hooks = [[f"s_mul_i32 s{T0}, s{sJ}, 25600", f"s_mul_i32 s{T1}, s{sWAVE}, 3200", f"s_add_u32 s{T0}, s{T0}, s{T1}", f"s_add_u32 s{T0}, s{T0}, {WP_OFF}"] +
                     [f"buffer_load_dwordx4 {vr(OF(i),4)}, v{VDMA}, {srd(SWS)}, s{T0} offen offset:{off} {HS}" for i, off in enumerate((0, 1024, 2048, 2176))]]
        if 23 <= t < 26:
            hooks = ms[3 * (t - 23):3 * (t - 22)]
        if t == 29:
            poll_issue(0, 0)
        if t == 33:
            poll_check(0, 0)
            a("s_waitcnt vmcnt(0) lgkmcnt(0)\ns_barrier")
            stamp(a, 7)
        if 33 <= t < 38:
            hooks = [dmaA(t - 33)]
        if t == 38:
            hooks = [qa_loads]
        if t == 40:
            hooks = [wo_base()]
        if t == 49:
            a("s_waitcnt vmcnt(0) lgkmcnt(0)\ns_barrier")
            stamp(a, 8)
        if 49 <= t < 56:
            hooks = [wo_half(1, 0)[t - 49]]
        if OPT.get("prio", 1):
            pr = {14: 3, 19: 2, 24: 1, 29: 0, 33: 3, 37: 2, 41: 1, 45: 0, 49: 3, 53: 2, 57: 1, 61: 0}
            if t in pr:
                a(f"s_setprio {pr[t]}")
        if (t + 2) % 16 == 0 and t + 2 < NT:
            c = (t + 2) // 16
            a(f"v_add_u32 v{VK}, {(CH[c] - CH[c - 1]) & 0xffffffff}, v{VK}")
        if t % 16 == 0 and 0 < t < NT:
            c = t // 16
            a(f"v_add_u32 v{VV}, {(CH[c] - CH[c - 1]) & 0xffffffff}, v{VV}")
        tile_step(t, NT, 1, lambda u: (u & 15) * 2560, lambda u: (u & 15) * 2560, lambda u: None, hooks=hooks)
    scale_q(0)
    a(f"v_mul_f32 v15, 0, v{O}")
    for i in range(1, 13):
        a(f"v_fmac_f32 v15, 0, v{O+i}")
    a("v_cmp_u_f32 vcc, v15, v15")
    a("s_nop 4")
    a("s_cbranch_vccnz L_slowB")
    a.label("L_epiB")
    epilogue(1)
    stamp(a, 9)
    stamp(a, 1, 2)

    a(f"""
    s_mul_i32 s{T0}, s{sWAVE}, 2560
    s_add_u32 s{T0}, s{T0}, {A_OFF - CH[3]}
    v_add_u32 v{VK}, s{T0}, v{VK}
    v_add_u32 v{VV}, s{T0}, v{VV}
    """)

    def pen(buf, u):
        return [f"s_cmp_ge_u32 s{sQT}, {8 - u}",
                f"s_cselect_b32 s{T0}, s{sONE}, {(NEGBIG & 0xffff0000) | 0x3f80}",
                f"s_not_b64 exec, s[{sLO}:{sLO+1}]",
                f"v_mov_b32 v{KH[buf]+1}, s{T0}",
                "s_mov_b64 exec, -1"]

    def cmaskA(u):
        return MD if u == 8 else (MF if u == 0 else None)
    a(kreads(0, 0))
    a(pen(0, 0))
    for u in range(9):
        if u + 1 < 9:
            a(kreads((u + 1) & 1, (u + 1) * 2560))
            a("s_waitcnt lgkmcnt(2)")
        else:
            a("s_waitcnt lgkmcnt(0)")
        a("s_nop 0")
        a(qk(S[u & 3], u & 1, 0, cmaskA(u)))
        if u + 1 < 9:
            a(pen((u + 1) & 1, u + 1))
        if u >= 2:
            a(maxtree(19, S[(u - 2) & 3], u == 2))
    a(kreads(0, 0))
    a(kreads(1, 2560))
    zero_o()
    for u in (7, 8):
        a(maxtree(19, S[u & 3], False))
    set_m(0, 19)
    a(pen(0, 0) + pen(1, 1))
    stamp(a, 2, 2)
    a("s_waitcnt vmcnt(0)")
    a("s_barrier")
    publish(1, 1, 4)
    stamp(a, 10)
    stamp(a, 3, 2)
    a("s_waitcnt lgkmcnt(2)")
    a(qk(S[0], 0, 0, cmaskA(0)))
    PI, PC = OPT.get("pi", 5), OPT.get("pc", 7)
    h1 = wo_half(1, 1)
    for t in range(10):
        hooks = []
        if t < 4:
            hooks = h1[2 * t:2 * t + 2]
        if t == 4:
            hooks = [o_base(1)]
        if t == PI:
            poll_issue(1, 1)
        if t == PC:
            poll_check(1, 1, sleep=2)
            a("s_waitcnt vmcnt(0)\ns_barrier")
            stamp(a, 4, 2)
            hooks = [o_load(i) for i in range(5)]
        if t == PC + 1:
            hooks = [o_load(i) for i in range(5, 10)]
        tile_step(t, 9, 0, lambda u: u * 2560, lambda u: u * 2560, cmaskA, extra_k=pen, hooks=hooks)
    a("s_nop 15")
    epilogue(0)
    stamp(a, 11)
    stamp(a, 7, 2)

    GACC = lambda ct: 32 + 4 * ct
    GW = lambda buf, ct: 56 + buf * 20 + 4 * ct

    def g3reads(i):
        return [f"ds_read_b128 {vr(GW(i&1,ct),4)}, v{VW3} offset:{(i*5+ct)*1024}" for ct in range(5)]

    def g3_compute(younger=0, mid=None, hooks=None):
        a(g3reads(0))
        for i in range(10):
            if mid and i == mid[0]:
                mid[1]()
            w = f" vmcnt({9 - i + younger})" if not (mid and i >= mid[0]) else ""
            a("s_waitcnt lgkmcnt(0)" + w)
            rs = g3reads(i + 1) if i < 9 else []
            for ct in range(5):
                a(mfma16(GACC(ct), GW(i & 1, ct), OF(i), None if i == 0 else GACC(ct)))
                a(rs[ct:ct + 1])
            if hooks and i in hooks:
                a(hooks[i])

    def g3_finish(p, after=None):
        l1, l2 = a.uniq("L_r"), a.uniq("L_r")
        a(f"s_cmp_lt_u32 s{sWAVE}, 4\ns_cbranch_scc1 {l1}")
        a(f"v_add_u32 v10, {SCR[p]}, v{VRED}")
        for ct in range(5):
            a(f"ds_write_b128 v10, {vr(GACC(ct),4)} offset:{ct*1024}")
        a("s_waitcnt lgkmcnt(0)")
        a.label(l1)
        a("s_barrier")
        if after:
            after()
        a(f"s_cmp_ge_u32 s{sWAVE}, 4\ns_cbranch_scc1 {l2}")
        a(f"v_add_u32 v10, {SCR[p]}, v{VRED}")
        for ct in range(5):
            a(f"ds_read_b128 {vr(96+4*ct,4)}, v10 offset:{ct*1024}")
        a(f"""
        s_lshl_b32 s{T0}, s{sHEAD}, 2
        s_add_u32 s{T0}, s{T0}, s{sCW}
        s_mul_i32 s{T0}, s{T0}, {16*2560}
        s_mul_i32 s{T1}, s{sQB}, 160
        s_add_u32 s{T0}, s{T0}, s{T1}
        s_add_u32 s{T0}, s{T0}, {p*1280}
        s_waitcnt lgkmcnt(0)
        """)
        for i in range(20):
            a(f"v_add_f32 v{96+i}, v{96+i}, v{32+i}")
        for i in range(10):
            a(f"v_cvt_pk_bf16_f32 v{116+i}, v{96+2*i}, v{96+2*i+1}")
        a(f"""
        buffer_store_dwordx4 v[116:119], v{VOUT}, {srd(SOUT)}, s{T0} offen
        buffer_store_dwordx4 v[120:123], v{VOUT}, {srd(SOUT)}, s{T0} offen offset:16
        buffer_store_dwordx2 v[124:125], v{VOUT}, {srd(SOUT)}, s{T0} offen offset:32
        """)
        a.label(l2)

    MID = OPT.get("mid", 5)

    def mid():
        a("s_waitcnt vmcnt(0)")
        a("s_barrier")
        publish(1, 0, 7)
        stamp(a, 8, 2)
    h0 = wo_half(0, 0)
    per = -(-7 // (10 - MID))
    g3_compute(younger=2, mid=(MID, mid), hooks={MID + i: h0[i * per:(i + 1) * per] for i in range(10 - MID)})
    a("s_barrier")
    stamp(a, 9, 2)
    a("s_nop 4")

    def after():
        lab = a.uniq("L_h1")
        a(f"s_sub_u32 s{T0}, s{sWAVE}, 4\ns_cmp_ge_u32 s{T0}, 3\ns_cbranch_scc1 {lab}")
        for k in range(17):
            a(wo_piece(0, 50 - 4 + 3 * k, WOL[0][1] + (3 * k - 4) * 1024, cond=6 if k == 16 else None))
        a.label(lab)
        poll_issue(1, 0, wave=7)
        poll_check(1, 0, sleep=2, wave=7)
    g3_finish(1, after)
    stamp(a, 12)
    stamp(a, 11, 2)
    a(f"""
    s_cmp_lt_u32 s{sWAVE}, 4
    s_cselect_b32 s{T0}, {(WOL[0][0] - WOL[1][0]) & 0xffffffff}, {WOL[0][1] - WOL[1][1]}
    v_add_u32 v{VW3}, s{T0}, v{VW3}
    """)
    a(o_base(0))
    lab = a.uniq("L_k0")
    a(f"s_waitcnt vmcnt(3)\ns_cmp_lt_u32 s{sWAVE}, 4\ns_cbranch_scc1 {lab}\ns_waitcnt vmcnt(0)\n{lab}:")
    a("s_barrier")
    stamp(a, 13)
    stamp(a, 12, 2)
    for i in range(10):
        a(o_load(i))
    g3_compute()
    stamp(a, 13, 2)
    a("s_nop 7")
    g3_finish(0)
    if STAMPS:
        a("s_waitcnt vmcnt(0)")
        stamp(a, 14)
        stamp(a, 14, 2)
        a("s_waitcnt lgkmcnt(0)")
        a(f"""
        s_lshl_b32 s{T0}, s2, 4
        s_add_u32 s{T0}, s{T0}, s{sWAVE}
        s_lshl_b32 s{T0}, s{T0}, 7
        s_add_u32 s{T0}, s{T0}, {STAMP_OFF}
        s_mov_b64 exec, 1
        """)
        for i in range(15):
            a(f"v_mov_b32 v1, s{SB+2*i}")
            a(f"buffer_store_dword v1, off, {srd(SWS)}, s{T0} offset:{4*i}")
        if OPT.get("dbgst"):
            a(f"s_cmp_lg_u32 s2, {OPT['dbgst']}\ns_cbranch_scc1 L_done\ns_cmp_lg_u32 s{sWAVE}, 0\ns_cbranch_scc1 L_done")
            for i in range(1, 15):
                a(f"s_sub_u32 s{T0}, s{SB+2*i}, s{SB}")
                a(f"v_mov_b32 v1, s{T0}")
                a(f"buffer_store_dword v1, off, {srd(SDBG)}, 0 offset:{4*i}")
    a.label("L_done")
    a("s_endpgm")

    a.label("L_idle")
    G3D = [32, 33, 34, 35, 36]
    for i in range(5):
        a([f"v_add_u32 v10, {64*i}, v0",
           "v_mul_u32_u24 v11, 6554, v10",
           "v_lshrrev_b32 v11, 16, v11",
           "v_mul_u32_u24 v12, 10, v11",
           "v_sub_u32 v12, v10, v12",
           "v_mul_u32_u24 v11, 1280, v11",
           f"v_lshl_add_u32 v{G3D[i]}, v12, 4, v11"])
    a(f"""
    s_cmp_ge_u32 s{sTB}, 8
    s_cselect_b32 s{SX[0]}, s{SWO[1]}, s{SWO[0]}
    s_cselect_b32 s{SX[0]+1}, s{SWO[1]+1}, s{SWO[0]+1}
    s_mov_b32 s{SX[0]+2}, {WO_BYTES}
    s_and_b32 s{T0}, s{sTB}, 7
    s_mul_i32 s{T0}, s{T0}, 160
    s_mul_i32 s{T1}, s{sWAVE}, {32*1280}
    s_add_u32 s{T0}, s{T0}, s{T1}
    s_mul_i32 s{T1}, s{sWAVE}, 5120
    """)
    for rnd in range(3):
        lab = a.uniq("L_id")
        if rnd == 2:
            a(f"s_cmp_ge_u32 s{sWAVE}, 4\ns_cbranch_scc1 {lab}")
        a(f"s_add_u32 s{T2}, s{T0}, {rnd*256*1280}")
        for i in range(5):
            a(f"s_add_u32 m0, s{T1}, {K + rnd*8*5120 + i*1024}\ns_nop 0")
            a(f"buffer_load_dwordx4 v{G3D[i]}, {srd(SX[0])}, s{T2} offen lds")
        a.label(lab)
    a(f"""
    v_lshrrev_b32 v10, 5, v0
    v_bfe_u32 v11, v0, 4, 1
    v_bfe_u32 v12, v0, 2, 2
    v_and_b32 v13, 3, v0
    v_mul_u32_u24 v13, 40, v13
    v_add_u32 v13, {K}, v13
    v_mul_u32_u24 v14, 20, v10
    v_lshl_add_u32 v14, v11, 2, v14
    v_add_u32 v14, v14, v12
    v_mul_u32_u24 v14, 160, v14
    v_add_u32 v37, v14, v13
    v_mul_u32_u24 v14, 80, v10
    v_mul_u32_u24 v11, 20, v11
    v_add3_u32 v14, v14, v11, v12
    v_add_u32 v14, 16, v14
    v_mul_u32_u24 v14, 160, v14
    v_add_u32 v38, v14, v13
    s_mul_i32 s{T0}, s{sWAVE}, 6400
    v_add_u32 v37, s{T0}, v37
    s_mul_i32 s{T0}, s{sWAVE}, 25600
    v_add_u32 v38, s{T0}, v38
    v_lshlrev_b32 v39, 4, v0
    v_mov_b32 v10, 0
    v_mov_b32 v11, 0
    v_mov_b32 v12, 4
    ds_write_b64 v10, v[10:11]
    ds_write_b32 v10, v12 offset:8
    s_mul_i32 s{T0}, s{sTB}, 102400
    s_add_u32 s{T0}, s{T0}, {WP_OFF}
    s_mul_i32 s{T1}, s{sWAVE}, 5120
    s_add_u32 s{T1}, s{T1}, s{T0}              ; kh=0, i=w
    s_lshr_b32 s{T2}, s{sWAVE}, 1
    s_mul_i32 s{T2}, s{T2}, 51200
    s_and_b32 s{T3}, s{sWAVE}, 1
    s_mul_i32 s{T3}, s{T3}, 5120
    s_add_u32 s{T2}, s{T2}, s{T3}
    s_add_u32 s{T2}, s{T2}, s{T0}
    s_add_u32 s{T2}, s{T2}, {8*5120}
    s_waitcnt vmcnt(0) lgkmcnt(0)
    s_barrier
    """)
    count_in()
    for rnd in range(3):
        lab = a.uniq("L_id")
        if rnd == 2:
            a(f"s_cmp_ge_u32 s{sWAVE}, 4\ns_cbranch_scc1 {lab}")
        base = 64 + rnd * 20
        for ct in range(5):
            for rd in range(2):
                if rnd < 2:
                    a(f"ds_read_b64_tr_b16 {vr(base+4*ct+2*rd,2)}, v37 offset:{rnd*51200 + rd*1280 + ct*8}")
                else:
                    a(f"ds_read_b64_tr_b16 {vr(base+4*ct+2*rd,2)}, v38 offset:{rd*6400 + ct*8}")
        a("s_waitcnt lgkmcnt(0)")
        if rnd == 1:
            a(f"s_add_u32 s{T1}, s{T1}, 51200")
        sreg = T1 if rnd < 2 else T2
        for ct in range(5):
            if ct == 4:
                a(f"s_add_u32 s{T3}, s{sreg}, 4096")
                a(f"buffer_store_dwordx4 {vr(base+4*ct,4)}, v39, {srd(SWS)}, s{T3} offen {HST}")
            else:
                a(f"buffer_store_dwordx4 {vr(base+4*ct,4)}, v39, {srd(SWS)}, s{sreg} offen offset:{ct*1024} {HST}")
        a.label(lab)
    a("s_waitcnt vmcnt(0)\ns_barrier")
    publish(0, 0, 1)
    publish(0, 1, 2)
    poll_issue(2, 0)
    poll_check(2, 0, sleep=32)
    a(f"s_cmp_ge_u32 s{sWAVE}, 4")
    a("s_cbranch_scc1 L_attn_setup")
    a("s_branch L_xfree")

    a.label("L_slowB")
    reset_m(1)
    a(f"""
    v_mov_b32 v19, 0xff800000
    v_subrev_u32 v10, {CH[3]}, v{VK}
    v_subrev_u32 v12, {CH[3]}, v{VV}
    s_add_u32 s{T0}, s{sKVB}, {32*163840}
    s_add_u32 s{T1}, s{T0}, 163840
    """)

    def gk():
        return f"""
        buffer_load_dwordx2 {vr(KL[0],2)}, v10, {srd(SWS)}, s{T0} offen {HS}
        buffer_load_dwordx2 {vr(KL[0]+2,2)}, v10, {srd(SWS)}, s{T0} offen offset:512 {HS}
        s_mov_b64 exec, s[{sLO}:{sLO+1}]
        buffer_load_dwordx2 {vr(KH[0],2)}, v10, {srd(SWS)}, s{T0} offen offset:1024 {HS}
        """
    a.label("L_slow1")
    a(gk())
    a("s_mov_b64 exec, -1\ns_waitcnt vmcnt(0)")
    a(qk(S[0], 0, 1))
    a("s_nop 15")
    a(maxtree(19, S[0], False))
    a(f"""
    s_add_u32 s{T0}, s{T0}, 2560
    s_cmp_lt_u32 s{T0}, s{T1}
    s_cbranch_scc1 L_slow1
    """)
    set_m(1, 19)
    zero_o()
    a(f"s_sub_u32 s{T0}, s{T1}, 163840")
    a.label("L_slow2")
    a(gk())
    a(f"""
    s_mov_b64 exec, s[{sVM}:{sVM+1}]
    buffer_load_dwordx4 {vr(VF[0],4)}, v12, {srd(SWS)}, s{T0} offen {HS}
    buffer_load_dwordx4 {vr(VF[0]+4,4)}, v12, {srd(SWS)}, s{T0} offen offset:640 {HS}
    s_mov_b64 exec, -1
    s_waitcnt vmcnt(0)
    """)
    a(qk(S[0], 0, 1))
    a("s_nop 15")
    a(exps(S[0]))
    a("s_nop 1")
    a(pv(S[0], 0))
    a(f"""
    s_add_u32 s{T0}, s{T0}, 2560
    s_cmp_lt_u32 s{T0}, s{T1}
    s_cbranch_scc1 L_slow2
    s_nop 15
    s_branch L_epiB
    """)


def main(out):
    global HST, HS
    HST = ["sc1", "", "sc0 sc1", "nt", "sc1 nt"][OPT.get("st", 0)]
    HS = ["sc1", ""][OPT.get("ld", 0)]
    a = Asm()
    hdr = open(f"cdna_kernels/{NAME}.s.ref").read().split("\n")
    keep = [l for l in hdr if l.startswith(";") and "@launch" not in l]
    for l in keep:
        a.raw(l)
    a.raw(f"; @launch grid=(256,1,1) block=(512,1,1) lds={LDS_BYTES}")
    a.raw('.amdgcn_target "amdgcn-amd-amdhsa--gfx950"')
    a.raw(".text")
    gen(a)
    a.raw('.section .rodata,"a"')
    a.raw(".p2align 6")
    a.raw(f""".amdhsa_kernel {KNAME}
  .amdhsa_next_free_vgpr 248
  .amdhsa_next_free_sgpr {102 if STAMPS else 72}
  .amdhsa_accum_offset 248
  .amdhsa_group_segment_fixed_size 0
  .amdhsa_kernarg_size 72
  .amdhsa_user_sgpr_count 2
  .amdhsa_user_sgpr_kernarg_segment_ptr 1
  .amdhsa_system_sgpr_workgroup_id_x 1
.end_amdhsa_kernel""")
    open(out, "w").write(a.text())


if __name__ == "__main__":
    if "--stamps" in sys.argv:
        STAMPS = True
        sys.argv.remove("--stamps")
    for x in list(sys.argv):
        if x.startswith("-D"):
            k, _, v = x[2:].partition("=")
            OPT[k] = int(v) if v else 1
            sys.argv.remove(x)
    main(sys.argv[1] if len(sys.argv) > 1 else f"cdna_kernels/{NAME}.s")
```

```python
import sys, struct

NAME = "concat_heads__sliding_block__softmax_full_mha__prompt"
KNAME = NAME + "_kernel"

QW_OFF = 0x000000
KV_OFF = 0x500000
OW_OFF = 0xF00000
FL_OFF = 0x1400000
EP_OFF = 0x1409000
WP_OFF = 0x1500000
WS_USED = 0x1700000
X_BYTES = 2048 * 640 * 2
WQKV_BYTES = 640 * 1920 * 2
WO_BYTES = 640 * 640 * 2
OUT_BYTES = 2048 * 1280 * 2
SRD3 = 0x00020000
LDS_BYTES = 163840
K = 1024

STAMPS = False
STAMP_OFF = 0x2000000
SB = 72
OPT = {}


def f32bits(x):
    return struct.unpack("<I", struct.pack("<f", x))[0]


NEGBIG = f32bits(-1e30)
CSCALE = f32bits((20 ** -0.5) * 1.4426950408889634)


class Asm:
    def __init__(self):
        self.l = []
        self.n = 0

    def __call__(self, s):
        if isinstance(s, (list, tuple)):
            for x in s:
                self(x)
            return
        for line in s.strip("\n").split("\n"):
            line = line.strip()
            if line:
                self.l.append(("" if line.endswith(":") else "    ") + line)

    def label(self, s):
        self.l.append(s + ":")

    def raw(self, s):
        self.l.append(s)

    def uniq(self, p):
        self.n += 1
        return f"{p}_{self.n}"

    def text(self):
        return "\n".join(self.l) + "\n"


def vr(a, n):
    return f"v[{a}:{a + n - 1}]"


def mfma32(d, a_, b_, c):
    cs = vr(c, 16) if c is not None else "0"
    return f"v_mfma_f32_32x32x16_bf16 {vr(d,16)}, {vr(a_,4)}, {vr(b_,4)}, {cs}"


def mfma32k8(d, a_, b_, c):
    return f"v_mfma_f32_32x32x8_bf16 {vr(d,16)}, {vr(a_,2)}, {vr(b_,2)}, {vr(c,16)}"


def mfma16(d, a_, b_, c):
    cs = vr(c, 4) if c is not None else "0"
    return f"v_mfma_f32_16x16x32_bf16 {vr(d,4)}, {vr(a_,4)}, {vr(b_,4)}, {cs}"


def stamp(a, i, mode=0):
    if STAMPS and (i == 0 or OPT.get("sm", 0) == mode):
        a(f"s_memrealtime s[{SB+2*i}:{SB+2*i+1}]")


SX = [4, 12]
SW = [8, 16]
SWS, SDBG = 20, 24
SWO = [28, 32]
SOUT = 36
sWAVE, sCW, sTB, sM, sKS, sXB, sWB, sLP = 40, 41, 42, 43, 44, 45, 46, 47
T0, T1, T2, T3, T4, T5 = 48, 49, 50, 51, 52, 53
sEQ, sEK = 54, 55
sHEAD, sQB, sQT, sW1K = 56, 57, 58, 59
sVM, sLO = 60, 62
sCS, sONE, sKVB, sXCD, sJ, sROT = 64, 65, 66, 67, 68, 69
sCNT = 70
sKVS = 71
sTAG = 3


def srd(n):
    return f"s[{n}:{n+3}]"


HS = "sc1"
HST = "sc1"


def gen(a):
    a.raw(f".globl {KNAME}\n.p2align 8\n.type {KNAME},@function")
    a.label(KNAME)
    a(f"""
    s_cmp_ge_u32 s2, 256
    s_cbranch_scc1 L_done
    """)
    stamp(a, 0)
    a(f"""
    s_load_dwordx2 s[{SX[1]}:{SX[1]+1}], s[0:1], 24
    s_load_dwordx2 s[{SW[1]}:{SW[1]+1}], s[0:1], 32
    s_load_dwordx2 s[{SX[0]}:{SX[0]+1}], s[0:1], 0
    s_load_dwordx2 s[{SW[0]}:{SW[0]+1}], s[0:1], 8
    s_load_dwordx2 s[{SWO[0]}:{SWO[0]+1}], s[0:1], 16
    s_load_dwordx2 s[{SWO[1]}:{SWO[1]+1}], s[0:1], 40
    s_load_dwordx2 s[{SOUT}:{SOUT+1}], s[0:1], 48
    s_load_dwordx2 s[{SWS}:{SWS+1}], s[0:1], 64
    v_lshrrev_b32 v1, 6, v0
    v_and_b32 v0, 63, v0
    s_and_b32 s{sXCD}, s2, 7
    v_readfirstlane_b32 s{sWAVE}, v1
    s_lshr_b32 s{sJ}, s2, 3
    s_and_b32 s{T0}, s{sXCD}, 1
    s_lshl_b32 s{T0}, s{T0}, 3
    s_and_b32 s{T1}, s{sJ}, 7
    s_add_u32 s{sTB}, s{T0}, s{T1}
    s_lshr_b32 s{T0}, s{sXCD}, 1
    s_lshl_b32 s{T0}, s{T0}, 2
    s_lshr_b32 s{T2}, s{sJ}, 3
    s_add_u32 s{sM}, s{T0}, s{T2}
    """)
    rm = OPT.get("rot", 1)
    if rm == 0:
        a(f"s_mov_b32 s{sROT}, 0")
    elif rm == 1:
        a(f"""
        s_mul_i32 s{T2}, s{T2}, 3
        s_add_u32 s{sROT}, s{T1}, s{T2}
        s_cmp_ge_u32 s{sROT}, 10
        s_cselect_b32 s{T0}, 10, 0
        s_sub_u32 s{sROT}, s{sROT}, s{T0}
        """)
    else:
        a(f"""
        s_add_u32 s{sROT}, s{T1}, s{T2}
        s_and_b32 s{sROT}, s{sROT}, 1
        s_mul_i32 s{sROT}, s{sROT}, 5
        """)
    a(f"""
    s_and_b32 s{sCW}, s{sWAVE}, 3
    """)
    for n, size in ((SX[0], X_BYTES), (SW[0], WQKV_BYTES), (SX[1], X_BYTES), (SW[1], WQKV_BYTES), (SWO[0], WO_BYTES),
                    (SWO[1], WO_BYTES), (SOUT, OUT_BYTES), (SWS, 0x4000000 if STAMPS else WS_USED)):
        a(f"s_mov_b32 s{n+2}, {size}\ns_mov_b32 s{n+3}, {SRD3}")
    a(f"""
    v_lshrrev_b32 v6, 3, v0
    v_mul_u32_u24 v2, 1280, v6
    v_lshrrev_b32 v7, 4, v0
    v_and_b32 v8, 7, v0
    v_xor_b32 v8, v8, v7
    v_lshl_add_u32 v2, v8, 4, v2
    v_xor_b32 v3, 64, v2
    v_mul_u32_u24 v9, 3840, v7
    v_and_b32 v8, 15, v0
    v_lshlrev_b32 v10, 1, v7
    v_xor_b32 v8, v8, v10
    """)
    a("""
    v_lshl_add_u32 v4, v8, 4, v9
    v_xor_b32 v5, 128, v4
    """)
    a(f"""
    s_lshl_b32 s{T0}, s{sTB}, 7
    s_lshl_b32 s{T1}, s{sCW}, 5
    s_add_u32 s{T0}, s{T0}, s{T1}
    s_mul_i32 s{sXB}, s{T0}, 1280
    s_mul_i32 s{sWB}, s{sCW}, {16*3840}
    s_lshl_b32 s{T0}, s{sM}, 8
    s_add_u32 s{sWB}, s{sWB}, s{T0}
    s_lshl_b32 s{sLP}, s{sCW}, 12
    s_lshr_b32 s{T3}, s{sWAVE}, 2              ; group
    s_add_u32 s{sKS}, s{sROT}, s{T3}
    s_cmp_eq_u32 s{sKS}, 10
    s_cselect_b32 s{sKS}, 0, s{sKS}
    s_lshl_b32 s{T3}, s{T3}, 15
    s_add_u32 s{T3}, s{T3}, s{sLP}
    """)

    def dma_stage(n, sLP=sLP):
        p = 1 - n // 10
        slot = (n % 5) * 32 * K
        out = [f"s_lshl_b32 s{T0}, s{sKS}, 7",
               f"s_add_u32 s{T0}, s{T0}, s{sXB}",
               f"s_mul_i32 s{T1}, s{sKS}, {64*3840}",
               f"s_add_u32 s{T1}, s{T1}, s{sWB}"]
        for i in range(4):
            out += [f"s_add_u32 m0, s{sLP}, {slot + i*1024}",
                    f"s_add_u32 s{T2}, s{T0}, {i*8*1280}",
                    f"buffer_load_dwordx4 v{2 + (i & 1)}, {srd(SX[p])}, s{T2} offen lds",
                    f"s_add_u32 m0, s{sLP}, {slot + 16*K + i*1024}",
                    f"s_add_u32 s{T2}, s{T1}, {i*4*3840}",
                    f"buffer_load_dwordx4 v{4 + (i >> 1)}, {srd(SW[p])}, s{T2} offen lds"]
        out += [f"s_add_u32 s{sKS}, s{sKS}, 1",
                f"s_cmp_eq_u32 s{sKS}, 10",
                f"s_cselect_b32 s{sKS}, 0, s{sKS}"]
        return out

    a("s_waitcnt lgkmcnt(0)")
    a(f"s_cmp_eq_u32 s{sM}, 15")
    a("s_cbranch_scc1 L_setup1")
    a(dma_stage(0, T3))
    a(f"s_cmp_lt_u32 s{sWAVE}, 4")
    a("s_cbranch_scc1 L_setup1")
    for n in (2, 3):
        a(dma_stage(n))
    a.label("L_setup1")
    a(f"""
    s_lshl_b32 s{T0}, s{sXCD}, 2
    s_and_b32 s{T1}, s{sJ}, 3
    s_add_u32 s{sHEAD}, s{T0}, s{T1}
    s_lshr_b32 s{sQB}, s{sJ}, 2
    s_add_u32 s{T0}, s{SWS}, {EP_OFF}
    s_addc_u32 s{T1}, s{SWS+1}, 0
    s_load_dword s{sTAG}, s[{T0}:{T1}], 0
    """)
    a.label("L_setup2")

    XA = lambda sg, kk: 14 + sg * 6 + kk
    WA = lambda sg, ct: 14 + sg * 6 + 2 + ct
    a(f"""
    v_and_b32 v6, 15, v0
    v_lshrrev_b32 v8, 1, v6                ; f(row)
    v_xor_b32 v8, v8, v7                   ; o ^ f
    v_lshlrev_b32 v8, 4, v8
    v_lshl_add_u32 v8, v6, 7, v8
    s_lshr_b32 s{T0}, s{sCW}, 1
    s_lshl_b32 s{T0}, s{T0}, 13
    v_add_u32 v{XA(0,0)}, s{T0}, v8
    v_xor_b32 v{XA(0,1)}, 64, v{XA(0,0)}
    v_lshrrev_b32 v8, 2, v0
    v_and_b32 v8, 3, v8                    ; r
    v_lshl_add_u32 v9, v7, 3, v8           ; krow = 8o + r
    v_lshlrev_b32 v9, 8, v9
    v_add_u32 v9, {16*K}, v9
    v_and_b32 v10, 1, v7
    v_lshl_add_u32 v10, v10, 2, v8
    v_lshlrev_b32 v10, 1, v10              ; sigma
    v_bfe_u32 v11, v0, 1, 1                ; c>>1
    s_and_b32 s{T0}, s{sCW}, 1
    s_lshl_b32 s{T0}, s{T0}, 3
    v_or_b32 v11, s{T0}, v11               ; 8cg + (c>>1)
    v_xor_b32 v11, v11, v10
    v_lshl_add_u32 v11, v11, 4, v9
    v_and_b32 v12, 1, v0
    v_lshl_add_u32 v{WA(0,0)}, v12, 3, v11
    v_xor_b32 v{WA(0,1)}, 32, v{WA(0,0)}
    v_xor_b32 v{WA(0,2)}, 64, v{WA(0,0)}
    v_xor_b32 v{WA(0,3)}, 96, v{WA(0,0)}
    """)
    for sg in (1, 2):
        for i in range(6):
            a(f"v_add_u32 v{14+sg*6+i}, {sg*64*K}, v{14+i}")
    EA = [196, 197, 198, 199]
    a(f"""
    s_lshl_b32 s{T0}, s{sTB}, 2
    s_and_b32 s{T1}, s{sCW}, 2
    s_add_u32 s{T0}, s{T0}, s{T1}
    s_lshr_b32 s{T1}, s{sWAVE}, 2
    s_xor_b32 s{T1}, s{T1}, 1
    s_lshl_b32 s{T1}, s{T1}, 11                ; p*32*64
    s_add_u32 s{T0}, s{T0}, s{T1}
    s_cmp_ge_u32 s{sM}, 5
    s_cselect_b32 s{T2}, 1, 0                  ; K or V
    s_lshl_b32 s{T3}, 1280, s{T2}
    s_mul_i32 s{sEQ}, s{T0}, s{T3}
    s_mul_i32 s{T0}, s{T2}, {KV_OFF}
    s_add_u32 s{sEQ}, s{sEQ}, s{T0}
    s_add_u32 s{sEK}, s{sEQ}, s{T3}
    s_lshl_b32 s{T3}, s{T3}, 6
    s_and_b32 s{T1}, s{sCW}, 1
    s_cmp_ge_u32 s{sM}, 10
    s_cbranch_scc1 L_ea1
    s_mul_i32 s{T0}, s{T2}, 5
    s_sub_u32 s{T0}, s{sM}, s{T0}
    s_lshl_b32 s{T0}, s{T0}, 5
    s_lshl_b32 s{T1}, s{T1}, 4
    s_add_u32 s{T0}, s{T0}, s{T1}
    v_add_u32 v8, s{T0}, v7
    v_lshlrev_b32 v10, 4, v6
    """)
    for ct in range(4):
        a(f"""
        v_add_u32 v9, {4*ct}, v8
        v_mul_u32_u24 v11, 205, v9
        v_lshrrev_b32 v11, 10, v11
        v_mul_u32_u24 v12, 5, v11
        v_sub_u32 v12, v9, v12
        v_mul_lo_u32 v11, v11, s{T3}
        v_lshl_add_u32 v12, v12, 8, v10
        v_add_u32 v{EA[ct]}, v11, v12
        """)
    a(f"""
    s_branch L_ea2
    L_ea1:
    s_sub_u32 s{T0}, s{sM}, 10
    s_lshl_b32 s{T0}, s{T0}, 7
    s_lshl_b32 s{T1}, s{T1}, 6
    s_add_u32 s{T0}, s{T0}, s{T1}
    v_add_u32 v8, s{T0}, v6
    v_mul_u32_u24 v10, 320, v7
    v_add_u32 v10, 1280, v10
    """)
    for ct in range(4):
        a(f"""
        v_add_u32 v9, {16*ct}, v8
        v_mul_u32_u24 v11, 3277, v9
        v_lshrrev_b32 v11, 16, v11
        v_mul_u32_u24 v12, 20, v11
        v_sub_u32 v12, v9, v12
        v_mul_lo_u32 v11, v11, s{T3}
        v_lshl_add_u32 v12, v12, 4, v10
        v_add_u32 v{EA[ct]}, v11, v12
        """)
    a.label("L_ea2")
    a(f"""
    s_lshl_b32 s{sQT}, s{sQB}, 3
    s_add_u32 s{sQT}, s{sQT}, s{sWAVE}
    s_lshl_b32 s{sW1K}, s{sWAVE}, 10
    s_mov_b32 s{sVM}, 0x000fffff
    s_mov_b32 s{sVM+1}, 0x000fffff
    s_mov_b32 s{sLO}, -1
    s_mov_b32 s{sLO+1}, 0
    s_mov_b32 s{sCS}, {CSCALE}
    s_mov_b32 s{sONE}, 0x3f80
    s_mul_i32 s{sKVB}, s{sHEAD}, 163840
    s_add_u32 s{sKVB}, s{sKVB}, {KV_OFF}
    """)

    ACC = lambda ct, tt: 128 + (ct * 4 + tt) * 4
    XF = lambda buf, tt: 64 + buf * 32 + tt * 4
    WF = lambda buf, ct: 64 + buf * 32 + 16 + ct * 4

    def g1reads(i, kk):
        slot = i % 5
        sg, so = slot >> 1, (slot & 1) * 32 * K
        r = []
        for q in range(4):
            r.append(f"ds_read_b128 {vr(XF(kk,q),4)}, v{XA(sg,kk)} offset:{so + q*2048}")
            for rd in range(2):
                r.append(f"ds_read_b64_tr_b16 {vr(WF(kk,q)+2*rd,2)}, v{WA(sg,q)} offset:{so + kk*8192 + rd*1024}")
        return r

    VPG, VPUB, VPO, VPD = 202, 203, 206, 204
    sPM, sSTR = SDBG, SDBG + 2

    def only_wave(wave):
        lab = a.uniq("L_w")
        a(f"s_cmp_lg_u32 s{sWAVE}, {wave}")
        a(f"s_cbranch_scc1 {lab}")
        return lab

    def publish(kind, p, wave):
        lab = only_wave(wave)
        if kind == 0:
            a(f"""
            v_mov_b32 v1, s{sTAG}
            s_mov_b32 s{T4}, {FL_OFF + p*16384}
            s_mov_b64 exec, s[{sPM}:{sPM+1}]
            buffer_store_dword v1, v{VPUB}, {srd(SWS)}, s{T4} offen sc1
            s_mov_b64 exec, -1
            """)
        else:
            a(f"""
            s_lshl_b32 s{T4}, s{sQB}, 8
            s_lshl_b32 s{T5}, s{sHEAD}, 2
            s_add_u32 s{T4}, s{T4}, s{T5}
            s_add_u32 s{T4}, s{T4}, {FL_OFF + 32768}
            v_mov_b32 v1, s{sTAG}
            s_mov_b64 exec, 1
            buffer_store_dword v1, off, {srd(SWS)}, s{T4} sc1
            s_mov_b64 exec, -1
            """)
        a.label(lab)

    def poll_loads(kind, p):
        if kind == 0:
            return [f"s_mov_b32 s{T3}, {FL_OFF + p*16384}",
                    f"buffer_load_dwordx2 {vr(VPD,2)}, v{VPG}, {srd(SWS)}, s{T3} offen sc1"]
        return [f"s_mov_b32 s{T3}, {FL_OFF + 32768}",
                f"buffer_load_dword v{VPD}, v{VPO}, {srd(SWS)}, s{T3} offen sc1"]

    def poll_issue(kind, p, wave=0):
        lab = only_wave(wave) if wave is not None else a.uniq("L_w")
        a(poll_loads(kind, p))
        a.label(lab)

    def poll_check(kind, p, sleep=8, wave=0, first=0):
        lab = only_wave(wave) if wave is not None else a.uniq("L_w")
        loop = a.uniq("L_spin")
        a(f"s_mov_b32 s{sCNT}, 0x20000")
        a(f"s_waitcnt vmcnt({first})")
        a.label(loop)
        a(f"v_cmp_eq_u32 vcc, s{sTAG}, v{VPD}")
        if kind == 0:
            a(f"v_cmp_eq_u32 s[{T0}:{T0+1}], s{sTAG}, v{VPD+1}")
            a(f"s_orn2_b64 s[{T0}:{T0+1}], s[{T0}:{T0+1}], s[{sSTR}:{sSTR+1}]\ns_and_b64 vcc, vcc, s[{T0}:{T0+1}]")
        a(f"""
        s_cmp_eq_u64 vcc, -1
        s_cbranch_scc1 {lab}
        s_sleep {sleep}
        """)
        a(poll_loads(kind, p))
        a(f"""
        s_sub_u32 s{sCNT}, s{sCNT}, 1
        s_cmp_lg_u32 s{sCNT}, 0
        s_waitcnt vmcnt(0)
        s_cbranch_scc1 {loop}
        """)
        a.label(lab)

    a(f"""
    s_mul_i32 s{T0}, s{sHEAD}, 20
    s_add_u32 s{T1}, s{T0}, 19
    s_lshr_b32 s{T0}, s{T0}, 7
    s_lshr_b32 s{T1}, s{T1}, 7
    s_cmp_lg_u32 s{T0}, s{T1}
    s_cselect_b64 s[{sSTR}:{sSTR+1}], -1, 0
    s_lshl_b32 s{T0}, s{sHEAD}, 9
    v_lshl_add_u32 v{VPG}, v0, 3, s{T0}
    s_mul_i32 s{T0}, s{sM}, 52
    s_lshr_b32 s{T0}, s{T0}, 8                 ; type
    s_mul_i32 s{T1}, s{T0}, 5
    s_sub_u32 s{T1}, s{sM}, s{T1}
    s_mul_i32 s{T2}, s{T1}, 205
    s_lshr_b32 s{T2}, s{T2}, 5
    s_cmp_eq_u32 s{T1}, 2
    s_cselect_b32 s{sPM}, 0x80, 0
    s_or_b32 s{sPM}, s{sPM}, 0x7f
    s_cmp_eq_u32 s{sM}, 15
    s_cselect_b32 s{sPM}, -1, s{sPM}
    s_mov_b32 s{sPM+1}, 0
    s_lshl_b32 s{T2}, s{T2}, 9
    s_lshl_b32 s{T0}, s{T0}, 7
    s_add_u32 s{T2}, s{T2}, s{T0}
    s_lshl_b32 s{T0}, s{sTB}, 3
    s_add_u32 s{T2}, s{T2}, s{T0}
    v_lshl_add_u32 v{VPUB}, v0, 9, s{T2}
    s_min_u32 s{T1}, s{T1}, 1
    s_lshl_b32 s{T1}, s{T1}, 2
    s_mov_b64 exec, 1
    v_add_u32 v{VPUB}, s{T1}, v{VPUB}
    s_mov_b64 exec, -1
    v_and_b32 v8, 31, v0
    v_lshlrev_b32 v8, 2, v8
    s_lshl_b32 s{T0}, s{sXCD}, 8
    v_add_u32 v{VPO}, s{T0}, v8
    """)
    a(f"s_waitcnt lgkmcnt(0)\ns_add_u32 s{sTAG}, s{sTAG}, 0x9e3779b1")
    a(f"s_cmp_eq_u32 s{sM}, 15")
    a("s_cbranch_scc1 L_idle")

    a(f"s_cmp_lt_u32 s{sWAVE}, 4")
    a("s_cbranch_scc1 L_xstart")
    for n in range(11):
        a("s_waitcnt vmcnt(24)")
        a("s_barrier")
        if n <= 9:
            a(dma_stage(n + 4))
    a("s_setprio 3")
    a("s_branch L_compute")
    a.label("L_xstart")
    a(f"""
    s_add_u32 s{sKS}, s{sKS}, 3
    s_cmp_ge_u32 s{sKS}, 10
    s_cselect_b32 s{T0}, 10, 0
    s_sub_u32 s{sKS}, s{sKS}, s{T0}
    s_waitcnt vmcnt(0)
    s_barrier
    """)
    a.label("L_compute")
    stamp(a, 1)
    stamp(a, 1, 1)
    a(g1reads(0, 0))
    a(f"s_cmp_ge_u32 s{sM}, 10")
    a("s_cbranch_scc1 L_comp1")

    def interleave(ms, rs):
        out = []
        ri = 0
        for i, m in enumerate(ms):
            out.append(m)
            if ri < len(rs):
                out.append(rs[ri]); ri += 1
        out += rs[ri:]
        return out

    for cg in range(2):
        if cg == 1:
            a.label("L_comp1")

        def mm(i, kk):
            out = []
            for ct in range(4):
                for tt in range(4):
                    c = None if (i == 0 and kk == 0) else ACC(ct, tt)
                    if cg == 1:
                        out.append(mfma16(ACC(ct, tt), XF(kk, tt), WF(kk, ct), c))
                    else:
                        out.append(mfma16(ACC(ct, tt), WF(kk, ct), XF(kk, tt), c))
            return out
        for i in range(10):
            a("s_waitcnt lgkmcnt(0)")
            a(interleave(mm(i, 0), g1reads(i, 1)))
            a(f"s_waitcnt lgkmcnt(0) vmcnt({[16, 8, 0][i]})" if i < 3 else "s_waitcnt lgkmcnt(0)")
            if i >= 7:
                lab = a.uniq("L_nb")
                a(f"s_cmp_ge_u32 s{sWAVE}, 4\ns_cbranch_scc1 {lab}\ns_barrier\n{lab}:")
            else:
                a("s_barrier")
            if i in (1, 3, 5, 7, 9):
                stamp(a, 2 + i // 2, 1)
            a(interleave(mm(i, 1), g1reads(i + 1, 0) if i < 9 else []))
        if cg == 0:
            a("s_branch L_g1epi")
    a.label("L_g1epi")
    stamp(a, 2)
    EP = OPT.get("ep", 2)
    lab = a.uniq("L_noload")
    a(f"s_cmp_ge_u32 s{sWAVE}, 4")
    a(f"s_cbranch_scc1 {lab}")
    if EP >= 1:
        a(dma_stage(14))
    if EP >= 2:
        a("s_barrier")
        a(dma_stage(15))
    a(f"s_branch {lab}_j")
    a.label(lab)
    a("v_mov_b32 v10, 0\nv_mov_b32 v11, 1\ns_mov_b64 exec, 1\nds_add_u32 v10, v11 offset:8\ns_mov_b64 exec, -1")
    a.label(lab + "_j")
    stamp(a, 7, 1)
    a("s_nop 7")
    t = 64
    for ct in range(4):
        for tp in range(2):
            for h in range(2):
                s_ = ACC(ct, 2 * tp + h)
                a(f"v_cvt_pk_bf16_f32 v{t+2*h}, v{s_}, v{s_+1}")
                a(f"v_cvt_pk_bf16_f32 v{t+2*h+1}, v{s_+2}, v{s_+3}")
            a(f"buffer_store_dwordx4 {vr(t,4)}, v{EA[ct]}, {srd(SWS)}, s{sEQ if tp == 0 else sEK} offen {HST}")
            t += 4
    a.label("L_g1tail")
    stamp(a, 8, 1)

    S = [32, 48, 64, 80]
    O = 96
    QL, QH = [112, 118], [116, 122]
    KL, KH = [124, 130], [128, 134]
    VF = [136, 144]
    MD, MF = 152, 168
    VK, VV = 4, 6
    VIDX, VDMA, VQ = 7, 8, 9
    QB_OFF = 1 * K
    CH = [11 * K, 51 * K, 91 * K, 1 * K]
    A_OFF = 50 * K
    WOL = [[10 * K, 60 * K], [110 * K, 0]]
    SCR = [130 * K, 110 * K]
    OFB = [52, 208]
    ST = [184, 188, 192, 248, 252]
    VOF, VW3, VOUT, VRED = 197, 198, 200, 201

    def lds_wait(off, val, sleep=1):
        loop = a.uniq("L_lw")
        a(f"s_mov_b32 s{sCNT}, 0x400000\nv_mov_b32 v10, 0")
        a.label(loop)
        a(f"""
        ds_read_b32 v11, v10 offset:{off}
        s_waitcnt lgkmcnt(0)
        v_readfirstlane_b32 s{T0}, v11
        s_cmp_eq_u32 s{T0}, {val}
        s_cbranch_scc1 {loop}_ok
        s_sleep {sleep}
        s_sub_u32 s{sCNT}, s{sCNT}, 1
        s_cmp_lg_u32 s{sCNT}, 0
        s_cbranch_scc1 {loop}
        {loop}_ok:
        """)

    a(f"s_cmp_ge_u32 s{sWAVE}, 4")
    a("s_cbranch_scc1 L_attn_setup")
    if EP < 1:
        a(dma_stage(14))
    if EP < 2:
        a("s_barrier")
        a(dma_stage(15))
    a("s_barrier")
    stamp(a, 9, 1)
    PB = OPT.get("pb", 13)
    for n in (12, 13):
        if n == PB:
            a("s_waitcnt vmcnt(0)")
            stamp(a, 10, 1)
        a(dma_stage(n + 4))
        a("s_barrier")
        if n == PB:
            publish(0, 1, 1)
    a(dma_stage(18))
    a("s_barrier")
    a(dma_stage(19))
    a(f"v_lshlrev_b32 v{VDMA}, 4, v0")
    if PB == 12:
        a("s_waitcnt vmcnt(24)")
    a("s_barrier")
    if OPT.get("ppre", 1):
        poll_issue(0, 1)
    a("v_mov_b32 v10, 0\nv_mov_b32 v11, 0\nds_write_b64 v10, v[10:11]\nds_write_b32 v10, v10 offset:8")
    if OPT.get("ppre", 1):
        lab = a.uniq("L_w0")
        a(f"s_waitcnt vmcnt(1) lgkmcnt(0)\ns_cmp_eq_u32 s{sWAVE}, 0\ns_cbranch_scc1 {lab}\ns_waitcnt vmcnt(0)\n{lab}:")
    else:
        a("s_waitcnt vmcnt(0) lgkmcnt(0)")
    a("s_barrier")
    stamp(a, 3)
    stamp(a, 11, 1)
    if not OPT.get("ppre", 1):
        poll_issue(0, 1)
    poll_check(0, 1, sleep=4)
    lab = only_wave(0)
    a("v_mov_b32 v10, 0\nv_mov_b32 v11, 1\nds_write_b32 v10, v11")
    a.label(lab)
    lds_wait(0, 1)

    def first_loads(part):
        a(f"s_add_u32 s{T0}, s{sKVB}, s{sW1K}")
        if part == 0:
            a(f"""
            s_mul_i32 s{T3}, s{sHEAD}, 81920
            s_mul_i32 s{T4}, s{sQB}, 10240
            s_add_u32 s{T3}, s{T3}, s{T4}
            s_add_u32 s{T3}, s{T3}, s{sW1K}
            """)
            for j in range(3):
                lab = None
                if j == 2:
                    lab = a.uniq("L_q")
                    a(f"s_cmp_ge_u32 s{sWAVE}, 2\ns_cbranch_scc1 {lab}")
                a(f"""
                s_add_u32 m0, s{sW1K}, {QB_OFF + j*4096}
                s_add_u32 s{T2}, s{T3}, {QW_OFF + 32*81920 + j*4096}
                buffer_load_dwordx4 v{VDMA}, {srd(SWS)}, s{T2} offen {HS} lds
                """)
                if lab:
                    a.label(lab)
        for j in range(5 * part, 5 * part + 5):
            a(f"""
            s_add_u32 m0, s{sW1K}, {CH[0] + j*4096}
            s_add_u32 s{T2}, s{T0}, {32*163840 + j*4096}
            buffer_load_dwordx4 v{VDMA}, {srd(SWS)}, s{T2} offen {HS} lds
            """)
    a.label("L_x1")
    first_loads(0)
    a.label("L_x2")
    stamp(a, 4)
    stamp(a, 12, 1)
    first_loads(1)
    a.label("L_attn_setup")
    a(f"""
    v_lshlrev_b32 v{VDMA}, 4, v0
    v_lshrrev_b32 v11, 5, v0               ; h
    v_and_b32 v12, 31, v0                  ; i
    v_and_b32 v13, 3, v12
    v_lshrrev_b32 v14, 3, v12
    v_lshl_add_u32 v13, v14, 2, v13        ; kappa & 15
    v_bfe_u32 v14, v12, 2, 1               ; kappa >> 4
    v_lshlrev_b32 v15, 4, v13
    v_lshl_add_u32 v16, v14, 3, v15
    v_lshl_add_u32 v16, v11, 8, v16
    v_add_u32 v{VK}, {CH[0]}, v16
    v_mul_u32_u24 v16, 20, v11
    v_add_u32 v16, v16, v12
    v_lshlrev_b32 v16, 4, v16
    v_add_u32 v{VV}, {CH[0] + 1280}, v16
    v_and_b32 v15, 15, v12
    v_lshlrev_b32 v15, 4, v15
    v_lshrrev_b32 v16, 4, v12
    v_lshl_add_u32 v15, v16, 3, v15        ; (q&15)*16 + (q>>4)*8
    v_lshl_add_u32 v{VQ}, v11, 8, v15
    v_mov_b32 v{VIDX}, 0xdddddddd
    v_and_b32 v17, 0x1b, v12
    v_cmp_eq_u32 vcc, 24, v17
    v_mov_b32 v16, 0x3f803f80
    s_nop 0
    v_cndmask_b32 v17, 0, v16, vcc
    """)
    for b in range(2):
        a(f"v_mov_b32 v{KH[b]}, 0x3f803f80")
        a(f"v_mov_b32 v{KH[b]+1}, 0x00003f80")
        for i in range(8):
            a(f"v_mov_b32 v{VF[b]+i}, v17")

    def mask_setup():
        out = [["v_lshrrev_b32 v13, 5, v0", "v_lshlrev_b32 v13, 4, v13", "v_and_b32 v12, 31, v0",
                "v_sub_u32 v13, v12, v13", f"v_mov_b32 v14, {NEGBIG}"]]
        for r in range(0, 16, 2):
            out.append([f"v_cmp_le_i32 s[{T0}:{T0+1}], {r}, v13",
                        f"v_cmp_le_i32 s[{T2}:{T2+1}], {r+1}, v13",
                        "s_nop 0",
                        f"v_cndmask_b32 v{MD+r}, v14, 0, s[{T0}:{T0+1}]",
                        f"v_cndmask_b32 v{MF+r}, 0, v14, s[{T0}:{T0+1}]",
                        f"v_cndmask_b32 v{MD+r+1}, v14, 0, s[{T2}:{T2+1}]",
                        f"v_cndmask_b32 v{MF+r+1}, 0, v14, s[{T2}:{T2+1}]"])
        return out

    def scale_q(p):
        for r in [QL[p] + i for i in range(4)] + [QH[p], QH[p] + 1]:
            a(f"""
            v_lshlrev_b32 v15, 16, v{r}
            v_and_b32 v16, 0xffff0000, v{r}
            v_mul_f32 v15, s{sCS}, v15
            v_mul_f32 v16, s{sCS}, v16
            v_cvt_pk_bf16_f32 v{r}, v15, v16
            """)
        reset_m(p)

    def reset_m(p):
        a(f"""
        v_mov_b32 v15, 0x3f800000
        v_cndmask_b32 v{QH[p]}, 0, v{QH[p]}, s[{sLO}:{sLO+1}]
        v_cndmask_b32 v{QH[p]+1}, v15, v{QH[p]+1}, s[{sLO}:{sLO+1}]
        """)

    def set_m(p, M):
        a(f"""
        v_mov_b32 v15, v{M}
        s_nop 1
        v_permlane32_swap_b32 v15, v{M}
        s_nop 1
        v_max_f32 v15, v15, v{M}
        v_sub_f32 v15, 0, v15                  ; -m
        v_and_b32 v16, 0xffff0000, v15         ; hi
        v_sub_f32 v17, v15, v16
        v_and_b32 v18, 0xffff0000, v17         ; mid
        v_sub_f32 v17, v17, v18                ; lo
        v_lshrrev_b32 v16, 16, v16
        v_or_b32 v16, v16, v18
        v_lshrrev_b32 v17, 16, v17
        v_or_b32 v17, 0x3f800000, v17
        v_cndmask_b32 v{QH[p]}, v16, v{QH[p]}, s[{sLO}:{sLO+1}]
        v_cndmask_b32 v{QH[p]+1}, v17, v{QH[p]+1}, s[{sLO}:{sLO+1}]
        """)

    def kreads(buf, off, restore=True):
        return [f"ds_read2st64_b64 {vr(KL[buf],4)}, v{VK} offset0:{off//512} offset1:{off//512+1}",
                f"s_mov_b64 exec, s[{sLO}:{sLO+1}]",
                f"ds_read_b64 {vr(KH[buf],2)}, v{VK} offset:{off+1024}"] + (["s_mov_b64 exec, -1"] if restore else [])

    def vreads(buf, off):
        return [f"s_mov_b64 exec, s[{sVM}:{sVM+1}]",
                f"ds_read_b128 {vr(VF[buf],4)}, v{VV} offset:{off}",
                f"ds_read_b128 {vr(VF[buf]+4,4)}, v{VV} offset:{off+640}",
                "s_mov_b64 exec, -1"]

    def qk(Sd, buf, p, C=None):
        return [mfma32(Sd, KL[buf], QL[p], C), mfma32k8(Sd, KH[buf], QH[p], Sd)]

    def pv(Ss, buf):
        return [f"v_smfmac_f32_32x32x32_bf16 {vr(O,16)}, {vr(VF[buf],4)}, {vr(Ss,8)}, v{VIDX}",
                f"v_smfmac_f32_32x32x32_bf16 {vr(O,16)}, {vr(VF[buf]+4,4)}, {vr(Ss+8,8)}, v{VIDX}"]

    def exps(Ss):
        return [f"v_exp_f32 v{Ss+i}, v{Ss+i}" for i in range(16)]

    def maxtree(M, Ss, first):
        out = []
        if first:
            out.append(f"v_max3_f32 v{M}, v{Ss}, v{Ss+1}, v{Ss+2}")
            rest = list(range(3, 16))
        else:
            rest = list(range(16))
        while len(rest) >= 2:
            out.append(f"v_max3_f32 v{M}, v{M}, v{Ss+rest[0]}, v{Ss+rest[1]}")
            rest = rest[2:]
        if rest:
            out.append(f"v_max_f32 v{M}, v{M}, v{Ss+rest[0]}")
        return out

    def zero_o():
        for i in range(16):
            a(f"v_mov_b32 v{O+i}, 0")

    def o_addr(p):
        return f"""
        s_mul_i32 s{T0}, s{sQT}, 40960
        s_add_u32 s{T0}, s{T0}, {OW_OFF + p*64*40960}
        s_lshl_b32 s{T1}, s{sHEAD}, 10
        s_add_u32 s{T1}, s{T1}, s{T0}
        s_lshr_b32 s{T2}, s{sHEAD}, 2
        s_add_u32 s{T2}, s{T2}, 32
        s_lshl_b32 s{T2}, s{T2}, 10
        s_add_u32 s{T2}, s{T2}, s{T0}
        s_and_b32 s{T3}, s{sHEAD}, 1
        s_lshl_b32 s{T3}, s{T3}, 9
        s_add_u32 s{T2}, s{T2}, s{T3}
        s_and_b32 s{T3}, s{sHEAD}, 2
        s_lshl_b32 s{T3}, s{T3}, 2
        s_add_u32 s{T2}, s{T2}, s{T3}
        """

    def o_store():
        return f"""
        buffer_store_dwordx4 v[20:23], v{VDMA}, {srd(SWS)}, s{T1} offen {HST}
        s_mov_b64 exec, s[{sLO}:{sLO+1}]
        buffer_store_dwordx2 v[24:25], v{VDMA}, {srd(SWS)}, s{T2} offen {HST}
        s_mov_b64 exec, -1
        """

    def epilogue(p):
        a(f"v_rcp_f32 v15, v{O+12}")
        a(o_addr(p))
        for i in range(12):
            a(f"v_mul_f32 v{O+i}, v{O+i}, v15")
        for i in range(6):
            a(f"v_cvt_pk_bf16_f32 v{20+i}, v{O+2*i}, v{O+2*i+1}")
        a(o_store())

    def tile_step(t, n, p, koff, voff, cmask, extra_k=None, hooks=None):
        a("s_waitcnt lgkmcnt(0)")
        rd = []
        if t + 2 < n:
            rd += kreads(t & 1, koff(t + 2), restore=(t >= n))
        if t < n:
            rd += vreads(t & 1, voff(t))
        if extra_k and t + 2 < n:
            rd += extra_k(t & 1, t + 2)
        q = qk(S[(t + 1) & 3], (t + 1) & 1, p, cmask(t + 1)) if t + 1 < n else []
        pp = pv(S[(t - 1) & 3], (t - 1) & 1) if t >= 1 else []
        e = exps(S[t & 3]) if t < n else []
        if t == 0:
            a("s_nop 10")
        ms = q + pp
        if not e:
            a(["s_nop 1"] + ms)
            return
        hooks = hooks or []
        for i in range(4):
            if i < len(ms):
                a(ms[i])
            a(e[4 * i:4 * i + 2])
            if i == 0:
                a(rd)
            elif hooks:
                nh = (len(hooks) + 2) // 3
                for hk in hooks[(i - 1) * nh:i * nh]:
                    a(hk)
            a(e[4 * i + 2:4 * i + 4])

    def g3_setup():
        return [["v_lshrrev_b32 v10, 4, v0",
                 "v_lshlrev_b32 v11, 9, v10",
                 "v_and_b32 v12, 15, v0",
                 f"v_lshl_add_u32 v{VOF}, v12, 4, v11"],
                ["v_mul_u32_u24 v12, 2560, v12",
                 "v_mul_u32_u24 v10, 40, v10",
                 f"v_add_u32 v{VOUT}, v12, v10"],
                [f"s_cmp_lt_u32 s{sWAVE}, 4",
                 f"s_cselect_b32 s{T0}, {WOL[1][0]}, {WOL[1][1]}",
                 f"v_add_u32 v{VW3}, s{T0}, v{VDMA}",
                 f"s_mul_i32 s{T0}, s{sCW}, 5120",
                 f"v_add_u32 v{VRED}, s{T0}, v{VDMA}"]]

    def wo_piece(p, q0, ldsbase, cond=None):
        o = [f"s_add_u32 m0, s{sW1K}, {ldsbase & 0xffffffff}",
             f"s_add_u32 s{T1}, s{sKVS}, {WP_OFF + p*819200 + q0*1024}",
             f"buffer_load_dwordx4 v{VDMA}, {srd(SWS)}, s{T1} offen {HS} lds"]
        if cond is not None:
            lab = a.uniq("L_wo")
            o = [f"s_cmp_ge_u32 s{sWAVE}, {cond}", f"s_cbranch_scc1 {lab}"] + o + [f"{lab}:"]
        return o

    def wo_half(p, kh):
        return [wo_piece(p, 50 * kh + 8 * k, WOL[p][kh] + 8 * k * 1024, cond=2 if k == 6 else None) for k in range(7)]

    def wo_base():
        return [f"s_mul_i32 s{sKVS}, s{sQB}, 102400", f"s_add_u32 s{sKVS}, s{sKVS}, s{sW1K}"]

    def o_base(p=0):
        return [f"s_lshl_b32 s{T0}, s{sHEAD}, 1",
                f"s_lshr_b32 s{T1}, s{sCW}, 1",
                f"s_add_u32 s{T0}, s{T0}, s{T1}",
                f"s_mul_i32 s{T0}, s{T0}, 40960",
                f"s_and_b32 s{T1}, s{sCW}, 1",
                f"s_lshl_b32 s{T1}, s{T1}, 8",
                f"s_add_u32 s{T0}, s{T0}, s{T1}",
                f"s_add_u32 s{T0}, s{T0}, {OW_OFF + p*64*40960}",
                f"s_lshr_b32 s{T1}, s{sWAVE}, 2",
                f"s_lshl_b32 s{sEK}, s{T1}, 12",
                f"s_add_u32 s{sEK}, s{sEK}, s{T0}",
                f"s_add_u32 s{sEK}, s{sEK}, {16*2048}",
                f"s_lshl_b32 s{T1}, s{T1}, 14",
                f"s_add_u32 s{sEQ}, s{T0}, s{T1}"]

    def o_load(p, i):
        d = OFB[p] + 4 * i
        if i < 8:
            return [f"s_add_u32 s{T5}, s{sEQ}, {p*64*40960 + (i>>1)*4096}",
                    f"buffer_load_dwordx4 {vr(d,4)}, v{VOF}, {srd(SWS)}, s{T5} offen offset:{(i&1)*2048} {HS}"]
        return [f"s_add_u32 s{T5}, s{sEK}, {p*64*40960}",
                f"buffer_load_dwordx4 {vr(d,4)}, v{VOF}, {srd(SWS)}, s{T5} offen offset:{(i-8)*2048} {HS}"]

    zero_o()
    lab = a.uniq("L_xl")
    a(f"s_cmp_ge_u32 s{sWAVE}, 4\ns_cbranch_scc1 {lab}")
    a("s_waitcnt vmcnt(0)\nv_mov_b32 v10, 0\nv_mov_b32 v11, 1\ns_mov_b64 exec, 1\nds_add_u32 v10, v11 offset:4\ns_mov_b64 exec, -1")
    a(f"s_branch {lab}_j")
    a.label(lab)
    lds_wait(8, 4)
    a.label(lab + "_j")
    lds_wait(4, 4)
    stamp(a, 5)
    stamp(a, 13, 1)
    a(f"""
    s_mul_i32 s{T0}, s{sWAVE}, 1280
    s_add_u32 s{T0}, s{T0}, {QB_OFF}
    v_add_u32 v15, s{T0}, v{VQ}
    ds_read2st64_b64 {vr(QL[1],4)}, v15 offset0:0 offset1:1
    ds_read_b64 {vr(QH[1],2)}, v15 offset:1024
    s_add_u32 s{sKVS}, s{sKVB}, s{sW1K}
    """)
    a(kreads(0, 0))
    a(kreads(1, 2560))
    a("s_waitcnt lgkmcnt(4)")
    scale_q(1)
    a("s_waitcnt lgkmcnt(2)")
    a(qk(S[0], 0, 1))
    a("s_nop 15")
    a(maxtree(19, S[0], True))
    set_m(1, 19)
    a("s_nop 1")
    a(qk(S[0], 0, 1))

    def dmaY(j):
        lab = a.uniq("L_dy")
        return [f"s_cmp_lt_u32 s{sWAVE}, 4", f"s_cbranch_scc1 {lab}",
                f"s_add_u32 m0, s{sW1K}, {CH[1] + j*4096 - 4096}",
                f"s_add_u32 s{T2}, s{sKVS}, {32*163840 + 40960 + j*4096 - 4096}",
                f"buffer_load_dwordx4 v{VDMA}, {srd(SWS)}, s{T2} offen {HS} lds", f"{lab}:"]

    def dma3(r):
        return [f"s_add_u32 m0, s{sW1K}, {CH[3] + r*8192}",
                f"s_add_u32 s{T2}, s{sKVS}, {32*163840 + 3*40960 + r*8192}",
                f"buffer_load_dwordx4 v{VDMA}, {srd(SWS)}, s{T2} offen {HS} lds"]

    def dmaA(j):
        out = [f"s_mul_i32 s{T1}, s{sQB}, 20480", f"s_sub_u32 s{T1}, s{T1}, 20480"]
        if j < 2:
            out += [f"s_max_i32 s{T1}, s{T1}, 0"]
        elif j == 2:
            out += [f"s_max_i32 s{T0}, s{T1}, 0", f"s_cmp_lt_u32 s{sWAVE}, 4", f"s_cselect_b32 s{T1}, s{T0}, s{T1}"]
        out += [f"s_add_u32 s{T1}, s{T1}, s{sKVS}", f"s_add_u32 m0, s{sW1K}, {A_OFF + j*8192}",
                f"s_add_u32 s{T1}, s{T1}, {j*8192}",
                f"buffer_load_dwordx4 v{VDMA}, {srd(SWS)}, s{T1} offen {HS} lds"]
        return out

    qa_loads = [f"s_mul_i32 s{T0}, s{sHEAD}, 81920",
                f"s_mul_i32 s{T2}, s{sQT}, 1280",
                f"s_add_u32 s{T0}, s{T0}, s{T2}",
                f"buffer_load_dwordx2 {vr(QL[0],2)}, v{VQ}, {srd(SWS)}, s{T0} offen {HS}",
                f"buffer_load_dwordx2 {vr(QL[0]+2,2)}, v{VQ}, {srd(SWS)}, s{T0} offen offset:512 {HS}",
                f"s_mov_b64 exec, s[{sLO}:{sLO+1}]",
                f"buffer_load_dwordx2 {vr(QH[0],2)}, v{VQ}, {srd(SWS)}, s{T0} offen offset:1024 {HS}",
                "s_mov_b64 exec, -1"]
    assert QW_OFF == 0

    NT = 64
    ms = mask_setup()
    for t in range(NT + 1):
        hooks = []
        if t < 10:
            hooks = [dmaY(2 * t), dmaY(2 * t + 1)]
        if t == 14:
            a("s_waitcnt vmcnt(0) lgkmcnt(0)\ns_barrier")
            stamp(a, 6)
            stamp(a, 14, 1)
            publish(0, 0, 4)
        if 14 <= t < 19:
            hooks = [dma3(t - 14)]
        if t == 20:
            hooks = g3_setup()
        if 23 <= t < 26:
            hooks = ms[3 * (t - 23):3 * (t - 22)]
        if t == 26:
            hooks = [[f"v_mov_b32 v{20+i}, -1" for i in range(6)], o_addr(0), o_store()]
        if t == 27:
            hooks = [o_addr(1), o_store()]
        if t == 29:
            poll_issue(0, 0)
        if t == 33:
            poll_check(0, 0)
            a("s_waitcnt vmcnt(0) lgkmcnt(0)\ns_barrier")
            publish(1, 0, 1)
            stamp(a, 7)
        if 33 <= t < 38:
            hooks = [dmaA(t - 33)]
        if t == 38:
            hooks = [qa_loads]
        if t == 40:
            hooks = [wo_base(), o_base()]
        if 41 <= t < 46:
            k = t - 41
            hooks = [[f"s_add_u32 s{T1}, s{sKVS}, {WP_OFF + k*8192}",
                      f"buffer_load_dwordx4 {vr(ST[k],4)}, v{VDMA}, {srd(SWS)}, s{T1} offen {HS}"]]
        if 56 <= t < 59:
            k = t - 56
            hooks = [wo_piece(0, 80 + 8 * k, WOL[0][0] + (80 + 8 * k) * 1024, cond=4 if k == 2 else None)]
        if t == 46:
            poll_issue(1, 0)
        if t == 49:
            poll_check(1, 0)
            a("s_waitcnt vmcnt(0) lgkmcnt(0)\ns_barrier")
            stamp(a, 8)
        if 49 <= t < 56:
            hooks = [wo_half(1, 0)[t - 49]]
        if OPT.get("prio", 1):
            pr = {14: 3, 19: 2, 24: 1, 29: 0, 33: 3, 37: 2, 41: 1, 45: 0, 49: 3, 53: 2, 57: 1, 61: 0}
            if t in pr:
                a(f"s_setprio {pr[t]}")
        if (t + 2) % 16 == 0 and t + 2 < NT:
            c = (t + 2) // 16
            a(f"v_add_u32 v{VK}, {(CH[c] - CH[c - 1]) & 0xffffffff}, v{VK}")
        if t % 16 == 0 and 0 < t < NT:
            c = t // 16
            a(f"v_add_u32 v{VV}, {(CH[c] - CH[c - 1]) & 0xffffffff}, v{VV}")
        tile_step(t, NT, 1, lambda u: (u & 15) * 2560, lambda u: (u & 15) * 2560, lambda u: None, hooks=hooks)
    scale_q(0)
    def finite_check(lab):
        a(f"v_mul_f32 v15, 0, v{O}")
        for i in range(1, 13):
            a(f"v_fmac_f32 v15, 0, v{O+i}")
        a("v_cmp_u_f32 vcc, v15, v15")
        a("s_nop 4")
        a(f"s_cbranch_vccnz {lab}")
    finite_check("L_slowB")
    a.label("L_epiB")
    epilogue(1)
    stamp(a, 9)
    stamp(a, 1, 2)

    a(f"""
    s_mul_i32 s{T0}, s{sWAVE}, 2560
    s_add_u32 s{T0}, s{T0}, {A_OFF - CH[3]}
    v_add_u32 v{VK}, s{T0}, v{VK}
    v_add_u32 v{VV}, s{T0}, v{VV}
    """)

    def pen(buf, u):
        return [f"s_cmp_ge_u32 s{sQT}, {8 - u}",
                f"s_cselect_b32 s{T0}, s{sONE}, {(NEGBIG & 0xffff0000) | 0x3f80}",
                f"s_not_b64 exec, s[{sLO}:{sLO+1}]",
                f"v_mov_b32 v{KH[buf]+1}, s{T0}",
                "s_mov_b64 exec, -1"]

    def cmaskA(u):
        return MD if u == 8 else (MF if u == 0 else None)
    def a_pass1():
        a(kreads(0, 0))
        a(pen(0, 0))
        for u in range(9):
            if u + 1 < 9:
                a(kreads((u + 1) & 1, (u + 1) * 2560))
                a("s_waitcnt lgkmcnt(2)")
            else:
                a("s_waitcnt lgkmcnt(0)")
            a("s_nop 0")
            a(qk(S[u & 3], u & 1, 0, cmaskA(u)))
            if u + 1 < 9:
                a(pen((u + 1) & 1, u + 1))
            if u >= 2:
                a(maxtree(19, S[(u - 2) & 3], u == 2))
        a(kreads(0, 0))
        a(kreads(1, 2560))
        zero_o()
        for u in (7, 8):
            a(maxtree(19, S[u & 3], False))
        set_m(0, 19)
        a(pen(0, 0) + pen(1, 1))

    a(kreads(0, 7 * 2560))
    a(kreads(1, 8 * 2560))
    a(pen(0, 7))
    a("s_waitcnt lgkmcnt(2)\ns_nop 0")
    a(qk(S[0], 0, 0))
    a("s_waitcnt lgkmcnt(0)")
    a(qk(S[1], 1, 0, MD))
    zero_o()
    a(kreads(0, 0))
    a(kreads(1, 2560))
    a(maxtree(19, S[0], True))
    a(maxtree(19, S[1], False))
    set_m(0, 19)
    a(pen(0, 0) + pen(1, 1))
    stamp(a, 2, 2)
    a("s_barrier")
    stamp(a, 10)
    stamp(a, 3, 2)
    a("s_waitcnt lgkmcnt(2)")
    a(qk(S[0], 0, 0, cmaskA(0)))
    PC = OPT.get("pc", 6)
    h1 = wo_half(1, 1)
    nper = -(-10 // (9 - PC))
    for t in range(10):
        hooks = []
        if t < 4:
            hooks = h1[2 * t:2 * t + 2]
        if t == PC:
            a("s_waitcnt vmcnt(0)\ns_barrier")
            stamp(a, 4, 2)
        if PC <= t < 9:
            hooks = [o_load(1, i) for i in range((t - PC) * nper, min(10, (t - PC + 1) * nper))]
        tile_step(t, 9, 0, lambda u: u * 2560, lambda u: u * 2560, cmaskA, extra_k=pen, hooks=hooks)
    a("s_nop 15")
    finite_check("L_slowA")
    a.label("L_epiA")
    epilogue(0)
    stamp(a, 11)
    stamp(a, 7, 2)

    GACC = lambda ct: 32 + 4 * ct
    GW = lambda buf, ct: 92 + buf * 20 + 4 * ct
    FT = 152
    retries = []

    def g3reads(i):
        return [f"ds_read_b128 {vr(GW(i%3,ct),4)}, v{VW3} offset:{(i*5+ct)*1024}" for ct in range(5)]

    def g3_finish(p, before=None):
        l1, l2 = a.uniq("L_r"), a.uniq("L_r")
        a(f"s_cmp_lt_u32 s{sWAVE}, 4\ns_cbranch_scc1 {l1}")
        a(f"v_add_u32 v10, {SCR[p]}, v{VRED}")
        for ct in range(5):
            a(f"ds_write_b128 v10, {vr(GACC(ct),4)} offset:{ct*1024}")
        a.label(l1)
        if before:
            before()
            a("s_waitcnt lgkmcnt(0) vmcnt(10)")
        else:
            a("s_waitcnt lgkmcnt(0)")
        a("s_barrier")
        a(f"s_cmp_ge_u32 s{sWAVE}, 4\ns_cbranch_scc1 {l2}")
        a(f"v_add_u32 v10, {SCR[p]}, v{VRED}")
        for ct in range(5):
            a(f"ds_read_b128 {vr(FT+4*ct,4)}, v10 offset:{ct*1024}")
        a(f"""
        s_lshl_b32 s{T0}, s{sHEAD}, 2
        s_add_u32 s{T0}, s{T0}, s{sCW}
        s_mul_i32 s{T0}, s{T0}, {16*2560}
        s_mul_i32 s{T1}, s{sQB}, 160
        s_add_u32 s{T0}, s{T0}, s{T1}
        s_add_u32 s{T0}, s{T0}, {p*1280}
        s_waitcnt lgkmcnt(0)
        """)
        for i in range(20):
            a(f"v_add_f32 v{FT+i}, v{FT+i}, v{32+i}")
        for i in range(10):
            a(f"v_cvt_pk_bf16_f32 v{FT+20+i}, v{FT+2*i}, v{FT+2*i+1}")
        a(f"""
        buffer_store_dwordx4 {vr(FT+20,4)}, v{VOUT}, {srd(SOUT)}, s{T0} offen
        buffer_store_dwordx4 {vr(FT+24,4)}, v{VOUT}, {srd(SOUT)}, s{T0} offen offset:16
        buffer_store_dwordx2 {vr(FT+28,2)}, v{VOUT}, {srd(SOUT)}, s{T0} offen offset:32
        """)
        a.label(l2)

    def o_check(p, i, n):
        d = OFB[p] + 4 * i
        a(f"""
        s_waitcnt vmcnt({n})
        L_gw{p}_{i}:
        v_max3_u32 v10, v{d}, v{d+1}, v{d+2}
        v_max_u32 v10, v10, v{d+3}
        v_cmp_eq_u32 vcc, -1, v10
        s_cbranch_vccnz L_gr{p}_{i}
        L_gc{p}_{i}:
        """)
        retries.append((p, i))

    a(f"s_mov_b32 s{sCNT}, 0x20000")
    MID, OI = OPT.get("mid", 1), OPT.get("oi", 8)
    a(g3reads(0))
    a(g3reads(1))
    young = 2
    nd = no = 0
    for i in range(10):
        if i == MID:
            a("s_barrier")
            stamp(a, 8, 2)
        o_check(1, i, 9 - i + young)
        a(f"s_waitcnt lgkmcnt({5 if i < 9 else 0})")
        rs = g3reads(i + 2) if i < 8 else []
        for ct in range(5):
            a(mfma16(GACC(ct), GW(i % 3, ct), OFB[1] + 4 * i, None if i == 0 else GACC(ct)))
            a(rs[ct:ct + 1])
        if i >= MID and nd < 5:
            a(wo_piece(0, 40 + 8 * nd, WOL[0][0] + (40 + 8 * nd) * 1024))
            nd += 1; young += 1
        if i >= OI:
            n = -(-10 // (10 - OI))
            for k in range(no, min(10, no + n)):
                a(o_load(0, k)); young += 1
            no = min(10, no + n)
    assert nd == 5 and MID + 5 <= OI
    for k in range(no, 10):
        a(o_load(0, k))
    a("s_barrier")
    stamp(a, 9, 2)
    a(f"s_add_u32 s{T0}, s{sW1K}, {WOL[0][0]}\nv_add_u32 v11, s{T0}, v{VDMA}")

    def stage_out():
        for k in range(5):
            a(f"ds_write_b128 v11, {vr(ST[k],4)} offset:{k*8192}")
    g3_finish(1, before=stage_out)
    stamp(a, 12)
    stamp(a, 11, 2)
    a(f"""
    s_cmp_lt_u32 s{sWAVE}, 4
    s_mov_b32 s{T0}, {(WOL[0][1] - WOL[1][1]) & 0xffffffff}
    s_cselect_b32 s{T0}, {(WOL[0][0] - WOL[1][0]) & 0xffffffff}, s{T0}
    v_add_u32 v{VW3}, s{T0}, v{VW3}
    """)
    stamp(a, 13)
    stamp(a, 12, 2)
    a(g3reads(0))
    a(g3reads(1))
    for i in range(10):
        d = OFB[0] + 4 * i
        o_check(0, i, 9 - i)
        a(f"s_waitcnt lgkmcnt({5 if i < 9 else 0})")
        rs = g3reads(i + 2) if i < 8 else []
        for ct in range(5):
            a(mfma16(GACC(ct), GW(i % 3, ct), d, None if i == 0 else GACC(ct)))
            a(rs[ct:ct + 1])
    stamp(a, 13, 2)
    a("s_nop 7")
    g3_finish(0)
    lab = only_wave(4)
    a(f"""
    s_cmp_lg_u32 s2, 0
    s_cbranch_scc1 {lab}
    v_mov_b32 v1, s{sTAG}
    s_mov_b32 s{T4}, {EP_OFF}
    s_mov_b64 exec, 1
    buffer_store_dword v1, off, {srd(SWS)}, s{T4} sc1
    s_mov_b64 exec, -1
    """)
    a.label(lab)
    if STAMPS:
        a("s_waitcnt vmcnt(0)")
        stamp(a, 14)
        stamp(a, 14, 2)
        a("s_waitcnt lgkmcnt(0)")
        a(f"""
        s_lshl_b32 s{T0}, s2, 4
        s_add_u32 s{T0}, s{T0}, s{sWAVE}
        s_lshl_b32 s{T0}, s{T0}, 7
        s_add_u32 s{T0}, s{T0}, {STAMP_OFF}
        s_mov_b64 exec, 1
        """)
        for i in range(15):
            a(f"v_mov_b32 v1, s{SB+2*i}")
            a(f"buffer_store_dword v1, off, {srd(SWS)}, s{T0} offset:{4*i}")
    a.label("L_done")
    a("s_endpgm")

    for p, i in retries:
        a.label(f"L_gr{p}_{i}")
        a(f"""
        s_sub_u32 s{sCNT}, s{sCNT}, 1
        s_cmp_eq_u32 s{sCNT}, 0
        s_cbranch_scc1 L_gq{p}_{i}
        s_waitcnt vmcnt(0)
        s_sleep 1
        """)
        for k in range(i, 10):
            a(o_load(p, k))
        a(f"s_waitcnt vmcnt({9 - i if p == 0 else 0})")
        a(f"s_branch L_gw{p}_{i}")
        a.label(f"L_gq{p}_{i}")
        a(f"s_mov_b32 s{sCNT}, 1\ns_branch L_gc{p}_{i}")

    a.label("L_slowA")
    reset_m(0)
    a_pass1()
    a("s_waitcnt lgkmcnt(2)\ns_nop 0")
    a(qk(S[0], 0, 0, cmaskA(0)))
    for t in range(10):
        tile_step(t, 9, 0, lambda u: u * 2560, lambda u: u * 2560, cmaskA, extra_k=pen)
    a("s_nop 15\ns_branch L_epiA")

    a.label("L_idle")
    G3D = [32, 33, 34, 35, 36]
    for i in range(5):
        a([f"v_add_u32 v10, {64*i}, v0",
           "v_mul_u32_u24 v11, 6554, v10",
           "v_lshrrev_b32 v11, 16, v11",
           "v_mul_u32_u24 v12, 10, v11",
           "v_sub_u32 v12, v10, v12",
           "v_mul_u32_u24 v11, 1280, v11",
           f"v_lshl_add_u32 v{G3D[i]}, v12, 4, v11"])
    a(f"""
    s_cmp_ge_u32 s{sTB}, 8
    s_cselect_b32 s{SX[0]}, s{SWO[1]}, s{SWO[0]}
    s_cselect_b32 s{SX[0]+1}, s{SWO[1]+1}, s{SWO[0]+1}
    s_mov_b32 s{SX[0]+2}, {WO_BYTES}
    s_and_b32 s{T0}, s{sTB}, 7
    s_mul_i32 s{T0}, s{T0}, 160
    s_mul_i32 s{T1}, s{sWAVE}, {32*1280}
    s_add_u32 s{T0}, s{T0}, s{T1}
    s_mul_i32 s{T1}, s{sWAVE}, 5120
    """)
    for rnd in range(3):
        lab = a.uniq("L_id")
        if rnd == 2:
            a(f"s_cmp_ge_u32 s{sWAVE}, 4\ns_cbranch_scc1 {lab}")
        a(f"s_add_u32 s{T2}, s{T0}, {rnd*256*1280}")
        for i in range(5):
            a(f"s_add_u32 m0, s{T1}, {K + rnd*8*5120 + i*1024}\ns_nop 0")
            a(f"buffer_load_dwordx4 v{G3D[i]}, {srd(SX[0])}, s{T2} offen lds")
        a.label(lab)
    a(f"""
    v_lshrrev_b32 v10, 5, v0
    v_bfe_u32 v11, v0, 4, 1
    v_bfe_u32 v12, v0, 2, 2
    v_and_b32 v13, 3, v0
    v_mul_u32_u24 v13, 40, v13
    v_add_u32 v13, {K}, v13
    v_mul_u32_u24 v14, 20, v10
    v_lshl_add_u32 v14, v11, 2, v14
    v_add_u32 v14, v14, v12
    v_mul_u32_u24 v14, 160, v14
    v_add_u32 v37, v14, v13
    v_mul_u32_u24 v14, 80, v10
    v_mul_u32_u24 v11, 20, v11
    v_add3_u32 v14, v14, v11, v12
    v_add_u32 v14, 16, v14
    v_mul_u32_u24 v14, 160, v14
    v_add_u32 v38, v14, v13
    s_mul_i32 s{T0}, s{sWAVE}, 6400
    v_add_u32 v37, s{T0}, v37
    s_mul_i32 s{T0}, s{sWAVE}, 25600
    v_add_u32 v38, s{T0}, v38
    v_lshlrev_b32 v39, 4, v0
    v_mov_b32 v10, 0
    v_mov_b32 v11, 0
    v_mov_b32 v12, 4
    ds_write_b64 v10, v[10:11]
    ds_write_b32 v10, v12 offset:8
    s_mul_i32 s{T0}, s{sTB}, 102400
    s_add_u32 s{T0}, s{T0}, {WP_OFF}
    s_mul_i32 s{T1}, s{sWAVE}, 5120
    s_add_u32 s{T1}, s{T1}, s{T0}              ; kh=0, i=w
    s_lshr_b32 s{T2}, s{sWAVE}, 1
    s_mul_i32 s{T2}, s{T2}, 51200
    s_and_b32 s{T3}, s{sWAVE}, 1
    s_mul_i32 s{T3}, s{T3}, 5120
    s_add_u32 s{T2}, s{T2}, s{T3}
    s_add_u32 s{T2}, s{T2}, s{T0}
    s_add_u32 s{T2}, s{T2}, {8*5120}
    s_waitcnt vmcnt(0) lgkmcnt(0)
    s_barrier
    """)
    for rnd in range(3):
        lab = a.uniq("L_id")
        if rnd == 2:
            a(f"s_cmp_ge_u32 s{sWAVE}, 4\ns_cbranch_scc1 {lab}")
        base = 64 + rnd * 20
        for ct in range(5):
            for rd in range(2):
                if rnd < 2:
                    a(f"ds_read_b64_tr_b16 {vr(base+4*ct+2*rd,2)}, v37 offset:{rnd*51200 + rd*1280 + ct*8}")
                else:
                    a(f"ds_read_b64_tr_b16 {vr(base+4*ct+2*rd,2)}, v38 offset:{rd*6400 + ct*8}")
        a("s_waitcnt lgkmcnt(0)")
        if rnd == 1:
            a(f"s_add_u32 s{T1}, s{T1}, 51200")
        sreg = T1 if rnd < 2 else T2
        for ct in range(5):
            if ct == 4:
                a(f"s_add_u32 s{T3}, s{sreg}, 4096")
                a(f"buffer_store_dwordx4 {vr(base+4*ct,4)}, v39, {srd(SWS)}, s{T3} offen {HST}")
            else:
                a(f"buffer_store_dwordx4 {vr(base+4*ct,4)}, v39, {srd(SWS)}, s{sreg} offen offset:{ct*1024} {HST}")
        a.label(lab)
    a("s_waitcnt vmcnt(0)\ns_barrier")
    publish(0, 0, 1)
    publish(0, 1, 2)
    a(f"v_add_u32 v{VPUB}, 4, v{VPUB}")
    publish(0, 0, 3)
    publish(0, 1, 4)
    poll_issue(0, 1)
    poll_check(0, 1, sleep=OPT.get('isl', 32))
    a("s_barrier")
    a(f"s_cmp_ge_u32 s{sWAVE}, 4")
    a("s_cbranch_scc1 L_attn_setup")
    a(f"v_lshlrev_b32 v{VDMA}, 4, v0")
    a("s_branch L_x1")

    a.label("L_slowB")
    reset_m(1)
    a(f"""
    v_mov_b32 v19, 0xff800000
    v_subrev_u32 v10, {CH[3]}, v{VK}
    v_subrev_u32 v12, {CH[3]}, v{VV}
    s_add_u32 s{T0}, s{sKVB}, {32*163840}
    s_add_u32 s{T1}, s{T0}, 163840
    """)

    def gk():
        return f"""
        buffer_load_dwordx2 {vr(KL[0],2)}, v10, {srd(SWS)}, s{T0} offen {HS}
        buffer_load_dwordx2 {vr(KL[0]+2,2)}, v10, {srd(SWS)}, s{T0} offen offset:512 {HS}
        s_mov_b64 exec, s[{sLO}:{sLO+1}]
        buffer_load_dwordx2 {vr(KH[0],2)}, v10, {srd(SWS)}, s{T0} offen offset:1024 {HS}
        """
    a.label("L_slow1")
    a(gk())
    a("s_mov_b64 exec, -1\ns_waitcnt vmcnt(0)")
    a(qk(S[0], 0, 1))
    a("s_nop 15")
    a(maxtree(19, S[0], False))
    a(f"""
    s_add_u32 s{T0}, s{T0}, 2560
    s_cmp_lt_u32 s{T0}, s{T1}
    s_cbranch_scc1 L_slow1
    """)
    set_m(1, 19)
    zero_o()
    a(f"s_sub_u32 s{T0}, s{T1}, 163840")
    a.label("L_slow2")
    a(gk())
    a(f"""
    s_mov_b64 exec, s[{sVM}:{sVM+1}]
    buffer_load_dwordx4 {vr(VF[0],4)}, v12, {srd(SWS)}, s{T0} offen {HS}
    buffer_load_dwordx4 {vr(VF[0]+4,4)}, v12, {srd(SWS)}, s{T0} offen offset:640 {HS}
    s_mov_b64 exec, -1
    s_waitcnt vmcnt(0)
    """)
    a(qk(S[0], 0, 1))
    a("s_nop 15")
    a(exps(S[0]))
    a("s_nop 1")
    a(pv(S[0], 0))
    a(f"""
    s_add_u32 s{T0}, s{T0}, 2560
    s_cmp_lt_u32 s{T0}, s{T1}
    s_cbranch_scc1 L_slow2
    s_nop 15
    s_branch L_epiB
    """)


def main(out):
    global HST, HS
    HST = ["sc1", "", "sc0 sc1", "nt", "sc1 nt"][OPT.get("st", 0)]
    HS = ["sc1", ""][OPT.get("ld", 0)]
    a = Asm()
    hdr = open(f"cdna_kernels/{NAME}.s.ref").read().split("\n")
    keep = [l for l in hdr if l.startswith(";") and "@launch" not in l]
    for l in keep:
        a.raw(l)
    a.raw(f"; @launch grid=(256,1,1) block=(512,1,1) lds={LDS_BYTES}")
    a.raw('.amdgcn_target "amdgcn-amd-amdhsa--gfx950"')
    a.raw(".text")
    gen(a)
    a.raw('.section .rodata,"a"')
    a.raw(".p2align 6")
    a.raw(f""".amdhsa_kernel {KNAME}
  .amdhsa_next_free_vgpr 256
  .amdhsa_next_free_sgpr {102 if STAMPS else 72}
  .amdhsa_accum_offset 256
  .amdhsa_group_segment_fixed_size 0
  .amdhsa_kernarg_size 72
  .amdhsa_user_sgpr_count 2
  .amdhsa_user_sgpr_kernarg_segment_ptr 1
  .amdhsa_system_sgpr_workgroup_id_x 1
.end_amdhsa_kernel""")
    open(out, "w").write(a.text())


if __name__ == "__main__":
    if "--stamps" in sys.argv:
        STAMPS = True
        sys.argv.remove("--stamps")
    for x in list(sys.argv):
        if x.startswith("-D"):
            k, _, v = x[2:].partition("=")
            OPT[k] = int(v) if v else 1
            sys.argv.remove(x)
    main(sys.argv[1] if len(sys.argv) > 1 else f"cdna_kernels/{NAME}.s")
```

```python
import sys, struct

NAME = "concat_heads__sliding_block__softmax_full_mha__prompt"
KNAME = NAME + "_kernel"

QW_OFF = 0x000000
KV_OFF = 0x500000
OW_OFF = 0xF00000
FL_OFF = 0x1400000
EP_OFF = 0x1409000
WP_OFF = 0x1500000
WS_USED = 0x1700000
X_BYTES = 2048 * 640 * 2
WQKV_BYTES = 640 * 1920 * 2
WO_BYTES = 640 * 640 * 2
OUT_BYTES = 2048 * 1280 * 2
SRD3 = 0x00020000
LDS_BYTES = 163840
K = 1024

STAMPS = False
STAMP_OFF = 0x2000000
SB = 72
OPT = {}


def f32bits(x):
    return struct.unpack("<I", struct.pack("<f", x))[0]


NEGBIG = f32bits(-1e30)
CSCALE = f32bits((20 ** -0.5) * 1.4426950408889634)


class Asm:
    def __init__(self):
        self.l = []
        self.n = 0

    def __call__(self, s):
        if isinstance(s, (list, tuple)):
            for x in s:
                self(x)
            return
        for line in s.strip("\n").split("\n"):
            line = line.strip()
            if line:
                self.l.append(("" if line.endswith(":") else "    ") + line)

    def label(self, s):
        self.l.append(s + ":")

    def raw(self, s):
        self.l.append(s)

    def uniq(self, p):
        self.n += 1
        return f"{p}_{self.n}"

    def text(self):
        return "\n".join(self.l) + "\n"


def vr(a, n):
    return f"v[{a}:{a + n - 1}]"


def mfma32(d, a_, b_, c):
    cs = vr(c, 16) if c is not None else "0"
    return f"v_mfma_f32_32x32x16_bf16 {vr(d,16)}, {vr(a_,4)}, {vr(b_,4)}, {cs}"


def mfma32k8(d, a_, b_, c):
    return f"v_mfma_f32_32x32x8_bf16 {vr(d,16)}, {vr(a_,2)}, {vr(b_,2)}, {vr(c,16)}"


def mfma16(d, a_, b_, c):
    cs = vr(c, 4) if c is not None else "0"
    return f"v_mfma_f32_16x16x32_bf16 {vr(d,4)}, {vr(a_,4)}, {vr(b_,4)}, {cs}"


def stamp(a, i, mode=0):
    if STAMPS and (i == 0 or OPT.get("sm", 0) == mode):
        a(f"s_memrealtime s[{SB+2*i}:{SB+2*i+1}]")


SX = [4, 12]
SW = [8, 16]
SWS, SDBG = 20, 24
SWO = [28, 32]
SOUT = 36
sWAVE, sCW, sTB, sM, sKS, sXB, sWB, sLP = 40, 41, 42, 43, 44, 45, 46, 47
T0, T1, T2, T3, T4, T5 = 48, 49, 50, 51, 52, 53
sEQ, sEK = 54, 55
sHEAD, sQB, sQT, sW1K = 56, 57, 58, 59
sVM, sLO = 60, 62
sCS, sONE, sKVB, sXCD, sJ, sROT = 64, 65, 66, 67, 68, 69
sCNT = 70
sKVS = 71
sTAG = 3


def srd(n):
    return f"s[{n}:{n+3}]"


HS = "sc1"
HST = "sc1"


def gen(a):
    a.raw(f".globl {KNAME}\n.p2align 8\n.type {KNAME},@function")
    a.label(KNAME)
    a(f"""
    s_cmp_ge_u32 s2, 256
    s_cbranch_scc1 L_done
    """)
    stamp(a, 0)
    a(f"""
    s_load_dwordx2 s[{SX[1]}:{SX[1]+1}], s[0:1], 24
    s_load_dwordx2 s[{SW[1]}:{SW[1]+1}], s[0:1], 32
    s_load_dwordx2 s[{SX[0]}:{SX[0]+1}], s[0:1], 0
    s_load_dwordx2 s[{SW[0]}:{SW[0]+1}], s[0:1], 8
    s_load_dwordx2 s[{SWO[0]}:{SWO[0]+1}], s[0:1], 16
    s_load_dwordx2 s[{SWO[1]}:{SWO[1]+1}], s[0:1], 40
    s_load_dwordx2 s[{SOUT}:{SOUT+1}], s[0:1], 48
    s_load_dwordx2 s[{SWS}:{SWS+1}], s[0:1], 64
    v_lshrrev_b32 v1, 6, v0
    v_and_b32 v0, 63, v0
    s_and_b32 s{sXCD}, s2, 7
    v_readfirstlane_b32 s{sWAVE}, v1
    s_lshr_b32 s{sJ}, s2, 3
    s_and_b32 s{T0}, s{sXCD}, 1
    s_lshl_b32 s{T0}, s{T0}, 3
    s_and_b32 s{T1}, s{sJ}, 7
    s_add_u32 s{sTB}, s{T0}, s{T1}
    s_lshr_b32 s{T0}, s{sXCD}, 1
    s_lshl_b32 s{T0}, s{T0}, 2
    s_lshr_b32 s{T2}, s{sJ}, 3
    s_add_u32 s{sM}, s{T0}, s{T2}
    """)
    rm = OPT.get("rot", 1)
    if rm == 0:
        a(f"s_mov_b32 s{sROT}, 0")
    elif rm == 1:
        a(f"""
        s_mul_i32 s{T2}, s{T2}, 3
        s_add_u32 s{sROT}, s{T1}, s{T2}
        s_cmp_ge_u32 s{sROT}, 10
        s_cselect_b32 s{T0}, 10, 0
        s_sub_u32 s{sROT}, s{sROT}, s{T0}
        """)
    else:
        a(f"""
        s_add_u32 s{sROT}, s{T1}, s{T2}
        s_and_b32 s{sROT}, s{sROT}, 1
        s_mul_i32 s{sROT}, s{sROT}, 5
        """)
    a(f"""
    s_and_b32 s{sCW}, s{sWAVE}, 3
    """)
    for n, size in ((SX[0], X_BYTES), (SW[0], WQKV_BYTES), (SX[1], X_BYTES), (SW[1], WQKV_BYTES), (SWO[0], WO_BYTES),
                    (SWO[1], WO_BYTES), (SOUT, OUT_BYTES), (SWS, 0x4000000 if STAMPS else WS_USED)):
        a(f"s_mov_b32 s{n+2}, {size}\ns_mov_b32 s{n+3}, {SRD3}")
    a(f"""
    v_lshrrev_b32 v6, 3, v0
    v_mul_u32_u24 v2, 1280, v6
    v_lshrrev_b32 v7, 4, v0
    v_and_b32 v8, 7, v0
    v_xor_b32 v8, v8, v7
    v_lshl_add_u32 v2, v8, 4, v2
    v_xor_b32 v3, 64, v2
    v_mul_u32_u24 v9, 3840, v7
    v_and_b32 v8, 15, v0
    v_lshlrev_b32 v10, 1, v7
    v_xor_b32 v8, v8, v10
    """)
    a("""
    v_lshl_add_u32 v4, v8, 4, v9
    v_xor_b32 v5, 128, v4
    """)
    a(f"""
    s_lshl_b32 s{T0}, s{sTB}, 7
    s_lshl_b32 s{T1}, s{sCW}, 5
    s_add_u32 s{T0}, s{T0}, s{T1}
    s_mul_i32 s{sXB}, s{T0}, 1280
    s_mul_i32 s{sWB}, s{sCW}, {16*3840}
    s_lshl_b32 s{T0}, s{sM}, 8
    s_add_u32 s{sWB}, s{sWB}, s{T0}
    s_lshl_b32 s{sLP}, s{sCW}, 12
    s_lshr_b32 s{T3}, s{sWAVE}, 2              ; group
    s_add_u32 s{sKS}, s{sROT}, s{T3}
    s_cmp_eq_u32 s{sKS}, 10
    s_cselect_b32 s{sKS}, 0, s{sKS}
    s_lshl_b32 s{T3}, s{T3}, 15
    s_add_u32 s{T3}, s{T3}, s{sLP}
    """)

    def dma_stage(n, sLP=sLP):
        p = 1 - n // 10
        slot = (n % 5) * 32 * K
        out = [f"s_lshl_b32 s{T0}, s{sKS}, 7",
               f"s_add_u32 s{T0}, s{T0}, s{sXB}",
               f"s_mul_i32 s{T1}, s{sKS}, {64*3840}",
               f"s_add_u32 s{T1}, s{T1}, s{sWB}"]
        for i in range(4):
            out += [f"s_add_u32 m0, s{sLP}, {slot + i*1024}",
                    f"s_add_u32 s{T2}, s{T0}, {i*8*1280}",
                    f"buffer_load_dwordx4 v{2 + (i & 1)}, {srd(SX[p])}, s{T2} offen lds",
                    f"s_add_u32 m0, s{sLP}, {slot + 16*K + i*1024}",
                    f"s_add_u32 s{T2}, s{T1}, {i*4*3840}",
                    f"buffer_load_dwordx4 v{4 + (i >> 1)}, {srd(SW[p])}, s{T2} offen lds"]
        out += [f"s_add_u32 s{sKS}, s{sKS}, 1",
                f"s_cmp_eq_u32 s{sKS}, 10",
                f"s_cselect_b32 s{sKS}, 0, s{sKS}"]
        return out

    a("s_waitcnt lgkmcnt(0)")
    a(f"s_cmp_eq_u32 s{sM}, 15")
    a("s_cbranch_scc1 L_setup1")
    a(dma_stage(0, T3))
    a(f"s_cmp_lt_u32 s{sWAVE}, 4")
    a("s_cbranch_scc1 L_setup1")
    for n in (2, 3):
        a(dma_stage(n))
    a.label("L_setup1")
    a(f"""
    s_lshl_b32 s{T0}, s{sXCD}, 2
    s_and_b32 s{T1}, s{sJ}, 3
    s_add_u32 s{sHEAD}, s{T0}, s{T1}
    s_lshr_b32 s{sQB}, s{sJ}, 2
    s_add_u32 s{T0}, s{SWS}, {EP_OFF}
    s_addc_u32 s{T1}, s{SWS+1}, 0
    s_load_dword s{sTAG}, s[{T0}:{T1}], 0
    """)
    a.label("L_setup2")

    XA = lambda sg, kk: 14 + sg * 6 + kk
    WA = lambda sg, ct: 14 + sg * 6 + 2 + ct
    a(f"""
    v_and_b32 v6, 15, v0
    v_lshrrev_b32 v8, 1, v6                ; f(row)
    v_xor_b32 v8, v8, v7                   ; o ^ f
    v_lshlrev_b32 v8, 4, v8
    v_lshl_add_u32 v8, v6, 7, v8
    s_lshr_b32 s{T0}, s{sCW}, 1
    s_lshl_b32 s{T0}, s{T0}, 13
    v_add_u32 v{XA(0,0)}, s{T0}, v8
    v_xor_b32 v{XA(0,1)}, 64, v{XA(0,0)}
    v_lshrrev_b32 v8, 2, v0
    v_and_b32 v8, 3, v8                    ; r
    v_lshl_add_u32 v9, v7, 3, v8           ; krow = 8o + r
    v_lshlrev_b32 v9, 8, v9
    v_add_u32 v9, {16*K}, v9
    v_and_b32 v10, 1, v7
    v_lshl_add_u32 v10, v10, 2, v8
    v_lshlrev_b32 v10, 1, v10              ; sigma
    v_bfe_u32 v11, v0, 1, 1                ; c>>1
    s_and_b32 s{T0}, s{sCW}, 1
    s_lshl_b32 s{T0}, s{T0}, 3
    v_or_b32 v11, s{T0}, v11               ; 8cg + (c>>1)
    v_xor_b32 v11, v11, v10
    v_lshl_add_u32 v11, v11, 4, v9
    v_and_b32 v12, 1, v0
    v_lshl_add_u32 v{WA(0,0)}, v12, 3, v11
    v_xor_b32 v{WA(0,1)}, 32, v{WA(0,0)}
    v_xor_b32 v{WA(0,2)}, 64, v{WA(0,0)}
    v_xor_b32 v{WA(0,3)}, 96, v{WA(0,0)}
    """)
    for sg in (1, 2):
        for i in range(6):
            a(f"v_add_u32 v{14+sg*6+i}, {sg*64*K}, v{14+i}")
    EA = [196, 197, 198, 199]
    a(f"""
    s_lshl_b32 s{T0}, s{sTB}, 2
    s_and_b32 s{T1}, s{sCW}, 2
    s_add_u32 s{T0}, s{T0}, s{T1}
    s_lshr_b32 s{T1}, s{sWAVE}, 2
    s_xor_b32 s{T1}, s{T1}, 1
    s_lshl_b32 s{T1}, s{T1}, 11                ; p*32*64
    s_add_u32 s{T0}, s{T0}, s{T1}
    s_cmp_ge_u32 s{sM}, 5
    s_cselect_b32 s{T2}, 1, 0                  ; K or V
    s_lshl_b32 s{T3}, 1280, s{T2}
    s_mul_i32 s{sEQ}, s{T0}, s{T3}
    s_mul_i32 s{T0}, s{T2}, {KV_OFF}
    s_add_u32 s{sEQ}, s{sEQ}, s{T0}
    s_add_u32 s{sEK}, s{sEQ}, s{T3}
    s_lshl_b32 s{T3}, s{T3}, 6
    s_and_b32 s{T1}, s{sCW}, 1
    s_cmp_ge_u32 s{sM}, 10
    s_cbranch_scc1 L_ea1
    s_mul_i32 s{T0}, s{T2}, 5
    s_sub_u32 s{T0}, s{sM}, s{T0}
    s_lshl_b32 s{T0}, s{T0}, 5
    s_lshl_b32 s{T1}, s{T1}, 4
    s_add_u32 s{T0}, s{T0}, s{T1}
    v_add_u32 v8, s{T0}, v7
    v_lshlrev_b32 v10, 4, v6
    """)
    for ct in range(4):
        a(f"""
        v_add_u32 v9, {4*ct}, v8
        v_mul_u32_u24 v11, 205, v9
        v_lshrrev_b32 v11, 10, v11
        v_mul_u32_u24 v12, 5, v11
        v_sub_u32 v12, v9, v12
        v_mul_lo_u32 v11, v11, s{T3}
        v_lshl_add_u32 v12, v12, 8, v10
        v_add_u32 v{EA[ct]}, v11, v12
        """)
    a(f"""
    s_branch L_ea2
    L_ea1:
    s_sub_u32 s{T0}, s{sM}, 10
    s_lshl_b32 s{T0}, s{T0}, 7
    s_lshl_b32 s{T1}, s{T1}, 6
    s_add_u32 s{T0}, s{T0}, s{T1}
    v_add_u32 v8, s{T0}, v6
    v_mul_u32_u24 v10, 320, v7
    v_add_u32 v10, 1280, v10
    """)
    for ct in range(4):
        a(f"""
        v_add_u32 v9, {16*ct}, v8
        v_mul_u32_u24 v11, 3277, v9
        v_lshrrev_b32 v11, 16, v11
        v_mul_u32_u24 v12, 20, v11
        v_sub_u32 v12, v9, v12
        v_mul_lo_u32 v11, v11, s{T3}
        v_lshl_add_u32 v12, v12, 4, v10
        v_add_u32 v{EA[ct]}, v11, v12
        """)
    a.label("L_ea2")
    a(f"""
    s_lshl_b32 s{sQT}, s{sQB}, 3
    s_add_u32 s{sQT}, s{sQT}, s{sWAVE}
    s_lshl_b32 s{sW1K}, s{sWAVE}, 10
    s_mov_b32 s{sVM}, 0x000fffff
    s_mov_b32 s{sVM+1}, 0x000fffff
    s_mov_b32 s{sLO}, -1
    s_mov_b32 s{sLO+1}, 0
    s_mov_b32 s{sCS}, {CSCALE}
    s_mov_b32 s{sONE}, 0x3f80
    s_mul_i32 s{sKVB}, s{sHEAD}, 163840
    s_add_u32 s{sKVB}, s{sKVB}, {KV_OFF}
    """)

    ACC = lambda ct, tt: 128 + (ct * 4 + tt) * 4
    XF = lambda buf, tt: 64 + buf * 32 + tt * 4
    WF = lambda buf, ct: 64 + buf * 32 + 16 + ct * 4

    def g1reads(i, kk):
        slot = i % 5
        sg, so = slot >> 1, (slot & 1) * 32 * K
        r = []
        for q in range(4):
            r.append(f"ds_read_b128 {vr(XF(kk,q),4)}, v{XA(sg,kk)} offset:{so + q*2048}")
            for rd in range(2):
                r.append(f"ds_read_b64_tr_b16 {vr(WF(kk,q)+2*rd,2)}, v{WA(sg,q)} offset:{so + kk*8192 + rd*1024}")
        return r

    VPG, VPUB, VPO, VPD = 202, 203, 206, 204
    sPM, sSTR = SDBG, SDBG + 2

    def only_wave(wave):
        lab = a.uniq("L_w")
        a(f"s_cmp_lg_u32 s{sWAVE}, {wave}")
        a(f"s_cbranch_scc1 {lab}")
        return lab

    def publish(kind, p, wave):
        lab = only_wave(wave)
        if kind == 0:
            a(f"""
            v_mov_b32 v1, s{sTAG}
            s_mov_b32 s{T4}, {FL_OFF + p*16384}
            s_mov_b64 exec, s[{sPM}:{sPM+1}]
            buffer_store_dword v1, v{VPUB}, {srd(SWS)}, s{T4} offen sc1
            s_mov_b64 exec, -1
            """)
        else:
            a(f"""
            s_lshl_b32 s{T4}, s{sQB}, 8
            s_lshl_b32 s{T5}, s{sHEAD}, 2
            s_add_u32 s{T4}, s{T4}, s{T5}
            s_add_u32 s{T4}, s{T4}, {FL_OFF + 32768}
            v_mov_b32 v1, s{sTAG}
            s_mov_b64 exec, 1
            buffer_store_dword v1, off, {srd(SWS)}, s{T4} sc1
            s_mov_b64 exec, -1
            """)
        a.label(lab)

    def poll_loads(kind, p):
        if kind == 0:
            return [f"s_mov_b32 s{T3}, {FL_OFF + p*16384}",
                    f"buffer_load_dwordx2 {vr(VPD,2)}, v{VPG}, {srd(SWS)}, s{T3} offen sc1"]
        return [f"s_mov_b32 s{T3}, {FL_OFF + 32768}",
                f"buffer_load_dword v{VPD}, v{VPO}, {srd(SWS)}, s{T3} offen sc1"]

    def poll_issue(kind, p, wave=0):
        lab = only_wave(wave) if wave is not None else a.uniq("L_w")
        a(poll_loads(kind, p))
        a.label(lab)

    def poll_check(kind, p, sleep=8, wave=0, first=0):
        lab = only_wave(wave) if wave is not None else a.uniq("L_w")
        loop = a.uniq("L_spin")
        a(f"s_mov_b32 s{sCNT}, 0x20000")
        a(f"s_waitcnt vmcnt({first})")
        a.label(loop)
        a(f"v_cmp_eq_u32 vcc, s{sTAG}, v{VPD}")
        if kind == 0:
            a(f"v_cmp_eq_u32 s[{T0}:{T0+1}], s{sTAG}, v{VPD+1}")
            a(f"s_orn2_b64 s[{T0}:{T0+1}], s[{T0}:{T0+1}], s[{sSTR}:{sSTR+1}]\ns_and_b64 vcc, vcc, s[{T0}:{T0+1}]")
        a(f"""
        s_cmp_eq_u64 vcc, -1
        s_cbranch_scc1 {lab}
        s_sleep {sleep}
        """)
        a(poll_loads(kind, p))
        a(f"""
        s_sub_u32 s{sCNT}, s{sCNT}, 1
        s_cmp_lg_u32 s{sCNT}, 0
        s_waitcnt vmcnt(0)
        s_cbranch_scc1 {loop}
        """)
        a.label(lab)

    a(f"""
    s_mul_i32 s{T0}, s{sHEAD}, 20
    s_add_u32 s{T1}, s{T0}, 19
    s_lshr_b32 s{T0}, s{T0}, 7
    s_lshr_b32 s{T1}, s{T1}, 7
    s_cmp_lg_u32 s{T0}, s{T1}
    s_cselect_b64 s[{sSTR}:{sSTR+1}], -1, 0
    s_lshl_b32 s{T0}, s{sHEAD}, 9
    v_lshl_add_u32 v{VPG}, v0, 3, s{T0}
    s_mul_i32 s{T0}, s{sM}, 52
    s_lshr_b32 s{T0}, s{T0}, 8                 ; type
    s_mul_i32 s{T1}, s{T0}, 5
    s_sub_u32 s{T1}, s{sM}, s{T1}
    s_mul_i32 s{T2}, s{T1}, 205
    s_lshr_b32 s{T2}, s{T2}, 5
    s_cmp_eq_u32 s{T1}, 2
    s_cselect_b32 s{sPM}, 0x80, 0
    s_or_b32 s{sPM}, s{sPM}, 0x7f
    s_cmp_eq_u32 s{sM}, 15
    s_cselect_b32 s{sPM}, -1, s{sPM}
    s_mov_b32 s{sPM+1}, 0
    s_lshl_b32 s{T2}, s{T2}, 9
    s_lshl_b32 s{T0}, s{T0}, 7
    s_add_u32 s{T2}, s{T2}, s{T0}
    s_lshl_b32 s{T0}, s{sTB}, 3
    s_add_u32 s{T2}, s{T2}, s{T0}
    v_lshl_add_u32 v{VPUB}, v0, 9, s{T2}
    s_min_u32 s{T1}, s{T1}, 1
    s_lshl_b32 s{T1}, s{T1}, 2
    s_mov_b64 exec, 1
    v_add_u32 v{VPUB}, s{T1}, v{VPUB}
    s_mov_b64 exec, -1
    v_and_b32 v8, 31, v0
    v_lshlrev_b32 v8, 2, v8
    s_lshl_b32 s{T0}, s{sXCD}, 8
    v_add_u32 v{VPO}, s{T0}, v8
    """)
    a(f"s_waitcnt lgkmcnt(0)\ns_add_u32 s{sTAG}, s{sTAG}, 0x9e3779b1")
    a(f"s_cmp_eq_u32 s{sM}, 15")
    a("s_cbranch_scc1 L_idle")

    a(f"s_cmp_lt_u32 s{sWAVE}, 4")
    a("s_cbranch_scc1 L_xstart")
    for n in range(11):
        a("s_waitcnt vmcnt(24)")
        a("s_barrier")
        if n <= 9:
            a(dma_stage(n + 4))
    a("s_setprio 3")
    a("s_branch L_compute")
    a.label("L_xstart")
    a(f"""
    s_add_u32 s{sKS}, s{sKS}, 3
    s_cmp_ge_u32 s{sKS}, 10
    s_cselect_b32 s{T0}, 10, 0
    s_sub_u32 s{sKS}, s{sKS}, s{T0}
    s_waitcnt vmcnt(0)
    s_barrier
    """)
    a.label("L_compute")
    stamp(a, 1)
    stamp(a, 1, 1)
    a(g1reads(0, 0))
    a(f"s_cmp_ge_u32 s{sM}, 10")
    a("s_cbranch_scc1 L_comp1")

    def interleave(ms, rs):
        out = []
        ri = 0
        for i, m in enumerate(ms):
            out.append(m)
            if ri < len(rs):
                out.append(rs[ri]); ri += 1
        out += rs[ri:]
        return out

    for cg in range(2):
        if cg == 1:
            a.label("L_comp1")

        def mm(i, kk):
            out = []
            for ct in range(4):
                for tt in range(4):
                    c = None if (i == 0 and kk == 0) else ACC(ct, tt)
                    if cg == 1:
                        out.append(mfma16(ACC(ct, tt), XF(kk, tt), WF(kk, ct), c))
                    else:
                        out.append(mfma16(ACC(ct, tt), WF(kk, ct), XF(kk, tt), c))
            return out
        for i in range(10):
            a("s_waitcnt lgkmcnt(0)")
            a(interleave(mm(i, 0), g1reads(i, 1)))
            a(f"s_waitcnt lgkmcnt(0) vmcnt({[16, 8, 0][i]})" if i < 3 else "s_waitcnt lgkmcnt(0)")
            if i >= 7:
                lab = a.uniq("L_nb")
                a(f"s_cmp_ge_u32 s{sWAVE}, 4\ns_cbranch_scc1 {lab}\ns_barrier\n{lab}:")
            else:
                a("s_barrier")
            if i in (1, 3, 5, 7, 9):
                stamp(a, 2 + i // 2, 1)
            a(interleave(mm(i, 1), g1reads(i + 1, 0) if i < 9 else []))
        if cg == 0:
            a("s_branch L_g1epi")
    a.label("L_g1epi")
    stamp(a, 2)
    EP = OPT.get("ep", 2)
    lab = a.uniq("L_noload")
    a(f"s_cmp_ge_u32 s{sWAVE}, 4")
    a(f"s_cbranch_scc1 {lab}")
    if EP >= 1:
        a(dma_stage(14))
    if EP >= 2:
        a("s_barrier")
        a(dma_stage(15))
    a(f"s_branch {lab}_j")
    a.label(lab)
    a("v_mov_b32 v10, 0\nv_mov_b32 v11, 1\ns_mov_b64 exec, 1\nds_add_u32 v10, v11 offset:8\ns_mov_b64 exec, -1")
    a.label(lab + "_j")
    stamp(a, 7, 1)
    a("s_nop 7")
    t = 64
    for ct in range(4):
        for tp in range(2):
            for h in range(2):
                s_ = ACC(ct, 2 * tp + h)
                a(f"v_cvt_pk_bf16_f32 v{t+2*h}, v{s_}, v{s_+1}")
                a(f"v_cvt_pk_bf16_f32 v{t+2*h+1}, v{s_+2}, v{s_+3}")
            a(f"buffer_store_dwordx4 {vr(t,4)}, v{EA[ct]}, {srd(SWS)}, s{sEQ if tp == 0 else sEK} offen {HST}")
            t += 4
    a.label("L_g1tail")
    stamp(a, 8, 1)

    S = [32, 48, 64, 80]
    O = 96
    QL, QH = [112, 118], [116, 122]
    KL, KH = [124, 130], [128, 134]
    VF = [136, 144]
    MD, MF = 152, 168
    VK, VV = 4, 6
    VIDX, VDMA, VQ = 7, 8, 9
    QB_OFF = 1 * K
    CH = [11 * K, 51 * K, 91 * K, 1 * K]
    A_OFF = 50 * K
    WOL = [[10 * K, 60 * K], [110 * K, 0]]
    SCR = [130 * K, 110 * K]
    OFB = [52, 208]
    ST = [184, 188, 192, 248, 252]
    VOF, VW3, VOUT, VRED = 197, 198, 200, 201

    def lds_wait(off, val, sleep=1):
        loop = a.uniq("L_lw")
        a(f"s_mov_b32 s{sCNT}, 0x400000\nv_mov_b32 v10, 0")
        a.label(loop)
        a(f"""
        ds_read_b32 v11, v10 offset:{off}
        s_waitcnt lgkmcnt(0)
        v_readfirstlane_b32 s{T0}, v11
        s_cmp_eq_u32 s{T0}, {val}
        s_cbranch_scc1 {loop}_ok
        s_sleep {sleep}
        s_sub_u32 s{sCNT}, s{sCNT}, 1
        s_cmp_lg_u32 s{sCNT}, 0
        s_cbranch_scc1 {loop}
        {loop}_ok:
        """)

    a(f"s_cmp_ge_u32 s{sWAVE}, 4")
    a("s_cbranch_scc1 L_attn_setup")
    if EP < 1:
        a(dma_stage(14))
    if EP < 2:
        a("s_barrier")
        a(dma_stage(15))
    a("s_barrier")
    stamp(a, 9, 1)
    PB = OPT.get("pb", 12)
    for n in (12, 13):
        if n == PB:
            a("s_waitcnt vmcnt(0)")
            stamp(a, 10, 1)
        a(dma_stage(n + 4))
        a("s_barrier")
        if n == PB:
            publish(0, 1, 1)
    a(dma_stage(18))
    a("s_barrier")
    a(dma_stage(19))
    a(f"v_lshlrev_b32 v{VDMA}, 4, v0")
    if PB == 12:
        a("s_waitcnt vmcnt(24)")
    a("s_barrier")
    if OPT.get("ppre", 1):
        poll_issue(0, 1)
    a("v_mov_b32 v10, 0\nv_mov_b32 v11, 0\nds_write_b64 v10, v[10:11]\nds_write_b32 v10, v10 offset:8")
    if OPT.get("ppre", 1):
        lab = a.uniq("L_w0")
        a(f"s_waitcnt vmcnt(1) lgkmcnt(0)\ns_cmp_eq_u32 s{sWAVE}, 0\ns_cbranch_scc1 {lab}\ns_waitcnt vmcnt(0)\n{lab}:")
    else:
        a("s_waitcnt vmcnt(0) lgkmcnt(0)")
    a("s_barrier")
    stamp(a, 3)
    stamp(a, 11, 1)
    if not OPT.get("ppre", 1):
        poll_issue(0, 1)
    poll_check(0, 1, sleep=4)
    lab = only_wave(0)
    a("v_mov_b32 v10, 0\nv_mov_b32 v11, 1\nds_write_b32 v10, v11")
    a.label(lab)
    lds_wait(0, 1)

    def first_loads(part):
        a(f"s_add_u32 s{T0}, s{sKVB}, s{sW1K}")
        if part == 0:
            a(f"""
            s_mul_i32 s{T3}, s{sHEAD}, 81920
            s_mul_i32 s{T4}, s{sQB}, 10240
            s_add_u32 s{T3}, s{T3}, s{T4}
            s_add_u32 s{T3}, s{T3}, s{sW1K}
            """)
            for j in range(3):
                lab = None
                if j == 2:
                    lab = a.uniq("L_q")
                    a(f"s_cmp_ge_u32 s{sWAVE}, 2\ns_cbranch_scc1 {lab}")
                a(f"""
                s_add_u32 m0, s{sW1K}, {QB_OFF + j*4096}
                s_add_u32 s{T2}, s{T3}, {QW_OFF + 32*81920 + j*4096}
                buffer_load_dwordx4 v{VDMA}, {srd(SWS)}, s{T2} offen {HS} lds
                """)
                if lab:
                    a.label(lab)
        for j in range(5 * part, 5 * part + 5):
            a(f"""
            s_add_u32 m0, s{sW1K}, {CH[0] + j*4096}
            s_add_u32 s{T2}, s{T0}, {32*163840 + j*4096}
            buffer_load_dwordx4 v{VDMA}, {srd(SWS)}, s{T2} offen {HS} lds
            """)
    a.label("L_x1")
    first_loads(0)
    a.label("L_x2")
    stamp(a, 4)
    stamp(a, 12, 1)
    first_loads(1)
    a.label("L_attn_setup")
    a(f"""
    v_lshlrev_b32 v{VDMA}, 4, v0
    v_lshrrev_b32 v11, 5, v0               ; h
    v_and_b32 v12, 31, v0                  ; i
    v_and_b32 v13, 3, v12
    v_lshrrev_b32 v14, 3, v12
    v_lshl_add_u32 v13, v14, 2, v13        ; kappa & 15
    v_bfe_u32 v14, v12, 2, 1               ; kappa >> 4
    v_lshlrev_b32 v15, 4, v13
    v_lshl_add_u32 v16, v14, 3, v15
    v_lshl_add_u32 v16, v11, 8, v16
    v_add_u32 v{VK}, {CH[0]}, v16
    v_mul_u32_u24 v16, 20, v11
    v_add_u32 v16, v16, v12
    v_lshlrev_b32 v16, 4, v16
    v_add_u32 v{VV}, {CH[0] + 1280}, v16
    v_and_b32 v15, 15, v12
    v_lshlrev_b32 v15, 4, v15
    v_lshrrev_b32 v16, 4, v12
    v_lshl_add_u32 v15, v16, 3, v15        ; (q&15)*16 + (q>>4)*8
    v_lshl_add_u32 v{VQ}, v11, 8, v15
    v_mov_b32 v{VIDX}, 0xdddddddd
    v_and_b32 v17, 0x1b, v12
    v_cmp_eq_u32 vcc, 24, v17
    v_mov_b32 v16, 0x3f803f80
    s_nop 0
    v_cndmask_b32 v17, 0, v16, vcc
    """)
    for b in range(2):
        a(f"v_mov_b32 v{KH[b]}, 0x3f803f80")
        a(f"v_mov_b32 v{KH[b]+1}, 0x00003f80")
        for i in range(8):
            a(f"v_mov_b32 v{VF[b]+i}, v17")

    def mask_setup():
        out = [["v_lshrrev_b32 v13, 5, v0", "v_lshlrev_b32 v13, 4, v13", "v_and_b32 v12, 31, v0",
                "v_sub_u32 v13, v12, v13", f"v_mov_b32 v14, {NEGBIG}"]]
        for r in range(0, 16, 2):
            out.append([f"v_cmp_le_i32 s[{T0}:{T0+1}], {r}, v13",
                        f"v_cmp_le_i32 s[{T2}:{T2+1}], {r+1}, v13",
                        "s_nop 0",
                        f"v_cndmask_b32 v{MD+r}, v14, 0, s[{T0}:{T0+1}]",
                        f"v_cndmask_b32 v{MF+r}, 0, v14, s[{T0}:{T0+1}]",
                        f"v_cndmask_b32 v{MD+r+1}, v14, 0, s[{T2}:{T2+1}]",
                        f"v_cndmask_b32 v{MF+r+1}, 0, v14, s[{T2}:{T2+1}]"])
        return out

    def scale_q(p):
        for r in [QL[p] + i for i in range(4)] + [QH[p], QH[p] + 1]:
            a(f"""
            v_lshlrev_b32 v15, 16, v{r}
            v_and_b32 v16, 0xffff0000, v{r}
            v_mul_f32 v15, s{sCS}, v15
            v_mul_f32 v16, s{sCS}, v16
            v_cvt_pk_bf16_f32 v{r}, v15, v16
            """)
        reset_m(p)

    def reset_m(p):
        a(f"""
        v_mov_b32 v15, 0x3f800000
        v_cndmask_b32 v{QH[p]}, 0, v{QH[p]}, s[{sLO}:{sLO+1}]
        v_cndmask_b32 v{QH[p]+1}, v15, v{QH[p]+1}, s[{sLO}:{sLO+1}]
        """)

    def set_m(p, M):
        a(f"""
        v_mov_b32 v15, v{M}
        s_nop 1
        v_permlane32_swap_b32 v15, v{M}
        s_nop 1
        v_max_f32 v15, v15, v{M}
        v_sub_f32 v15, 0, v15                  ; -m
        v_and_b32 v16, 0xffff0000, v15         ; hi
        v_sub_f32 v17, v15, v16
        v_and_b32 v18, 0xffff0000, v17         ; mid
        v_sub_f32 v17, v17, v18                ; lo
        v_lshrrev_b32 v16, 16, v16
        v_or_b32 v16, v16, v18
        v_lshrrev_b32 v17, 16, v17
        v_or_b32 v17, 0x3f800000, v17
        v_cndmask_b32 v{QH[p]}, v16, v{QH[p]}, s[{sLO}:{sLO+1}]
        v_cndmask_b32 v{QH[p]+1}, v17, v{QH[p]+1}, s[{sLO}:{sLO+1}]
        """)

    def kreads(buf, off, restore=True):
        return [f"ds_read2st64_b64 {vr(KL[buf],4)}, v{VK} offset0:{off//512} offset1:{off//512+1}",
                f"s_mov_b64 exec, s[{sLO}:{sLO+1}]",
                f"ds_read_b64 {vr(KH[buf],2)}, v{VK} offset:{off+1024}"] + (["s_mov_b64 exec, -1"] if restore else [])

    def vreads(buf, off):
        return [f"s_mov_b64 exec, s[{sVM}:{sVM+1}]",
                f"ds_read_b128 {vr(VF[buf],4)}, v{VV} offset:{off}",
                f"ds_read_b128 {vr(VF[buf]+4,4)}, v{VV} offset:{off+640}",
                "s_mov_b64 exec, -1"]

    def qk(Sd, buf, p, C=None):
        return [mfma32(Sd, KL[buf], QL[p], C), mfma32k8(Sd, KH[buf], QH[p], Sd)]

    def pv(Ss, buf):
        return [f"v_smfmac_f32_32x32x32_bf16 {vr(O,16)}, {vr(VF[buf],4)}, {vr(Ss,8)}, v{VIDX}",
                f"v_smfmac_f32_32x32x32_bf16 {vr(O,16)}, {vr(VF[buf]+4,4)}, {vr(Ss+8,8)}, v{VIDX}"]

    def exps(Ss):
        return [f"v_exp_f32 v{Ss+i}, v{Ss+i}" for i in range(16)]

    def maxtree(M, Ss, first):
        out = []
        if first:
            out.append(f"v_max3_f32 v{M}, v{Ss}, v{Ss+1}, v{Ss+2}")
            rest = list(range(3, 16))
        else:
            rest = list(range(16))
        while len(rest) >= 2:
            out.append(f"v_max3_f32 v{M}, v{M}, v{Ss+rest[0]}, v{Ss+rest[1]}")
            rest = rest[2:]
        if rest:
            out.append(f"v_max_f32 v{M}, v{M}, v{Ss+rest[0]}")
        return out

    def zero_o():
        for i in range(16):
            a(f"v_mov_b32 v{O+i}, 0")

    def o_addr(p):
        return f"""
        s_mul_i32 s{T0}, s{sQT}, 40960
        s_add_u32 s{T0}, s{T0}, {OW_OFF + p*64*40960}
        s_lshl_b32 s{T1}, s{sHEAD}, 10
        s_add_u32 s{T1}, s{T1}, s{T0}
        s_lshr_b32 s{T2}, s{sHEAD}, 2
        s_add_u32 s{T2}, s{T2}, 32
        s_lshl_b32 s{T2}, s{T2}, 10
        s_add_u32 s{T2}, s{T2}, s{T0}
        s_and_b32 s{T3}, s{sHEAD}, 1
        s_lshl_b32 s{T3}, s{T3}, 9
        s_add_u32 s{T2}, s{T2}, s{T3}
        s_and_b32 s{T3}, s{sHEAD}, 2
        s_lshl_b32 s{T3}, s{T3}, 2
        s_add_u32 s{T2}, s{T2}, s{T3}
        """

    def o_store():
        return f"""
        buffer_store_dwordx4 v[20:23], v{VDMA}, {srd(SWS)}, s{T1} offen {HST}
        s_mov_b64 exec, s[{sLO}:{sLO+1}]
        buffer_store_dwordx2 v[24:25], v{VDMA}, {srd(SWS)}, s{T2} offen {HST}
        s_mov_b64 exec, -1
        """

    def epilogue(p):
        a(f"v_rcp_f32 v15, v{O+12}")
        a(o_addr(p))
        for i in range(12):
            a(f"v_mul_f32 v{O+i}, v{O+i}, v15")
        for i in range(6):
            a(f"v_cvt_pk_bf16_f32 v{20+i}, v{O+2*i}, v{O+2*i+1}")
        a(o_store())

    def tile_step(t, n, p, koff, voff, cmask, extra_k=None, hooks=None):
        a("s_waitcnt lgkmcnt(0)")
        rd = []
        if t + 2 < n:
            rd += kreads(t & 1, koff(t + 2), restore=(t >= n))
        if t < n:
            rd += vreads(t & 1, voff(t))
        if extra_k and t + 2 < n:
            rd += extra_k(t & 1, t + 2)
        q = qk(S[(t + 1) & 3], (t + 1) & 1, p, cmask(t + 1)) if t + 1 < n else []
        pp = pv(S[(t - 1) & 3], (t - 1) & 1) if t >= 1 else []
        e = exps(S[t & 3]) if t < n else []
        if t == 0:
            a("s_nop 10")
        ms = q + pp
        if not e:
            a(["s_nop 1"] + ms)
            return
        hooks = hooks or []
        for i in range(4):
            if i < len(ms):
                a(ms[i])
            a(e[4 * i:4 * i + 2])
            if i == 0:
                a(rd)
            elif hooks:
                nh = (len(hooks) + 2) // 3
                for hk in hooks[(i - 1) * nh:i * nh]:
                    a(hk)
            a(e[4 * i + 2:4 * i + 4])

    def g3_setup():
        return [["v_lshrrev_b32 v10, 4, v0",
                 "v_lshlrev_b32 v11, 9, v10",
                 "v_and_b32 v12, 15, v0",
                 f"v_lshl_add_u32 v{VOF}, v12, 4, v11"],
                ["v_mul_u32_u24 v12, 2560, v12",
                 "v_mul_u32_u24 v10, 40, v10",
                 f"v_add_u32 v{VOUT}, v12, v10"],
                [f"s_cmp_lt_u32 s{sWAVE}, 4",
                 f"s_cselect_b32 s{T0}, {WOL[1][0]}, {WOL[1][1]}",
                 f"v_add_u32 v{VW3}, s{T0}, v{VDMA}",
                 f"s_mul_i32 s{T0}, s{sCW}, 5120",
                 f"v_add_u32 v{VRED}, s{T0}, v{VDMA}"]]

    def wo_piece(p, q0, ldsbase, cond=None):
        o = [f"s_add_u32 m0, s{sW1K}, {ldsbase & 0xffffffff}",
             f"s_add_u32 s{T1}, s{sKVS}, {WP_OFF + p*819200 + q0*1024}",
             f"buffer_load_dwordx4 v{VDMA}, {srd(SWS)}, s{T1} offen {HS} lds"]
        if cond is not None:
            lab = a.uniq("L_wo")
            o = [f"s_cmp_ge_u32 s{sWAVE}, {cond}", f"s_cbranch_scc1 {lab}"] + o + [f"{lab}:"]
        return o

    def wo_half(p, kh):
        return [wo_piece(p, 50 * kh + 8 * k, WOL[p][kh] + 8 * k * 1024, cond=2 if k == 6 else None) for k in range(7)]

    def wo_base():
        return [f"s_mul_i32 s{sKVS}, s{sQB}, 102400", f"s_add_u32 s{sKVS}, s{sKVS}, s{sW1K}"]

    def o_base(p=0):
        return [f"s_lshl_b32 s{T0}, s{sHEAD}, 1",
                f"s_lshr_b32 s{T1}, s{sCW}, 1",
                f"s_add_u32 s{T0}, s{T0}, s{T1}",
                f"s_mul_i32 s{T0}, s{T0}, 40960",
                f"s_and_b32 s{T1}, s{sCW}, 1",
                f"s_lshl_b32 s{T1}, s{T1}, 8",
                f"s_add_u32 s{T0}, s{T0}, s{T1}",
                f"s_add_u32 s{T0}, s{T0}, {OW_OFF + p*64*40960}",
                f"s_lshr_b32 s{T1}, s{sWAVE}, 2",
                f"s_lshl_b32 s{sEK}, s{T1}, 12",
                f"s_add_u32 s{sEK}, s{sEK}, s{T0}",
                f"s_add_u32 s{sEK}, s{sEK}, {16*2048}",
                f"s_lshl_b32 s{T1}, s{T1}, 14",
                f"s_add_u32 s{sEQ}, s{T0}, s{T1}"]

    def o_load(p, i):
        d = OFB[p] + 4 * i
        if i < 8:
            return [f"s_add_u32 s{T5}, s{sEQ}, {p*64*40960 + (i>>1)*4096}",
                    f"buffer_load_dwordx4 {vr(d,4)}, v{VOF}, {srd(SWS)}, s{T5} offen offset:{(i&1)*2048} {HS}"]
        return [f"s_add_u32 s{T5}, s{sEK}, {p*64*40960}",
                f"buffer_load_dwordx4 {vr(d,4)}, v{VOF}, {srd(SWS)}, s{T5} offen offset:{(i-8)*2048} {HS}"]

    zero_o()
    lab = a.uniq("L_xl")
    a(f"s_cmp_ge_u32 s{sWAVE}, 4\ns_cbranch_scc1 {lab}")
    a("s_waitcnt vmcnt(0)\nv_mov_b32 v10, 0\nv_mov_b32 v11, 1\ns_mov_b64 exec, 1\nds_add_u32 v10, v11 offset:4\ns_mov_b64 exec, -1")
    a(f"s_branch {lab}_j")
    a.label(lab)
    lds_wait(8, 4)
    a.label(lab + "_j")
    lds_wait(4, 4)
    stamp(a, 5)
    stamp(a, 13, 1)
    a(f"""
    s_mul_i32 s{T0}, s{sWAVE}, 1280
    s_add_u32 s{T0}, s{T0}, {QB_OFF}
    v_add_u32 v15, s{T0}, v{VQ}
    ds_read2st64_b64 {vr(QL[1],4)}, v15 offset0:0 offset1:1
    ds_read_b64 {vr(QH[1],2)}, v15 offset:1024
    s_add_u32 s{sKVS}, s{sKVB}, s{sW1K}
    """)
    a(kreads(0, 0))
    a(kreads(1, 2560))
    a("s_waitcnt lgkmcnt(4)")
    scale_q(1)
    a("s_waitcnt lgkmcnt(2)")
    a(qk(S[0], 0, 1))
    a("s_nop 15")
    a(maxtree(19, S[0], True))
    set_m(1, 19)
    a("s_nop 1")
    a(qk(S[0], 0, 1))

    def dmaY(j):
        lab = a.uniq("L_dy")
        return [f"s_cmp_lt_u32 s{sWAVE}, 4", f"s_cbranch_scc1 {lab}",
                f"s_add_u32 m0, s{sW1K}, {CH[1] + j*4096 - 4096}",
                f"s_add_u32 s{T2}, s{sKVS}, {32*163840 + 40960 + j*4096 - 4096}",
                f"buffer_load_dwordx4 v{VDMA}, {srd(SWS)}, s{T2} offen {HS} lds", f"{lab}:"]

    def dma3(r):
        return [f"s_add_u32 m0, s{sW1K}, {CH[3] + r*8192}",
                f"s_add_u32 s{T2}, s{sKVS}, {32*163840 + 3*40960 + r*8192}",
                f"buffer_load_dwordx4 v{VDMA}, {srd(SWS)}, s{T2} offen {HS} lds"]

    def dmaA(j):
        out = [f"s_mul_i32 s{T1}, s{sQB}, 20480", f"s_sub_u32 s{T1}, s{T1}, 20480"]
        if j < 2:
            out += [f"s_max_i32 s{T1}, s{T1}, 0"]
        elif j == 2:
            out += [f"s_max_i32 s{T0}, s{T1}, 0", f"s_cmp_lt_u32 s{sWAVE}, 4", f"s_cselect_b32 s{T1}, s{T0}, s{T1}"]
        out += [f"s_add_u32 s{T1}, s{T1}, s{sKVS}", f"s_add_u32 m0, s{sW1K}, {A_OFF + j*8192}",
                f"s_add_u32 s{T1}, s{T1}, {j*8192}",
                f"buffer_load_dwordx4 v{VDMA}, {srd(SWS)}, s{T1} offen {HS} lds"]
        return out

    qa_loads = [f"s_mul_i32 s{T0}, s{sHEAD}, 81920",
                f"s_mul_i32 s{T2}, s{sQT}, 1280",
                f"s_add_u32 s{T0}, s{T0}, s{T2}",
                f"buffer_load_dwordx2 {vr(QL[0],2)}, v{VQ}, {srd(SWS)}, s{T0} offen {HS}",
                f"buffer_load_dwordx2 {vr(QL[0]+2,2)}, v{VQ}, {srd(SWS)}, s{T0} offen offset:512 {HS}",
                f"s_mov_b64 exec, s[{sLO}:{sLO+1}]",
                f"buffer_load_dwordx2 {vr(QH[0],2)}, v{VQ}, {srd(SWS)}, s{T0} offen offset:1024 {HS}",
                "s_mov_b64 exec, -1"]
    assert QW_OFF == 0

    NT = 64
    ms = mask_setup()
    for t in range(NT + 1):
        hooks = []
        if t < 10:
            hooks = [dmaY(2 * t), dmaY(2 * t + 1)]
        if t == 14:
            a("s_waitcnt vmcnt(0) lgkmcnt(0)\ns_barrier")
            stamp(a, 6)
            stamp(a, 14, 1)
            publish(0, 0, 4)
        if 14 <= t < 19:
            hooks = [dma3(t - 14)]
        if t == 20:
            hooks = g3_setup()
        if 23 <= t < 26:
            hooks = ms[3 * (t - 23):3 * (t - 22)]
        if t == 26:
            hooks = [[f"v_mov_b32 v{20+i}, -1" for i in range(6)], o_addr(0), o_store()]
        if t == 27:
            hooks = [o_addr(1), o_store()]
        if t == 29:
            poll_issue(0, 0)
        if t == 33:
            poll_check(0, 0)
            a("s_waitcnt vmcnt(0) lgkmcnt(0)\ns_barrier")
            publish(1, 0, 1)
            stamp(a, 7)
        if 33 <= t < 38:
            hooks = [dmaA(t - 33)]
        if t == 38:
            hooks = [qa_loads]
        if t == 40:
            hooks = [wo_base(), o_base()]
        if 41 <= t < 46:
            k = t - 41
            hooks = [[f"s_add_u32 s{T1}, s{sKVS}, {WP_OFF + k*8192}",
                      f"buffer_load_dwordx4 {vr(ST[k],4)}, v{VDMA}, {srd(SWS)}, s{T1} offen {HS}"]]
        if 56 <= t < 59:
            k = t - 56
            hooks = [wo_piece(0, 80 + 8 * k, WOL[0][0] + (80 + 8 * k) * 1024, cond=4 if k == 2 else None)]
        if t == 46:
            poll_issue(1, 0)
        if t == 49:
            poll_check(1, 0)
            a("s_waitcnt vmcnt(0) lgkmcnt(0)\ns_barrier")
            stamp(a, 8)
        if 49 <= t < 56:
            hooks = [wo_half(1, 0)[t - 49]]
        if OPT.get("prio", 1):
            pr = {14: 3, 19: 2, 24: 1, 29: 0, 33: 3, 37: 2, 41: 1, 45: 0, 49: 3, 53: 2, 57: 1, 61: 0}
            if t in pr:
                a(f"s_setprio {pr[t]}")
        if (t + 2) % 16 == 0 and t + 2 < NT:
            c = (t + 2) // 16
            a(f"v_add_u32 v{VK}, {(CH[c] - CH[c - 1]) & 0xffffffff}, v{VK}")
        if t % 16 == 0 and 0 < t < NT:
            c = t // 16
            a(f"v_add_u32 v{VV}, {(CH[c] - CH[c - 1]) & 0xffffffff}, v{VV}")
        tile_step(t, NT, 1, lambda u: (u & 15) * 2560, lambda u: (u & 15) * 2560, lambda u: None, hooks=hooks)
    scale_q(0)
    def finite_check(lab):
        a(f"v_mul_f32 v15, 0, v{O}")
        for i in range(1, 13):
            a(f"v_fmac_f32 v15, 0, v{O+i}")
        a("v_cmp_u_f32 vcc, v15, v15")
        a("s_nop 4")
        a(f"s_cbranch_vccnz {lab}")
    finite_check("L_slowB")
    a.label("L_epiB")
    epilogue(1)
    stamp(a, 9)
    stamp(a, 1, 2)

    a(f"""
    s_mul_i32 s{T0}, s{sWAVE}, 2560
    s_add_u32 s{T0}, s{T0}, {A_OFF - CH[3]}
    v_add_u32 v{VK}, s{T0}, v{VK}
    v_add_u32 v{VV}, s{T0}, v{VV}
    """)

    def pen(buf, u):
        return [f"s_cmp_ge_u32 s{sQT}, {8 - u}",
                f"s_cselect_b32 s{T0}, s{sONE}, {(NEGBIG & 0xffff0000) | 0x3f80}",
                f"s_not_b64 exec, s[{sLO}:{sLO+1}]",
                f"v_mov_b32 v{KH[buf]+1}, s{T0}",
                "s_mov_b64 exec, -1"]

    def cmaskA(u):
        return MD if u == 8 else (MF if u == 0 else None)
    def a_pass1():
        a(kreads(0, 0))
        a(pen(0, 0))
        for u in range(9):
            if u + 1 < 9:
                a(kreads((u + 1) & 1, (u + 1) * 2560))
                a("s_waitcnt lgkmcnt(2)")
            else:
                a("s_waitcnt lgkmcnt(0)")
            a("s_nop 0")
            a(qk(S[u & 3], u & 1, 0, cmaskA(u)))
            if u + 1 < 9:
                a(pen((u + 1) & 1, u + 1))
            if u >= 2:
                a(maxtree(19, S[(u - 2) & 3], u == 2))
        a(kreads(0, 0))
        a(kreads(1, 2560))
        zero_o()
        for u in (7, 8):
            a(maxtree(19, S[u & 3], False))
        set_m(0, 19)
        a(pen(0, 0) + pen(1, 1))

    a(kreads(0, 7 * 2560))
    a(kreads(1, 8 * 2560))
    a(pen(0, 7))
    a("s_waitcnt lgkmcnt(2)\ns_nop 0")
    a(qk(S[0], 0, 0))
    a("s_waitcnt lgkmcnt(0)")
    a(qk(S[1], 1, 0, MD))
    zero_o()
    a(kreads(0, 0))
    a(kreads(1, 2560))
    a(maxtree(19, S[0], True))
    a(maxtree(19, S[1], False))
    set_m(0, 19)
    a(pen(0, 0) + pen(1, 1))
    stamp(a, 2, 2)
    a("s_barrier")
    stamp(a, 10)
    stamp(a, 3, 2)
    a("s_waitcnt lgkmcnt(2)")
    a(qk(S[0], 0, 0, cmaskA(0)))
    PC = OPT.get("pc", 6)
    h1 = wo_half(1, 1)
    nper = -(-10 // (9 - PC))
    for t in range(10):
        hooks = []
        if t < 4:
            hooks = h1[2 * t:2 * t + 2]
        if t == PC:
            a("s_waitcnt vmcnt(0)\ns_barrier")
            stamp(a, 4, 2)
        if PC <= t < 9:
            hooks = [o_load(1, i) for i in range((t - PC) * nper, min(10, (t - PC + 1) * nper))]
        tile_step(t, 9, 0, lambda u: u * 2560, lambda u: u * 2560, cmaskA, extra_k=pen, hooks=hooks)
    a("s_nop 15")
    finite_check("L_slowA")
    a.label("L_epiA")
    epilogue(0)
    stamp(a, 11)
    stamp(a, 7, 2)

    GACC = lambda ct: 32 + 4 * ct
    GW = lambda buf, ct: 92 + buf * 20 + 4 * ct
    FT = 152
    retries = []

    def g3reads(i):
        return [f"ds_read_b128 {vr(GW(i%3,ct),4)}, v{VW3} offset:{(i*5+ct)*1024}" for ct in range(5)]

    def g3_finish(p, before=None):
        l1, l2 = a.uniq("L_r"), a.uniq("L_r")
        a(f"s_cmp_lt_u32 s{sWAVE}, 4\ns_cbranch_scc1 {l1}")
        a(f"v_add_u32 v10, {SCR[p]}, v{VRED}")
        for ct in range(5):
            a(f"ds_write_b128 v10, {vr(GACC(ct),4)} offset:{ct*1024}")
        a.label(l1)
        if before:
            before()
            a("s_waitcnt lgkmcnt(0) vmcnt(10)")
        else:
            a("s_waitcnt lgkmcnt(0)")
        a("s_barrier")
        a(f"s_cmp_ge_u32 s{sWAVE}, 4\ns_cbranch_scc1 {l2}")
        a(f"v_add_u32 v10, {SCR[p]}, v{VRED}")
        for ct in range(5):
            a(f"ds_read_b128 {vr(FT+4*ct,4)}, v10 offset:{ct*1024}")
        a(f"""
        s_lshl_b32 s{T0}, s{sHEAD}, 2
        s_add_u32 s{T0}, s{T0}, s{sCW}
        s_mul_i32 s{T0}, s{T0}, {16*2560}
        s_mul_i32 s{T1}, s{sQB}, 160
        s_add_u32 s{T0}, s{T0}, s{T1}
        s_add_u32 s{T0}, s{T0}, {p*1280}
        s_waitcnt lgkmcnt(0)
        """)
        for i in range(20):
            a(f"v_add_f32 v{FT+i}, v{FT+i}, v{32+i}")
        for i in range(10):
            a(f"v_cvt_pk_bf16_f32 v{FT+20+i}, v{FT+2*i}, v{FT+2*i+1}")
        a(f"""
        buffer_store_dwordx4 {vr(FT+20,4)}, v{VOUT}, {srd(SOUT)}, s{T0} offen
        buffer_store_dwordx4 {vr(FT+24,4)}, v{VOUT}, {srd(SOUT)}, s{T0} offen offset:16
        buffer_store_dwordx2 {vr(FT+28,2)}, v{VOUT}, {srd(SOUT)}, s{T0} offen offset:32
        """)
        a.label(l2)

    def o_check(p, i, n):
        d = OFB[p] + 4 * i
        a(f"""
        s_waitcnt vmcnt({n})
        L_gw{p}_{i}:
        v_max3_u32 v10, v{d}, v{d+1}, v{d+2}
        v_max_u32 v10, v10, v{d+3}
        v_cmp_eq_u32 vcc, -1, v10
        s_cbranch_vccnz L_gr{p}_{i}
        L_gc{p}_{i}:
        """)
        retries.append((p, i))

    a(f"s_mov_b32 s{sCNT}, 0x20000")
    MID, OI = OPT.get("mid", 1), OPT.get("oi", 8)
    a(g3reads(0))
    a(g3reads(1))
    young = 2
    nd = no = 0
    for i in range(10):
        if i == MID:
            a("s_barrier")
            stamp(a, 8, 2)
        o_check(1, i, 9 - i + young)
        a(f"s_waitcnt lgkmcnt({5 if i < 9 else 0})")
        rs = g3reads(i + 2) if i < 8 else []
        for ct in range(5):
            a(mfma16(GACC(ct), GW(i % 3, ct), OFB[1] + 4 * i, None if i == 0 else GACC(ct)))
            a(rs[ct:ct + 1])
        if i >= MID and nd < 5:
            a(wo_piece(0, 40 + 8 * nd, WOL[0][0] + (40 + 8 * nd) * 1024))
            nd += 1; young += 1
        if i >= OI:
            n = -(-10 // (10 - OI))
            for k in range(no, min(10, no + n)):
                a(o_load(0, k)); young += 1
            no = min(10, no + n)
    assert nd == 5 and MID + 5 <= OI
    for k in range(no, 10):
        a(o_load(0, k))
    a("s_barrier")
    stamp(a, 9, 2)
    a(f"s_add_u32 s{T0}, s{sW1K}, {WOL[0][0]}\nv_add_u32 v11, s{T0}, v{VDMA}")

    def stage_out():
        for k in range(5):
            a(f"ds_write_b128 v11, {vr(ST[k],4)} offset:{k*8192}")
    g3_finish(1, before=stage_out)
    stamp(a, 12)
    stamp(a, 11, 2)
    a(f"""
    s_cmp_lt_u32 s{sWAVE}, 4
    s_mov_b32 s{T0}, {(WOL[0][1] - WOL[1][1]) & 0xffffffff}
    s_cselect_b32 s{T0}, {(WOL[0][0] - WOL[1][0]) & 0xffffffff}, s{T0}
    v_add_u32 v{VW3}, s{T0}, v{VW3}
    """)
    stamp(a, 13)
    stamp(a, 12, 2)
    a(g3reads(0))
    a(g3reads(1))
    for i in range(10):
        d = OFB[0] + 4 * i
        o_check(0, i, 9 - i)
        a(f"s_waitcnt lgkmcnt({5 if i < 9 else 0})")
        rs = g3reads(i + 2) if i < 8 else []
        for ct in range(5):
            a(mfma16(GACC(ct), GW(i % 3, ct), d, None if i == 0 else GACC(ct)))
            a(rs[ct:ct + 1])
    stamp(a, 13, 2)
    a("s_nop 7")
    g3_finish(0)
    lab = only_wave(4)
    a(f"""
    s_cmp_lg_u32 s2, 0
    s_cbranch_scc1 {lab}
    v_mov_b32 v1, s{sTAG}
    s_mov_b32 s{T4}, {EP_OFF}
    s_mov_b64 exec, 1
    buffer_store_dword v1, off, {srd(SWS)}, s{T4} sc1
    s_mov_b64 exec, -1
    """)
    a.label(lab)
    if STAMPS:
        a("s_waitcnt vmcnt(0)")
        stamp(a, 14)
        stamp(a, 14, 2)
        a("s_waitcnt lgkmcnt(0)")
        a(f"""
        s_lshl_b32 s{T0}, s2, 4
        s_add_u32 s{T0}, s{T0}, s{sWAVE}
        s_lshl_b32 s{T0}, s{T0}, 7
        s_add_u32 s{T0}, s{T0}, {STAMP_OFF}
        s_mov_b64 exec, 1
        """)
        for i in range(15):
            a(f"v_mov_b32 v1, s{SB+2*i}")
            a(f"buffer_store_dword v1, off, {srd(SWS)}, s{T0} offset:{4*i}")
    if OPT.get("pad"):
        if "padwg" in OPT:
            a(f"s_cmp_lg_u32 s2, {OPT['padwg']}\ns_cbranch_scc1 L_done")
        a(f"""
        L_pad:
        s_memrealtime s[{T0}:{T1}]
        s_waitcnt lgkmcnt(0)
        s_sub_u32 s{T0}, s{T0}, s{SB}
        s_cmp_lt_u32 s{T0}, {OPT["pad"]}
        s_cbranch_scc1 L_pad
        """)
    a.label("L_done")
    a("s_endpgm")

    for p, i in retries:
        a.label(f"L_gr{p}_{i}")
        a(f"""
        s_sub_u32 s{sCNT}, s{sCNT}, 1
        s_cmp_eq_u32 s{sCNT}, 0
        s_cbranch_scc1 L_gq{p}_{i}
        s_waitcnt vmcnt(0)
        s_sleep 1
        """)
        for k in range(i, 10):
            a(o_load(p, k))
        a(f"s_waitcnt vmcnt({9 - i if p == 0 else 0})")
        a(f"s_branch L_gw{p}_{i}")
        a.label(f"L_gq{p}_{i}")
        a(f"s_mov_b32 s{sCNT}, 1\ns_branch L_gc{p}_{i}")

    a.label("L_slowA")
    reset_m(0)
    a_pass1()
    a("s_waitcnt lgkmcnt(2)\ns_nop 0")
    a(qk(S[0], 0, 0, cmaskA(0)))
    for t in range(10):
        tile_step(t, 9, 0, lambda u: u * 2560, lambda u: u * 2560, cmaskA, extra_k=pen)
    a("s_nop 15\ns_branch L_epiA")

    a.label("L_idle")
    G3D = [32, 33, 34, 35, 36]
    for i in range(5):
        a([f"v_add_u32 v10, {64*i}, v0",
           "v_mul_u32_u24 v11, 6554, v10",
           "v_lshrrev_b32 v11, 16, v11",
           "v_mul_u32_u24 v12, 10, v11",
           "v_sub_u32 v12, v10, v12",
           "v_mul_u32_u24 v11, 1280, v11",
           f"v_lshl_add_u32 v{G3D[i]}, v12, 4, v11"])
    a(f"""
    s_cmp_ge_u32 s{sTB}, 8
    s_cselect_b32 s{SX[0]}, s{SWO[1]}, s{SWO[0]}
    s_cselect_b32 s{SX[0]+1}, s{SWO[1]+1}, s{SWO[0]+1}
    s_mov_b32 s{SX[0]+2}, {WO_BYTES}
    s_and_b32 s{T0}, s{sTB}, 7
    s_mul_i32 s{T0}, s{T0}, 160
    s_mul_i32 s{T1}, s{sWAVE}, {32*1280}
    s_add_u32 s{T0}, s{T0}, s{T1}
    s_mul_i32 s{T1}, s{sWAVE}, 5120
    """)
    for rnd in range(3):
        lab = a.uniq("L_id")
        if rnd == 2:
            a(f"s_cmp_ge_u32 s{sWAVE}, 4\ns_cbranch_scc1 {lab}")
        a(f"s_add_u32 s{T2}, s{T0}, {rnd*256*1280}")
        for i in range(5):
            a(f"s_add_u32 m0, s{T1}, {K + rnd*8*5120 + i*1024}\ns_nop 0")
            a(f"buffer_load_dwordx4 v{G3D[i]}, {srd(SX[0])}, s{T2} offen lds")
        a.label(lab)
    a(f"""
    v_lshrrev_b32 v10, 5, v0
    v_bfe_u32 v11, v0, 4, 1
    v_bfe_u32 v12, v0, 2, 2
    v_and_b32 v13, 3, v0
    v_mul_u32_u24 v13, 40, v13
    v_add_u32 v13, {K}, v13
    v_mul_u32_u24 v14, 20, v10
    v_lshl_add_u32 v14, v11, 2, v14
    v_add_u32 v14, v14, v12
    v_mul_u32_u24 v14, 160, v14
    v_add_u32 v37, v14, v13
    v_mul_u32_u24 v14, 80, v10
    v_mul_u32_u24 v11, 20, v11
    v_add3_u32 v14, v14, v11, v12
    v_add_u32 v14, 16, v14
    v_mul_u32_u24 v14, 160, v14
    v_add_u32 v38, v14, v13
    s_mul_i32 s{T0}, s{sWAVE}, 6400
    v_add_u32 v37, s{T0}, v37
    s_mul_i32 s{T0}, s{sWAVE}, 25600
    v_add_u32 v38, s{T0}, v38
    v_lshlrev_b32 v39, 4, v0
    v_mov_b32 v10, 0
    v_mov_b32 v11, 0
    v_mov_b32 v12, 4
    ds_write_b64 v10, v[10:11]
    ds_write_b32 v10, v12 offset:8
    s_mul_i32 s{T0}, s{sTB}, 102400
    s_add_u32 s{T0}, s{T0}, {WP_OFF}
    s_mul_i32 s{T1}, s{sWAVE}, 5120
    s_add_u32 s{T1}, s{T1}, s{T0}              ; kh=0, i=w
    s_lshr_b32 s{T2}, s{sWAVE}, 1
    s_mul_i32 s{T2}, s{T2}, 51200
    s_and_b32 s{T3}, s{sWAVE}, 1
    s_mul_i32 s{T3}, s{T3}, 5120
    s_add_u32 s{T2}, s{T2}, s{T3}
    s_add_u32 s{T2}, s{T2}, s{T0}
    s_add_u32 s{T2}, s{T2}, {8*5120}
    s_waitcnt vmcnt(0) lgkmcnt(0)
    s_barrier
    """)
    for rnd in range(3):
        lab = a.uniq("L_id")
        if rnd == 2:
            a(f"s_cmp_ge_u32 s{sWAVE}, 4\ns_cbranch_scc1 {lab}")
        base = 64 + rnd * 20
        for ct in range(5):
            for rd in range(2):
                if rnd < 2:
                    a(f"ds_read_b64_tr_b16 {vr(base+4*ct+2*rd,2)}, v37 offset:{rnd*51200 + rd*1280 + ct*8}")
                else:
                    a(f"ds_read_b64_tr_b16 {vr(base+4*ct+2*rd,2)}, v38 offset:{rd*6400 + ct*8}")
        a("s_waitcnt lgkmcnt(0)")
        if rnd == 1:
            a(f"s_add_u32 s{T1}, s{T1}, 51200")
        sreg = T1 if rnd < 2 else T2
        for ct in range(5):
            if ct == 4:
                a(f"s_add_u32 s{T3}, s{sreg}, 4096")
                a(f"buffer_store_dwordx4 {vr(base+4*ct,4)}, v39, {srd(SWS)}, s{T3} offen {HST}")
            else:
                a(f"buffer_store_dwordx4 {vr(base+4*ct,4)}, v39, {srd(SWS)}, s{sreg} offen offset:{ct*1024} {HST}")
        a.label(lab)
    a("s_waitcnt vmcnt(0)\ns_barrier")
    publish(0, 0, 1)
    publish(0, 1, 2)
    a(f"v_add_u32 v{VPUB}, 4, v{VPUB}")
    publish(0, 0, 3)
    publish(0, 1, 4)
    poll_issue(0, 1)
    poll_check(0, 1, sleep=OPT.get('isl', 32))
    a("s_barrier")
    a(f"s_cmp_ge_u32 s{sWAVE}, 4")
    a("s_cbranch_scc1 L_attn_setup")
    a(f"v_lshlrev_b32 v{VDMA}, 4, v0")
    a("s_branch L_x1")

    a.label("L_slowB")
    reset_m(1)
    a(f"""
    v_mov_b32 v19, 0xff800000
    v_subrev_u32 v10, {CH[3]}, v{VK}
    v_subrev_u32 v12, {CH[3]}, v{VV}
    s_add_u32 s{T0}, s{sKVB}, {32*163840}
    s_add_u32 s{T1}, s{T0}, 163840
    """)

    def gk():
        return f"""
        buffer_load_dwordx2 {vr(KL[0],2)}, v10, {srd(SWS)}, s{T0} offen {HS}
        buffer_load_dwordx2 {vr(KL[0]+2,2)}, v10, {srd(SWS)}, s{T0} offen offset:512 {HS}
        s_mov_b64 exec, s[{sLO}:{sLO+1}]
        buffer_load_dwordx2 {vr(KH[0],2)}, v10, {srd(SWS)}, s{T0} offen offset:1024 {HS}
        """
    a.label("L_slow1")
    a(gk())
    a("s_mov_b64 exec, -1\ns_waitcnt vmcnt(0)")
    a(qk(S[0], 0, 1))
    a("s_nop 15")
    a(maxtree(19, S[0], False))
    a(f"""
    s_add_u32 s{T0}, s{T0}, 2560
    s_cmp_lt_u32 s{T0}, s{T1}
    s_cbranch_scc1 L_slow1
    """)
    set_m(1, 19)
    zero_o()
    a(f"s_sub_u32 s{T0}, s{T1}, 163840")
    a.label("L_slow2")
    a(gk())
    a(f"""
    s_mov_b64 exec, s[{sVM}:{sVM+1}]
    buffer_load_dwordx4 {vr(VF[0],4)}, v12, {srd(SWS)}, s{T0} offen {HS}
    buffer_load_dwordx4 {vr(VF[0]+4,4)}, v12, {srd(SWS)}, s{T0} offen offset:640 {HS}
    s_mov_b64 exec, -1
    s_waitcnt vmcnt(0)
    """)
    a(qk(S[0], 0, 1))
    a("s_nop 15")
    a(exps(S[0]))
    a("s_nop 1")
    a(pv(S[0], 0))
    a(f"""
    s_add_u32 s{T0}, s{T0}, 2560
    s_cmp_lt_u32 s{T0}, s{T1}
    s_cbranch_scc1 L_slow2
    s_nop 15
    s_branch L_epiB
    """)


def main(out):
    global HST, HS
    HST = ["sc1", "", "sc0 sc1", "nt", "sc1 nt"][OPT.get("st", 0)]
    HS = ["sc1", ""][OPT.get("ld", 0)]
    a = Asm()
    hdr = open(f"cdna_kernels/{NAME}.s.ref").read().split("\n")
    keep = [l for l in hdr if l.startswith(";") and "@launch" not in l]
    for l in keep:
        a.raw(l)
    a.raw(f"; @launch grid=(256,1,1) block=(512,1,1) lds={LDS_BYTES}")
    a.raw('.amdgcn_target "amdgcn-amd-amdhsa--gfx950"')
    a.raw(".text")
    gen(a)
    a.raw('.section .rodata,"a"')
    a.raw(".p2align 6")
    a.raw(f""".amdhsa_kernel {KNAME}
  .amdhsa_next_free_vgpr 256
  .amdhsa_next_free_sgpr {102 if STAMPS else 72}
  .amdhsa_accum_offset 256
  .amdhsa_group_segment_fixed_size 0
  .amdhsa_kernarg_size 72
  .amdhsa_user_sgpr_count 2
  .amdhsa_user_sgpr_kernarg_segment_ptr 1
  .amdhsa_system_sgpr_workgroup_id_x 1
.end_amdhsa_kernel""")
    open(out, "w").write(a.text())


if __name__ == "__main__":
    if "--stamps" in sys.argv:
        STAMPS = True
        sys.argv.remove("--stamps")
    for x in list(sys.argv):
        if x.startswith("-D"):
            k, _, v = x[2:].partition("=")
            OPT[k] = int(v) if v else 1
            sys.argv.remove(x)
    main(sys.argv[1] if len(sys.argv) > 1 else f"cdna_kernels/{NAME}.s")
```

```python
import sys, struct, re

NAME = "concat_heads__sliding_block__softmax_full_mha__prompt"
KNAME = NAME + "_kernel"

QW_OFF = 0x000000
KV_OFF = 0x500000
OW_OFF = 0xF00000
FL_OFF = 0x1400000
EP_OFF = 0x1409000
WP_OFF = 0x1500000
WS_USED = 0x1700000
X_BYTES = 2048 * 640 * 2
WQKV_BYTES = 640 * 1920 * 2
WO_BYTES = 640 * 640 * 2
OUT_BYTES = 2048 * 1280 * 2
SRD3 = 0x00020000
LDS_BYTES = 163840
K = 1024

STAMPS = False
STAMP_OFF = 0x2000000
SB = 72
OPT = {}


def f32bits(x):
    return struct.unpack("<I", struct.pack("<f", x))[0]


NEGBIG = f32bits(-1e30)
CSCALE = f32bits((20 ** -0.5) * 1.4426950408889634)


class Asm:
    def __init__(self):
        self.l = []
        self.n = 0

    def __call__(self, s):
        if isinstance(s, (list, tuple)):
            for x in s:
                self(x)
            return
        for line in s.strip("\n").split("\n"):
            line = line.strip()
            if line:
                self.l.append(("" if line.endswith(":") else "    ") + line)

    def label(self, s):
        self.l.append(s + ":")

    def raw(self, s):
        self.l.append(s)

    def uniq(self, p):
        self.n += 1
        return f"{p}_{self.n}"

    def text(self):
        return "\n".join(self.l) + "\n"


def vr(a, n):
    return f"v[{a}:{a + n - 1}]"


def mfma32(d, a_, b_, c):
    cs = vr(c, 16) if c is not None else "0"
    return f"v_mfma_f32_32x32x16_bf16 {vr(d,16)}, {vr(a_,4)}, {vr(b_,4)}, {cs}"


def mfma32k8(d, a_, b_, c):
    return f"v_mfma_f32_32x32x8_bf16 {vr(d,16)}, {vr(a_,2)}, {vr(b_,2)}, {vr(c,16)}"


def mfma16(d, a_, b_, c):
    cs = vr(c, 4) if c is not None else "0"
    return f"v_mfma_f32_16x16x32_bf16 {vr(d,4)}, {vr(a_,4)}, {vr(b_,4)}, {cs}"


def cstamp(a, i):
    if STAMPS and OPT.get("sm", 0) == 3:
        a(f"s_memrealtime s[{SB+2*i}:{SB+2*i+1}]")
        a(f"s_memtime s[{SB+2*i+2}:{SB+2*i+3}]")


def stamp(a, i, mode=0):
    if STAMPS and (i == 0 or OPT.get("sm", 0) == mode):
        a(f"s_memrealtime s[{SB+2*i}:{SB+2*i+1}]")


SX = [4, 12]
SW = [8, 16]
SWS, SDBG = 20, 24
SWO = [28, 32]
SOUT = 36
sWAVE, sCW, sTB, sM, sKS, sXB, sWB, sLP = 40, 41, 42, 43, 44, 45, 46, 47
T0, T1, T2, T3, T4, T5 = 48, 49, 50, 51, 52, 53
sEQ, sEK = 54, 55
sHEAD, sQB, sQT, sW1K = 56, 57, 58, 59
sVM, sLO = 60, 62
sCS, sONE, sKVB, sXCD, sJ, sROT = 64, 65, 66, 67, 68, 69
sCNT = 70
sKVS = 71
sTAG = 3
sBAD = 47


def srd(n):
    return f"s[{n}:{n+3}]"


HS = "sc1"
HST = "sc1"
OUTP = ""


def gen(a):
    a.raw(f".globl {KNAME}\n.p2align 8\n.type {KNAME},@function")
    a.label(KNAME)
    a(f"""
    s_cmp_ge_u32 s2, 256
    s_cbranch_scc1 L_done
    """)
    stamp(a, 0)
    a(f"""
    s_load_dwordx2 s[{SX[1]}:{SX[1]+1}], s[0:1], 24
    s_load_dwordx2 s[{SW[1]}:{SW[1]+1}], s[0:1], 32
    s_load_dwordx2 s[{SX[0]}:{SX[0]+1}], s[0:1], 0
    s_load_dwordx2 s[{SW[0]}:{SW[0]+1}], s[0:1], 8
    s_load_dwordx2 s[{SWO[0]}:{SWO[0]+1}], s[0:1], 16
    s_load_dwordx2 s[{SWO[1]}:{SWO[1]+1}], s[0:1], 40
    s_load_dwordx2 s[{SOUT}:{SOUT+1}], s[0:1], 48
    s_load_dwordx2 s[{SWS}:{SWS+1}], s[0:1], 64
    v_lshrrev_b32 v1, 6, v0
    v_and_b32 v0, 63, v0
    s_and_b32 s{sXCD}, s2, 7
    v_readfirstlane_b32 s{sWAVE}, v1
    s_lshr_b32 s{sJ}, s2, 3
    s_and_b32 s{T0}, s{sXCD}, 1
    s_lshl_b32 s{T0}, s{T0}, 3
    s_and_b32 s{T1}, s{sJ}, 7
    s_add_u32 s{sTB}, s{T0}, s{T1}
    s_lshr_b32 s{T0}, s{sXCD}, 1
    s_lshl_b32 s{T0}, s{T0}, 2
    s_lshr_b32 s{T2}, s{sJ}, 3
    s_add_u32 s{sM}, s{T0}, s{T2}
    """)
    rm = OPT.get("rot", 1)
    if rm == 0:
        a(f"s_mov_b32 s{sROT}, 0")
    elif rm == 1:
        a(f"""
        s_mul_i32 s{T2}, s{T2}, 3
        s_add_u32 s{sROT}, s{T1}, s{T2}
        s_cmp_ge_u32 s{sROT}, 10
        s_cselect_b32 s{T0}, 10, 0
        s_sub_u32 s{sROT}, s{sROT}, s{T0}
        """)
    elif rm == 2:
        a(f"""
        s_add_u32 s{sROT}, s{T1}, s{T2}
        s_and_b32 s{sROT}, s{sROT}, 1
        s_mul_i32 s{sROT}, s{sROT}, 5
        """)
    else:
        a(f"""
        s_add_u32 s{sROT}, s{T1}, s{T2}
        s_and_b32 s{sROT}, s{sROT}, 3
        s_mul_i32 s{sROT}, s{sROT}, 5
        s_lshr_b32 s{sROT}, s{sROT}, 1
        """)
    a(f"""
    s_and_b32 s{sCW}, s{sWAVE}, 3
    """)
    for n, size in ((SX[0], X_BYTES), (SW[0], WQKV_BYTES), (SX[1], X_BYTES), (SW[1], WQKV_BYTES), (SWO[0], WO_BYTES),
                    (SWO[1], WO_BYTES), (SOUT, OUT_BYTES), (SWS, 0x4000000 if STAMPS else WS_USED)):
        a(f"s_mov_b32 s{n+2}, {size}\ns_mov_b32 s{n+3}, {SRD3}")
    a(f"""
    v_lshrrev_b32 v6, 3, v0
    v_mul_u32_u24 v2, 1280, v6
    v_lshrrev_b32 v7, 4, v0
    v_and_b32 v8, 7, v0
    v_xor_b32 v8, v8, v7
    v_lshl_add_u32 v2, v8, 4, v2
    v_xor_b32 v3, 64, v2
    v_mul_u32_u24 v9, 3840, v7
    v_and_b32 v8, 15, v0
    v_lshlrev_b32 v10, 1, v7
    v_xor_b32 v8, v8, v10
    """)
    a("""
    v_lshl_add_u32 v4, v8, 4, v9
    v_xor_b32 v5, 128, v4
    """)
    a(f"""
    s_lshl_b32 s{T0}, s{sTB}, 7
    s_lshl_b32 s{T1}, s{sCW}, 5
    s_add_u32 s{T0}, s{T0}, s{T1}
    s_mul_i32 s{sXB}, s{T0}, 1280
    s_mul_i32 s{sWB}, s{sCW}, {16*3840}
    s_lshl_b32 s{T0}, s{sM}, 8
    s_add_u32 s{sWB}, s{sWB}, s{T0}
    s_lshl_b32 s{sLP}, s{sCW}, 12
    s_lshr_b32 s{T3}, s{sWAVE}, 2              ; group
    s_add_u32 s{sKS}, s{sROT}, s{T3}
    s_cmp_eq_u32 s{sKS}, 10
    s_cselect_b32 s{sKS}, 0, s{sKS}
    s_lshl_b32 s{T3}, s{T3}, 15
    s_add_u32 s{T3}, s{T3}, s{sLP}
    """)

    def dma_stage(n, sLP=sLP):
        p = 1 - n // 10
        slot = (n % 5) * 32 * K
        out = [f"s_lshl_b32 s{T0}, s{sKS}, 7",
               f"s_add_u32 s{T0}, s{T0}, s{sXB}",
               f"s_mul_i32 s{T1}, s{sKS}, {64*3840}",
               f"s_add_u32 s{T1}, s{T1}, s{sWB}"]
        for i in range(4):
            out += [f"s_add_u32 m0, s{sLP}, {slot + i*1024}",
                    f"s_add_u32 s{T2}, s{T0}, {i*8*1280}",
                    f"buffer_load_dwordx4 v{2 + (i & 1)}, {srd(SX[p])}, s{T2} offen lds",
                    f"s_add_u32 m0, s{sLP}, {slot + 16*K + i*1024}",
                    f"s_add_u32 s{T2}, s{T1}, {i*4*3840}",
                    f"buffer_load_dwordx4 v{4 + (i >> 1)}, {srd(SW[p])}, s{T2} offen lds"]
        out += [f"s_add_u32 s{sKS}, s{sKS}, 1",
                f"s_cmp_eq_u32 s{sKS}, 10",
                f"s_cselect_b32 s{sKS}, 0, s{sKS}"]
        return out

    a("s_waitcnt lgkmcnt(0)")
    a(f"s_cmp_eq_u32 s{sM}, 15")
    a("s_cbranch_scc1 L_setup1")
    a(dma_stage(0, T3))
    a(f"s_cmp_lt_u32 s{sWAVE}, 4")
    a("s_cbranch_scc1 L_setup1")
    for n in (2, 3):
        a(dma_stage(n))
    a.label("L_setup1")
    a(f"""
    s_lshl_b32 s{T0}, s{sXCD}, 2
    s_and_b32 s{T1}, s{sJ}, 3
    s_add_u32 s{sHEAD}, s{T0}, s{T1}
    s_lshr_b32 s{sQB}, s{sJ}, 2
    s_add_u32 s{T0}, s{SWS}, {EP_OFF}
    s_addc_u32 s{T1}, s{SWS+1}, 0
    s_load_dword s{sTAG}, s[{T0}:{T1}], 0
    """)
    marks = [len(a.l)]
    S = [64, 80, 96, 112]
    O = 208
    OO = [48, 208]
    KL, KH = [128, 132], [240, 242]
    QL, QH = [136, 142], [140, 146]
    VF = [224, 232]
    MD, MF = 32, 48
    VK, VV, VIDX, VDMA, VQ, VOF, VW3, VOUT, VRED = 244, 245, 246, 247, 248, 249, 250, 251, 252
    VOUT2 = 253
    QB_OFF = 1 * K
    CH = [11 * K, 51 * K, 91 * K, 1 * K]
    A_OFF = 50 * K
    WOL = [[10 * K, 60 * K], [110 * K, 0]]
    SCR = [130 * K, 110 * K]
    OFB = [32, 148]
    ST = [188, 192, 196, 28, 4]

    a(f"""
    v_lshlrev_b32 v{VDMA}, 4, v0
    v_lshrrev_b32 v11, 5, v0               ; h
    v_and_b32 v12, 31, v0                  ; i
    v_and_b32 v13, 3, v12
    v_lshrrev_b32 v14, 3, v12
    v_lshl_add_u32 v13, v14, 2, v13        ; kappa & 15
    v_bfe_u32 v14, v12, 2, 1               ; kappa >> 4
    v_lshlrev_b32 v15, 4, v13
    v_lshl_add_u32 v16, v14, 3, v15
    v_lshl_add_u32 v16, v11, 8, v16
    v_add_u32 v{VK}, {CH[0]}, v16
    v_mul_u32_u24 v16, 20, v11
    v_add_u32 v16, v16, v12
    v_lshlrev_b32 v16, 4, v16
    v_add_u32 v{VV}, {CH[0] + 1280}, v16
    v_and_b32 v15, 15, v12
    v_lshlrev_b32 v15, 4, v15
    v_lshrrev_b32 v16, 4, v12
    v_lshl_add_u32 v15, v16, 3, v15        ; (q&15)*16 + (q>>4)*8
    v_lshl_add_u32 v{VQ}, v11, 8, v15
    v_mov_b32 v{VIDX}, 0xdddddddd
    v_and_b32 v17, 0x1b, v12
    v_cmp_eq_u32 vcc, 24, v17
    v_mov_b32 v16, 0x3f803f80
    s_nop 0
    v_cndmask_b32 v17, 0, v16, vcc
    """)
    for b in range(2):
        a(f"v_mov_b32 v{KH[b]}, 0x3f803f80")
        a(f"v_mov_b32 v{KH[b]+1}, 0x00003f80")
        for i in range(8):
            a(f"v_mov_b32 v{VF[b]+i}, v17")

    def mask_setup():
        out = [["v_lshrrev_b32 v13, 5, v0", "v_lshlrev_b32 v13, 4, v13", "v_and_b32 v12, 31, v0",
                "v_sub_u32 v13, v12, v13", f"v_mov_b32 v14, {NEGBIG}"]]
        for r in range(0, 16, 2):
            out.append([f"v_cmp_le_i32 s[{T0}:{T0+1}], {r}, v13",
                        f"v_cmp_le_i32 s[{T2}:{T2+1}], {r+1}, v13",
                        "s_nop 0",
                        f"v_cndmask_b32 v{MD+r}, v14, 0, s[{T0}:{T0+1}]",
                        f"v_cndmask_b32 v{MF+r}, 0, v14, s[{T0}:{T0+1}]",
                        f"v_cndmask_b32 v{MD+r+1}, v14, 0, s[{T2}:{T2+1}]",
                        f"v_cndmask_b32 v{MF+r+1}, 0, v14, s[{T2}:{T2+1}]"])
        return out

    def g3_setup():
        return [["v_lshrrev_b32 v10, 4, v0",
                 "v_lshlrev_b32 v11, 9, v10",
                 "v_and_b32 v12, 15, v0",
                 f"v_lshl_add_u32 v{VOF}, v12, 4, v11"],
                ["v_mul_u32_u24 v12, 2560, v12",
                 f"v_lshl_add_u32 v{VOUT}, v10, 4, v12",
                 f"v_lshl_add_u32 v{VOUT2}, v10, 3, v12"],
                [f"s_cmp_lt_u32 s{sWAVE}, 4",
                 f"s_cselect_b32 s{T0}, {WOL[1][0]}, {WOL[1][1]}",
                 f"v_add_u32 v{VW3}, s{T0}, v{VDMA}",
                 f"s_mul_i32 s{T0}, s{sCW}, 5120",
                 f"v_add_u32 v{VRED}, s{T0}, v{VDMA}"]]

    marks.append(len(a.l))
    a(mask_setup()[:5])
    marks.append(len(a.l))
    a(mask_setup()[5:])
    marks.append(len(a.l))
    a(g3_setup())
    for i in range(16):
        a(f"v_mov_b32 v{O+i}, 0")
    marks.append(len(a.l))

    XA = lambda sg, kk: 14 + sg * 6 + kk
    WA = lambda sg, ct: 14 + sg * 6 + 2 + ct
    a(f"""
    v_and_b32 v6, 15, v0
    v_lshrrev_b32 v8, 1, v6                ; f(row)
    v_xor_b32 v8, v8, v7                   ; o ^ f
    v_lshlrev_b32 v8, 4, v8
    v_lshl_add_u32 v8, v6, 7, v8
    s_lshr_b32 s{T0}, s{sCW}, 1
    s_lshl_b32 s{T0}, s{T0}, 13
    v_add_u32 v{XA(0,0)}, s{T0}, v8
    v_xor_b32 v{XA(0,1)}, 64, v{XA(0,0)}
    v_lshrrev_b32 v8, 2, v0
    v_and_b32 v8, 3, v8                    ; r
    v_lshl_add_u32 v9, v7, 3, v8           ; krow = 8o + r
    v_lshlrev_b32 v9, 8, v9
    v_add_u32 v9, {16*K}, v9
    v_and_b32 v10, 1, v7
    v_lshl_add_u32 v10, v10, 2, v8
    v_lshlrev_b32 v10, 1, v10              ; sigma
    v_bfe_u32 v11, v0, 1, 1                ; c>>1
    s_and_b32 s{T0}, s{sCW}, 1
    s_lshl_b32 s{T0}, s{T0}, 3
    v_or_b32 v11, s{T0}, v11               ; 8cg + (c>>1)
    v_xor_b32 v11, v11, v10
    v_lshl_add_u32 v11, v11, 4, v9
    v_and_b32 v12, 1, v0
    v_lshl_add_u32 v{WA(0,0)}, v12, 3, v11
    v_xor_b32 v{WA(0,1)}, 32, v{WA(0,0)}
    v_xor_b32 v{WA(0,2)}, 64, v{WA(0,0)}
    v_xor_b32 v{WA(0,3)}, 96, v{WA(0,0)}
    """)
    for sg in (1, 2):
        for i in range(6):
            a(f"v_add_u32 v{14+sg*6+i}, {sg*64*K}, v{14+i}")
    marks.append(len(a.l))
    EA = [196, 197, 198, 199]
    a(f"""
    s_lshl_b32 s{T0}, s{sTB}, 2
    s_and_b32 s{T1}, s{sCW}, 2
    s_add_u32 s{T0}, s{T0}, s{T1}
    s_lshr_b32 s{T1}, s{sWAVE}, 2
    s_xor_b32 s{T1}, s{T1}, 1
    s_lshl_b32 s{T1}, s{T1}, 11                ; p*32*64
    s_add_u32 s{T0}, s{T0}, s{T1}
    s_cmp_ge_u32 s{sM}, 5
    s_cselect_b32 s{T2}, 1, 0                  ; K or V
    s_lshl_b32 s{T3}, 1280, s{T2}
    s_mul_i32 s{sEQ}, s{T0}, s{T3}
    s_mul_i32 s{T0}, s{T2}, {KV_OFF}
    s_add_u32 s{sEQ}, s{sEQ}, s{T0}
    s_add_u32 s{sEK}, s{sEQ}, s{T3}
    s_lshl_b32 s{T3}, s{T3}, 6
    s_and_b32 s{T1}, s{sCW}, 1
    s_cmp_ge_u32 s{sM}, 10
    s_cbranch_scc1 L_ea1
    s_mul_i32 s{T0}, s{T2}, 5
    s_sub_u32 s{T0}, s{sM}, s{T0}
    s_lshl_b32 s{T0}, s{T0}, 5
    s_lshl_b32 s{T1}, s{T1}, 4
    s_add_u32 s{T0}, s{T0}, s{T1}
    v_add_u32 v8, s{T0}, v7
    v_lshlrev_b32 v10, 4, v6
    """)
    for ct in range(4):
        a(f"""
        v_add_u32 v9, {4*ct}, v8
        v_mul_u32_u24 v11, 205, v9
        v_lshrrev_b32 v11, 10, v11
        v_mul_u32_u24 v12, 5, v11
        v_sub_u32 v12, v9, v12
        v_mul_lo_u32 v11, v11, s{T3}
        v_lshl_add_u32 v12, v12, 8, v10
        v_add_u32 v{EA[ct]}, v11, v12
        """)
    a(f"""
    s_branch L_ea2
    L_ea1:
    s_sub_u32 s{T0}, s{sM}, 10
    s_lshl_b32 s{T0}, s{T0}, 7
    s_lshl_b32 s{T1}, s{T1}, 6
    s_add_u32 s{T0}, s{T0}, s{T1}
    v_add_u32 v8, s{T0}, v6
    v_mul_u32_u24 v10, 320, v7
    v_add_u32 v10, 1280, v10
    """)
    for ct in range(4):
        a(f"""
        v_add_u32 v9, {16*ct}, v8
        v_mul_u32_u24 v11, 3277, v9
        v_lshrrev_b32 v11, 16, v11
        v_mul_u32_u24 v12, 20, v11
        v_sub_u32 v12, v9, v12
        v_mul_lo_u32 v11, v11, s{T3}
        v_lshl_add_u32 v12, v12, 4, v10
        v_add_u32 v{EA[ct]}, v11, v12
        """)
    a.label("L_ea2")
    marks.append(len(a.l))
    a(f"""
    s_lshl_b32 s{sQT}, s{sQB}, 3
    s_add_u32 s{sQT}, s{sQT}, s{sWAVE}
    s_lshl_b32 s{sW1K}, s{sWAVE}, 10
    s_mov_b32 s{sVM}, 0x000fffff
    s_mov_b32 s{sVM+1}, 0x000fffff
    s_mov_b32 s{sLO}, -1
    s_mov_b32 s{sLO+1}, 0
    s_mov_b32 s{sCS}, {CSCALE}
    s_mov_b32 s{sONE}, 0x3f80
    s_mul_i32 s{sKVB}, s{sHEAD}, 163840
    s_add_u32 s{sKVB}, s{sKVB}, {KV_OFF}
    """)

    ACC = lambda ct, tt: 128 + (ct * 4 + tt) * 4
    XF = lambda buf, tt: 64 + buf * 32 + tt * 4
    WF = lambda buf, ct: 64 + buf * 32 + 16 + ct * 4

    def g1reads(i, kk):
        slot = i % 5
        sg, so = slot >> 1, (slot & 1) * 32 * K
        r = []
        for q in range(4):
            r.append(f"ds_read_b128 {vr(XF(kk,q),4)}, v{XA(sg,kk)} offset:{so + q*2048}")
            for rd in range(2):
                r.append(f"ds_read_b64_tr_b16 {vr(WF(kk,q)+2*rd,2)}, v{WA(sg,q)} offset:{so + kk*8192 + rd*1024}")
        return r

    VPG, VPUB, VPO, VPD = 202, 203, 206, 204
    sPM, sSTR = SDBG, SDBG + 2

    def only_wave(wave):
        lab = a.uniq("L_w")
        a(f"s_cmp_lg_u32 s{sWAVE}, {wave}")
        a(f"s_cbranch_scc1 {lab}")
        return lab

    def publish(kind, p, wave):
        lab = only_wave(wave)
        if kind == 0:
            a(f"""
            v_mov_b32 v1, s{sTAG}
            s_mov_b32 s{T4}, {FL_OFF + p*16384}
            s_mov_b64 exec, s[{sPM}:{sPM+1}]
            buffer_store_dword v1, v{VPUB}, {srd(SWS)}, s{T4} offen sc1
            s_mov_b64 exec, -1
            """)
        else:
            a(f"""
            s_lshl_b32 s{T4}, s{sQB}, 8
            s_lshl_b32 s{T5}, s{sHEAD}, 2
            s_add_u32 s{T4}, s{T4}, s{T5}
            s_add_u32 s{T4}, s{T4}, {FL_OFF + 32768}
            v_mov_b32 v1, s{sTAG}
            s_mov_b64 exec, 1
            buffer_store_dword v1, off, {srd(SWS)}, s{T4} sc1
            s_mov_b64 exec, -1
            """)
        a.label(lab)

    def poll_loads(kind, p):
        if kind == 0:
            return [f"s_mov_b32 s{T3}, {FL_OFF + p*16384}",
                    f"buffer_load_dwordx2 {vr(VPD,2)}, v{VPG}, {srd(SWS)}, s{T3} offen sc1"]
        return [f"s_mov_b32 s{T3}, {FL_OFF + 32768}",
                f"buffer_load_dword v{VPD}, v{VPO}, {srd(SWS)}, s{T3} offen sc1"]

    def poll_issue(kind, p, wave=0):
        lab = only_wave(wave) if wave is not None else a.uniq("L_w")
        a(poll_loads(kind, p))
        a.label(lab)

    def poll_check(kind, p, sleep=8, wave=0, first=0):
        lab = only_wave(wave) if wave is not None else a.uniq("L_w")
        loop = a.uniq("L_spin")
        a(f"s_mov_b32 s{sCNT}, 0x20000")
        a(f"s_waitcnt vmcnt({first})")
        a.label(loop)
        a(f"v_cmp_eq_u32 vcc, s{sTAG}, v{VPD}")
        if kind == 0:
            a(f"v_cmp_eq_u32 s[{T0}:{T0+1}], s{sTAG}, v{VPD+1}")
            a(f"s_orn2_b64 s[{T0}:{T0+1}], s[{T0}:{T0+1}], s[{sSTR}:{sSTR+1}]\ns_and_b64 vcc, vcc, s[{T0}:{T0+1}]")
        a(f"""
        s_cmp_eq_u64 vcc, -1
        s_cbranch_scc1 {lab}
        s_sleep {sleep}
        """)
        a(poll_loads(kind, p))
        a(f"""
        s_sub_u32 s{sCNT}, s{sCNT}, 1
        s_cmp_lg_u32 s{sCNT}, 0
        s_waitcnt vmcnt(0)
        s_cbranch_scc1 {loop}
        """)
        a.label(lab)

    a(f"""
    s_mul_i32 s{T0}, s{sHEAD}, 20
    s_add_u32 s{T1}, s{T0}, 19
    s_lshr_b32 s{T0}, s{T0}, 7
    s_lshr_b32 s{T1}, s{T1}, 7
    s_cmp_lg_u32 s{T0}, s{T1}
    s_cselect_b64 s[{sSTR}:{sSTR+1}], -1, 0
    s_lshl_b32 s{T0}, s{sHEAD}, 9
    v_lshl_add_u32 v{VPG}, v0, 3, s{T0}
    s_mul_i32 s{T0}, s{sM}, 52
    s_lshr_b32 s{T0}, s{T0}, 8                 ; type
    s_mul_i32 s{T1}, s{T0}, 5
    s_sub_u32 s{T1}, s{sM}, s{T1}
    s_mul_i32 s{T2}, s{T1}, 205
    s_lshr_b32 s{T2}, s{T2}, 5
    s_cmp_eq_u32 s{T1}, 2
    s_cselect_b32 s{sPM}, 0x80, 0
    s_or_b32 s{sPM}, s{sPM}, 0x7f
    s_cmp_eq_u32 s{sM}, 15
    s_cselect_b32 s{sPM}, -1, s{sPM}
    s_mov_b32 s{sPM+1}, 0
    s_lshl_b32 s{T2}, s{T2}, 9
    s_lshl_b32 s{T0}, s{T0}, 7
    s_add_u32 s{T2}, s{T2}, s{T0}
    s_lshl_b32 s{T0}, s{sTB}, 3
    s_add_u32 s{T2}, s{T2}, s{T0}
    v_lshl_add_u32 v{VPUB}, v0, 9, s{T2}
    s_min_u32 s{T1}, s{T1}, 1
    s_lshl_b32 s{T1}, s{T1}, 2
    s_mov_b64 exec, 1
    v_add_u32 v{VPUB}, s{T1}, v{VPUB}
    s_mov_b64 exec, -1
    v_and_b32 v8, 31, v0
    v_lshlrev_b32 v8, 2, v8
    s_lshl_b32 s{T0}, s{sXCD}, 8
    v_add_u32 v{VPO}, s{T0}, v8
    """)
    a(f"s_waitcnt lgkmcnt(0)\ns_add_u32 s{sTAG}, s{sTAG}, 0x9e3779b1")
    marks.append(len(a.l))
    late = a.l[marks[0]:marks[4]]
    del a.l[marks[0]:marks[4]]
    late = [re.sub(r"\bv(1[4-7])\b", lambda m: "v%d" % (int(m.group(1)) - 8), x.split(";")[0]).strip() for x in late]
    a(f"s_cmp_eq_u32 s{sM}, 15")
    a("s_cbranch_scc1 L_idle")

    a(f"s_cmp_lt_u32 s{sWAVE}, 4")
    a("s_cbranch_scc1 L_xstart")
    for n in range(11):
        a("s_waitcnt vmcnt(24)")
        a("s_barrier")
        if n <= 9:
            a(dma_stage(n + 4))
    a("s_setprio 3")
    a("s_branch L_compute")
    a.label("L_xstart")
    a(f"""
    s_add_u32 s{sKS}, s{sKS}, 3
    s_cmp_ge_u32 s{sKS}, 10
    s_cselect_b32 s{T0}, 10, 0
    s_sub_u32 s{sKS}, s{sKS}, s{T0}
    s_waitcnt vmcnt(0)
    s_barrier
    """)
    a.label("L_compute")
    stamp(a, 1)
    stamp(a, 1, 1)
    a(g1reads(0, 0))
    a(f"s_cmp_ge_u32 s{sM}, 10")
    a("s_cbranch_scc1 L_comp1")

    def interleave(ms, rs, step):
        per = -(-len(late) // 18)
        ex = late[step * per:(step + 1) * per] if step < 18 else []
        out = []
        ri = xi = 0
        for i, m in enumerate(ms):
            out.append(m)
            if ri < len(rs):
                out.append(rs[ri]); ri += 1
            if i >= 16 - per and xi < len(ex):
                out.append(ex[xi]); xi += 1
        out += rs[ri:] + ex[xi:]
        return out

    for cg in range(2):
        if cg == 1:
            a.label("L_comp1")

        def mm(i, kk):
            out = []
            for ct in range(4):
                for tt in range(4):
                    c = None if (i == 0 and kk == 0) else ACC(ct, tt)
                    if cg == 1:
                        out.append(mfma16(ACC(ct, tt), XF(kk, tt), WF(kk, ct), c))
                    else:
                        out.append(mfma16(ACC(ct, tt), WF(kk, ct), XF(kk, tt), c))
            return out
        for i in range(10):
            a("s_waitcnt lgkmcnt(0)")
            a(interleave(mm(i, 0), g1reads(i, 1), 2 * i))
            a({0: "s_waitcnt lgkmcnt(0) vmcnt(8)", 2: "s_waitcnt lgkmcnt(0) vmcnt(0)"}.get(i, "s_waitcnt lgkmcnt(0)"))
            if i in (0, 2, 4, 5, 6):
                a("s_barrier")
            else:
                lab = a.uniq("L_nb")
                a(f"s_cmp_ge_u32 s{sWAVE}, 4\ns_cbranch_scc1 {lab}\ns_barrier\n{lab}:")
            if i in (1, 3, 5, 7, 9):
                stamp(a, 2 + i // 2, 1)
            a(interleave(mm(i, 1), g1reads(i + 1, 0) if i < 9 else [], 2 * i + 1))
        if cg == 0:
            a("s_branch L_g1epi")
    a.label("L_g1epi")
    stamp(a, 2)
    EP = OPT.get("ep", 2)
    lab = a.uniq("L_noload")
    a(f"s_cmp_ge_u32 s{sWAVE}, 4")
    a(f"s_cbranch_scc1 {lab}")
    if EP >= 1:
        a(dma_stage(14))
    if EP >= 2:
        a("s_barrier")
        a(dma_stage(15))
    a(f"s_branch {lab}_j")
    a.label(lab)
    a("v_mov_b32 v10, 0\nv_mov_b32 v11, 1\ns_mov_b64 exec, 1\nds_add_u32 v10, v11 offset:8\ns_mov_b64 exec, -1")
    a.label(lab + "_j")
    stamp(a, 7, 1)
    a("s_nop 7")
    t = 64
    for ct in range(4):
        for tp in range(2):
            for h in range(2):
                s_ = ACC(ct, 2 * tp + h)
                a(f"v_cvt_pk_bf16_f32 v{t+2*h}, v{s_}, v{s_+1}")
                a(f"v_cvt_pk_bf16_f32 v{t+2*h+1}, v{s_+2}, v{s_+3}")
            a(f"buffer_store_dwordx4 {vr(t,4)}, v{EA[ct]}, {srd(SWS)}, s{sEQ if tp == 0 else sEK} offen {HST}")
            t += 4
    a.label("L_g1tail")
    stamp(a, 8, 1)

    def lds_wait(off, val, sleep=1):
        loop = a.uniq("L_lw")
        a(f"s_mov_b32 s{sCNT}, 0x400000\nv_mov_b32 v10, 0")
        a.label(loop)
        a(f"""
        ds_read_b32 v11, v10 offset:{off}
        s_waitcnt lgkmcnt(0)
        v_readfirstlane_b32 s{T0}, v11
        s_cmp_eq_u32 s{T0}, {val}
        s_cbranch_scc1 {loop}_ok
        s_sleep {sleep}
        s_sub_u32 s{sCNT}, s{sCNT}, 1
        s_cmp_lg_u32 s{sCNT}, 0
        s_cbranch_scc1 {loop}
        {loop}_ok:
        """)

    a(f"s_cmp_ge_u32 s{sWAVE}, 4")
    a("s_cbranch_scc1 L_attn_setup")
    assert EP == 2
    PB = OPT.get("pb", 1)
    a(f"s_waitcnt vmcnt({0 if PB else 16})")
    a("s_barrier")
    stamp(a, 9, 1)
    if PB:
        publish(0, 1, 1)
    a(dma_stage(16))
    a(dma_stage(17))
    a("s_waitcnt vmcnt(8)")
    stamp(a, 10, 1)
    a("s_barrier")
    if not PB:
        publish(0, 1, 1)
    a(dma_stage(18))
    a("s_barrier")
    a(dma_stage(19))
    if OPT.get("ppre", 1):
        poll_issue(0, 1)
    a("v_mov_b32 v10, 0\nv_mov_b32 v11, 0\nds_write_b64 v10, v[10:11]\nds_write_b32 v10, v10 offset:8")
    if OPT.get("ppre", 1):
        lab = a.uniq("L_w0")
        a(f"s_waitcnt vmcnt(1) lgkmcnt(0)\ns_cmp_eq_u32 s{sWAVE}, 0\ns_cbranch_scc1 {lab}\ns_waitcnt vmcnt(0)\n{lab}:")
    else:
        a("s_waitcnt vmcnt(0) lgkmcnt(0)")
    a("s_barrier")
    stamp(a, 3)
    stamp(a, 11, 1)
    if not OPT.get("ppre", 1):
        poll_issue(0, 1)
    poll_check(0, 1, sleep=4)
    lab = only_wave(0)
    a("v_mov_b32 v10, 0\nv_mov_b32 v11, 1\nds_write_b32 v10, v11")
    a.label(lab)
    lds_wait(0, 1)

    def first_loads(part):
        a(f"s_add_u32 s{T0}, s{sKVB}, s{sW1K}")
        if part == 0:
            a(f"""
            s_mul_i32 s{T3}, s{sHEAD}, 81920
            s_mul_i32 s{T4}, s{sQB}, 10240
            s_add_u32 s{T3}, s{T3}, s{T4}
            s_add_u32 s{T3}, s{T3}, s{sW1K}
            """)
            for j in range(3):
                lab = None
                if j == 2:
                    lab = a.uniq("L_q")
                    a(f"s_cmp_ge_u32 s{sWAVE}, 2\ns_cbranch_scc1 {lab}")
                a(f"""
                s_add_u32 m0, s{sW1K}, {QB_OFF + j*4096}
                s_add_u32 s{T2}, s{T3}, {QW_OFF + 32*81920 + j*4096}
                buffer_load_dwordx4 v{VDMA}, {srd(SWS)}, s{T2} offen {HS} lds
                """)
                if lab:
                    a.label(lab)
        for j in range(5 * part, 5 * part + 5):
            a(f"""
            s_add_u32 m0, s{sW1K}, {CH[0] + j*4096}
            s_add_u32 s{T2}, s{T0}, {32*163840 + j*4096}
            buffer_load_dwordx4 v{VDMA}, {srd(SWS)}, s{T2} offen {HS} lds
            """)
    a.label("L_x1")
    first_loads(0)
    a.label("L_x2")
    stamp(a, 4)
    stamp(a, 12, 1)
    first_loads(1)
    a.label("L_attn_setup")
    def scale_q(p):
        for r in [QL[p] + i for i in range(4)] + [QH[p], QH[p] + 1]:
            a(f"""
            v_lshlrev_b32 v15, 16, v{r}
            v_and_b32 v16, 0xffff0000, v{r}
            v_mul_f32 v15, s{sCS}, v15
            v_mul_f32 v16, s{sCS}, v16
            v_cvt_pk_bf16_f32 v{r}, v15, v16
            """)
        reset_m(p)

    def reset_m(p):
        a(f"""
        v_mov_b32 v15, 0x3f800000
        v_cndmask_b32 v{QH[p]}, 0, v{QH[p]}, s[{sLO}:{sLO+1}]
        v_cndmask_b32 v{QH[p]+1}, v15, v{QH[p]+1}, s[{sLO}:{sLO+1}]
        """)

    def set_m(p, M):
        a(f"""
        v_mov_b32 v15, v{M}
        s_nop 1
        v_permlane32_swap_b32 v15, v{M}
        s_nop 1
        v_max_f32 v15, v15, v{M}
        v_sub_f32 v15, 0, v15                  ; -m
        v_and_b32 v16, 0xffff0000, v15         ; hi
        v_sub_f32 v17, v15, v16
        v_and_b32 v18, 0xffff0000, v17         ; mid
        v_sub_f32 v17, v17, v18                ; lo
        v_lshrrev_b32 v16, 16, v16
        v_or_b32 v16, v16, v18
        v_lshrrev_b32 v17, 16, v17
        v_or_b32 v17, 0x3f800000, v17
        v_cndmask_b32 v{QH[p]}, v16, v{QH[p]}, s[{sLO}:{sLO+1}]
        v_cndmask_b32 v{QH[p]+1}, v17, v{QH[p]+1}, s[{sLO}:{sLO+1}]
        """)

    def kreads(buf, off, restore=True):
        return [f"ds_read2st64_b64 {vr(KL[buf],4)}, v{VK} offset0:{off//512} offset1:{off//512+1}",
                f"s_mov_b64 exec, s[{sLO}:{sLO+1}]",
                f"ds_read_b64 {vr(KH[buf],2)}, v{VK} offset:{off+1024}"] + (["s_mov_b64 exec, -1"] if restore else [])

    def vreads(buf, off):
        return [f"s_mov_b64 exec, s[{sVM}:{sVM+1}]",
                f"ds_read_b128 {vr(VF[buf],4)}, v{VV} offset:{off}",
                f"ds_read_b128 {vr(VF[buf]+4,4)}, v{VV} offset:{off+640}",
                "s_mov_b64 exec, -1"]

    def qk(Sd, buf, p, C=None):
        return [mfma32(Sd, KL[buf], QL[p], C), mfma32k8(Sd, KH[buf], QH[p], Sd)]

    def pv(Ss, buf, o):
        return [f"v_smfmac_f32_32x32x32_bf16 {vr(o,16)}, {vr(VF[buf],4)}, {vr(Ss,8)}, v{VIDX}",
                f"v_smfmac_f32_32x32x32_bf16 {vr(o,16)}, {vr(VF[buf]+4,4)}, {vr(Ss+8,8)}, v{VIDX}"]

    def cap(fn, *args):
        keep, a.l = a.l, []
        fn(*args)
        out, a.l = [x.strip() for x in a.l], keep
        return out

    def exps(Ss):
        return [f"v_exp_f32 v{Ss+i}, v{Ss+i}" for i in range(16)]

    def maxtree(M, Ss, first):
        out = []
        if first:
            out.append(f"v_max3_f32 v{M}, v{Ss}, v{Ss+1}, v{Ss+2}")
            rest = list(range(3, 16))
        else:
            rest = list(range(16))
        while len(rest) >= 2:
            out.append(f"v_max3_f32 v{M}, v{M}, v{Ss+rest[0]}, v{Ss+rest[1]}")
            rest = rest[2:]
        if rest:
            out.append(f"v_max_f32 v{M}, v{M}, v{Ss+rest[0]}")
        return out

    def zero_o(p):
        for i in range(16):
            a(f"v_mov_b32 v{OO[p]+i}, 0")

    def o_addr(p):
        return f"""
        s_mul_i32 s{T0}, s{sQT}, 40960
        s_add_u32 s{T0}, s{T0}, {OW_OFF + p*64*40960}
        s_lshl_b32 s{T1}, s{sHEAD}, 10
        s_add_u32 s{T1}, s{T1}, s{T0}
        s_lshr_b32 s{T2}, s{sHEAD}, 2
        s_add_u32 s{T2}, s{T2}, 32
        s_lshl_b32 s{T2}, s{T2}, 10
        s_add_u32 s{T2}, s{T2}, s{T0}
        s_and_b32 s{T3}, s{sHEAD}, 1
        s_lshl_b32 s{T3}, s{T3}, 9
        s_add_u32 s{T2}, s{T2}, s{T3}
        s_and_b32 s{T3}, s{sHEAD}, 2
        s_lshl_b32 s{T3}, s{T3}, 2
        s_add_u32 s{T2}, s{T2}, s{T3}
        """

    def o_store():
        return f"""
        buffer_store_dwordx4 v[20:23], v{VDMA}, {srd(SWS)}, s{T1} offen {HST}
        s_mov_b64 exec, s[{sLO}:{sLO+1}]
        buffer_store_dwordx2 v[24:25], v{VDMA}, {srd(SWS)}, s{T2} offen {HST}
        s_mov_b64 exec, -1
        """

    def epilogue(p):
        o = OO[p]
        a(f"v_rcp_f32 v15, v{o+12}")
        a(o_addr(p))
        for i in range(12):
            a(f"v_mul_f32 v{o+i}, v{o+i}, v15")
        for i in range(6):
            a(f"v_cvt_pk_bf16_f32 v{20+i}, v{o+2*i}, v{o+2*i+1}")
        a(o_store())

    def finite(p):
        a(f"v_mul_f32 v15, 0, v{OO[p]}")
        for i in range(1, 13):
            a(f"v_fmac_f32 v15, 0, v{OO[p]+i}")
        a("v_cmp_u_f32 vcc, v15, v15")

    def pen(reg, u):
        return [f"s_cmp_ge_u32 s{sQT}, {8 - u}",
                f"s_cselect_b32 s{T0}, s{sONE}, {(NEGBIG & 0xffff0000) | 0x3f80}",
                f"s_not_b64 exec, s[{sLO}:{sLO+1}]",
                f"v_mov_b32 v{reg+1}, s{T0}",
                "s_mov_b64 exec, -1"]

    def tile_step(t, n, pf, koff, voff, cmask, extra_k=None, hooks=None, midprio=None):
        a("s_waitcnt lgkmcnt(0)")
        rd = []
        if t + 2 < n:
            rd += kreads(t & 1, koff(t + 2), restore=(t >= n))
        if t < n:
            rd += vreads(t & 1, voff(t))
        if extra_k and t + 2 < n:
            rd += extra_k(t & 1, t + 2)
        q = qk(S[(t + 1) & 3], (t + 1) & 1, pf(t + 1), cmask(t + 1)) if t + 1 < n else []
        pp = pv(S[(t - 1) & 3], (t - 1) & 1, OO[pf(t - 1)]) if t >= 1 else []
        e = exps(S[t & 3]) if t < n else []
        if t == 0:
            a("s_nop 10")
        ms = q + pp
        if not e:
            a(["s_nop 1"] + ms)
            return
        order = OPT.get("ord", 1)
        if len(ms) == 4:
            ms = [ms, [q[0], pp[0], q[1], pp[1]], [q[0], pp[0], pp[1], q[1]]][order]
        rpos, roff = divmod(OPT.get("rp", 2), 10)
        hooks = hooks or []
        hp = [i for i in range(4) if i != rpos]
        nh = (len(hooks) + 2) // 3
        for i in range(4):
            if i == 2 and midprio is not None:
                a(f"s_setprio {midprio}")
            if i < len(ms):
                a(ms[i])
            if i == rpos:
                a(e[4 * i:4 * i + roff] + rd + e[4 * i + roff:4 * i + 4])
            else:
                a(e[4 * i:4 * i + 2])
                k = hp.index(i)
                for hk in hooks[k * nh:(k + 1) * nh]:
                    a(hk)
                a(e[4 * i + 2:4 * i + 4])
        if order == 2 and len(ms) == 4:
            a("s_nop 4")

    def wo_piece(p, q0, ldsbase, cond=None):
        o = [f"s_add_u32 m0, s{sW1K}, {ldsbase & 0xffffffff}",
             f"s_add_u32 s{T1}, s{sKVS}, {WP_OFF + p*819200 + q0*1024}",
             f"buffer_load_dwordx4 v{VDMA}, {srd(SWS)}, s{T1} offen {HS} lds"]
        if cond is not None:
            lab = a.uniq("L_wo")
            o = [f"s_cmp_ge_u32 s{sWAVE}, {cond}", f"s_cbranch_scc1 {lab}"] + o + [f"{lab}:"]
        return o

    def wo_half(p, kh):
        return [wo_piece(p, 50 * kh + 8 * k, WOL[p][kh] + 8 * k * 1024, cond=2 if k == 6 else None) for k in range(7)]

    def wo_base():
        return [f"s_mul_i32 s{sKVS}, s{sQB}, 102400", f"s_add_u32 s{sKVS}, s{sKVS}, s{sW1K}"]

    def o_base(p=0):
        return [f"s_lshl_b32 s{T0}, s{sHEAD}, 1",
                f"s_lshr_b32 s{T1}, s{sCW}, 1",
                f"s_add_u32 s{T0}, s{T0}, s{T1}",
                f"s_mul_i32 s{T0}, s{T0}, 40960",
                f"s_and_b32 s{T1}, s{sCW}, 1",
                f"s_lshl_b32 s{T1}, s{T1}, 8",
                f"s_add_u32 s{T0}, s{T0}, s{T1}",
                f"s_add_u32 s{T0}, s{T0}, {OW_OFF + p*64*40960}",
                f"s_lshr_b32 s{T1}, s{sWAVE}, 2",
                f"s_lshl_b32 s{sEK}, s{T1}, 12",
                f"s_add_u32 s{sEK}, s{sEK}, s{T0}",
                f"s_add_u32 s{sEK}, s{sEK}, {16*2048}",
                f"s_lshl_b32 s{T1}, s{T1}, 14",
                f"s_add_u32 s{sEQ}, s{T0}, s{T1}"]

    def o_load(p, i):
        d = OFB[p] + 4 * i
        if i < 8:
            return [f"s_add_u32 s{T5}, s{sEQ}, {p*64*40960 + (i>>1)*4096}",
                    f"buffer_load_dwordx4 {vr(d,4)}, v{VOF}, {srd(SWS)}, s{T5} offen offset:{(i&1)*2048} {HS}"]
        return [f"s_add_u32 s{T5}, s{sEK}, {p*64*40960}",
                f"buffer_load_dwordx4 {vr(d,4)}, v{VOF}, {srd(SWS)}, s{T5} offen offset:{(i-8)*2048} {HS}"]

    lab = a.uniq("L_xl")
    a(f"s_cmp_ge_u32 s{sWAVE}, 4\ns_cbranch_scc1 {lab}")
    a("s_waitcnt vmcnt(0)\nv_mov_b32 v10, 0\nv_mov_b32 v11, 1\ns_mov_b64 exec, 1\nds_add_u32 v10, v11 offset:4\ns_mov_b64 exec, -1")
    a(f"s_branch {lab}_j")
    a.label(lab)
    lds_wait(8, 4)
    a.label(lab + "_j")
    lds_wait(4, 4)
    stamp(a, 5)
    stamp(a, 13, 1)
    a(f"""
    s_mul_i32 s{T0}, s{sWAVE}, 1280
    s_add_u32 s{T0}, s{T0}, {QB_OFF}
    v_add_u32 v15, s{T0}, v{VQ}
    ds_read2st64_b64 {vr(QL[1],4)}, v15 offset0:0 offset1:1
    ds_read_b64 {vr(QH[1],2)}, v15 offset:1024
    s_add_u32 s{sKVS}, s{sKVB}, s{sW1K}
    """)
    a(kreads(0, 0))
    a(kreads(1, 2560))
    a("s_waitcnt lgkmcnt(4)")
    scale_q(1)
    a("s_waitcnt lgkmcnt(2)")
    a(qk(S[0], 0, 1))
    a("s_nop 15")
    a(maxtree(19, S[0], True))
    set_m(1, 19)
    a("s_nop 1")
    a(qk(S[0], 0, 1))

    def dmaY(j):
        lab = a.uniq("L_dy")
        return [f"s_cmp_lt_u32 s{sWAVE}, 4", f"s_cbranch_scc1 {lab}",
                f"s_add_u32 m0, s{sW1K}, {CH[1] + j*4096 - 4096}",
                f"s_add_u32 s{T2}, s{sKVS}, {32*163840 + 40960 + j*4096 - 4096}",
                f"buffer_load_dwordx4 v{VDMA}, {srd(SWS)}, s{T2} offen {HS} lds", f"{lab}:"]

    def dma3(r):
        return [f"s_add_u32 m0, s{sW1K}, {CH[3] + r*8192}",
                f"s_add_u32 s{T2}, s{sKVS}, {32*163840 + 3*40960 + r*8192}",
                f"buffer_load_dwordx4 v{VDMA}, {srd(SWS)}, s{T2} offen {HS} lds"]

    def dmaA(j):
        out = [f"s_mul_i32 s{T1}, s{sQB}, 20480", f"s_sub_u32 s{T1}, s{T1}, 20480"]
        if j < 2:
            out += [f"s_max_i32 s{T1}, s{T1}, 0"]
        elif j == 2:
            out += [f"s_max_i32 s{T0}, s{T1}, 0", f"s_cmp_lt_u32 s{sWAVE}, 4", f"s_cselect_b32 s{T1}, s{T0}, s{T1}"]
        out += [f"s_add_u32 s{T1}, s{T1}, s{sKVS}", f"s_add_u32 m0, s{sW1K}, {A_OFF + j*8192}",
                f"s_add_u32 s{T1}, s{T1}, {j*8192}",
                f"buffer_load_dwordx4 v{VDMA}, {srd(SWS)}, s{T1} offen {HS} lds"]
        return out

    qa_loads = [f"s_mul_i32 s{T0}, s{sHEAD}, 81920",
                f"s_mul_i32 s{T2}, s{sQT}, 1280",
                f"s_add_u32 s{T0}, s{T0}, s{T2}",
                f"buffer_load_dwordx2 {vr(QL[0],2)}, v{VQ}, {srd(SWS)}, s{T0} offen {HS}",
                f"buffer_load_dwordx2 {vr(QL[0]+2,2)}, v{VQ}, {srd(SWS)}, s{T0} offen offset:512 {HS}",
                f"s_mov_b64 exec, s[{sLO}:{sLO+1}]",
                f"buffer_load_dwordx2 {vr(QH[0],2)}, v{VQ}, {srd(SWS)}, s{T0} offen offset:1024 {HS}",
                "s_mov_b64 exec, -1"]
    assert QW_OFF == 0

    NT = 73
    PC = 64 + OPT.get("pc", 6)
    EB = OPT.get("eb", 65)
    h1 = wo_half(1, 1)
    nper = -(-10 // (NT - PC))
    ST0, ST1, KLT, KHT, VKT = 148, 164, 180, 184, 186
    sq = cap(scale_q, 0)

    def kt_reads(u):
        return [f"ds_read2st64_b64 {vr(KLT,4)}, v{VKT} offset0:{5*u} offset1:{5*u+1}",
                f"s_mov_b64 exec, s[{sLO}:{sLO+1}]",
                f"ds_read_b64 {vr(KHT,2)}, v{VKT} offset:{u*2560+1024}",
                "s_mov_b64 exec, -1"]
    adelta = [f"s_mul_i32 s{T0}, s{sWAVE}, 2560", f"s_add_u32 s{T0}, s{T0}, {A_OFF - CH[3]}"]
    xh = {50: [sq[:10], sq[10:20]], 51: [sq[20:30], sq[30:]],
          52: [adelta + [f"v_add_u32 v{VKT}, s{T0}, v{VK}", f"v_mov_b32 v{KHT}, 0x3f803f80"] + pen(KHT, 7), kt_reads(7)],
          53: [[mfma32(ST0, KLT, QL[0], None)], [mfma32k8(ST0, KHT, QH[0], ST0)] + kt_reads(8) + pen(KHT, 8)],
          54: [[mfma32(ST1, KLT, QL[0], MD)], [mfma32k8(ST1, KHT, QH[0], ST1)]],
          55: [maxtree(19, ST0, True)[:4], maxtree(19, ST0, True)[4:]],
          56: [maxtree(19, ST1, False)[:4], maxtree(19, ST1, False)[4:]],
          57: [cap(set_m, 0, 19)[:5], cap(set_m, 0, 19)[5:]],
          64: [[], cap(zero_o, 0)[:8], cap(zero_o, 0)[8:]]}
    ep = cap(epilogue, 1)
    xh[EB] = [cap(finite, 1)[:7], cap(finite, 1)[7:] + ["s_cmp_lg_u64 vcc, 0", f"s_cselect_b32 s{sBAD}, 1, 0"], ep[:21]]
    xh[EB + 1] = [ep[21:33] + [f"s_cmp_lg_u32 s{sBAD}, 0", "s_cbranch_scc1 L_nostB"] + ep[33:] + ["L_nostB:"]]
    assert ep[33].startswith("buffer_store") and ep[20].startswith("v_mul")
    pf = lambda u: 1 if u < 64 else 0
    off = lambda u: (u & 15) * 2560 if u < 64 else (u - 64) * 2560
    cm = lambda u: MF if u == 64 else (MD if u == 72 else None)
    for t in range(NT + 1):
        hooks = []
        if t < 10:
            hooks = [dmaY(2 * t), dmaY(2 * t + 1)]
        if t == 14:
            a("s_waitcnt vmcnt(0) lgkmcnt(0)\ns_barrier")
            stamp(a, 6)
            cstamp(a, 1)
            stamp(a, 14, 1)
            publish(0, 0, 4)
        if 14 <= t < 19:
            hooks = [dma3(t - 14)]
        if t == 26:
            hooks = [[f"v_mov_b32 v{20+i}, -1" for i in range(6)], o_addr(0), o_store()]
        if t == 27:
            hooks = [o_addr(1), o_store()]
        if t == 29:
            poll_issue(0, 0)
        if t == 33:
            poll_check(0, 0)
            a("s_waitcnt vmcnt(0) lgkmcnt(0)\ns_barrier")
            publish(1, 0, 1)
            stamp(a, 7)
            cstamp(a, 3)
        if 33 <= t < 38:
            hooks = [dmaA(t - 33)]
        if t == 38:
            hooks = [qa_loads]
        if t == 40:
            hooks = [wo_base(), o_base()]
        if 41 <= t < 46:
            k = t - 41
            hooks = [[f"s_add_u32 s{T1}, s{sKVS}, {WP_OFF + k*8192}",
                      f"buffer_load_dwordx4 {vr(ST[k],4)}, v{VDMA}, {srd(SWS)}, s{T1} offen {HS}"]]
        if 56 <= t < 59:
            k = t - 56
            hooks = [wo_piece(0, 80 + 8 * k, WOL[0][0] + (80 + 8 * k) * 1024, cond=4 if k == 2 else None)]
        if t == 46:
            poll_issue(1, 0)
        if t == 49:
            poll_check(1, 0)
            a("s_waitcnt vmcnt(0) lgkmcnt(0)\ns_barrier")
            stamp(a, 8)
            cstamp(a, 5)
        if 49 <= t < 56:
            hooks = [wo_half(1, 0)[t - 49]]
        if t == 67:
            a("s_barrier")
            stamp(a, 10)
            cstamp(a, 7)
            stamp(a, 3, 2)
        if 67 <= t < 70:
            hooks = h1[3 * (t - 67):3 * (t - 66)]
        if PC <= t < NT:
            hooks = [o_load(1, i) for i in range((t - PC) * nper, min(10, (t - PC + 1) * nper))]
        if t in xh:
            hx = xh[t] + [[]] * (3 - len(xh[t]))
            assert len(hooks) <= 1
            hooks = [hx[0], hx[1], hx[2] + (hooks[0] if hooks else [])]
        if t < 14:
            a("s_nop 0")
        else:
            t0 = max(x for x in (14, 33, 49, 67) if x <= t)
            a(f"s_setprio {3 - (t - t0) % 4}")
        if t + 2 in (16, 32, 48):
            c = (t + 2) // 16
            a(f"v_add_u32 v{VK}, {(CH[c] - CH[c - 1]) & 0xffffffff}, v{VK}")
        if t in (16, 32, 48):
            c = t // 16
            a(f"v_add_u32 v{VV}, {(CH[c] - CH[c - 1]) & 0xffffffff}, v{VV}")
        if t == 62:
            a(f"v_mov_b32 v{VK}, v{VKT}")
        if t == 64:
            stamp(a, 9)
            stamp(a, 1, 2)
            a(adelta + [f"v_add_u32 v{VV}, s{T0}, v{VV}"])
        tile_step(t, NT, pf, off, off, cm, extra_k=lambda b, u: pen(KH[b], u - 64) if u >= 64 else [], hooks=hooks)
    a("s_setprio 0")
    a(f"s_cmp_lg_u32 s{sBAD}, 0")
    a("s_cbranch_scc1 L_slowB")
    a.label("L_chkA")
    a("s_nop 8")
    finite(0)
    a("s_nop 4")
    a("s_cbranch_vccnz L_slowA")
    a.label("L_epiA")
    epilogue(0)
    stamp(a, 11)
    stamp(a, 7, 2)

    GA = [148, 208]
    GW = lambda buf, ct: 72 + buf * 20 + 4 * ct
    FT = 168
    retries = []

    def g3reads(i):
        return [f"ds_read_b128 {vr(GW(i%3,ct),4)}, v{VW3} offset:{(i*5+ct)*1024}" for ct in range(5)]

    def part_out(p):
        a(f"v_add_u32 v10, {SCR[p]}, v{VRED}")
        for ct in range(5):
            a(f"ds_write_b128 v10, {vr(GA[p]+4*ct,4)} offset:{ct*1024}")

    def finish(p):
        a(f"v_add_u32 v10, {SCR[p]}, v{VRED}")
        for ct in range(5):
            a(f"ds_read_b128 {vr(FT+4*ct,4)}, v10 offset:{ct*1024}")
        a(f"""
        s_lshl_b32 s{T0}, s{sHEAD}, 2
        s_add_u32 s{T0}, s{T0}, s{sCW}
        s_mul_i32 s{T0}, s{T0}, {16*2560}
        s_mul_i32 s{T1}, s{sQB}, 160
        s_add_u32 s{T0}, s{T0}, s{T1}
        s_add_u32 s{T0}, s{T0}, {p*1280}
        """)
        for g, (lo, hi) in enumerate(((0, 8), (8, 16), (16, 20))):
            a(f"s_waitcnt lgkmcnt({[3, 1, 0][g]})")
            for i in range(lo, hi):
                a(f"v_add_f32 v{FT+i}, v{FT+i}, v{GA[p]+i}")
            for i in range(lo // 2, hi // 2):
                a(f"v_cvt_pk_bf16_f32 v{FT+20+i}, v{FT+2*i}, v{FT+2*i+1}")
            a(f"buffer_store_dwordx{4 if g < 2 else 2} {vr(FT+20+4*g, 4 if g < 2 else 2)}, v{VOUT if g < 2 else VOUT2}, {srd(SOUT)}, s{T0} offen offset:{64*g} {OUTP}")

    def o_check(p, i, n):
        d = OFB[p] + 4 * i
        a(f"""
        s_waitcnt vmcnt({n})
        L_gw{p}_{i}:
        v_max3_u32 v10, v{d}, v{d+1}, v{d+2}
        v_max_u32 v10, v10, v{d+3}
        v_cmp_eq_u32 vcc, -1, v10
        s_cbranch_vccnz L_gr{p}_{i}
        L_gc{p}_{i}:
        """)
        retries.append((p, i))

    a(f"s_mov_b32 s{sCNT}, 0x20000")
    OI = OPT.get("oi", 8)
    a("s_waitcnt vmcnt(12)")
    a("s_barrier")
    stamp(a, 8, 2)
    a(g3reads(0))
    a(g3reads(1))
    young = 2
    nd = no = 0
    for i in range(10):
        o_check(1, i, 9 - i + young)
        a(f"s_waitcnt lgkmcnt({5 if i < 9 else 0})")
        rs = g3reads(i + 2) if i < 8 else []
        for ct in range(5):
            a(mfma16(GA[1] + 4 * ct, GW(i % 3, ct), OFB[1] + 4 * i, None if i == 0 else GA[1] + 4 * ct))
            a(rs[ct:ct + 1])
        if nd < 5:
            a(wo_piece(0, 40 + 8 * nd, WOL[0][0] + (40 + 8 * nd) * 1024))
            nd += 1; young += 1
        if i >= OI:
            n = -(-10 // (10 - OI))
            for k in range(no, min(10, no + n)):
                a(o_load(0, k)); young += 1
            no = min(10, no + n)
    assert OI >= 5
    for k in range(no, 10):
        a(o_load(0, k))
    a("s_barrier")
    stamp(a, 9, 2)
    a(f"s_add_u32 s{T0}, s{sW1K}, {WOL[0][0]}\nv_add_u32 v11, s{T0}, v{VDMA}")
    MRG = OPT.get("mrg", 0)
    if not MRG:
        a(f"s_cmp_lt_u32 s{sWAVE}, 4\ns_cbranch_scc1 L_pb1")
        part_out(1)
        a.label("L_pb1")
    for k in range(5):
        a(f"ds_write_b128 v11, {vr(ST[k],4)} offset:{k*8192}")
    a(f"""
    s_cmp_lt_u32 s{sWAVE}, 4
    s_mov_b32 s{T0}, {(WOL[0][1] - WOL[1][1]) & 0xffffffff}
    s_cselect_b32 s{T0}, {(WOL[0][0] - WOL[1][0]) & 0xffffffff}, s{T0}
    v_add_u32 v{VW3}, s{T0}, v{VW3}
    s_waitcnt lgkmcnt(0) vmcnt(10)
    s_barrier
    """)
    if not MRG:
        a(f"s_cmp_ge_u32 s{sWAVE}, 4\ns_cbranch_scc1 L_pb2")
        finish(1)
        a.label("L_pb2")
    stamp(a, 12)
    stamp(a, 13)
    stamp(a, 12, 2)
    a(g3reads(0))
    a(g3reads(1))
    for i in range(10):
        d = OFB[0] + 4 * i
        o_check(0, i, 9 - i)
        a(f"s_waitcnt lgkmcnt({5 if i < 9 else 0})")
        rs = g3reads(i + 2) if i < 8 else []
        for ct in range(5):
            a(mfma16(GA[0] + 4 * ct, GW(i % 3, ct), d, None if i == 0 else GA[0] + 4 * ct))
            a(rs[ct:ct + 1])
    stamp(a, 13, 2)
    if MRG:
        a(f"s_cmp_ge_u32 s{sWAVE}, 4\ns_cbranch_scc1 L_fin1")
        a("s_nop 2")
        part_out(0)
        a("s_waitcnt lgkmcnt(0)\ns_barrier")
        finish(1)
        a("s_branch L_fin2")
        a.label("L_fin1")
        part_out(1)
        a("s_waitcnt lgkmcnt(0)\ns_barrier")
        finish(0)
        a.label("L_fin2")
    else:
        a(f"s_cmp_lt_u32 s{sWAVE}, 4\ns_cbranch_scc1 L_fin1")
        a("s_nop 2")
        part_out(0)
        a("s_waitcnt lgkmcnt(0)\ns_barrier\ns_branch L_fin2")
        a.label("L_fin1")
        a("s_barrier")
        finish(0)
        a.label("L_fin2")
    lab = only_wave(4)
    a(f"""
    s_cmp_lg_u32 s2, 0
    s_cbranch_scc1 {lab}
    v_mov_b32 v1, s{sTAG}
    s_mov_b32 s{T4}, {EP_OFF}
    s_mov_b64 exec, 1
    buffer_store_dword v1, off, {srd(SWS)}, s{T4} sc1
    s_mov_b64 exec, -1
    """)
    a.label(lab)
    if STAMPS:
        a("s_waitcnt vmcnt(0)")
        stamp(a, 14)
        stamp(a, 14, 2)
        a("s_waitcnt lgkmcnt(0)")
        a(f"""
        s_lshl_b32 s{T0}, s2, 4
        s_add_u32 s{T0}, s{T0}, s{sWAVE}
        s_lshl_b32 s{T0}, s{T0}, 7
        s_add_u32 s{T0}, s{T0}, {STAMP_OFF}
        s_mov_b64 exec, 1
        """)
        for i in range(15):
            a(f"v_mov_b32 v1, s{SB+2*i}")
            a(f"buffer_store_dword v1, off, {srd(SWS)}, s{T0} offset:{4*i}")
    if OPT.get("pad"):
        if "padwg" in OPT:
            a(f"s_cmp_lg_u32 s2, {OPT['padwg']}\ns_cbranch_scc1 L_done")
        a(f"""
        L_pad:
        s_memrealtime s[{T0}:{T1}]
        s_waitcnt lgkmcnt(0)
        s_sub_u32 s{T0}, s{T0}, s{SB}
        s_cmp_lt_u32 s{T0}, {OPT["pad"]}
        s_cbranch_scc1 L_pad
        """)
    a.label("L_done")
    a("s_endpgm")

    for p, i in retries:
        a.label(f"L_gr{p}_{i}")
        a(f"""
        s_sub_u32 s{sCNT}, s{sCNT}, 1
        s_cmp_eq_u32 s{sCNT}, 0
        s_cbranch_scc1 L_gq{p}_{i}
        s_waitcnt vmcnt(0)
        s_sleep 1
        """)
        for k in range(i, 10):
            a(o_load(p, k))
        a(f"s_waitcnt vmcnt({9 - i if p == 0 else 0})")
        a(f"s_branch L_gw{p}_{i}")
        a.label(f"L_gq{p}_{i}")
        a(f"s_mov_b32 s{sCNT}, 1\ns_branch L_gc{p}_{i}")

    a.label("L_slowA")
    MF2 = OO[1]
    cmA = lambda u: MD if u == 8 else (MF2 if u == 0 else None)
    penA = lambda b, u: pen(KH[b], u)
    for i in range(16):
        a(f"v_sub_f32 v{MF2+i}, {NEGBIG}, v{MD+i}")
    reset_m(0)
    a(kreads(0, 0))
    a(penA(0, 0))
    for u in range(9):
        if u + 1 < 9:
            a(kreads((u + 1) & 1, (u + 1) * 2560))
            a("s_waitcnt lgkmcnt(2)")
        else:
            a("s_waitcnt lgkmcnt(0)")
        a("s_nop 0")
        a(qk(S[u & 3], u & 1, 0, cmA(u)))
        if u + 1 < 9:
            a(penA((u + 1) & 1, u + 1))
        if u >= 2:
            a(maxtree(19, S[(u - 2) & 3], u == 2))
    a(kreads(0, 0))
    a(kreads(1, 2560))
    zero_o(0)
    for u in (7, 8):
        a(maxtree(19, S[u & 3], False))
    set_m(0, 19)
    a(penA(0, 0) + penA(1, 1))
    a("s_waitcnt lgkmcnt(2)\ns_nop 0")
    a(qk(S[0], 0, 0, cmA(0)))
    for t in range(10):
        a("s_nop 0")
        tile_step(t, 9, lambda u: 0, lambda u: u * 2560, lambda u: u * 2560, cmA, extra_k=penA)
    a("s_nop 15\ns_branch L_epiA")

    a.label("L_idle")
    a(late)
    G3D = [128, 129, 130, 131, 132]
    for i in range(5):
        a([f"v_add_u32 v10, {64*i}, v0",
           "v_mul_u32_u24 v11, 6554, v10",
           "v_lshrrev_b32 v11, 16, v11",
           "v_mul_u32_u24 v12, 10, v11",
           "v_sub_u32 v12, v10, v12",
           "v_mul_u32_u24 v11, 1280, v11",
           f"v_lshl_add_u32 v{G3D[i]}, v12, 4, v11"])
    a(f"""
    s_cmp_ge_u32 s{sTB}, 8
    s_cselect_b32 s{SX[0]}, s{SWO[1]}, s{SWO[0]}
    s_cselect_b32 s{SX[0]+1}, s{SWO[1]+1}, s{SWO[0]+1}
    s_mov_b32 s{SX[0]+2}, {WO_BYTES}
    s_and_b32 s{T0}, s{sTB}, 7
    s_mul_i32 s{T0}, s{T0}, 160
    s_mul_i32 s{T1}, s{sWAVE}, {32*1280}
    s_add_u32 s{T0}, s{T0}, s{T1}
    s_mul_i32 s{T1}, s{sWAVE}, 5120
    """)
    for rnd in range(3):
        lab = a.uniq("L_id")
        if rnd == 2:
            a(f"s_cmp_ge_u32 s{sWAVE}, 4\ns_cbranch_scc1 {lab}")
        a(f"s_add_u32 s{T2}, s{T0}, {rnd*256*1280}")
        for i in range(5):
            a(f"s_add_u32 m0, s{T1}, {K + rnd*8*5120 + i*1024}\ns_nop 0")
            a(f"buffer_load_dwordx4 v{G3D[i]}, {srd(SX[0])}, s{T2} offen lds")
        a.label(lab)
    a(f"""
    v_lshrrev_b32 v10, 5, v0
    v_bfe_u32 v11, v0, 4, 1
    v_bfe_u32 v12, v0, 2, 2
    v_and_b32 v13, 3, v0
    v_lshlrev_b32 v136, 3, v13
    v_lshlrev_b32 v13, 4, v13
    v_add_u32 v13, {K}, v13
    v_mul_u32_u24 v14, 20, v10
    v_lshl_add_u32 v14, v11, 2, v14
    v_add_u32 v14, v14, v12
    v_mul_u32_u24 v14, 160, v14
    v_add_u32 v133, v14, v13
    v_mul_u32_u24 v14, 80, v10
    v_mul_u32_u24 v11, 20, v11
    v_add3_u32 v14, v14, v11, v12
    v_add_u32 v14, 16, v14
    v_mul_u32_u24 v14, 160, v14
    v_add_u32 v134, v14, v13
    s_mul_i32 s{T0}, s{sWAVE}, 6400
    v_add_u32 v133, s{T0}, v133
    s_mul_i32 s{T0}, s{sWAVE}, 25600
    v_add_u32 v134, s{T0}, v134
    v_lshlrev_b32 v135, 4, v0
    v_sub_u32 v137, v133, v136
    v_sub_u32 v138, v134, v136
    v_mov_b32 v10, 0
    v_mov_b32 v11, 0
    v_mov_b32 v12, 4
    ds_write_b64 v10, v[10:11]
    ds_write_b32 v10, v12 offset:8
    s_mul_i32 s{T0}, s{sTB}, 102400
    s_add_u32 s{T0}, s{T0}, {WP_OFF}
    s_mul_i32 s{T1}, s{sWAVE}, 5120
    s_add_u32 s{T1}, s{T1}, s{T0}              ; kh=0, i=w
    s_lshr_b32 s{T2}, s{sWAVE}, 1
    s_mul_i32 s{T2}, s{T2}, 51200
    s_and_b32 s{T3}, s{sWAVE}, 1
    s_mul_i32 s{T3}, s{T3}, 5120
    s_add_u32 s{T2}, s{T2}, s{T3}
    s_add_u32 s{T2}, s{T2}, s{T0}
    s_add_u32 s{T2}, s{T2}, {8*5120}
    s_waitcnt vmcnt(0) lgkmcnt(0)
    s_barrier
    """)
    for rnd in range(3):
        lab = a.uniq("L_id")
        if rnd == 2:
            a(f"s_cmp_ge_u32 s{sWAVE}, 4\ns_cbranch_scc1 {lab}")
        base = 64 + rnd * 20
        for ct in range(5):
            for rd in range(2):
                if rnd < 2:
                    a(f"ds_read_b64_tr_b16 {vr(base+4*ct+2*rd,2)}, v{133 if ct < 4 else 137} offset:{rnd*51200 + rd*1280 + (ct>>1)*64 + (ct&1)*8}")
                else:
                    a(f"ds_read_b64_tr_b16 {vr(base+4*ct+2*rd,2)}, v{134 if ct < 4 else 138} offset:{rd*6400 + (ct>>1)*64 + (ct&1)*8}")
        a("s_waitcnt lgkmcnt(0)")
        if rnd == 1:
            a(f"s_add_u32 s{T1}, s{T1}, 51200")
        sreg = T1 if rnd < 2 else T2
        for ct in range(5):
            if ct == 4:
                a(f"s_add_u32 s{T3}, s{sreg}, 4096")
                a(f"buffer_store_dwordx4 {vr(base+4*ct,4)}, v135, {srd(SWS)}, s{T3} offen {HST}")
            else:
                a(f"buffer_store_dwordx4 {vr(base+4*ct,4)}, v135, {srd(SWS)}, s{sreg} offen offset:{ct*1024} {HST}")
        a.label(lab)
    a("s_waitcnt vmcnt(0)\ns_barrier")
    publish(0, 0, 1)
    publish(0, 1, 2)
    a(f"v_add_u32 v{VPUB}, 4, v{VPUB}")
    publish(0, 0, 3)
    publish(0, 1, 4)
    poll_issue(0, 1)
    poll_check(0, 1, sleep=OPT.get('isl', 32))
    a("s_barrier")
    a(f"s_cmp_ge_u32 s{sWAVE}, 4")
    a("s_cbranch_scc1 L_attn_setup")
    a("s_branch L_x1")

    a.label("L_slowB")
    reset_m(1)
    a(f"""
    v_mov_b32 v19, 0xff800000
    s_mul_i32 s{T0}, s{sWAVE}, 2560
    s_add_u32 s{T0}, s{T0}, {A_OFF}
    v_subrev_u32 v10, s{T0}, v{VK}
    v_subrev_u32 v12, s{T0}, v{VV}
    s_not_b64 exec, s[{sLO}:{sLO+1}]
    v_mov_b32 v{KH[0]+1}, 0x3f80
    s_mov_b64 exec, -1
    s_add_u32 s{T0}, s{sKVB}, {32*163840}
    s_add_u32 s{T1}, s{T0}, 163840
    """)

    def gk():
        return f"""
        buffer_load_dwordx2 {vr(KL[0],2)}, v10, {srd(SWS)}, s{T0} offen {HS}
        buffer_load_dwordx2 {vr(KL[0]+2,2)}, v10, {srd(SWS)}, s{T0} offen offset:512 {HS}
        s_mov_b64 exec, s[{sLO}:{sLO+1}]
        buffer_load_dwordx2 {vr(KH[0],2)}, v10, {srd(SWS)}, s{T0} offen offset:1024 {HS}
        """
    a.label("L_slow1")
    a(gk())
    a("s_mov_b64 exec, -1\ns_waitcnt vmcnt(0)")
    a(qk(S[0], 0, 1))
    a("s_nop 15")
    a(maxtree(19, S[0], False))
    a(f"""
    s_add_u32 s{T0}, s{T0}, 2560
    s_cmp_lt_u32 s{T0}, s{T1}
    s_cbranch_scc1 L_slow1
    """)
    set_m(1, 19)
    zero_o(1)
    a(f"s_sub_u32 s{T0}, s{T1}, 163840")
    a.label("L_slow2")
    a(gk())
    a(f"""
    s_mov_b64 exec, s[{sVM}:{sVM+1}]
    buffer_load_dwordx4 {vr(VF[0],4)}, v12, {srd(SWS)}, s{T0} offen {HS}
    buffer_load_dwordx4 {vr(VF[0]+4,4)}, v12, {srd(SWS)}, s{T0} offen offset:640 {HS}
    s_mov_b64 exec, -1
    s_waitcnt vmcnt(0)
    """)
    a(qk(S[0], 0, 1))
    a("s_nop 15")
    a(exps(S[0]))
    a("s_nop 1")
    a(pv(S[0], 0, OO[1]))
    a(f"""
    s_add_u32 s{T0}, s{T0}, 2560
    s_cmp_lt_u32 s{T0}, s{T1}
    s_cbranch_scc1 L_slow2
    s_nop 15
    """)
    epilogue(1)
    a("s_branch L_chkA")


def main(out):
    global HST, HS, OUTP
    OUTP = ["", "nt", "sc1", "sc0 sc1"][OPT.get("outp", 0)]
    HST = ["sc1", "", "sc0 sc1", "nt", "sc1 nt"][OPT.get("st", 0)]
    HS = ["sc1", ""][OPT.get("ld", 0)]
    a = Asm()
    hdr = open(f"cdna_kernels/{NAME}.s.ref").read().split("\n")
    keep = [l for l in hdr if l.startswith(";") and "@launch" not in l]
    for l in keep:
        a.raw(l)
    a.raw(f"; @launch grid=(256,1,1) block=(512,1,1) lds={LDS_BYTES}")
    a.raw('.amdgcn_target "amdgcn-amd-amdhsa--gfx950"')
    a.raw(".text")
    gen(a)
    a.raw('.section .rodata,"a"')
    a.raw(".p2align 6")
    a.raw(f""".amdhsa_kernel {KNAME}
  .amdhsa_next_free_vgpr 256
  .amdhsa_next_free_sgpr {102 if STAMPS else 72}
  .amdhsa_accum_offset 256
  .amdhsa_group_segment_fixed_size 0
  .amdhsa_kernarg_size 72
  .amdhsa_user_sgpr_count 2
  .amdhsa_user_sgpr_kernarg_segment_ptr 1
  .amdhsa_system_sgpr_workgroup_id_x 1
.end_amdhsa_kernel""")
    open(out, "w").write(a.text())


if __name__ == "__main__":
    if "--stamps" in sys.argv:
        STAMPS = True
        sys.argv.remove("--stamps")
    for x in list(sys.argv):
        if x.startswith("-D"):
            k, _, v = x[2:].partition("=")
            OPT[k] = int(v) if v else 1
            sys.argv.remove(x)
    main(sys.argv[1] if len(sys.argv) > 1 else f"cdna_kernels/{NAME}.s")
```

```python
import sys, struct, re

NAME = "concat_heads__sliding_block__softmax_full_mha__prompt"
KNAME = NAME + "_kernel"

QW_OFF = 0x000000
KV_OFF = 0x500000
OW_OFF = 0xF00000
FL_OFF = 0x1400000
EP_OFF = 0x1409000
WP_OFF = 0x1500000
WS_USED = 0x1700000
X_BYTES = 2048 * 640 * 2
WQKV_BYTES = 640 * 1920 * 2
WO_BYTES = 640 * 640 * 2
OUT_BYTES = 2048 * 1280 * 2
SRD3 = 0x00020000
LDS_BYTES = 163840
K = 1024

STAMPS = False
STAMP_OFF = 0x2000000
SB = 72
OPT = {}


def f32bits(x):
    return struct.unpack("<I", struct.pack("<f", x))[0]


NEGBIG = f32bits(-1e30)
CSCALE = f32bits((20 ** -0.5) * 1.4426950408889634)


class Asm:
    def __init__(self):
        self.l = []
        self.n = 0

    def __call__(self, s):
        if isinstance(s, (list, tuple)):
            for x in s:
                self(x)
            return
        for line in s.strip("\n").split("\n"):
            line = line.strip()
            if line:
                self.l.append(("" if line.endswith(":") else "    ") + line)

    def label(self, s):
        self.l.append(s + ":")

    def raw(self, s):
        self.l.append(s)

    def uniq(self, p):
        self.n += 1
        return f"{p}_{self.n}"

    def text(self):
        return "\n".join(self.l) + "\n"


def vr(a, n):
    return f"v[{a}:{a + n - 1}]"


def mfma32(d, a_, b_, c):
    cs = vr(c, 16) if c is not None else "0"
    return f"v_mfma_f32_32x32x16_bf16 {vr(d,16)}, {vr(a_,4)}, {vr(b_,4)}, {cs}"


def mfma32k8(d, a_, b_, c):
    return f"v_mfma_f32_32x32x8_bf16 {vr(d,16)}, {vr(a_,2)}, {vr(b_,2)}, {vr(c,16)}"


def mfma16(d, a_, b_, c):
    cs = vr(c, 4) if c is not None else "0"
    return f"v_mfma_f32_16x16x32_bf16 {vr(d,4)}, {vr(a_,4)}, {vr(b_,4)}, {cs}"


def cstamp(a, i):
    if STAMPS and OPT.get("sm", 0) == 3:
        a(f"s_memrealtime s[{SB+2*i}:{SB+2*i+1}]")
        a(f"s_memtime s[{SB+2*i+2}:{SB+2*i+3}]")


def stamp(a, i, mode=0):
    if STAMPS and (i == 0 or OPT.get("sm", 0) == mode):
        a(f"s_memrealtime s[{SB+2*i}:{SB+2*i+1}]")


SX = [4, 12]
SW = [8, 16]
SWS, SDBG = 20, 24
SWO = [28, 32]
SOUT = 36
sWAVE, sCW, sTB, sM, sKS, sXB, sWB, sLP = 40, 41, 42, 43, 44, 45, 46, 47
T0, T1, T2, T3, T4, T5 = 48, 49, 50, 51, 52, 53
sEQ, sEK = 54, 55
sHEAD, sQB, sQT, sW1K = 56, 57, 58, 59
sVM, sLO = 60, 62
sCS, sONE, sKVB, sXCD, sJ, sROT = 64, 65, 66, 67, 68, 69
sCNT = 70
sKVS = 71
sTAG = 3
sBAD = 47


def srd(n):
    return f"s[{n}:{n+3}]"


HS = "sc1"
HST = "sc1"
OUTP = ""


def gen(a):
    a.raw(f".globl {KNAME}\n.p2align 8\n.type {KNAME},@function")
    a.label(KNAME)
    a(f"""
    s_cmp_ge_u32 s2, 256
    s_cbranch_scc1 L_done
    """)
    stamp(a, 0)
    a(f"""
    s_load_dwordx2 s[{SX[1]}:{SX[1]+1}], s[0:1], 24
    s_load_dwordx2 s[{SW[1]}:{SW[1]+1}], s[0:1], 32
    s_load_dwordx2 s[{SX[0]}:{SX[0]+1}], s[0:1], 0
    s_load_dwordx2 s[{SW[0]}:{SW[0]+1}], s[0:1], 8
    s_load_dwordx2 s[{SWO[0]}:{SWO[0]+1}], s[0:1], 16
    s_load_dwordx2 s[{SWO[1]}:{SWO[1]+1}], s[0:1], 40
    s_load_dwordx2 s[{SOUT}:{SOUT+1}], s[0:1], 48
    s_load_dwordx2 s[{SWS}:{SWS+1}], s[0:1], 64
    v_lshrrev_b32 v1, 6, v0
    v_and_b32 v0, 63, v0
    s_and_b32 s{sXCD}, s2, 7
    v_readfirstlane_b32 s{sWAVE}, v1
    s_lshr_b32 s{sJ}, s2, 3
    s_and_b32 s{T0}, s{sXCD}, 1
    s_lshl_b32 s{T0}, s{T0}, 3
    s_and_b32 s{T1}, s{sJ}, 7
    s_add_u32 s{sTB}, s{T0}, s{T1}
    s_lshr_b32 s{T0}, s{sXCD}, 1
    s_lshl_b32 s{T0}, s{T0}, 2
    s_lshr_b32 s{T2}, s{sJ}, 3
    s_add_u32 s{sM}, s{T0}, s{T2}
    """)
    rm = OPT.get("rot", 2)
    if rm == 0:
        a(f"s_mov_b32 s{sROT}, 0")
    elif rm == 1:
        a(f"""
        s_mul_i32 s{T2}, s{T2}, 3
        s_add_u32 s{sROT}, s{T1}, s{T2}
        s_cmp_ge_u32 s{sROT}, 10
        s_cselect_b32 s{T0}, 10, 0
        s_sub_u32 s{sROT}, s{sROT}, s{T0}
        """)
    elif rm == 2:
        a(f"""
        s_add_u32 s{sROT}, s{T1}, s{T2}
        s_and_b32 s{sROT}, s{sROT}, 1
        s_mul_i32 s{sROT}, s{sROT}, 5
        """)
    else:
        a(f"""
        s_add_u32 s{sROT}, s{T1}, s{T2}
        s_and_b32 s{sROT}, s{sROT}, 3
        s_mul_i32 s{sROT}, s{sROT}, 5
        s_lshr_b32 s{sROT}, s{sROT}, 1
        """)
    a(f"""
    s_and_b32 s{sCW}, s{sWAVE}, 3
    """)
    for n, size in ((SX[0], X_BYTES), (SW[0], WQKV_BYTES), (SX[1], X_BYTES), (SW[1], WQKV_BYTES), (SWO[0], WO_BYTES),
                    (SWO[1], WO_BYTES), (SOUT, OUT_BYTES), (SWS, 0x4000000 if STAMPS else WS_USED)):
        a(f"s_mov_b32 s{n+2}, {size}\ns_mov_b32 s{n+3}, {SRD3}")
    a(f"""
    v_lshrrev_b32 v6, 3, v0
    v_mul_u32_u24 v2, 1280, v6
    v_lshrrev_b32 v7, 4, v0
    v_and_b32 v8, 7, v0
    v_xor_b32 v8, v8, v7
    v_lshl_add_u32 v2, v8, 4, v2
    v_xor_b32 v3, 64, v2
    v_mul_u32_u24 v9, 3840, v7
    v_and_b32 v8, 15, v0
    v_lshlrev_b32 v10, 1, v7
    v_xor_b32 v8, v8, v10
    """)
    a("""
    v_lshl_add_u32 v4, v8, 4, v9
    v_xor_b32 v5, 128, v4
    """)
    a(f"""
    s_lshl_b32 s{T0}, s{sTB}, 7
    s_lshl_b32 s{T1}, s{sCW}, 5
    s_add_u32 s{T0}, s{T0}, s{T1}
    s_mul_i32 s{sXB}, s{T0}, 1280
    s_mul_i32 s{sWB}, s{sCW}, {16*3840}
    s_lshl_b32 s{T0}, s{sM}, 8
    s_add_u32 s{sWB}, s{sWB}, s{T0}
    s_lshl_b32 s{sLP}, s{sCW}, 12
    s_lshr_b32 s{T3}, s{sWAVE}, 2              ; group
    s_add_u32 s{sKS}, s{sROT}, s{T3}
    s_cmp_eq_u32 s{sKS}, 10
    s_cselect_b32 s{sKS}, 0, s{sKS}
    s_lshl_b32 s{T3}, s{T3}, 15
    s_add_u32 s{T3}, s{T3}, s{sLP}
    """)

    def dma_stage(n, sLP=sLP):
        p = 1 - n // 10
        slot = (n % 5) * 32 * K
        out = [f"s_lshl_b32 s{T0}, s{sKS}, 7",
               f"s_add_u32 s{T0}, s{T0}, s{sXB}",
               f"s_mul_i32 s{T1}, s{sKS}, {64*3840}",
               f"s_add_u32 s{T1}, s{T1}, s{sWB}"]
        for i in range(4):
            out += [f"s_add_u32 m0, s{sLP}, {slot + i*1024}",
                    f"s_add_u32 s{T2}, s{T0}, {i*8*1280}",
                    f"buffer_load_dwordx4 v{2 + (i & 1)}, {srd(SX[p])}, s{T2} offen lds",
                    f"s_add_u32 m0, s{sLP}, {slot + 16*K + i*1024}",
                    f"s_add_u32 s{T2}, s{T1}, {i*4*3840}",
                    f"buffer_load_dwordx4 v{4 + (i >> 1)}, {srd(SW[p])}, s{T2} offen lds"]
        out += [f"s_add_u32 s{sKS}, s{sKS}, 1",
                f"s_cmp_eq_u32 s{sKS}, 10",
                f"s_cselect_b32 s{sKS}, 0, s{sKS}"]
        return out

    a("s_waitcnt lgkmcnt(0)")
    a(f"s_cmp_eq_u32 s{sM}, 15")
    a("s_cbranch_scc1 L_setup1")
    a(dma_stage(0, T3))
    a(f"s_cmp_lt_u32 s{sWAVE}, 4")
    a("s_cbranch_scc1 L_setup1")
    for n in (2, 3):
        a(dma_stage(n))
    a.label("L_setup1")
    a(f"""
    s_lshl_b32 s{T0}, s{sXCD}, 2
    s_and_b32 s{T1}, s{sJ}, 3
    s_add_u32 s{sHEAD}, s{T0}, s{T1}
    s_lshr_b32 s{sQB}, s{sJ}, 2
    s_add_u32 s{T0}, s{SWS}, {EP_OFF}
    s_addc_u32 s{T1}, s{SWS+1}, 0
    s_load_dword s{sTAG}, s[{T0}:{T1}], 0
    """)
    marks = [len(a.l)]
    S = [64, 80, 96, 112]
    O = 208
    OO = [48, 208]
    KL, KH = [128, 132], [240, 242]
    QL, QH = [136, 142], [140, 146]
    VF = [224, 232]
    MD, MF = 32, 48
    VK, VV, VIDX, VDMA, VQ, VOF, VW3, VOUT, VRED = 244, 245, 246, 247, 248, 249, 250, 251, 252
    VOUT2 = 253
    QB_OFF = 1 * K
    CH = [11 * K, 51 * K, 91 * K, 1 * K]
    A_OFF = 50 * K
    WOL = [[10 * K, 60 * K], [110 * K, 0]]
    SCR = [130 * K, 110 * K]
    OFB = [32, 148]
    ST = [188, 192, 196, 28, 4]

    a(f"""
    v_lshlrev_b32 v{VDMA}, 4, v0
    v_lshrrev_b32 v11, 5, v0               ; h
    v_and_b32 v12, 31, v0                  ; i
    v_and_b32 v13, 3, v12
    v_lshrrev_b32 v14, 3, v12
    v_lshl_add_u32 v13, v14, 2, v13        ; kappa & 15
    v_bfe_u32 v14, v12, 2, 1               ; kappa >> 4
    v_lshlrev_b32 v15, 4, v13
    v_lshl_add_u32 v16, v14, 3, v15
    v_lshl_add_u32 v16, v11, 8, v16
    v_add_u32 v{VK}, {CH[0]}, v16
    v_mul_u32_u24 v16, 20, v11
    v_add_u32 v16, v16, v12
    v_lshlrev_b32 v16, 4, v16
    v_add_u32 v{VV}, {CH[0] + 1280}, v16
    v_and_b32 v15, 15, v12
    v_lshlrev_b32 v15, 4, v15
    v_lshrrev_b32 v16, 4, v12
    v_lshl_add_u32 v15, v16, 3, v15        ; (q&15)*16 + (q>>4)*8
    v_lshl_add_u32 v{VQ}, v11, 8, v15
    v_mov_b32 v{VIDX}, 0xdddddddd
    v_and_b32 v17, 0x1b, v12
    v_cmp_eq_u32 vcc, 24, v17
    v_mov_b32 v16, 0x3f803f80
    s_nop 0
    v_cndmask_b32 v17, 0, v16, vcc
    """)
    for b in range(2):
        a(f"v_mov_b32 v{KH[b]}, 0x3f803f80")
        a(f"v_mov_b32 v{KH[b]+1}, 0x00003f80")
        for i in range(8):
            a(f"v_mov_b32 v{VF[b]+i}, v17")

    def mask_setup():
        out = [["v_lshrrev_b32 v13, 5, v0", "v_lshlrev_b32 v13, 4, v13", "v_and_b32 v12, 31, v0",
                "v_sub_u32 v13, v12, v13", f"v_mov_b32 v14, {NEGBIG}"]]
        for r in range(0, 16, 2):
            out.append([f"v_cmp_le_i32 s[{T0}:{T0+1}], {r}, v13",
                        f"v_cmp_le_i32 s[{T2}:{T2+1}], {r+1}, v13",
                        "s_nop 0",
                        f"v_cndmask_b32 v{MD+r}, v14, 0, s[{T0}:{T0+1}]",
                        f"v_cndmask_b32 v{MF+r}, 0, v14, s[{T0}:{T0+1}]",
                        f"v_cndmask_b32 v{MD+r+1}, v14, 0, s[{T2}:{T2+1}]",
                        f"v_cndmask_b32 v{MF+r+1}, 0, v14, s[{T2}:{T2+1}]"])
        return out

    def g3_setup():
        return [["v_lshrrev_b32 v10, 4, v0",
                 "v_lshlrev_b32 v11, 9, v10",
                 "v_and_b32 v12, 15, v0",
                 f"v_lshl_add_u32 v{VOF}, v12, 4, v11"],
                ["v_mul_u32_u24 v12, 2560, v12",
                 f"v_lshl_add_u32 v{VOUT}, v10, 4, v12",
                 f"v_lshl_add_u32 v{VOUT2}, v10, 3, v12"],
                [f"s_cmp_lt_u32 s{sWAVE}, 4",
                 f"s_cselect_b32 s{T0}, {WOL[1][0]}, {WOL[1][1]}",
                 f"v_add_u32 v{VW3}, s{T0}, v{VDMA}",
                 f"s_mul_i32 s{T0}, s{sCW}, 5120",
                 f"v_add_u32 v{VRED}, s{T0}, v{VDMA}"]]

    marks.append(len(a.l))
    a(mask_setup()[:5])
    marks.append(len(a.l))
    a(mask_setup()[5:])
    marks.append(len(a.l))
    a(g3_setup())
    for i in range(16):
        a(f"v_mov_b32 v{O+i}, 0")
    marks.append(len(a.l))

    XA = lambda sg, kk: 14 + sg * 6 + kk
    WA = lambda sg, ct: 14 + sg * 6 + 2 + ct
    a(f"""
    v_and_b32 v6, 15, v0
    v_lshrrev_b32 v8, 1, v6                ; f(row)
    v_xor_b32 v8, v8, v7                   ; o ^ f
    v_lshlrev_b32 v8, 4, v8
    v_lshl_add_u32 v8, v6, 7, v8
    s_lshr_b32 s{T0}, s{sCW}, 1
    s_lshl_b32 s{T0}, s{T0}, 13
    v_add_u32 v{XA(0,0)}, s{T0}, v8
    v_xor_b32 v{XA(0,1)}, 64, v{XA(0,0)}
    v_lshrrev_b32 v8, 2, v0
    v_and_b32 v8, 3, v8                    ; r
    v_lshl_add_u32 v9, v7, 3, v8           ; krow = 8o + r
    v_lshlrev_b32 v9, 8, v9
    v_add_u32 v9, {16*K}, v9
    v_and_b32 v10, 1, v7
    v_lshl_add_u32 v10, v10, 2, v8
    v_lshlrev_b32 v10, 1, v10              ; sigma
    v_bfe_u32 v11, v0, 1, 1                ; c>>1
    s_and_b32 s{T0}, s{sCW}, 1
    s_lshl_b32 s{T0}, s{T0}, 3
    v_or_b32 v11, s{T0}, v11               ; 8cg + (c>>1)
    v_xor_b32 v11, v11, v10
    v_lshl_add_u32 v11, v11, 4, v9
    v_and_b32 v12, 1, v0
    v_lshl_add_u32 v{WA(0,0)}, v12, 3, v11
    v_xor_b32 v{WA(0,1)}, 32, v{WA(0,0)}
    v_xor_b32 v{WA(0,2)}, 64, v{WA(0,0)}
    v_xor_b32 v{WA(0,3)}, 96, v{WA(0,0)}
    """)
    for sg in (1, 2):
        for i in range(6):
            a(f"v_add_u32 v{14+sg*6+i}, {sg*64*K}, v{14+i}")
    marks.append(len(a.l))
    EA = [196, 197, 198, 199]
    a(f"""
    s_lshl_b32 s{T0}, s{sTB}, 2
    s_and_b32 s{T1}, s{sCW}, 2
    s_add_u32 s{T0}, s{T0}, s{T1}
    s_lshr_b32 s{T1}, s{sWAVE}, 2
    s_xor_b32 s{T1}, s{T1}, 1
    s_lshl_b32 s{T1}, s{T1}, 11                ; p*32*64
    s_add_u32 s{T0}, s{T0}, s{T1}
    s_cmp_ge_u32 s{sM}, 5
    s_cselect_b32 s{T2}, 1, 0                  ; K or V
    s_lshl_b32 s{T3}, 1280, s{T2}
    s_mul_i32 s{sEQ}, s{T0}, s{T3}
    s_mul_i32 s{T0}, s{T2}, {KV_OFF}
    s_add_u32 s{sEQ}, s{sEQ}, s{T0}
    s_add_u32 s{sEK}, s{sEQ}, s{T3}
    s_lshl_b32 s{T3}, s{T3}, 6
    s_and_b32 s{T1}, s{sCW}, 1
    s_cmp_ge_u32 s{sM}, 10
    s_cbranch_scc1 L_ea1
    s_mul_i32 s{T0}, s{T2}, 5
    s_sub_u32 s{T0}, s{sM}, s{T0}
    s_lshl_b32 s{T0}, s{T0}, 5
    s_lshl_b32 s{T1}, s{T1}, 4
    s_add_u32 s{T0}, s{T0}, s{T1}
    v_add_u32 v8, s{T0}, v7
    v_lshlrev_b32 v10, 4, v6
    """)
    for ct in range(4):
        a(f"""
        v_add_u32 v9, {4*ct}, v8
        v_mul_u32_u24 v11, 205, v9
        v_lshrrev_b32 v11, 10, v11
        v_mul_u32_u24 v12, 5, v11
        v_sub_u32 v12, v9, v12
        v_mul_lo_u32 v11, v11, s{T3}
        v_lshl_add_u32 v12, v12, 8, v10
        v_add_u32 v{EA[ct]}, v11, v12
        """)
    a(f"""
    s_branch L_ea2
    L_ea1:
    s_sub_u32 s{T0}, s{sM}, 10
    s_lshl_b32 s{T0}, s{T0}, 7
    s_lshl_b32 s{T1}, s{T1}, 6
    s_add_u32 s{T0}, s{T0}, s{T1}
    v_add_u32 v8, s{T0}, v6
    v_mul_u32_u24 v10, 320, v7
    v_add_u32 v10, 1280, v10
    """)
    for ct in range(4):
        a(f"""
        v_add_u32 v9, {16*ct}, v8
        v_mul_u32_u24 v11, 3277, v9
        v_lshrrev_b32 v11, 16, v11
        v_mul_u32_u24 v12, 20, v11
        v_sub_u32 v12, v9, v12
        v_mul_lo_u32 v11, v11, s{T3}
        v_lshl_add_u32 v12, v12, 4, v10
        v_add_u32 v{EA[ct]}, v11, v12
        """)
    a.label("L_ea2")
    marks.append(len(a.l))
    a(f"""
    s_lshl_b32 s{sQT}, s{sQB}, 3
    s_add_u32 s{sQT}, s{sQT}, s{sWAVE}
    s_lshl_b32 s{sW1K}, s{sWAVE}, 10
    s_mov_b32 s{sVM}, 0x000fffff
    s_mov_b32 s{sVM+1}, 0x000fffff
    s_mov_b32 s{sLO}, -1
    s_mov_b32 s{sLO+1}, 0
    s_mov_b32 s{sCS}, {CSCALE}
    s_mov_b32 s{sONE}, 0x3f80
    s_mul_i32 s{sKVB}, s{sHEAD}, 163840
    s_add_u32 s{sKVB}, s{sKVB}, {KV_OFF}
    """)

    ACC = lambda ct, tt: 128 + (ct * 4 + tt) * 4
    XF = lambda buf, tt: 64 + buf * 32 + tt * 4
    WF = lambda buf, ct: 64 + buf * 32 + 16 + ct * 4

    def g1reads(i, kk):
        slot = i % 5
        sg, so = slot >> 1, (slot & 1) * 32 * K
        r = []
        for q in range(4):
            r.append(f"ds_read_b128 {vr(XF(kk,q),4)}, v{XA(sg,kk)} offset:{so + q*2048}")
            for rd in range(2):
                r.append(f"ds_read_b64_tr_b16 {vr(WF(kk,q)+2*rd,2)}, v{WA(sg,q)} offset:{so + kk*8192 + rd*1024}")
        return r

    VPG, VPUB, VPO, VPD = 202, 203, 206, 204
    sPM, sSTR = SDBG, SDBG + 2

    def only_wave(wave):
        lab = a.uniq("L_w")
        a(f"s_cmp_lg_u32 s{sWAVE}, {wave}")
        a(f"s_cbranch_scc1 {lab}")
        return lab

    def publish(kind, p, wave):
        lab = only_wave(wave)
        if kind == 0:
            a(f"""
            v_mov_b32 v1, s{sTAG}
            s_mov_b32 s{T4}, {FL_OFF + p*16384}
            s_mov_b64 exec, s[{sPM}:{sPM+1}]
            buffer_store_dword v1, v{VPUB}, {srd(SWS)}, s{T4} offen sc1
            s_mov_b64 exec, -1
            """)
        else:
            a(f"""
            s_lshl_b32 s{T4}, s{sQB}, 8
            s_lshl_b32 s{T5}, s{sHEAD}, 2
            s_add_u32 s{T4}, s{T4}, s{T5}
            s_add_u32 s{T4}, s{T4}, {FL_OFF + 32768}
            v_mov_b32 v1, s{sTAG}
            s_mov_b64 exec, 1
            buffer_store_dword v1, off, {srd(SWS)}, s{T4} sc1
            s_mov_b64 exec, -1
            """)
        a.label(lab)

    def poll_loads(kind, p):
        if kind == 0:
            return [f"s_mov_b32 s{T3}, {FL_OFF + p*16384}",
                    f"buffer_load_dwordx2 {vr(VPD,2)}, v{VPG}, {srd(SWS)}, s{T3} offen sc1"]
        return [f"s_mov_b32 s{T3}, {FL_OFF + 32768}",
                f"buffer_load_dword v{VPD}, v{VPO}, {srd(SWS)}, s{T3} offen sc1"]

    def poll_issue(kind, p, wave=0):
        lab = only_wave(wave) if wave is not None else a.uniq("L_w")
        a(poll_loads(kind, p))
        a.label(lab)

    def poll_check(kind, p, sleep=8, wave=0, first=0):
        lab = only_wave(wave) if wave is not None else a.uniq("L_w")
        loop = a.uniq("L_spin")
        a(f"s_mov_b32 s{sCNT}, 0x20000")
        a(f"s_waitcnt vmcnt({first})")
        a.label(loop)
        a(f"v_cmp_eq_u32 vcc, s{sTAG}, v{VPD}")
        if kind == 0:
            a(f"v_cmp_eq_u32 s[{T0}:{T0+1}], s{sTAG}, v{VPD+1}")
            a(f"s_orn2_b64 s[{T0}:{T0+1}], s[{T0}:{T0+1}], s[{sSTR}:{sSTR+1}]\ns_and_b64 vcc, vcc, s[{T0}:{T0+1}]")
        a(f"""
        s_cmp_eq_u64 vcc, -1
        s_cbranch_scc1 {lab}
        s_sleep {sleep}
        """)
        a(poll_loads(kind, p))
        a(f"""
        s_sub_u32 s{sCNT}, s{sCNT}, 1
        s_cmp_lg_u32 s{sCNT}, 0
        s_waitcnt vmcnt(0)
        s_cbranch_scc1 {loop}
        """)
        a.label(lab)

    a(f"""
    s_mul_i32 s{T0}, s{sHEAD}, 20
    s_add_u32 s{T1}, s{T0}, 19
    s_lshr_b32 s{T0}, s{T0}, 7
    s_lshr_b32 s{T1}, s{T1}, 7
    s_cmp_lg_u32 s{T0}, s{T1}
    s_cselect_b64 s[{sSTR}:{sSTR+1}], -1, 0
    s_lshl_b32 s{T0}, s{sHEAD}, 9
    v_lshl_add_u32 v{VPG}, v0, 3, s{T0}
    s_mul_i32 s{T0}, s{sM}, 52
    s_lshr_b32 s{T0}, s{T0}, 8                 ; type
    s_mul_i32 s{T1}, s{T0}, 5
    s_sub_u32 s{T1}, s{sM}, s{T1}
    s_mul_i32 s{T2}, s{T1}, 205
    s_lshr_b32 s{T2}, s{T2}, 5
    s_cmp_eq_u32 s{T1}, 2
    s_cselect_b32 s{sPM}, 0x80, 0
    s_or_b32 s{sPM}, s{sPM}, 0x7f
    s_cmp_eq_u32 s{sM}, 15
    s_cselect_b32 s{sPM}, -1, s{sPM}
    s_mov_b32 s{sPM+1}, 0
    s_lshl_b32 s{T2}, s{T2}, 9
    s_lshl_b32 s{T0}, s{T0}, 7
    s_add_u32 s{T2}, s{T2}, s{T0}
    s_lshl_b32 s{T0}, s{sTB}, 3
    s_add_u32 s{T2}, s{T2}, s{T0}
    v_lshl_add_u32 v{VPUB}, v0, 9, s{T2}
    s_min_u32 s{T1}, s{T1}, 1
    s_lshl_b32 s{T1}, s{T1}, 2
    s_mov_b64 exec, 1
    v_add_u32 v{VPUB}, s{T1}, v{VPUB}
    s_mov_b64 exec, -1
    v_and_b32 v8, 31, v0
    v_lshlrev_b32 v8, 2, v8
    s_lshl_b32 s{T0}, s{sXCD}, 8
    v_add_u32 v{VPO}, s{T0}, v8
    """)
    a(f"s_waitcnt lgkmcnt(0)\ns_add_u32 s{sTAG}, s{sTAG}, 0x9e3779b1")
    marks.append(len(a.l))
    late = a.l[marks[0]:marks[4]]
    del a.l[marks[0]:marks[4]]
    late = [re.sub(r"\bv(1[4-7])\b", lambda m: "v%d" % (int(m.group(1)) - 8), x.split(";")[0]).strip() for x in late]
    a(f"s_cmp_eq_u32 s{sM}, 15")
    a("s_cbranch_scc1 L_idle")

    a(f"s_cmp_lt_u32 s{sWAVE}, 4")
    a("s_cbranch_scc1 L_xstart")
    for n in range(11):
        a("s_waitcnt vmcnt(24)")
        a("s_barrier")
        if n <= 9:
            a(dma_stage(n + 4))
    a("s_setprio 3")
    a("s_branch L_compute")
    a.label("L_xstart")
    a(f"""
    s_add_u32 s{sKS}, s{sKS}, 3
    s_cmp_ge_u32 s{sKS}, 10
    s_cselect_b32 s{T0}, 10, 0
    s_sub_u32 s{sKS}, s{sKS}, s{T0}
    s_waitcnt vmcnt(0)
    s_barrier
    """)
    a.label("L_compute")
    stamp(a, 1)
    stamp(a, 1, 1)
    a(g1reads(0, 0))
    a(f"s_cmp_ge_u32 s{sM}, 10")
    a("s_cbranch_scc1 L_comp1")

    def interleave(ms, rs, step):
        per = -(-len(late) // 18)
        ex = late[step * per:(step + 1) * per] if step < 18 else []
        out = []
        ri = xi = 0
        for i, m in enumerate(ms):
            out.append(m)
            if ri < len(rs):
                out.append(rs[ri]); ri += 1
            if i >= 16 - per and xi < len(ex):
                out.append(ex[xi]); xi += 1
        out += rs[ri:] + ex[xi:]
        return out

    for cg in range(2):
        if cg == 1:
            a.label("L_comp1")

        def mm(i, kk):
            out = []
            for ct in range(4):
                for tt in range(4):
                    c = None if (i == 0 and kk == 0) else ACC(ct, tt)
                    if cg == 1:
                        out.append(mfma16(ACC(ct, tt), XF(kk, tt), WF(kk, ct), c))
                    else:
                        out.append(mfma16(ACC(ct, tt), WF(kk, ct), XF(kk, tt), c))
            return out
        for i in range(10):
            a("s_waitcnt lgkmcnt(0)")
            a(interleave(mm(i, 0), g1reads(i, 1), 2 * i))
            a({0: "s_waitcnt lgkmcnt(0) vmcnt(8)", 2: "s_waitcnt lgkmcnt(0) vmcnt(0)"}.get(i, "s_waitcnt lgkmcnt(0)"))
            if i in (0, 2, 4, 5, 6):
                a("s_barrier")
            else:
                lab = a.uniq("L_nb")
                a(f"s_cmp_ge_u32 s{sWAVE}, 4\ns_cbranch_scc1 {lab}\ns_barrier\n{lab}:")
            if i in (1, 3, 5, 7, 9):
                stamp(a, 2 + i // 2, 1)
            a(interleave(mm(i, 1), g1reads(i + 1, 0) if i < 9 else [], 2 * i + 1))
        if cg == 0:
            a("s_branch L_g1epi")
    a.label("L_g1epi")
    stamp(a, 2)
    EP = OPT.get("ep", 2)
    lab = a.uniq("L_noload")
    a(f"s_cmp_ge_u32 s{sWAVE}, 4")
    a(f"s_cbranch_scc1 {lab}")
    if EP >= 1:
        a(dma_stage(14))
    if EP >= 2:
        a("s_barrier")
        a(dma_stage(15))
    a(f"s_branch {lab}_j")
    a.label(lab)
    a("v_mov_b32 v10, 0\nv_mov_b32 v11, 1\ns_mov_b64 exec, 1\nds_add_u32 v10, v11 offset:8\ns_mov_b64 exec, -1")
    a.label(lab + "_j")
    stamp(a, 7, 1)
    a("s_nop 7")
    t = 64
    for ct in range(4):
        for tp in range(2):
            for h in range(2):
                s_ = ACC(ct, 2 * tp + h)
                a(f"v_cvt_pk_bf16_f32 v{t+2*h}, v{s_}, v{s_+1}")
                a(f"v_cvt_pk_bf16_f32 v{t+2*h+1}, v{s_+2}, v{s_+3}")
            a(f"buffer_store_dwordx4 {vr(t,4)}, v{EA[ct]}, {srd(SWS)}, s{sEQ if tp == 0 else sEK} offen {HST}")
            t += 4
    a.label("L_g1tail")
    stamp(a, 8, 1)

    def lds_wait(off, val, sleep=1):
        loop = a.uniq("L_lw")
        a(f"s_mov_b32 s{sCNT}, 0x400000\nv_mov_b32 v10, 0")
        a.label(loop)
        a(f"""
        ds_read_b32 v11, v10 offset:{off}
        s_waitcnt lgkmcnt(0)
        v_readfirstlane_b32 s{T0}, v11
        s_cmp_eq_u32 s{T0}, {val}
        s_cbranch_scc1 {loop}_ok
        s_sleep {sleep}
        s_sub_u32 s{sCNT}, s{sCNT}, 1
        s_cmp_lg_u32 s{sCNT}, 0
        s_cbranch_scc1 {loop}
        {loop}_ok:
        """)

    a(f"s_cmp_ge_u32 s{sWAVE}, 4")
    a("s_cbranch_scc1 L_attn_setup")
    assert EP == 2
    PB = OPT.get("pb", 1)
    a(f"s_waitcnt vmcnt({0 if PB else 16})")
    a("s_barrier")
    stamp(a, 9, 1)
    if PB:
        publish(0, 1, 1)
    a(dma_stage(16))
    a(dma_stage(17))
    a("s_waitcnt vmcnt(8)")
    stamp(a, 10, 1)
    a("s_barrier")
    if not PB:
        publish(0, 1, 1)
    a(dma_stage(18))
    a("s_barrier")
    a(dma_stage(19))
    if OPT.get("ppre", 1):
        poll_issue(0, 1)
    a("v_mov_b32 v10, 0\nv_mov_b32 v11, 0\nds_write_b64 v10, v[10:11]\nds_write_b32 v10, v10 offset:8")
    if OPT.get("ppre", 1):
        lab = a.uniq("L_w0")
        a(f"s_waitcnt vmcnt(1) lgkmcnt(0)\ns_cmp_eq_u32 s{sWAVE}, 0\ns_cbranch_scc1 {lab}\ns_waitcnt vmcnt(0)\n{lab}:")
    else:
        a("s_waitcnt vmcnt(0) lgkmcnt(0)")
    a("s_barrier")
    stamp(a, 3)
    stamp(a, 11, 1)
    if not OPT.get("ppre", 1):
        poll_issue(0, 1)
    poll_check(0, 1, sleep=4)
    lab = only_wave(0)
    a("v_mov_b32 v10, 0\nv_mov_b32 v11, 1\nds_write_b32 v10, v11")
    a.label(lab)
    lds_wait(0, 1)

    def first_loads(part):
        a(f"s_add_u32 s{T0}, s{sKVB}, s{sW1K}")
        if part == 0:
            a(f"""
            s_mul_i32 s{T3}, s{sHEAD}, 81920
            s_mul_i32 s{T4}, s{sQB}, 10240
            s_add_u32 s{T3}, s{T3}, s{T4}
            s_add_u32 s{T3}, s{T3}, s{sW1K}
            """)
            for j in range(3):
                lab = None
                if j == 2:
                    lab = a.uniq("L_q")
                    a(f"s_cmp_ge_u32 s{sWAVE}, 2\ns_cbranch_scc1 {lab}")
                a(f"""
                s_add_u32 m0, s{sW1K}, {QB_OFF + j*4096}
                s_add_u32 s{T2}, s{T3}, {QW_OFF + 32*81920 + j*4096}
                buffer_load_dwordx4 v{VDMA}, {srd(SWS)}, s{T2} offen {HS} lds
                """)
                if lab:
                    a.label(lab)
        for j in range(5 * part, 5 * part + 5):
            a(f"""
            s_add_u32 m0, s{sW1K}, {CH[0] + j*4096}
            s_add_u32 s{T2}, s{T0}, {32*163840 + j*4096}
            buffer_load_dwordx4 v{VDMA}, {srd(SWS)}, s{T2} offen {HS} lds
            """)
    a.label("L_x1")
    first_loads(0)
    a.label("L_x2")
    stamp(a, 4)
    stamp(a, 12, 1)
    first_loads(1)
    a.label("L_attn_setup")
    def scale_q(p):
        for r in [QL[p] + i for i in range(4)] + [QH[p], QH[p] + 1]:
            a(f"""
            v_lshlrev_b32 v15, 16, v{r}
            v_and_b32 v16, 0xffff0000, v{r}
            v_mul_f32 v15, s{sCS}, v15
            v_mul_f32 v16, s{sCS}, v16
            v_cvt_pk_bf16_f32 v{r}, v15, v16
            """)
        reset_m(p)

    def reset_m(p):
        a(f"""
        v_mov_b32 v15, 0x3f800000
        v_cndmask_b32 v{QH[p]}, 0, v{QH[p]}, s[{sLO}:{sLO+1}]
        v_cndmask_b32 v{QH[p]+1}, v15, v{QH[p]+1}, s[{sLO}:{sLO+1}]
        """)

    def set_m(p, M):
        a(f"""
        v_mov_b32 v15, v{M}
        s_nop 1
        v_permlane32_swap_b32 v15, v{M}
        s_nop 1
        v_max_f32 v15, v15, v{M}
        v_sub_f32 v15, 0, v15                  ; -m
        v_and_b32 v16, 0xffff0000, v15         ; hi
        v_sub_f32 v17, v15, v16
        v_and_b32 v18, 0xffff0000, v17         ; mid
        v_sub_f32 v17, v17, v18                ; lo
        v_lshrrev_b32 v16, 16, v16
        v_or_b32 v16, v16, v18
        v_lshrrev_b32 v17, 16, v17
        v_or_b32 v17, 0x3f800000, v17
        v_cndmask_b32 v{QH[p]}, v16, v{QH[p]}, s[{sLO}:{sLO+1}]
        v_cndmask_b32 v{QH[p]+1}, v17, v{QH[p]+1}, s[{sLO}:{sLO+1}]
        """)

    def kreads(buf, off, restore=True):
        return [f"ds_read2st64_b64 {vr(KL[buf],4)}, v{VK} offset0:{off//512} offset1:{off//512+1}",
                f"s_mov_b64 exec, s[{sLO}:{sLO+1}]",
                f"ds_read_b64 {vr(KH[buf],2)}, v{VK} offset:{off+1024}"] + (["s_mov_b64 exec, -1"] if restore else [])

    def vreads(buf, off):
        return [f"s_mov_b64 exec, s[{sVM}:{sVM+1}]",
                f"ds_read_b128 {vr(VF[buf],4)}, v{VV} offset:{off}",
                f"ds_read_b128 {vr(VF[buf]+4,4)}, v{VV} offset:{off+640}",
                "s_mov_b64 exec, -1"]

    def qk(Sd, buf, p, C=None):
        return [mfma32(Sd, KL[buf], QL[p], C), mfma32k8(Sd, KH[buf], QH[p], Sd)]

    def pv(Ss, buf, o):
        return [f"v_smfmac_f32_32x32x32_bf16 {vr(o,16)}, {vr(VF[buf],4)}, {vr(Ss,8)}, v{VIDX}",
                f"v_smfmac_f32_32x32x32_bf16 {vr(o,16)}, {vr(VF[buf]+4,4)}, {vr(Ss+8,8)}, v{VIDX}"]

    def cap(fn, *args):
        keep, a.l = a.l, []
        fn(*args)
        out, a.l = [x.strip() for x in a.l], keep
        return out

    def exps(Ss):
        return [f"v_exp_f32 v{Ss+i}, v{Ss+i}" for i in range(16)]

    def maxtree(M, Ss, first):
        out = []
        if first:
            out.append(f"v_max3_f32 v{M}, v{Ss}, v{Ss+1}, v{Ss+2}")
            rest = list(range(3, 16))
        else:
            rest = list(range(16))
        while len(rest) >= 2:
            out.append(f"v_max3_f32 v{M}, v{M}, v{Ss+rest[0]}, v{Ss+rest[1]}")
            rest = rest[2:]
        if rest:
            out.append(f"v_max_f32 v{M}, v{M}, v{Ss+rest[0]}")
        return out

    def zero_o(p):
        for i in range(16):
            a(f"v_mov_b32 v{OO[p]+i}, 0")

    def o_addr(p):
        return f"""
        s_mul_i32 s{T0}, s{sQT}, 40960
        s_add_u32 s{T0}, s{T0}, {OW_OFF + p*64*40960}
        s_lshl_b32 s{T1}, s{sHEAD}, 10
        s_add_u32 s{T1}, s{T1}, s{T0}
        s_lshr_b32 s{T2}, s{sHEAD}, 2
        s_add_u32 s{T2}, s{T2}, 32
        s_lshl_b32 s{T2}, s{T2}, 10
        s_add_u32 s{T2}, s{T2}, s{T0}
        s_and_b32 s{T3}, s{sHEAD}, 1
        s_lshl_b32 s{T3}, s{T3}, 9
        s_add_u32 s{T2}, s{T2}, s{T3}
        s_and_b32 s{T3}, s{sHEAD}, 2
        s_lshl_b32 s{T3}, s{T3}, 2
        s_add_u32 s{T2}, s{T2}, s{T3}
        """

    def o_store():
        return f"""
        buffer_store_dwordx4 v[20:23], v{VDMA}, {srd(SWS)}, s{T1} offen {HST}
        s_mov_b64 exec, s[{sLO}:{sLO+1}]
        buffer_store_dwordx2 v[24:25], v{VDMA}, {srd(SWS)}, s{T2} offen {HST}
        s_mov_b64 exec, -1
        """

    def epilogue(p):
        o = OO[p]
        a(f"v_rcp_f32 v15, v{o+12}")
        a(o_addr(p))
        for i in range(12):
            a(f"v_mul_f32 v{o+i}, v{o+i}, v15")
        for i in range(6):
            a(f"v_cvt_pk_bf16_f32 v{20+i}, v{o+2*i}, v{o+2*i+1}")
        a(o_store())

    def finite(p):
        a(f"v_mul_f32 v15, 0, v{OO[p]}")
        for i in range(1, 13):
            a(f"v_fmac_f32 v15, 0, v{OO[p]+i}")
        a("v_cmp_u_f32 vcc, v15, v15")

    def pen(reg, u):
        return [f"s_cmp_ge_u32 s{sQT}, {8 - u}",
                f"s_cselect_b32 s{T0}, s{sONE}, {(NEGBIG & 0xffff0000) | 0x3f80}",
                f"s_not_b64 exec, s[{sLO}:{sLO+1}]",
                f"v_mov_b32 v{reg+1}, s{T0}",
                "s_mov_b64 exec, -1"]

    def tile_step(t, n, pf, koff, voff, cmask, extra_k=None, hooks=None, midprio=None):
        a("s_waitcnt lgkmcnt(0)")
        rd = []
        if t + 2 < n:
            rd += kreads(t & 1, koff(t + 2), restore=(t >= n))
        if t < n:
            rd += vreads(t & 1, voff(t))
        if extra_k and t + 2 < n:
            rd += extra_k(t & 1, t + 2)
        q = qk(S[(t + 1) & 3], (t + 1) & 1, pf(t + 1), cmask(t + 1)) if t + 1 < n else []
        pp = pv(S[(t - 1) & 3], (t - 1) & 1, OO[pf(t - 1)]) if t >= 1 else []
        e = exps(S[t & 3]) if t < n else []
        if t == 0:
            a("s_nop 10")
        ms = q + pp
        if not e:
            a(["s_nop 1"] + ms)
            return
        order = OPT.get("ord", 1)
        if len(ms) == 4:
            ms = [ms, [q[0], pp[0], q[1], pp[1]], [q[0], pp[0], pp[1], q[1]]][order]
        rpos, roff = divmod(OPT.get("rp", 2), 10)
        hooks = hooks or []
        hp = [i for i in range(4) if i != rpos]
        nh = (len(hooks) + 2) // 3
        for i in range(4):
            if i == 2 and midprio is not None:
                a(f"s_setprio {midprio}")
            if i < len(ms):
                a(ms[i])
            if i == rpos:
                a(e[4 * i:4 * i + roff] + rd + e[4 * i + roff:4 * i + 4])
            else:
                a(e[4 * i:4 * i + 2])
                k = hp.index(i)
                for hk in hooks[k * nh:(k + 1) * nh]:
                    a(hk)
                a(e[4 * i + 2:4 * i + 4])
        if order == 2 and len(ms) == 4:
            a("s_nop 4")

    def wo_piece(p, q0, ldsbase, cond=None):
        o = [f"s_add_u32 m0, s{sW1K}, {ldsbase & 0xffffffff}",
             f"s_add_u32 s{T1}, s{sKVS}, {WP_OFF + p*819200 + q0*1024}",
             f"buffer_load_dwordx4 v{VDMA}, {srd(SWS)}, s{T1} offen {HS} lds"]
        if cond is not None:
            lab = a.uniq("L_wo")
            o = [f"s_cmp_ge_u32 s{sWAVE}, {cond}", f"s_cbranch_scc1 {lab}"] + o + [f"{lab}:"]
        return o

    def wo_half(p, kh):
        return [wo_piece(p, 50 * kh + 8 * k, WOL[p][kh] + 8 * k * 1024, cond=2 if k == 6 else None) for k in range(7)]

    def wo_base():
        return [f"s_mul_i32 s{sKVS}, s{sQB}, 102400", f"s_add_u32 s{sKVS}, s{sKVS}, s{sW1K}"]

    def o_base(p=0):
        return [f"s_lshl_b32 s{T0}, s{sHEAD}, 1",
                f"s_lshr_b32 s{T1}, s{sCW}, 1",
                f"s_add_u32 s{T0}, s{T0}, s{T1}",
                f"s_mul_i32 s{T0}, s{T0}, 40960",
                f"s_and_b32 s{T1}, s{sCW}, 1",
                f"s_lshl_b32 s{T1}, s{T1}, 8",
                f"s_add_u32 s{T0}, s{T0}, s{T1}",
                f"s_add_u32 s{T0}, s{T0}, {OW_OFF + p*64*40960}",
                f"s_lshr_b32 s{T1}, s{sWAVE}, 2",
                f"s_lshl_b32 s{sEK}, s{T1}, 12",
                f"s_add_u32 s{sEK}, s{sEK}, s{T0}",
                f"s_add_u32 s{sEK}, s{sEK}, {16*2048}",
                f"s_lshl_b32 s{T1}, s{T1}, 14",
                f"s_add_u32 s{sEQ}, s{T0}, s{T1}"]

    def o_load(p, i):
        d = OFB[p] + 4 * i
        if i < 8:
            return [f"s_add_u32 s{T5}, s{sEQ}, {p*64*40960 + (i>>1)*4096}",
                    f"buffer_load_dwordx4 {vr(d,4)}, v{VOF}, {srd(SWS)}, s{T5} offen offset:{(i&1)*2048} {HS}"]
        return [f"s_add_u32 s{T5}, s{sEK}, {p*64*40960}",
                f"buffer_load_dwordx4 {vr(d,4)}, v{VOF}, {srd(SWS)}, s{T5} offen offset:{(i-8)*2048} {HS}"]

    lab = a.uniq("L_xl")
    a(f"s_cmp_ge_u32 s{sWAVE}, 4\ns_cbranch_scc1 {lab}")
    a("s_waitcnt vmcnt(0)\nv_mov_b32 v10, 0\nv_mov_b32 v11, 1\ns_mov_b64 exec, 1\nds_add_u32 v10, v11 offset:4\ns_mov_b64 exec, -1")
    a(f"s_branch {lab}_j")
    a.label(lab)
    lds_wait(8, 4)
    a.label(lab + "_j")
    lds_wait(4, 4)
    stamp(a, 5)
    stamp(a, 13, 1)
    a(f"""
    s_mul_i32 s{T0}, s{sWAVE}, 1280
    s_add_u32 s{T0}, s{T0}, {QB_OFF}
    v_add_u32 v15, s{T0}, v{VQ}
    ds_read2st64_b64 {vr(QL[1],4)}, v15 offset0:0 offset1:1
    ds_read_b64 {vr(QH[1],2)}, v15 offset:1024
    s_add_u32 s{sKVS}, s{sKVB}, s{sW1K}
    """)
    a(kreads(0, 0))
    a(kreads(1, 2560))
    a("s_waitcnt lgkmcnt(4)")
    scale_q(1)
    a("s_waitcnt lgkmcnt(2)")
    a(qk(S[0], 0, 1))
    a("s_nop 15")
    a(maxtree(19, S[0], True))
    set_m(1, 19)
    a("s_nop 1")
    a(qk(S[0], 0, 1))

    def dmaY(j):
        lab = a.uniq("L_dy")
        return [f"s_cmp_lt_u32 s{sWAVE}, 4", f"s_cbranch_scc1 {lab}",
                f"s_add_u32 m0, s{sW1K}, {CH[1] + j*4096 - 4096}",
                f"s_add_u32 s{T2}, s{sKVS}, {32*163840 + 40960 + j*4096 - 4096}",
                f"buffer_load_dwordx4 v{VDMA}, {srd(SWS)}, s{T2} offen {HS} lds", f"{lab}:"]

    def dma3(r):
        return [f"s_add_u32 m0, s{sW1K}, {CH[3] + r*8192}",
                f"s_add_u32 s{T2}, s{sKVS}, {32*163840 + 3*40960 + r*8192}",
                f"buffer_load_dwordx4 v{VDMA}, {srd(SWS)}, s{T2} offen {HS} lds"]

    def dmaA(j):
        out = [f"s_mul_i32 s{T1}, s{sQB}, 20480", f"s_sub_u32 s{T1}, s{T1}, 20480"]
        if j < 2:
            out += [f"s_max_i32 s{T1}, s{T1}, 0"]
        elif j == 2:
            out += [f"s_max_i32 s{T0}, s{T1}, 0", f"s_cmp_lt_u32 s{sWAVE}, 4", f"s_cselect_b32 s{T1}, s{T0}, s{T1}"]
        out += [f"s_add_u32 s{T1}, s{T1}, s{sKVS}", f"s_add_u32 m0, s{sW1K}, {A_OFF + j*8192}",
                f"s_add_u32 s{T1}, s{T1}, {j*8192}",
                f"buffer_load_dwordx4 v{VDMA}, {srd(SWS)}, s{T1} offen {HS} lds"]
        return out

    qa_loads = [f"s_mul_i32 s{T0}, s{sHEAD}, 81920",
                f"s_mul_i32 s{T2}, s{sQT}, 1280",
                f"s_add_u32 s{T0}, s{T0}, s{T2}",
                f"buffer_load_dwordx2 {vr(QL[0],2)}, v{VQ}, {srd(SWS)}, s{T0} offen {HS}",
                f"buffer_load_dwordx2 {vr(QL[0]+2,2)}, v{VQ}, {srd(SWS)}, s{T0} offen offset:512 {HS}",
                f"s_mov_b64 exec, s[{sLO}:{sLO+1}]",
                f"buffer_load_dwordx2 {vr(QH[0],2)}, v{VQ}, {srd(SWS)}, s{T0} offen offset:1024 {HS}",
                "s_mov_b64 exec, -1"]
    assert QW_OFF == 0

    NT = 73
    PC = 64 + OPT.get("pc", 6)
    EB = OPT.get("eb", 65)
    h1 = wo_half(1, 1)
    nper = -(-10 // (NT - PC))
    ST0, ST1, KLT, KHT, VKT = 148, 164, 180, 184, 186
    sq = cap(scale_q, 0)

    def kt_reads(u):
        return [f"ds_read2st64_b64 {vr(KLT,4)}, v{VKT} offset0:{5*u} offset1:{5*u+1}",
                f"s_mov_b64 exec, s[{sLO}:{sLO+1}]",
                f"ds_read_b64 {vr(KHT,2)}, v{VKT} offset:{u*2560+1024}",
                "s_mov_b64 exec, -1"]
    adelta = [f"s_mul_i32 s{T0}, s{sWAVE}, 2560", f"s_add_u32 s{T0}, s{T0}, {A_OFF - CH[3]}"]
    xh = {50: [sq[:10], sq[10:20]], 51: [sq[20:30], sq[30:]],
          52: [adelta + [f"v_add_u32 v{VKT}, s{T0}, v{VK}", f"v_mov_b32 v{KHT}, 0x3f803f80"] + pen(KHT, 7), kt_reads(7)],
          53: [[mfma32(ST0, KLT, QL[0], None)], [mfma32k8(ST0, KHT, QH[0], ST0)] + kt_reads(8) + pen(KHT, 8)],
          54: [[mfma32(ST1, KLT, QL[0], MD)], [mfma32k8(ST1, KHT, QH[0], ST1)]],
          55: [maxtree(19, ST0, True)[:4], maxtree(19, ST0, True)[4:]],
          56: [maxtree(19, ST1, False)[:4], maxtree(19, ST1, False)[4:]],
          57: [cap(set_m, 0, 19)[:5], cap(set_m, 0, 19)[5:]],
          64: [[], cap(zero_o, 0)[:8], cap(zero_o, 0)[8:]]}
    ep = cap(epilogue, 1)
    xh[EB] = [cap(finite, 1)[:7], cap(finite, 1)[7:] + ["s_cmp_lg_u64 vcc, 0", f"s_cselect_b32 s{sBAD}, 1, 0"], ep[:21]]
    xh[EB + 1] = [ep[21:33] + [f"s_cmp_lg_u32 s{sBAD}, 0", "s_cbranch_scc1 L_nostB"] + ep[33:] + ["L_nostB:"]]
    assert ep[33].startswith("buffer_store") and ep[20].startswith("v_mul")
    pf = lambda u: 1 if u < 64 else 0
    off = lambda u: (u & 15) * 2560 if u < 64 else (u - 64) * 2560
    cm = lambda u: MF if u == 64 else (MD if u == 72 else None)
    for t in range(NT + 1):
        hooks = []
        if t < 10:
            hooks = [dmaY(2 * t), dmaY(2 * t + 1)]
        if t == 14:
            a("s_waitcnt vmcnt(0) lgkmcnt(0)\ns_barrier")
            stamp(a, 6)
            cstamp(a, 1)
            stamp(a, 14, 1)
            publish(0, 0, 4)
        if 14 <= t < 19:
            hooks = [dma3(t - 14)]
        if t == 26:
            hooks = [[f"v_mov_b32 v{20+i}, -1" for i in range(6)], o_addr(0), o_store()]
        if t == 27:
            hooks = [o_addr(1), o_store()]
        if t == 29:
            poll_issue(0, 0)
        if t == 33:
            poll_check(0, 0)
            a("s_waitcnt vmcnt(0) lgkmcnt(0)\ns_barrier")
            publish(1, 0, 1)
            stamp(a, 7)
            cstamp(a, 3)
        if 33 <= t < 38:
            hooks = [dmaA(t - 33)]
        if t == 38:
            hooks = [qa_loads]
        if t == 40:
            hooks = [wo_base(), o_base()]
        if 41 <= t < 46:
            k = t - 41
            hooks = [[f"s_add_u32 s{T1}, s{sKVS}, {WP_OFF + k*8192}",
                      f"buffer_load_dwordx4 {vr(ST[k],4)}, v{VDMA}, {srd(SWS)}, s{T1} offen {HS}"]]
        if 56 <= t < 59:
            k = t - 56
            hooks = [wo_piece(0, 80 + 8 * k, WOL[0][0] + (80 + 8 * k) * 1024, cond=4 if k == 2 else None)]
        if t == 46:
            poll_issue(1, 0)
        if t == 49:
            poll_check(1, 0)
            a("s_waitcnt vmcnt(0) lgkmcnt(0)\ns_barrier")
            stamp(a, 8)
            cstamp(a, 5)
        if 49 <= t < 56:
            hooks = [wo_half(1, 0)[t - 49]]
        if t == 67:
            a("s_barrier")
            stamp(a, 10)
            cstamp(a, 7)
            stamp(a, 3, 2)
        if 67 <= t < 70:
            hooks = h1[3 * (t - 67):3 * (t - 66)]
        if PC <= t < NT:
            hooks = [o_load(1, i) for i in range((t - PC) * nper, min(10, (t - PC + 1) * nper))]
        if t in xh:
            hx = xh[t] + [[]] * (3 - len(xh[t]))
            assert len(hooks) <= 1
            hooks = [hx[0], hx[1], hx[2] + (hooks[0] if hooks else [])]
        if t < 14:
            a("s_nop 0")
        else:
            t0 = max(x for x in (14, 33, 49, 67) if x <= t)
            a(f"s_setprio {3 - (t - t0) % 4}")
        if t + 2 in (16, 32, 48):
            c = (t + 2) // 16
            a(f"v_add_u32 v{VK}, {(CH[c] - CH[c - 1]) & 0xffffffff}, v{VK}")
        if t in (16, 32, 48):
            c = t // 16
            a(f"v_add_u32 v{VV}, {(CH[c] - CH[c - 1]) & 0xffffffff}, v{VV}")
        if t == 62:
            a(f"v_mov_b32 v{VK}, v{VKT}")
        if t == 64:
            stamp(a, 9)
            stamp(a, 1, 2)
            a(adelta + [f"v_add_u32 v{VV}, s{T0}, v{VV}"])
        tile_step(t, NT, pf, off, off, cm, extra_k=lambda b, u: pen(KH[b], u - 64) if u >= 64 else [], hooks=hooks)
    a("s_setprio 0")
    a(f"s_cmp_lg_u32 s{sBAD}, 0")
    a("s_cbranch_scc1 L_slowB")
    a.label("L_chkA")
    a("s_nop 8")
    finite(0)
    a("s_nop 4")
    a("s_cbranch_vccnz L_slowA")
    a.label("L_epiA")
    epilogue(0)
    stamp(a, 11)
    stamp(a, 7, 2)

    GA = [148, 208]
    GW = lambda buf, ct: 72 + buf * 20 + 4 * ct
    FT = 168
    retries = []

    def g3reads(i):
        return [f"ds_read_b128 {vr(GW(i%3,ct),4)}, v{VW3} offset:{(i*5+ct)*1024}" for ct in range(5)]

    def part_out(p):
        a(f"v_add_u32 v10, {SCR[p]}, v{VRED}")
        for ct in range(5):
            a(f"ds_write_b128 v10, {vr(GA[p]+4*ct,4)} offset:{ct*1024}")

    def finish(p):
        a(f"v_add_u32 v10, {SCR[p]}, v{VRED}")
        for ct in range(5):
            a(f"ds_read_b128 {vr(FT+4*ct,4)}, v10 offset:{ct*1024}")
        a(f"""
        s_lshl_b32 s{T0}, s{sHEAD}, 2
        s_add_u32 s{T0}, s{T0}, s{sCW}
        s_mul_i32 s{T0}, s{T0}, {16*2560}
        s_mul_i32 s{T1}, s{sQB}, 160
        s_add_u32 s{T0}, s{T0}, s{T1}
        s_add_u32 s{T0}, s{T0}, {p*1280}
        """)
        for g, (lo, hi) in enumerate(((0, 8), (8, 16), (16, 20))):
            a(f"s_waitcnt lgkmcnt({[3, 1, 0][g]})")
            for i in range(lo, hi):
                a(f"v_add_f32 v{FT+i}, v{FT+i}, v{GA[p]+i}")
            for i in range(lo // 2, hi // 2):
                a(f"v_cvt_pk_bf16_f32 v{FT+20+i}, v{FT+2*i}, v{FT+2*i+1}")
            a(f"buffer_store_dwordx{4 if g < 2 else 2} {vr(FT+20+4*g, 4 if g < 2 else 2)}, v{VOUT if g < 2 else VOUT2}, {srd(SOUT)}, s{T0} offen offset:{64*g} {OUTP}")

    def o_check(p, i, n):
        d = OFB[p] + 4 * i
        a(f"""
        s_waitcnt vmcnt({n})
        L_gw{p}_{i}:
        v_max3_u32 v10, v{d}, v{d+1}, v{d+2}
        v_max_u32 v10, v10, v{d+3}
        v_cmp_eq_u32 vcc, -1, v10
        s_cbranch_vccnz L_gr{p}_{i}
        L_gc{p}_{i}:
        """)
        retries.append((p, i))

    a(f"s_mov_b32 s{sCNT}, 0x20000")
    OI = OPT.get("oi", 10)
    a("s_waitcnt vmcnt(12)")
    a("s_barrier")
    stamp(a, 8, 2)
    a(g3reads(0))
    a(g3reads(1))
    young = 2
    nd = no = 0
    for i in range(10):
        o_check(1, i, 9 - i + young)
        a(f"s_waitcnt lgkmcnt({5 if i < 9 else 0})")
        rs = g3reads(i + 2) if i < 8 else []
        for ct in range(5):
            a(mfma16(GA[1] + 4 * ct, GW(i % 3, ct), OFB[1] + 4 * i, None if i == 0 else GA[1] + 4 * ct))
            a(rs[ct:ct + 1])
        if nd < 5:
            a(wo_piece(0, 40 + 8 * nd, WOL[0][0] + (40 + 8 * nd) * 1024))
            nd += 1; young += 1
        if i >= OI:
            n = -(-10 // (10 - OI))
            for k in range(no, min(10, no + n)):
                a(o_load(0, k)); young += 1
            no = min(10, no + n)
    assert OI >= 5
    if OI <= 10:
        for k in range(no, 10):
            a(o_load(0, k))
    a("s_barrier")
    stamp(a, 9, 2)
    a(f"s_add_u32 s{T0}, s{sW1K}, {WOL[0][0]}\nv_add_u32 v11, s{T0}, v{VDMA}")
    MRG = OPT.get("mrg", 0)
    if not MRG:
        a(f"s_cmp_lt_u32 s{sWAVE}, 4\ns_cbranch_scc1 L_pb1")
        part_out(1)
        a.label("L_pb1")
    for k in range(5):
        a(f"ds_write_b128 v11, {vr(ST[k],4)} offset:{k*8192}")
    a(f"""
    s_cmp_lt_u32 s{sWAVE}, 4
    s_mov_b32 s{T0}, {(WOL[0][1] - WOL[1][1]) & 0xffffffff}
    s_cselect_b32 s{T0}, {(WOL[0][0] - WOL[1][0]) & 0xffffffff}, s{T0}
    v_add_u32 v{VW3}, s{T0}, v{VW3}
    """)
    if OI == 11:
        for k in range(10):
            a(o_load(0, k))
    a(f"s_waitcnt lgkmcnt(0) vmcnt({10 if OI <= 11 else 0})\ns_barrier")
    if OI == 12:
        for k in range(10):
            a(o_load(0, k))
    if not MRG:
        a(f"s_cmp_ge_u32 s{sWAVE}, 4\ns_cbranch_scc1 L_pb2")
        finish(1)
        a.label("L_pb2")
    stamp(a, 12)
    stamp(a, 13)
    stamp(a, 12, 2)
    a(g3reads(0))
    a(g3reads(1))
    for i in range(10):
        d = OFB[0] + 4 * i
        o_check(0, i, 9 - i)
        a(f"s_waitcnt lgkmcnt({5 if i < 9 else 0})")
        rs = g3reads(i + 2) if i < 8 else []
        for ct in range(5):
            a(mfma16(GA[0] + 4 * ct, GW(i % 3, ct), d, None if i == 0 else GA[0] + 4 * ct))
            a(rs[ct:ct + 1])
    stamp(a, 13, 2)
    if MRG:
        a(f"s_cmp_ge_u32 s{sWAVE}, 4\ns_cbranch_scc1 L_fin1")
        a("s_nop 2")
        part_out(0)
        a("s_waitcnt lgkmcnt(0)\ns_barrier")
        finish(1)
        a("s_branch L_fin2")
        a.label("L_fin1")
        part_out(1)
        a("s_waitcnt lgkmcnt(0)\ns_barrier")
        finish(0)
        a.label("L_fin2")
    else:
        a(f"s_cmp_lt_u32 s{sWAVE}, 4\ns_cbranch_scc1 L_fin1")
        a("s_nop 2")
        part_out(0)
        a("s_waitcnt lgkmcnt(0)\ns_barrier\ns_branch L_fin2")
        a.label("L_fin1")
        a("s_barrier")
        finish(0)
        a.label("L_fin2")
    lab = only_wave(4)
    a(f"""
    s_cmp_lg_u32 s2, 0
    s_cbranch_scc1 {lab}
    v_mov_b32 v1, s{sTAG}
    s_mov_b32 s{T4}, {EP_OFF}
    s_mov_b64 exec, 1
    buffer_store_dword v1, off, {srd(SWS)}, s{T4} sc1
    s_mov_b64 exec, -1
    """)
    a.label(lab)
    if STAMPS:
        a("s_waitcnt vmcnt(0)")
        stamp(a, 14)
        stamp(a, 14, 2)
        a("s_waitcnt lgkmcnt(0)")
        a(f"""
        s_lshl_b32 s{T0}, s2, 4
        s_add_u32 s{T0}, s{T0}, s{sWAVE}
        s_lshl_b32 s{T0}, s{T0}, 7
        s_add_u32 s{T0}, s{T0}, {STAMP_OFF}
        s_mov_b64 exec, 1
        """)
        for i in range(15):
            a(f"v_mov_b32 v1, s{SB+2*i}")
            a(f"buffer_store_dword v1, off, {srd(SWS)}, s{T0} offset:{4*i}")
    if OPT.get("pad"):
        if "padwg" in OPT:
            a(f"s_cmp_lg_u32 s2, {OPT['padwg']}\ns_cbranch_scc1 L_done")
        a(f"""
        L_pad:
        s_memrealtime s[{T0}:{T1}]
        s_waitcnt lgkmcnt(0)
        s_sub_u32 s{T0}, s{T0}, s{SB}
        s_cmp_lt_u32 s{T0}, {OPT["pad"]}
        s_cbranch_scc1 L_pad
        """)
    a.label("L_done")
    a("s_endpgm")

    for p, i in retries:
        a.label(f"L_gr{p}_{i}")
        a(f"""
        s_sub_u32 s{sCNT}, s{sCNT}, 1
        s_cmp_eq_u32 s{sCNT}, 0
        s_cbranch_scc1 L_gq{p}_{i}
        s_waitcnt vmcnt(0)
        s_sleep 1
        """)
        for k in range(i, 10):
            a(o_load(p, k))
        a(f"s_waitcnt vmcnt({9 - i if p == 0 else 0})")
        a(f"s_branch L_gw{p}_{i}")
        a.label(f"L_gq{p}_{i}")
        a(f"s_mov_b32 s{sCNT}, 1\ns_branch L_gc{p}_{i}")

    a.label("L_slowA")
    MF2 = OO[1]
    cmA = lambda u: MD if u == 8 else (MF2 if u == 0 else None)
    penA = lambda b, u: pen(KH[b], u)
    for i in range(16):
        a(f"v_sub_f32 v{MF2+i}, {NEGBIG}, v{MD+i}")
    reset_m(0)
    a(kreads(0, 0))
    a(penA(0, 0))
    for u in range(9):
        if u + 1 < 9:
            a(kreads((u + 1) & 1, (u + 1) * 2560))
            a("s_waitcnt lgkmcnt(2)")
        else:
            a("s_waitcnt lgkmcnt(0)")
        a("s_nop 0")
        a(qk(S[u & 3], u & 1, 0, cmA(u)))
        if u + 1 < 9:
            a(penA((u + 1) & 1, u + 1))
        if u >= 2:
            a(maxtree(19, S[(u - 2) & 3], u == 2))
    a(kreads(0, 0))
    a(kreads(1, 2560))
    zero_o(0)
    for u in (7, 8):
        a(maxtree(19, S[u & 3], False))
    set_m(0, 19)
    a(penA(0, 0) + penA(1, 1))
    a("s_waitcnt lgkmcnt(2)\ns_nop 0")
    a(qk(S[0], 0, 0, cmA(0)))
    for t in range(10):
        a("s_nop 0")
        tile_step(t, 9, lambda u: 0, lambda u: u * 2560, lambda u: u * 2560, cmA, extra_k=penA)
    a("s_nop 15\ns_branch L_epiA")

    a.label("L_idle")
    a(late)
    G3D = [128, 129, 130, 131, 132]
    for i in range(5):
        a([f"v_add_u32 v10, {64*i}, v0",
           "v_mul_u32_u24 v11, 6554, v10",
           "v_lshrrev_b32 v11, 16, v11",
           "v_mul_u32_u24 v12, 10, v11",
           "v_sub_u32 v12, v10, v12",
           "v_mul_u32_u24 v11, 1280, v11",
           f"v_lshl_add_u32 v{G3D[i]}, v12, 4, v11"])
    a(f"""
    s_cmp_ge_u32 s{sTB}, 8
    s_cselect_b32 s{SX[0]}, s{SWO[1]}, s{SWO[0]}
    s_cselect_b32 s{SX[0]+1}, s{SWO[1]+1}, s{SWO[0]+1}
    s_mov_b32 s{SX[0]+2}, {WO_BYTES}
    s_and_b32 s{T0}, s{sTB}, 7
    s_mul_i32 s{T0}, s{T0}, 160
    s_mul_i32 s{T1}, s{sWAVE}, {32*1280}
    s_add_u32 s{T0}, s{T0}, s{T1}
    s_mul_i32 s{T1}, s{sWAVE}, 5120
    """)
    for rnd in range(3):
        lab = a.uniq("L_id")
        if rnd == 2:
            a(f"s_cmp_ge_u32 s{sWAVE}, 4\ns_cbranch_scc1 {lab}")
        a(f"s_add_u32 s{T2}, s{T0}, {rnd*256*1280}")
        for i in range(5):
            a(f"s_add_u32 m0, s{T1}, {K + rnd*8*5120 + i*1024}\ns_nop 0")
            a(f"buffer_load_dwordx4 v{G3D[i]}, {srd(SX[0])}, s{T2} offen lds")
        a.label(lab)
    a(f"""
    v_lshrrev_b32 v10, 5, v0
    v_bfe_u32 v11, v0, 4, 1
    v_bfe_u32 v12, v0, 2, 2
    v_and_b32 v13, 3, v0
    v_lshlrev_b32 v136, 3, v13
    v_lshlrev_b32 v13, 4, v13
    v_add_u32 v13, {K}, v13
    v_mul_u32_u24 v14, 20, v10
    v_lshl_add_u32 v14, v11, 2, v14
    v_add_u32 v14, v14, v12
    v_mul_u32_u24 v14, 160, v14
    v_add_u32 v133, v14, v13
    v_mul_u32_u24 v14, 80, v10
    v_mul_u32_u24 v11, 20, v11
    v_add3_u32 v14, v14, v11, v12
    v_add_u32 v14, 16, v14
    v_mul_u32_u24 v14, 160, v14
    v_add_u32 v134, v14, v13
    s_mul_i32 s{T0}, s{sWAVE}, 6400
    v_add_u32 v133, s{T0}, v133
    s_mul_i32 s{T0}, s{sWAVE}, 25600
    v_add_u32 v134, s{T0}, v134
    v_lshlrev_b32 v135, 4, v0
    v_sub_u32 v137, v133, v136
    v_sub_u32 v138, v134, v136
    v_mov_b32 v10, 0
    v_mov_b32 v11, 0
    v_mov_b32 v12, 4
    ds_write_b64 v10, v[10:11]
    ds_write_b32 v10, v12 offset:8
    s_mul_i32 s{T0}, s{sTB}, 102400
    s_add_u32 s{T0}, s{T0}, {WP_OFF}
    s_mul_i32 s{T1}, s{sWAVE}, 5120
    s_add_u32 s{T1}, s{T1}, s{T0}              ; kh=0, i=w
    s_lshr_b32 s{T2}, s{sWAVE}, 1
    s_mul_i32 s{T2}, s{T2}, 51200
    s_and_b32 s{T3}, s{sWAVE}, 1
    s_mul_i32 s{T3}, s{T3}, 5120
    s_add_u32 s{T2}, s{T2}, s{T3}
    s_add_u32 s{T2}, s{T2}, s{T0}
    s_add_u32 s{T2}, s{T2}, {8*5120}
    s_waitcnt vmcnt(0) lgkmcnt(0)
    s_barrier
    """)
    for rnd in range(3):
        lab = a.uniq("L_id")
        if rnd == 2:
            a(f"s_cmp_ge_u32 s{sWAVE}, 4\ns_cbranch_scc1 {lab}")
        base = 64 + rnd * 20
        for ct in range(5):
            for rd in range(2):
                if rnd < 2:
                    a(f"ds_read_b64_tr_b16 {vr(base+4*ct+2*rd,2)}, v{133 if ct < 4 else 137} offset:{rnd*51200 + rd*1280 + (ct>>1)*64 + (ct&1)*8}")
                else:
                    a(f"ds_read_b64_tr_b16 {vr(base+4*ct+2*rd,2)}, v{134 if ct < 4 else 138} offset:{rd*6400 + (ct>>1)*64 + (ct&1)*8}")
        a("s_waitcnt lgkmcnt(0)")
        if rnd == 1:
            a(f"s_add_u32 s{T1}, s{T1}, 51200")
        sreg = T1 if rnd < 2 else T2
        for ct in range(5):
            if ct == 4:
                a(f"s_add_u32 s{T3}, s{sreg}, 4096")
                a(f"buffer_store_dwordx4 {vr(base+4*ct,4)}, v135, {srd(SWS)}, s{T3} offen {HST}")
            else:
                a(f"buffer_store_dwordx4 {vr(base+4*ct,4)}, v135, {srd(SWS)}, s{sreg} offen offset:{ct*1024} {HST}")
        a.label(lab)
    a("s_waitcnt vmcnt(0)\ns_barrier")
    publish(0, 0, 1)
    publish(0, 1, 2)
    a(f"v_add_u32 v{VPUB}, 4, v{VPUB}")
    publish(0, 0, 3)
    publish(0, 1, 4)
    poll_issue(0, 1)
    poll_check(0, 1, sleep=OPT.get('isl', 32))
    a("s_barrier")
    a(f"s_cmp_ge_u32 s{sWAVE}, 4")
    a("s_cbranch_scc1 L_attn_setup")
    a("s_branch L_x1")

    a.label("L_slowB")
    reset_m(1)
    a(f"""
    v_mov_b32 v19, 0xff800000
    s_mul_i32 s{T0}, s{sWAVE}, 2560
    s_add_u32 s{T0}, s{T0}, {A_OFF}
    v_subrev_u32 v10, s{T0}, v{VK}
    v_subrev_u32 v12, s{T0}, v{VV}
    s_not_b64 exec, s[{sLO}:{sLO+1}]
    v_mov_b32 v{KH[0]+1}, 0x3f80
    s_mov_b64 exec, -1
    s_add_u32 s{T0}, s{sKVB}, {32*163840}
    s_add_u32 s{T1}, s{T0}, 163840
    """)

    def gk():
        return f"""
        buffer_load_dwordx2 {vr(KL[0],2)}, v10, {srd(SWS)}, s{T0} offen {HS}
        buffer_load_dwordx2 {vr(KL[0]+2,2)}, v10, {srd(SWS)}, s{T0} offen offset:512 {HS}
        s_mov_b64 exec, s[{sLO}:{sLO+1}]
        buffer_load_dwordx2 {vr(KH[0],2)}, v10, {srd(SWS)}, s{T0} offen offset:1024 {HS}
        """
    a.label("L_slow1")
    a(gk())
    a("s_mov_b64 exec, -1\ns_waitcnt vmcnt(0)")
    a(qk(S[0], 0, 1))
    a("s_nop 15")
    a(maxtree(19, S[0], False))
    a(f"""
    s_add_u32 s{T0}, s{T0}, 2560
    s_cmp_lt_u32 s{T0}, s{T1}
    s_cbranch_scc1 L_slow1
    """)
    set_m(1, 19)
    zero_o(1)
    a(f"s_sub_u32 s{T0}, s{T1}, 163840")
    a.label("L_slow2")
    a(gk())
    a(f"""
    s_mov_b64 exec, s[{sVM}:{sVM+1}]
    buffer_load_dwordx4 {vr(VF[0],4)}, v12, {srd(SWS)}, s{T0} offen {HS}
    buffer_load_dwordx4 {vr(VF[0]+4,4)}, v12, {srd(SWS)}, s{T0} offen offset:640 {HS}
    s_mov_b64 exec, -1
    s_waitcnt vmcnt(0)
    """)
    a(qk(S[0], 0, 1))
    a("s_nop 15")
    a(exps(S[0]))
    a("s_nop 1")
    a(pv(S[0], 0, OO[1]))
    a(f"""
    s_add_u32 s{T0}, s{T0}, 2560
    s_cmp_lt_u32 s{T0}, s{T1}
    s_cbranch_scc1 L_slow2
    s_nop 15
    """)
    epilogue(1)
    a("s_branch L_chkA")


def main(out):
    global HST, HS, OUTP
    OUTP = ["", "nt", "sc1", "sc0 sc1"][OPT.get("outp", 0)]
    HST = ["sc1", "", "sc0 sc1", "nt", "sc1 nt"][OPT.get("st", 0)]
    HS = ["sc1", ""][OPT.get("ld", 0)]
    a = Asm()
    hdr = open(f"cdna_kernels/{NAME}.s.ref").read().split("\n")
    keep = [l for l in hdr if l.startswith(";") and "@launch" not in l]
    for l in keep:
        a.raw(l)
    a.raw(f"; @launch grid=(256,1,1) block=(512,1,1) lds={LDS_BYTES}")
    a.raw('.amdgcn_target "amdgcn-amd-amdhsa--gfx950"')
    a.raw(".text")
    gen(a)
    a.raw('.section .rodata,"a"')
    a.raw(".p2align 6")
    a.raw(f""".amdhsa_kernel {KNAME}
  .amdhsa_next_free_vgpr 256
  .amdhsa_next_free_sgpr {102 if STAMPS else 72}
  .amdhsa_accum_offset 256
  .amdhsa_group_segment_fixed_size 0
  .amdhsa_kernarg_size 72
  .amdhsa_user_sgpr_count 2
  .amdhsa_user_sgpr_kernarg_segment_ptr 1
  .amdhsa_system_sgpr_workgroup_id_x 1
.end_amdhsa_kernel""")
    open(out, "w").write(a.text())


if __name__ == "__main__":
    if "--stamps" in sys.argv:
        STAMPS = True
        sys.argv.remove("--stamps")
    for x in list(sys.argv):
        if x.startswith("-D"):
            k, _, v = x[2:].partition("=")
            OPT[k] = int(v) if v else 1
            sys.argv.remove(x)
    main(sys.argv[1] if len(sys.argv) > 1 else f"cdna_kernels/{NAME}.s")
```

```python
import sys, struct, re

NAME = "concat_heads__sliding_block__softmax_full_mha__prompt"
KNAME = NAME + "_kernel"

QW_OFF = 0x000000
KV_OFF = 0x500000
OW_OFF = 0xF00000
FL_OFF = 0x1400000
EP_OFF = 0x1409000
WP_OFF = 0x1500000
WS_USED = 0x1700000
X_BYTES = 2048 * 640 * 2
WQKV_BYTES = 640 * 1920 * 2
WO_BYTES = 640 * 640 * 2
OUT_BYTES = 2048 * 1280 * 2
SRD3 = 0x00020000
LDS_BYTES = 163840
K = 1024

STAMPS = False
STAMP_OFF = 0x2000000
SB = 72
OPT = {}


def f32bits(x):
    return struct.unpack("<I", struct.pack("<f", x))[0]


NEGBIG = f32bits(-1e30)
CSCALE = f32bits((20 ** -0.5) * 1.4426950408889634)


class Asm:
    def __init__(self):
        self.l = []
        self.n = 0

    def __call__(self, s):
        if isinstance(s, (list, tuple)):
            for x in s:
                self(x)
            return
        for line in s.strip("\n").split("\n"):
            line = line.strip()
            if line:
                self.l.append(("" if line.endswith(":") else "    ") + line)

    def label(self, s):
        self.l.append(s + ":")

    def raw(self, s):
        self.l.append(s)

    def uniq(self, p):
        self.n += 1
        return f"{p}_{self.n}"

    def text(self):
        return "\n".join(self.l) + "\n"


def vr(a, n):
    return f"v[{a}:{a + n - 1}]"


def mfma32(d, a_, b_, c):
    cs = vr(c, 16) if c is not None else "0"
    return f"v_mfma_f32_32x32x16_bf16 {vr(d,16)}, {vr(a_,4)}, {vr(b_,4)}, {cs}"


def mfma32k8(d, a_, b_, c):
    return f"v_mfma_f32_32x32x8_bf16 {vr(d,16)}, {vr(a_,2)}, {vr(b_,2)}, {vr(c,16)}"


def mfma16(d, a_, b_, c):
    cs = vr(c, 4) if c is not None else "0"
    return f"v_mfma_f32_16x16x32_bf16 {vr(d,4)}, {vr(a_,4)}, {vr(b_,4)}, {cs}"


def cstamp(a, i):
    if STAMPS and OPT.get("sm", 0) == 3:
        a(f"s_memrealtime s[{SB+2*i}:{SB+2*i+1}]")
        a(f"s_memtime s[{SB+2*i+2}:{SB+2*i+3}]")


def stamp(a, i, mode=0):
    if STAMPS and (i == 0 or OPT.get("sm", 0) == mode):
        a(f"s_memrealtime s[{SB+2*i}:{SB+2*i+1}]")


SX = [4, 12]
SW = [8, 16]
SWS, SDBG = 20, 24
SWO = [28, 32]
SOUT = 36
sWAVE, sCW, sTB, sM, sKS, sXB, sWB, sLP = 40, 41, 42, 43, 44, 45, 46, 47
T0, T1, T2, T3, T4, T5 = 48, 49, 50, 51, 52, 53
sEQ, sEK = 54, 55
sHEAD, sQB, sQT, sW1K = 56, 57, 58, 59
sVM, sLO = 60, 62
sCS, sONE, sKVB, sXCD, sJ, sROT = 64, 65, 66, 67, 68, 69
sCNT = 70
sKVS = 71
sTAG = 3
sBAD = 47


def srd(n):
    return f"s[{n}:{n+3}]"


HS = "sc1"
HST = "sc1"
OUTP = ""


SCHEDS = {
    0: ([2, 3], {0: [4], 1: [5], 2: [6], 3: [7], 4: [8], 5: [9], 6: [10], 7: [11], 8: [12], 9: [13],
                 10: [14], 11: [15, "S"], 13: ["P", 16, 17], 15: [18], 16: [19, "Z"], 17: []}),
    1: ([], {0: [2, 3], 1: [4], 2: [5], 3: [6], 4: [7], 5: [8], 6: [9], 7: [10], 8: [11], 9: [12],
             10: [13], 11: [14, "S", 15], 13: [16, 17], 15: ["P", 18], 16: [19, "Z"], 17: []}),
    2: ([], {0: [2, 3], 1: [4], 2: [5], 3: [6], 4: [7], 5: [8], 6: [9], 7: [10], 8: [11], 9: [12],
             10: [13, 14], 12: ["S", 15, 16], 14: ["P", 17, 18], 16: [19, "Z"], 18: []}),
    3: ([], {0: [2], 1: [3], 2: [4], 3: [5], 4: [6], 5: [7], 6: [8], 7: [9], 8: [10], 9: [11],
             10: [12, 13], 12: [14, "S", 15], 14: [16, 17, 18], 16: ["P", 19, "Z"], 18: []}),
    4: ([], {0: [2, 3], 1: [4, 5], 3: [6, 7], 5: [8, 9], 7: [10, 11], 9: [12],
             10: [13, 14], 12: ["S", 15, 16], 14: ["P", 17, 18], 16: [19, "Z"], 18: []}),
    5: ([], {0: [2, 3], 1: [4], 2: [5], 3: [6], 4: [7], 5: [8], 6: [9], 7: [10, 11], 8: [12], 9: [13],
             10: [14], 11: [15, "S"], 13: ["P", 16, 17], 15: [18], 16: [19, "Z"], 17: []}),
}


def plan():
    pre, sch = SCHEDS[OPT.get("sch", 0)]
    ns = sorted(sch)
    q = {"X": [0], "Y": [1] + pre}
    waits = {}
    assert 0 in sch and 10 in sch and ns[-1] >= 17
    for k, n in enumerate(ns):
        need = set(range(n, ns[k + 1] if k + 1 < len(ns) else 20))
        if "P" in sch[n]:
            need.add("S")
        assert need <= set(q["X"]) | set(q["Y"]), (n, need)
        for g in "XY":
            idx = [i for i, x in enumerate(q[g]) if x in need]
            waits[g, n] = 8 * (len(q[g]) - 1 - max(idx)) if idx else None
            if "P" in sch[n] and g == "X" and OPT.get("pz", 0):
                waits[g, n] = 0
        for x in sch[n]:
            if isinstance(x, int):
                assert x - 5 <= n - 1, (n, x)
            if x == "Z":
                assert n >= 16 and k + 1 < len(ns)
            if x not in ("P", "Z"):
                q["Y" if n < 10 else "X"].append(x)
    st = [x for x in q["X"] + q["Y"] if isinstance(x, int)]
    assert sorted(st) == list(range(20))
    return pre, sch, ns, waits, min(x for x in q["X"][1:] if isinstance(x, int))


def gen(a):
    PRE, SCH, NS, WAITS, XFIRST = plan()
    a.raw(f".globl {KNAME}\n.p2align 8\n.type {KNAME},@function")
    a.label(KNAME)
    a(f"""
    s_cmp_ge_u32 s2, 256
    s_cbranch_scc1 L_done
    """)
    stamp(a, 0)
    a(f"""
    s_load_dwordx2 s[{SX[1]}:{SX[1]+1}], s[0:1], 24
    s_load_dwordx2 s[{SW[1]}:{SW[1]+1}], s[0:1], 32
    s_load_dwordx2 s[{SX[0]}:{SX[0]+1}], s[0:1], 0
    s_load_dwordx2 s[{SW[0]}:{SW[0]+1}], s[0:1], 8
    s_load_dwordx2 s[{SWO[0]}:{SWO[0]+1}], s[0:1], 16
    s_load_dwordx2 s[{SWO[1]}:{SWO[1]+1}], s[0:1], 40
    s_load_dwordx2 s[{SOUT}:{SOUT+1}], s[0:1], 48
    s_load_dwordx2 s[{SWS}:{SWS+1}], s[0:1], 64
    v_lshrrev_b32 v1, 6, v0
    v_and_b32 v0, 63, v0
    s_and_b32 s{sXCD}, s2, 7
    v_readfirstlane_b32 s{sWAVE}, v1
    s_lshr_b32 s{sJ}, s2, 3
    s_and_b32 s{T0}, s{sXCD}, 1
    s_lshl_b32 s{T0}, s{T0}, 3
    s_and_b32 s{T1}, s{sJ}, 7
    s_add_u32 s{sTB}, s{T0}, s{T1}
    s_lshr_b32 s{T0}, s{sXCD}, 1
    s_lshl_b32 s{T0}, s{T0}, 2
    s_lshr_b32 s{T2}, s{sJ}, 3
    s_add_u32 s{sM}, s{T0}, s{T2}
    """)
    rm = OPT.get("rot", 2)
    if rm == 0:
        a(f"s_mov_b32 s{sROT}, 0")
    elif rm == 1:
        a(f"""
        s_mul_i32 s{T2}, s{T2}, 3
        s_add_u32 s{sROT}, s{T1}, s{T2}
        s_cmp_ge_u32 s{sROT}, 10
        s_cselect_b32 s{T0}, 10, 0
        s_sub_u32 s{sROT}, s{sROT}, s{T0}
        """)
    elif rm == 2:
        a(f"""
        s_add_u32 s{sROT}, s{T1}, s{T2}
        s_and_b32 s{sROT}, s{sROT}, 1
        s_mul_i32 s{sROT}, s{sROT}, 5
        """)
    else:
        a(f"""
        s_add_u32 s{sROT}, s{T1}, s{T2}
        s_and_b32 s{sROT}, s{sROT}, 3
        s_mul_i32 s{sROT}, s{sROT}, 5
        s_lshr_b32 s{sROT}, s{sROT}, 1
        """)
    a(f"""
    s_and_b32 s{sCW}, s{sWAVE}, 3
    """)
    for n, size in ((SX[0], X_BYTES), (SW[0], WQKV_BYTES), (SX[1], X_BYTES), (SW[1], WQKV_BYTES), (SWO[0], WO_BYTES),
                    (SWO[1], WO_BYTES), (SOUT, OUT_BYTES), (SWS, 0x4000000 if STAMPS else WS_USED)):
        a(f"s_mov_b32 s{n+2}, {size}\ns_mov_b32 s{n+3}, {SRD3}")
    a(f"""
    v_lshrrev_b32 v6, 3, v0
    v_mul_u32_u24 v2, 1280, v6
    v_lshrrev_b32 v7, 4, v0
    v_and_b32 v8, 7, v0
    v_xor_b32 v8, v8, v7
    v_lshl_add_u32 v2, v8, 4, v2
    v_xor_b32 v3, 64, v2
    v_mul_u32_u24 v9, 3840, v7
    v_and_b32 v8, 15, v0
    v_lshlrev_b32 v10, 1, v7
    v_xor_b32 v8, v8, v10
    """)
    a("""
    v_lshl_add_u32 v4, v8, 4, v9
    v_xor_b32 v5, 128, v4
    """)
    a(f"""
    s_lshl_b32 s{T0}, s{sTB}, 7
    s_lshl_b32 s{T1}, s{sCW}, 5
    s_add_u32 s{T0}, s{T0}, s{T1}
    s_mul_i32 s{sXB}, s{T0}, 1280
    s_mul_i32 s{sWB}, s{sCW}, {16*3840}
    s_lshl_b32 s{T0}, s{sM}, 8
    s_add_u32 s{sWB}, s{sWB}, s{T0}
    s_lshl_b32 s{sLP}, s{sCW}, 12
    s_lshr_b32 s{T3}, s{sWAVE}, 2              ; group
    s_add_u32 s{sKS}, s{sROT}, s{T3}
    s_cmp_eq_u32 s{sKS}, 10
    s_cselect_b32 s{sKS}, 0, s{sKS}
    s_lshl_b32 s{T3}, s{T3}, 15
    s_add_u32 s{T3}, s{T3}, s{sLP}
    """)

    def dma_stage(n, sLP=sLP):
        p = 1 - n // 10
        slot = (n % 5) * 32 * K
        out = [f"s_lshl_b32 s{T0}, s{sKS}, 7",
               f"s_add_u32 s{T0}, s{T0}, s{sXB}",
               f"s_mul_i32 s{T1}, s{sKS}, {64*3840}",
               f"s_add_u32 s{T1}, s{T1}, s{sWB}"]
        for i in range(4):
            out += [f"s_add_u32 m0, s{sLP}, {slot + i*1024}",
                    f"s_add_u32 s{T2}, s{T0}, {i*8*1280}",
                    f"buffer_load_dwordx4 v{2 + (i & 1)}, {srd(SX[p])}, s{T2} offen lds",
                    f"s_add_u32 m0, s{sLP}, {slot + 16*K + i*1024}",
                    f"s_add_u32 s{T2}, s{T1}, {i*4*3840}",
                    f"buffer_load_dwordx4 v{4 + (i >> 1)}, {srd(SW[p])}, s{T2} offen lds"]
        out += [f"s_add_u32 s{sKS}, s{sKS}, 1",
                f"s_cmp_eq_u32 s{sKS}, 10",
                f"s_cselect_b32 s{sKS}, 0, s{sKS}"]
        return out

    a("s_waitcnt lgkmcnt(0)")
    stamp(a, 1, 4)
    a(f"s_cmp_eq_u32 s{sM}, 15")
    a("s_cbranch_scc1 L_setup1")
    a(dma_stage(0, T3))
    stamp(a, 2, 4)
    a(f"s_cmp_lt_u32 s{sWAVE}, 4")
    a("s_cbranch_scc1 L_setup1")
    for n in PRE:
        a(dma_stage(n))
    a.label("L_setup1")
    stamp(a, 3, 4)
    a(f"""
    s_lshl_b32 s{T0}, s{sXCD}, 2
    s_and_b32 s{T1}, s{sJ}, 3
    s_add_u32 s{sHEAD}, s{T0}, s{T1}
    s_lshr_b32 s{sQB}, s{sJ}, 2
    s_add_u32 s{T0}, s{SWS}, {EP_OFF}
    s_addc_u32 s{T1}, s{SWS+1}, 0
    s_load_dword s{sTAG}, s[{T0}:{T1}], 0
    """)
    marks = [len(a.l)]
    S = [64, 80, 96, 112]
    O = 208
    OO = [48, 208]
    KL, KH = [128, 132], [240, 242]
    QL, QH = [136, 142], [140, 146]
    VF = [224, 232]
    MD, MF = 32, 48
    VK, VV, VIDX, VDMA, VQ, VOF, VW3, VOUT, VRED = 244, 245, 246, 247, 248, 249, 250, 251, 252
    VOUT2 = 253
    QB_OFF = 1 * K
    CH = [11 * K, 51 * K, 91 * K, 1 * K]
    A_OFF = 50 * K
    WOL = [[10 * K, 60 * K], [110 * K, 0]]
    SCR = [130 * K, 110 * K]
    OFB = [32, 148]
    ST = [188, 192, 196, 28, 4]

    a(f"""
    v_lshlrev_b32 v{VDMA}, 4, v0
    v_lshrrev_b32 v11, 5, v0               ; h
    v_and_b32 v12, 31, v0                  ; i
    v_and_b32 v13, 3, v12
    v_lshrrev_b32 v14, 3, v12
    v_lshl_add_u32 v13, v14, 2, v13        ; kappa & 15
    v_bfe_u32 v14, v12, 2, 1               ; kappa >> 4
    v_lshlrev_b32 v15, 4, v13
    v_lshl_add_u32 v16, v14, 3, v15
    v_lshl_add_u32 v16, v11, 8, v16
    v_add_u32 v{VK}, {CH[0]}, v16
    v_mul_u32_u24 v16, 20, v11
    v_add_u32 v16, v16, v12
    v_lshlrev_b32 v16, 4, v16
    v_add_u32 v{VV}, {CH[0] + 1280}, v16
    v_and_b32 v15, 15, v12
    v_lshlrev_b32 v15, 4, v15
    v_lshrrev_b32 v16, 4, v12
    v_lshl_add_u32 v15, v16, 3, v15        ; (q&15)*16 + (q>>4)*8
    v_lshl_add_u32 v{VQ}, v11, 8, v15
    v_mov_b32 v{VIDX}, 0xdddddddd
    v_and_b32 v17, 0x1b, v12
    v_cmp_eq_u32 vcc, 24, v17
    v_mov_b32 v16, 0x3f803f80
    s_nop 0
    v_cndmask_b32 v17, 0, v16, vcc
    """)
    for b in range(2):
        a(f"v_mov_b32 v{KH[b]}, 0x3f803f80")
        a(f"v_mov_b32 v{KH[b]+1}, 0x00003f80")
        for i in range(8):
            a(f"v_mov_b32 v{VF[b]+i}, v17")

    def mask_setup():
        out = [["v_lshrrev_b32 v13, 5, v0", "v_lshlrev_b32 v13, 4, v13", "v_and_b32 v12, 31, v0",
                "v_sub_u32 v13, v12, v13", f"v_mov_b32 v14, {NEGBIG}"]]
        for r in range(0, 16, 2):
            out.append([f"v_cmp_le_i32 s[{T0}:{T0+1}], {r}, v13",
                        f"v_cmp_le_i32 s[{T2}:{T2+1}], {r+1}, v13",
                        "s_nop 0",
                        f"v_cndmask_b32 v{MD+r}, v14, 0, s[{T0}:{T0+1}]",
                        f"v_cndmask_b32 v{MF+r}, 0, v14, s[{T0}:{T0+1}]",
                        f"v_cndmask_b32 v{MD+r+1}, v14, 0, s[{T2}:{T2+1}]",
                        f"v_cndmask_b32 v{MF+r+1}, 0, v14, s[{T2}:{T2+1}]"])
        return out

    def g3_setup():
        return [["v_lshrrev_b32 v10, 4, v0",
                 "v_lshlrev_b32 v11, 9, v10",
                 "v_and_b32 v12, 15, v0",
                 f"v_lshl_add_u32 v{VOF}, v12, 4, v11"],
                ["v_mul_u32_u24 v12, 2560, v12",
                 f"v_lshl_add_u32 v{VOUT}, v10, 4, v12",
                 f"v_lshl_add_u32 v{VOUT2}, v10, 3, v12"],
                [f"s_cmp_lt_u32 s{sWAVE}, 4",
                 f"s_cselect_b32 s{T0}, {WOL[1][0]}, {WOL[1][1]}",
                 f"v_add_u32 v{VW3}, s{T0}, v{VDMA}",
                 f"s_mul_i32 s{T0}, s{sCW}, 5120",
                 f"v_add_u32 v{VRED}, s{T0}, v{VDMA}"]]

    marks.append(len(a.l))
    a(mask_setup()[:5])
    marks.append(len(a.l))
    a(mask_setup()[5:])
    marks.append(len(a.l))
    a(g3_setup())
    for i in range(16):
        a(f"v_mov_b32 v{O+i}, 0")
    marks.append(len(a.l))

    XA = lambda sg, kk: 14 + sg * 6 + kk
    WA = lambda sg, ct: 14 + sg * 6 + 2 + ct
    a(f"""
    v_and_b32 v6, 15, v0
    v_lshrrev_b32 v8, 1, v6                ; f(row)
    v_xor_b32 v8, v8, v7                   ; o ^ f
    v_lshlrev_b32 v8, 4, v8
    v_lshl_add_u32 v8, v6, 7, v8
    s_lshr_b32 s{T0}, s{sCW}, 1
    s_lshl_b32 s{T0}, s{T0}, 13
    v_add_u32 v{XA(0,0)}, s{T0}, v8
    v_xor_b32 v{XA(0,1)}, 64, v{XA(0,0)}
    v_lshrrev_b32 v8, 2, v0
    v_and_b32 v8, 3, v8                    ; r
    v_lshl_add_u32 v9, v7, 3, v8           ; krow = 8o + r
    v_lshlrev_b32 v9, 8, v9
    v_add_u32 v9, {16*K}, v9
    v_and_b32 v10, 1, v7
    v_lshl_add_u32 v10, v10, 2, v8
    v_lshlrev_b32 v10, 1, v10              ; sigma
    v_bfe_u32 v11, v0, 1, 1                ; c>>1
    s_and_b32 s{T0}, s{sCW}, 1
    s_lshl_b32 s{T0}, s{T0}, 3
    v_or_b32 v11, s{T0}, v11               ; 8cg + (c>>1)
    v_xor_b32 v11, v11, v10
    v_lshl_add_u32 v11, v11, 4, v9
    v_and_b32 v12, 1, v0
    v_lshl_add_u32 v{WA(0,0)}, v12, 3, v11
    v_xor_b32 v{WA(0,1)}, 32, v{WA(0,0)}
    v_xor_b32 v{WA(0,2)}, 64, v{WA(0,0)}
    v_xor_b32 v{WA(0,3)}, 96, v{WA(0,0)}
    """)
    for sg in (1, 2):
        for i in range(6):
            a(f"v_add_u32 v{14+sg*6+i}, {sg*64*K}, v{14+i}")
    marks.append(len(a.l))
    EA = [196, 197, 198, 199]
    a(f"""
    s_lshl_b32 s{T0}, s{sTB}, 2
    s_and_b32 s{T1}, s{sCW}, 2
    s_add_u32 s{T0}, s{T0}, s{T1}
    s_lshr_b32 s{T1}, s{sWAVE}, 2
    s_xor_b32 s{T1}, s{T1}, 1
    s_lshl_b32 s{T1}, s{T1}, 11                ; p*32*64
    s_add_u32 s{T0}, s{T0}, s{T1}
    s_cmp_ge_u32 s{sM}, 5
    s_cselect_b32 s{T2}, 1, 0                  ; K or V
    s_lshl_b32 s{T3}, 1280, s{T2}
    s_mul_i32 s{sEQ}, s{T0}, s{T3}
    s_mul_i32 s{T0}, s{T2}, {KV_OFF}
    s_add_u32 s{sEQ}, s{sEQ}, s{T0}
    s_add_u32 s{sEK}, s{sEQ}, s{T3}
    s_lshl_b32 s{T3}, s{T3}, 6
    s_and_b32 s{T1}, s{sCW}, 1
    s_cmp_ge_u32 s{sM}, 10
    s_cbranch_scc1 L_ea1
    s_mul_i32 s{T0}, s{T2}, 5
    s_sub_u32 s{T0}, s{sM}, s{T0}
    s_lshl_b32 s{T0}, s{T0}, 5
    s_lshl_b32 s{T1}, s{T1}, 4
    s_add_u32 s{T0}, s{T0}, s{T1}
    v_add_u32 v8, s{T0}, v7
    v_lshlrev_b32 v10, 4, v6
    """)
    for ct in range(4):
        a(f"""
        v_add_u32 v9, {4*ct}, v8
        v_mul_u32_u24 v11, 205, v9
        v_lshrrev_b32 v11, 10, v11
        v_mul_u32_u24 v12, 5, v11
        v_sub_u32 v12, v9, v12
        v_mul_lo_u32 v11, v11, s{T3}
        v_lshl_add_u32 v12, v12, 8, v10
        v_add_u32 v{EA[ct]}, v11, v12
        """)
    a(f"""
    s_branch L_ea2
    L_ea1:
    s_sub_u32 s{T0}, s{sM}, 10
    s_lshl_b32 s{T0}, s{T0}, 7
    s_lshl_b32 s{T1}, s{T1}, 6
    s_add_u32 s{T0}, s{T0}, s{T1}
    v_add_u32 v8, s{T0}, v6
    v_mul_u32_u24 v10, 320, v7
    v_add_u32 v10, 1280, v10
    """)
    for ct in range(4):
        a(f"""
        v_add_u32 v9, {16*ct}, v8
        v_mul_u32_u24 v11, 3277, v9
        v_lshrrev_b32 v11, 16, v11
        v_mul_u32_u24 v12, 20, v11
        v_sub_u32 v12, v9, v12
        v_mul_lo_u32 v11, v11, s{T3}
        v_lshl_add_u32 v12, v12, 4, v10
        v_add_u32 v{EA[ct]}, v11, v12
        """)
    a.label("L_ea2")
    marks.append(len(a.l))
    a(f"""
    s_lshl_b32 s{sQT}, s{sQB}, 3
    s_add_u32 s{sQT}, s{sQT}, s{sWAVE}
    s_lshl_b32 s{sW1K}, s{sWAVE}, 10
    s_mov_b32 s{sVM}, 0x000fffff
    s_mov_b32 s{sVM+1}, 0x000fffff
    s_mov_b32 s{sLO}, -1
    s_mov_b32 s{sLO+1}, 0
    s_mov_b32 s{sCS}, {CSCALE}
    s_mov_b32 s{sONE}, 0x3f80
    s_mul_i32 s{sKVB}, s{sHEAD}, 163840
    s_add_u32 s{sKVB}, s{sKVB}, {KV_OFF}
    """)

    ACC = lambda ct, tt: 128 + (ct * 4 + tt) * 4
    XF = lambda buf, tt: 64 + buf * 32 + tt * 4
    WF = lambda buf, ct: 64 + buf * 32 + 16 + ct * 4

    def g1reads(i, kk):
        slot = i % 5
        sg, so = slot >> 1, (slot & 1) * 32 * K
        r = []
        for q in range(4):
            r.append(f"ds_read_b128 {vr(XF(kk,q),4)}, v{XA(sg,kk)} offset:{so + q*2048}")
            for rd in range(2):
                r.append(f"ds_read_b64_tr_b16 {vr(WF(kk,q)+2*rd,2)}, v{WA(sg,q)} offset:{so + kk*8192 + rd*1024}")
        return r

    VPG, VPUB, VPO, VPD = 202, 203, 206, 204
    sPM, sSTR = SDBG, SDBG + 2

    def only_wave(wave):
        lab = a.uniq("L_w")
        a(f"s_cmp_lg_u32 s{sWAVE}, {wave}")
        a(f"s_cbranch_scc1 {lab}")
        return lab

    def publish(kind, p, wave):
        lab = only_wave(wave)
        if kind == 0:
            a(f"""
            v_mov_b32 v1, s{sTAG}
            s_mov_b32 s{T4}, {FL_OFF + p*16384}
            s_mov_b64 exec, s[{sPM}:{sPM+1}]
            buffer_store_dword v1, v{VPUB}, {srd(SWS)}, s{T4} offen sc1
            s_mov_b64 exec, -1
            """)
        else:
            a(f"""
            s_lshl_b32 s{T4}, s{sQB}, 8
            s_lshl_b32 s{T5}, s{sHEAD}, 2
            s_add_u32 s{T4}, s{T4}, s{T5}
            s_add_u32 s{T4}, s{T4}, {FL_OFF + 32768}
            v_mov_b32 v1, s{sTAG}
            s_mov_b64 exec, 1
            buffer_store_dword v1, off, {srd(SWS)}, s{T4} sc1
            s_mov_b64 exec, -1
            """)
        a.label(lab)

    def poll_loads(kind, p):
        if kind == 0:
            return [f"s_mov_b32 s{T3}, {FL_OFF + p*16384}",
                    f"buffer_load_dwordx2 {vr(VPD,2)}, v{VPG}, {srd(SWS)}, s{T3} offen sc1"]
        return [f"s_mov_b32 s{T3}, {FL_OFF + 32768}",
                f"buffer_load_dword v{VPD}, v{VPO}, {srd(SWS)}, s{T3} offen sc1"]

    def poll_issue(kind, p, wave=0):
        lab = only_wave(wave) if wave is not None else a.uniq("L_w")
        a(poll_loads(kind, p))
        a.label(lab)

    def poll_check(kind, p, sleep=8, wave=0, first=0):
        lab = only_wave(wave) if wave is not None else a.uniq("L_w")
        loop = a.uniq("L_spin")
        a(f"s_mov_b32 s{sCNT}, 0x20000")
        a(f"s_waitcnt vmcnt({first})")
        a.label(loop)
        a(f"v_cmp_eq_u32 vcc, s{sTAG}, v{VPD}")
        if kind == 0:
            a(f"v_cmp_eq_u32 s[{T0}:{T0+1}], s{sTAG}, v{VPD+1}")
            a(f"s_orn2_b64 s[{T0}:{T0+1}], s[{T0}:{T0+1}], s[{sSTR}:{sSTR+1}]\ns_and_b64 vcc, vcc, s[{T0}:{T0+1}]")
        a(f"""
        s_cmp_eq_u64 vcc, -1
        s_cbranch_scc1 {lab}
        s_sleep {sleep}
        """)
        a(poll_loads(kind, p))
        a(f"""
        s_sub_u32 s{sCNT}, s{sCNT}, 1
        s_cmp_lg_u32 s{sCNT}, 0
        s_waitcnt vmcnt(0)
        s_cbranch_scc1 {loop}
        """)
        a.label(lab)

    a(f"""
    s_mul_i32 s{T0}, s{sHEAD}, 20
    s_add_u32 s{T1}, s{T0}, 19
    s_lshr_b32 s{T0}, s{T0}, 7
    s_lshr_b32 s{T1}, s{T1}, 7
    s_cmp_lg_u32 s{T0}, s{T1}
    s_cselect_b64 s[{sSTR}:{sSTR+1}], -1, 0
    s_lshl_b32 s{T0}, s{sHEAD}, 9
    v_lshl_add_u32 v{VPG}, v0, 3, s{T0}
    s_mul_i32 s{T0}, s{sM}, 52
    s_lshr_b32 s{T0}, s{T0}, 8                 ; type
    s_mul_i32 s{T1}, s{T0}, 5
    s_sub_u32 s{T1}, s{sM}, s{T1}
    s_mul_i32 s{T2}, s{T1}, 205
    s_lshr_b32 s{T2}, s{T2}, 5
    s_cmp_eq_u32 s{T1}, 2
    s_cselect_b32 s{sPM}, 0x80, 0
    s_or_b32 s{sPM}, s{sPM}, 0x7f
    s_cmp_eq_u32 s{sM}, 15
    s_cselect_b32 s{sPM}, -1, s{sPM}
    s_mov_b32 s{sPM+1}, 0
    s_lshl_b32 s{T2}, s{T2}, 9
    s_lshl_b32 s{T0}, s{T0}, 7
    s_add_u32 s{T2}, s{T2}, s{T0}
    s_lshl_b32 s{T0}, s{sTB}, 3
    s_add_u32 s{T2}, s{T2}, s{T0}
    v_lshl_add_u32 v{VPUB}, v0, 9, s{T2}
    s_min_u32 s{T1}, s{T1}, 1
    s_lshl_b32 s{T1}, s{T1}, 2
    s_mov_b64 exec, 1
    v_add_u32 v{VPUB}, s{T1}, v{VPUB}
    s_mov_b64 exec, -1
    v_and_b32 v8, 31, v0
    v_lshlrev_b32 v8, 2, v8
    s_lshl_b32 s{T0}, s{sXCD}, 8
    v_add_u32 v{VPO}, s{T0}, v8
    """)
    a(f"s_waitcnt lgkmcnt(0)\ns_add_u32 s{sTAG}, s{sTAG}, 0x9e3779b1")
    marks.append(len(a.l))
    late = a.l[marks[0]:marks[4]]
    del a.l[marks[0]:marks[4]]
    late = [re.sub(r"\bv(1[4-7])\b", lambda m: "v%d" % (int(m.group(1)) - 8), x.split(";")[0]).strip() for x in late]
    a(f"s_cmp_eq_u32 s{sM}, 15")
    a("s_cbranch_scc1 L_idle")

    stamp(a, 4, 4)
    a(f"s_cmp_lt_u32 s{sWAVE}, 4")
    a("s_cbranch_scc1 L_xstart")
    for n in NS:
        if n > 10:
            break
        if WAITS["Y", n] is not None:
            a(f"s_waitcnt vmcnt({WAITS['Y', n]})")
        a("s_barrier")
        if n < 10:
            for x in SCH[n]:
                a(dma_stage(x))
    a("s_setprio 3")
    a("s_branch L_compute")
    a.label("L_xstart")
    a(f"""
    s_add_u32 s{sKS}, s{sKS}, {XFIRST - 11}
    s_cmp_ge_u32 s{sKS}, 10
    s_cselect_b32 s{T0}, 10, 0
    s_sub_u32 s{sKS}, s{sKS}, s{T0}
    s_waitcnt vmcnt(0)
    """)
    stamp(a, 5, 4)
    a("s_barrier")
    a.label("L_compute")
    stamp(a, 6, 4)
    stamp(a, 1)
    stamp(a, 1, 1)
    a(g1reads(0, 0))
    a(f"s_cmp_ge_u32 s{sM}, 10")
    a("s_cbranch_scc1 L_comp1")

    def interleave(ms, rs, step):
        per = -(-len(late) // 18)
        ex = late[step * per:(step + 1) * per] if step < 18 else []
        out = []
        ri = xi = 0
        for i, m in enumerate(ms):
            out.append(m)
            if ri < len(rs):
                out.append(rs[ri]); ri += 1
            if i >= 16 - per and xi < len(ex):
                out.append(ex[xi]); xi += 1
        out += rs[ri:] + ex[xi:]
        return out

    for cg in range(2):
        if cg == 1:
            a.label("L_comp1")

        def mm(i, kk):
            out = []
            for ct in range(4):
                for tt in range(4):
                    c = None if (i == 0 and kk == 0) else ACC(ct, tt)
                    if cg == 1:
                        out.append(mfma16(ACC(ct, tt), XF(kk, tt), WF(kk, ct), c))
                    else:
                        out.append(mfma16(ACC(ct, tt), WF(kk, ct), XF(kk, tt), c))
            return out
        for i in range(10):
            a("s_waitcnt lgkmcnt(0)")
            a(interleave(mm(i, 0), g1reads(i, 1), 2 * i))
            wy = WAITS.get(("Y", i + 11))
            a("s_waitcnt lgkmcnt(0)" + (f" vmcnt({wy})" if wy is not None else ""))
            bx, by = (i + 1) in SCH, (i + 11) in SCH
            if bx and by:
                a("s_barrier")
            elif bx or by:
                lab = a.uniq("L_nb")
                a(f"s_cmp_{'ge' if bx else 'lt'}_u32 s{sWAVE}, 4\ns_cbranch_scc1 {lab}\ns_barrier\n{lab}:")
            if i in (1, 3, 5, 7, 9):
                stamp(a, 2 + i // 2, 1)
            a(interleave(mm(i, 1), g1reads(i + 1, 0) if i < 9 else [], 2 * i + 1))
        if cg == 0:
            a("s_branch L_g1epi")
    a.label("L_g1epi")
    stamp(a, 2)

    def g1_stores():
        t = 64
        for ct in range(4):
            for tp in range(2):
                for h in range(2):
                    s_ = ACC(ct, 2 * tp + h)
                    a(f"v_cvt_pk_bf16_f32 v{t+2*h}, v{s_}, v{s_+1}")
                    a(f"v_cvt_pk_bf16_f32 v{t+2*h+1}, v{s_+2}, v{s_+3}")
                a(f"buffer_store_dwordx4 {vr(t,4)}, v{EA[ct]}, {srd(SWS)}, s{sEQ if tp == 0 else sEK} offen {HST}")
                t += 4
    a(f"s_cmp_lt_u32 s{sWAVE}, 4")
    a("s_cbranch_scc1 L_xload")
    a("v_mov_b32 v10, 0\nv_mov_b32 v11, 1\ns_mov_b64 exec, 1\nds_add_u32 v10, v11 offset:8\ns_mov_b64 exec, -1")
    stamp(a, 7, 1)
    a("s_nop 2")
    g1_stores()
    stamp(a, 8, 1)
    a("s_branch L_attn_setup")

    def lds_wait(off, val, sleep=1):
        loop = a.uniq("L_lw")
        a(f"s_mov_b32 s{sCNT}, 0x400000\nv_mov_b32 v10, 0")
        a.label(loop)
        a(f"""
        ds_read_b32 v11, v10 offset:{off}
        s_waitcnt lgkmcnt(0)
        v_readfirstlane_b32 s{T0}, v11
        s_cmp_eq_u32 s{T0}, {val}
        s_cbranch_scc1 {loop}_ok
        s_sleep {sleep}
        s_sub_u32 s{sCNT}, s{sCNT}, 1
        s_cmp_lg_u32 s{sCNT}, 0
        s_cbranch_scc1 {loop}
        {loop}_ok:
        """)

    a.label("L_xload")
    a("s_nop 7")
    for n in NS:
        if n < 10:
            continue
        if n > 10:
            w = WAITS["X", n]
            if n == NS[-1]:
                lab = a.uniq("L_w0")
                a(f"s_waitcnt vmcnt(1) lgkmcnt(0)\ns_cmp_eq_u32 s{sWAVE}, 0\ns_cbranch_scc1 {lab}\ns_waitcnt vmcnt(0)\n{lab}:")
            elif w is not None:
                a(f"s_waitcnt vmcnt({w})")
            a("s_barrier")
        for x in SCH[n]:
            if x == "S":
                stamp(a, 7, 1)
                g1_stores()
                stamp(a, 8, 1)
            elif x == "P":
                stamp(a, 9, 1)
                publish(0, 1, 1)
            elif x == "Z":
                stamp(a, 10, 1)
                assert SCH[n][-1] == "Z" and NS[-2] == n
                poll_issue(0, 1)
                a("v_mov_b32 v10, 0\nv_mov_b32 v11, 0\nds_write_b64 v10, v[10:11]\nds_write_b32 v10, v10 offset:8")
            else:
                a(dma_stage(x))
    stamp(a, 3)
    stamp(a, 11, 1)
    poll_check(0, 1, sleep=4)
    lab = only_wave(0)
    a("v_mov_b32 v10, 0\nv_mov_b32 v11, 1\nds_write_b32 v10, v11")
    a.label(lab)
    lds_wait(0, 1)

    def first_loads(part):
        a(f"s_add_u32 s{T0}, s{sKVB}, s{sW1K}")
        if part == 0:
            a(f"""
            s_mul_i32 s{T3}, s{sHEAD}, 81920
            s_mul_i32 s{T4}, s{sQB}, 10240
            s_add_u32 s{T3}, s{T3}, s{T4}
            s_add_u32 s{T3}, s{T3}, s{sW1K}
            """)
            for j in range(3):
                lab = None
                if j == 2:
                    lab = a.uniq("L_q")
                    a(f"s_cmp_ge_u32 s{sWAVE}, 2\ns_cbranch_scc1 {lab}")
                a(f"""
                s_add_u32 m0, s{sW1K}, {QB_OFF + j*4096}
                s_add_u32 s{T2}, s{T3}, {QW_OFF + 32*81920 + j*4096}
                buffer_load_dwordx4 v{VDMA}, {srd(SWS)}, s{T2} offen {HS} lds
                """)
                if lab:
                    a.label(lab)
        for j in range(5 * part, 5 * part + 5):
            a(f"""
            s_add_u32 m0, s{sW1K}, {CH[0] + j*4096}
            s_add_u32 s{T2}, s{T0}, {32*163840 + j*4096}
            buffer_load_dwordx4 v{VDMA}, {srd(SWS)}, s{T2} offen {HS} lds
            """)
    a.label("L_x1")
    first_loads(0)
    a.label("L_x2")
    stamp(a, 4)
    stamp(a, 12, 1)
    first_loads(1)
    a.label("L_attn_setup")
    def scale_q(p):
        for r in [QL[p] + i for i in range(4)] + [QH[p], QH[p] + 1]:
            a(f"""
            v_lshlrev_b32 v15, 16, v{r}
            v_and_b32 v16, 0xffff0000, v{r}
            v_mul_f32 v15, s{sCS}, v15
            v_mul_f32 v16, s{sCS}, v16
            v_cvt_pk_bf16_f32 v{r}, v15, v16
            """)
        reset_m(p)

    def reset_m(p):
        a(f"""
        v_mov_b32 v15, 0x3f800000
        v_cndmask_b32 v{QH[p]}, 0, v{QH[p]}, s[{sLO}:{sLO+1}]
        v_cndmask_b32 v{QH[p]+1}, v15, v{QH[p]+1}, s[{sLO}:{sLO+1}]
        """)

    def set_m(p, M):
        a(f"""
        v_mov_b32 v15, v{M}
        s_nop 1
        v_permlane32_swap_b32 v15, v{M}
        s_nop 1
        v_max_f32 v15, v15, v{M}
        v_sub_f32 v15, 0, v15                  ; -m
        v_and_b32 v16, 0xffff0000, v15         ; hi
        v_sub_f32 v17, v15, v16
        v_and_b32 v18, 0xffff0000, v17         ; mid
        v_sub_f32 v17, v17, v18                ; lo
        v_lshrrev_b32 v16, 16, v16
        v_or_b32 v16, v16, v18
        v_lshrrev_b32 v17, 16, v17
        v_or_b32 v17, 0x3f800000, v17
        v_cndmask_b32 v{QH[p]}, v16, v{QH[p]}, s[{sLO}:{sLO+1}]
        v_cndmask_b32 v{QH[p]+1}, v17, v{QH[p]+1}, s[{sLO}:{sLO+1}]
        """)

    def kreads(buf, off, restore=True):
        return [f"ds_read2st64_b64 {vr(KL[buf],4)}, v{VK} offset0:{off//512} offset1:{off//512+1}",
                f"s_mov_b64 exec, s[{sLO}:{sLO+1}]",
                f"ds_read_b64 {vr(KH[buf],2)}, v{VK} offset:{off+1024}"] + (["s_mov_b64 exec, -1"] if restore else [])

    def vreads(buf, off):
        return [f"s_mov_b64 exec, s[{sVM}:{sVM+1}]",
                f"ds_read_b128 {vr(VF[buf],4)}, v{VV} offset:{off}",
                f"ds_read_b128 {vr(VF[buf]+4,4)}, v{VV} offset:{off+640}",
                "s_mov_b64 exec, -1"]

    def qk(Sd, buf, p, C=None):
        return [mfma32(Sd, KL[buf], QL[p], C), mfma32k8(Sd, KH[buf], QH[p], Sd)]

    def pv(Ss, buf, o):
        return [f"v_smfmac_f32_32x32x32_bf16 {vr(o,16)}, {vr(VF[buf],4)}, {vr(Ss,8)}, v{VIDX}",
                f"v_smfmac_f32_32x32x32_bf16 {vr(o,16)}, {vr(VF[buf]+4,4)}, {vr(Ss+8,8)}, v{VIDX}"]

    def cap(fn, *args):
        keep, a.l = a.l, []
        fn(*args)
        out, a.l = [x.strip() for x in a.l], keep
        return out

    def exps(Ss):
        return [f"v_exp_f32 v{Ss+i}, v{Ss+i}" for i in range(16)]

    def maxtree(M, Ss, first):
        out = []
        if first:
            out.append(f"v_max3_f32 v{M}, v{Ss}, v{Ss+1}, v{Ss+2}")
            rest = list(range(3, 16))
        else:
            rest = list(range(16))
        while len(rest) >= 2:
            out.append(f"v_max3_f32 v{M}, v{M}, v{Ss+rest[0]}, v{Ss+rest[1]}")
            rest = rest[2:]
        if rest:
            out.append(f"v_max_f32 v{M}, v{M}, v{Ss+rest[0]}")
        return out

    def zero_o(p):
        for i in range(16):
            a(f"v_mov_b32 v{OO[p]+i}, 0")

    def o_addr(p):
        return f"""
        s_mul_i32 s{T0}, s{sQT}, 40960
        s_add_u32 s{T0}, s{T0}, {OW_OFF + p*64*40960}
        s_lshl_b32 s{T1}, s{sHEAD}, 10
        s_add_u32 s{T1}, s{T1}, s{T0}
        s_lshr_b32 s{T2}, s{sHEAD}, 2
        s_add_u32 s{T2}, s{T2}, 32
        s_lshl_b32 s{T2}, s{T2}, 10
        s_add_u32 s{T2}, s{T2}, s{T0}
        s_and_b32 s{T3}, s{sHEAD}, 1
        s_lshl_b32 s{T3}, s{T3}, 9
        s_add_u32 s{T2}, s{T2}, s{T3}
        s_and_b32 s{T3}, s{sHEAD}, 2
        s_lshl_b32 s{T3}, s{T3}, 2
        s_add_u32 s{T2}, s{T2}, s{T3}
        """

    def o_store():
        return f"""
        buffer_store_dwordx4 v[20:23], v{VDMA}, {srd(SWS)}, s{T1} offen {HST}
        s_mov_b64 exec, s[{sLO}:{sLO+1}]
        buffer_store_dwordx2 v[24:25], v{VDMA}, {srd(SWS)}, s{T2} offen {HST}
        s_mov_b64 exec, -1
        """

    def epilogue(p):
        o = OO[p]
        a(f"v_rcp_f32 v15, v{o+12}")
        a(o_addr(p))
        for i in range(12):
            a(f"v_mul_f32 v{o+i}, v{o+i}, v15")
        for i in range(6):
            a(f"v_cvt_pk_bf16_f32 v{20+i}, v{o+2*i}, v{o+2*i+1}")
        a(o_store())

    def finite(p):
        a(f"v_mul_f32 v15, 0, v{OO[p]}")
        for i in range(1, 13):
            a(f"v_fmac_f32 v15, 0, v{OO[p]+i}")
        a("v_cmp_u_f32 vcc, v15, v15")

    def pen(reg, u):
        return [f"s_cmp_ge_u32 s{sQT}, {8 - u}",
                f"s_cselect_b32 s{T0}, s{sONE}, {(NEGBIG & 0xffff0000) | 0x3f80}",
                f"s_not_b64 exec, s[{sLO}:{sLO+1}]",
                f"v_mov_b32 v{reg+1}, s{T0}",
                "s_mov_b64 exec, -1"]

    def tile_step(t, n, pf, koff, voff, cmask, extra_k=None, hooks=None, midprio=None):
        a("s_waitcnt lgkmcnt(0)")
        rd = []
        if t + 2 < n:
            rd += kreads(t & 1, koff(t + 2), restore=(t >= n))
        if t < n:
            rd += vreads(t & 1, voff(t))
        if extra_k and t + 2 < n:
            rd += extra_k(t & 1, t + 2)
        q = qk(S[(t + 1) & 3], (t + 1) & 1, pf(t + 1), cmask(t + 1)) if t + 1 < n else []
        pp = pv(S[(t - 1) & 3], (t - 1) & 1, OO[pf(t - 1)]) if t >= 1 else []
        e = exps(S[t & 3]) if t < n else []
        if t == 0:
            a("s_nop 10")
        ms = q + pp
        if not e:
            a(["s_nop 1"] + ms)
            return
        order = OPT.get("ord", 1)
        if len(ms) == 4:
            ms = [ms, [q[0], pp[0], q[1], pp[1]], [q[0], pp[0], pp[1], q[1]]][order]
        rpos, roff = divmod(OPT.get("rp", 2), 10)
        hooks = hooks or []
        hp = [i for i in range(4) if i != rpos]
        nh = (len(hooks) + 2) // 3
        for i in range(4):
            if i == 2 and midprio is not None:
                a(f"s_setprio {midprio}")
            if i < len(ms):
                a(ms[i])
            if i == rpos:
                a(e[4 * i:4 * i + roff] + rd + e[4 * i + roff:4 * i + 4])
            else:
                a(e[4 * i:4 * i + 2])
                k = hp.index(i)
                for hk in hooks[k * nh:(k + 1) * nh]:
                    a(hk)
                a(e[4 * i + 2:4 * i + 4])
        if order == 2 and len(ms) == 4:
            a("s_nop 4")

    def wo_piece(p, q0, ldsbase, cond=None):
        o = [f"s_add_u32 m0, s{sW1K}, {ldsbase & 0xffffffff}",
             f"s_add_u32 s{T1}, s{sKVS}, {WP_OFF + p*819200 + q0*1024}",
             f"buffer_load_dwordx4 v{VDMA}, {srd(SWS)}, s{T1} offen {HS} lds"]
        if cond is not None:
            lab = a.uniq("L_wo")
            o = [f"s_cmp_ge_u32 s{sWAVE}, {cond}", f"s_cbranch_scc1 {lab}"] + o + [f"{lab}:"]
        return o

    def wo_half(p, kh):
        return [wo_piece(p, 50 * kh + 8 * k, WOL[p][kh] + 8 * k * 1024, cond=2 if k == 6 else None) for k in range(7)]

    def wo_base():
        return [f"s_mul_i32 s{sKVS}, s{sQB}, 102400", f"s_add_u32 s{sKVS}, s{sKVS}, s{sW1K}"]

    def o_base(p=0):
        return [f"s_lshl_b32 s{T0}, s{sHEAD}, 1",
                f"s_lshr_b32 s{T1}, s{sCW}, 1",
                f"s_add_u32 s{T0}, s{T0}, s{T1}",
                f"s_mul_i32 s{T0}, s{T0}, 40960",
                f"s_and_b32 s{T1}, s{sCW}, 1",
                f"s_lshl_b32 s{T1}, s{T1}, 8",
                f"s_add_u32 s{T0}, s{T0}, s{T1}",
                f"s_add_u32 s{T0}, s{T0}, {OW_OFF + p*64*40960}",
                f"s_lshr_b32 s{T1}, s{sWAVE}, 2",
                f"s_lshl_b32 s{sEK}, s{T1}, 12",
                f"s_add_u32 s{sEK}, s{sEK}, s{T0}",
                f"s_add_u32 s{sEK}, s{sEK}, {16*2048}",
                f"s_lshl_b32 s{T1}, s{T1}, 14",
                f"s_add_u32 s{sEQ}, s{T0}, s{T1}"]

    def o_load(p, i):
        d = OFB[p] + 4 * i
        if i < 8:
            return [f"s_add_u32 s{T5}, s{sEQ}, {p*64*40960 + (i>>1)*4096}",
                    f"buffer_load_dwordx4 {vr(d,4)}, v{VOF}, {srd(SWS)}, s{T5} offen offset:{(i&1)*2048} {HS}"]
        return [f"s_add_u32 s{T5}, s{sEK}, {p*64*40960}",
                f"buffer_load_dwordx4 {vr(d,4)}, v{VOF}, {srd(SWS)}, s{T5} offen offset:{(i-8)*2048} {HS}"]

    lab = a.uniq("L_xl")
    a(f"s_cmp_ge_u32 s{sWAVE}, 4\ns_cbranch_scc1 {lab}")
    a("s_waitcnt vmcnt(0)\nv_mov_b32 v10, 0\nv_mov_b32 v11, 1\ns_mov_b64 exec, 1\nds_add_u32 v10, v11 offset:4\ns_mov_b64 exec, -1")
    a(f"s_branch {lab}_j")
    a.label(lab)
    lds_wait(8, 4)
    a.label(lab + "_j")
    lds_wait(4, 4)
    stamp(a, 5)
    stamp(a, 13, 1)
    a(f"""
    s_mul_i32 s{T0}, s{sWAVE}, 1280
    s_add_u32 s{T0}, s{T0}, {QB_OFF}
    v_add_u32 v15, s{T0}, v{VQ}
    ds_read2st64_b64 {vr(QL[1],4)}, v15 offset0:0 offset1:1
    ds_read_b64 {vr(QH[1],2)}, v15 offset:1024
    s_add_u32 s{sKVS}, s{sKVB}, s{sW1K}
    """)
    a(kreads(0, 0))
    a(kreads(1, 2560))
    a("s_waitcnt lgkmcnt(4)")
    scale_q(1)
    a("s_waitcnt lgkmcnt(2)")
    a(qk(S[0], 0, 1))
    a("s_nop 15")
    a(maxtree(19, S[0], True))
    set_m(1, 19)
    a("s_nop 1")
    a(qk(S[0], 0, 1))

    def dmaY(j):
        lab = a.uniq("L_dy")
        return [f"s_cmp_lt_u32 s{sWAVE}, 4", f"s_cbranch_scc1 {lab}",
                f"s_add_u32 m0, s{sW1K}, {CH[1] + j*4096 - 4096}",
                f"s_add_u32 s{T2}, s{sKVS}, {32*163840 + 40960 + j*4096 - 4096}",
                f"buffer_load_dwordx4 v{VDMA}, {srd(SWS)}, s{T2} offen {HS} lds", f"{lab}:"]

    def dma3(r):
        return [f"s_add_u32 m0, s{sW1K}, {CH[3] + r*8192}",
                f"s_add_u32 s{T2}, s{sKVS}, {32*163840 + 3*40960 + r*8192}",
                f"buffer_load_dwordx4 v{VDMA}, {srd(SWS)}, s{T2} offen {HS} lds"]

    def dmaA(j):
        out = [f"s_mul_i32 s{T1}, s{sQB}, 20480", f"s_sub_u32 s{T1}, s{T1}, 20480"]
        if j < 2:
            out += [f"s_max_i32 s{T1}, s{T1}, 0"]
        elif j == 2:
            out += [f"s_max_i32 s{T0}, s{T1}, 0", f"s_cmp_lt_u32 s{sWAVE}, 4", f"s_cselect_b32 s{T1}, s{T0}, s{T1}"]
        out += [f"s_add_u32 s{T1}, s{T1}, s{sKVS}", f"s_add_u32 m0, s{sW1K}, {A_OFF + j*8192}",
                f"s_add_u32 s{T1}, s{T1}, {j*8192}",
                f"buffer_load_dwordx4 v{VDMA}, {srd(SWS)}, s{T1} offen {HS} lds"]
        return out

    qa_loads = [f"s_mul_i32 s{T0}, s{sHEAD}, 81920",
                f"s_mul_i32 s{T2}, s{sQT}, 1280",
                f"s_add_u32 s{T0}, s{T0}, s{T2}",
                f"buffer_load_dwordx2 {vr(QL[0],2)}, v{VQ}, {srd(SWS)}, s{T0} offen {HS}",
                f"buffer_load_dwordx2 {vr(QL[0]+2,2)}, v{VQ}, {srd(SWS)}, s{T0} offen offset:512 {HS}",
                f"s_mov_b64 exec, s[{sLO}:{sLO+1}]",
                f"buffer_load_dwordx2 {vr(QH[0],2)}, v{VQ}, {srd(SWS)}, s{T0} offen offset:1024 {HS}",
                "s_mov_b64 exec, -1"]
    assert QW_OFF == 0

    NT = 73
    PC = 64 + OPT.get("pc", 7)
    EB = OPT.get("eb", 65)
    h1 = wo_half(1, 1)
    nper = -(-10 // (NT - PC))
    ST0, ST1, KLT, KHT, VKT = 148, 164, 180, 184, 186
    sq = cap(scale_q, 0)

    def kt_reads(u):
        return [f"ds_read2st64_b64 {vr(KLT,4)}, v{VKT} offset0:{5*u} offset1:{5*u+1}",
                f"s_mov_b64 exec, s[{sLO}:{sLO+1}]",
                f"ds_read_b64 {vr(KHT,2)}, v{VKT} offset:{u*2560+1024}",
                "s_mov_b64 exec, -1"]
    adelta = [f"s_mul_i32 s{T0}, s{sWAVE}, 2560", f"s_add_u32 s{T0}, s{T0}, {A_OFF - CH[3]}"]
    xh = {50: [sq[:10], sq[10:20]], 51: [sq[20:30], sq[30:]],
          52: [adelta + [f"v_add_u32 v{VKT}, s{T0}, v{VK}", f"v_mov_b32 v{KHT}, 0x3f803f80"] + pen(KHT, 7), kt_reads(7)],
          53: [[mfma32(ST0, KLT, QL[0], None)], [mfma32k8(ST0, KHT, QH[0], ST0)] + kt_reads(8) + pen(KHT, 8)],
          54: [[mfma32(ST1, KLT, QL[0], MD)], [mfma32k8(ST1, KHT, QH[0], ST1)]],
          55: [maxtree(19, ST0, True)[:4], maxtree(19, ST0, True)[4:]],
          56: [maxtree(19, ST1, False)[:4], maxtree(19, ST1, False)[4:]],
          57: [cap(set_m, 0, 19)[:5], cap(set_m, 0, 19)[5:]],
          64: [[], cap(zero_o, 0)[:8], cap(zero_o, 0)[8:]]}
    ep = cap(epilogue, 1)
    xh[EB] = [cap(finite, 1)[:7], cap(finite, 1)[7:] + ["s_cmp_lg_u64 vcc, 0", f"s_cselect_b32 s{sBAD}, 1, 0"], ep[:21]]
    xh[EB + 1] = [ep[21:33] + [f"s_cmp_lg_u32 s{sBAD}, 0", "s_cbranch_scc1 L_nostB"] + ep[33:] + ["L_nostB:"]]
    assert ep[33].startswith("buffer_store") and ep[20].startswith("v_mul")
    pf = lambda u: 1 if u < 64 else 0
    off = lambda u: (u & 15) * 2560 if u < 64 else (u - 64) * 2560
    cm = lambda u: MF if u == 64 else (MD if u == 72 else None)
    for t in range(NT + 1):
        hooks = []
        if t < 10:
            hooks = [dmaY(2 * t), dmaY(2 * t + 1)]
        if t == 14:
            a("s_waitcnt vmcnt(0) lgkmcnt(0)\ns_barrier")
            stamp(a, 6)
            cstamp(a, 1)
            stamp(a, 14, 1)
            publish(0, 0, 4)
        if 14 <= t < 19:
            hooks = [dma3(t - 14)]
        if t == 26:
            hooks = [[f"v_mov_b32 v{20+i}, -1" for i in range(6)], o_addr(0), o_store()]
        if t == 27:
            hooks = [o_addr(1), o_store()]
        if t == 29:
            poll_issue(0, 0)
        if t == 33:
            poll_check(0, 0)
            a("s_waitcnt vmcnt(0) lgkmcnt(0)\ns_barrier")
            publish(1, 0, 1)
            stamp(a, 7)
            cstamp(a, 3)
        if 33 <= t < 38:
            hooks = [dmaA(t - 33)]
        if t == 38:
            hooks = [qa_loads]
        if t == 40:
            hooks = [wo_base(), o_base()]
        if 41 <= t < 46:
            k = t - 41
            hooks = [[f"s_add_u32 s{T1}, s{sKVS}, {WP_OFF + k*8192}",
                      f"buffer_load_dwordx4 {vr(ST[k],4)}, v{VDMA}, {srd(SWS)}, s{T1} offen {HS}"]]
        if 56 <= t < 59:
            k = t - 56
            hooks = [wo_piece(0, 80 + 8 * k, WOL[0][0] + (80 + 8 * k) * 1024, cond=4 if k == 2 else None)]
        if t == 46:
            poll_issue(1, 0)
        if t == 49:
            poll_check(1, 0)
            a("s_waitcnt vmcnt(0) lgkmcnt(0)\ns_barrier")
            stamp(a, 8)
            cstamp(a, 5)
        if 49 <= t < 56:
            hooks = [wo_half(1, 0)[t - 49]]
        if t == 67:
            a("s_barrier")
            stamp(a, 10)
            cstamp(a, 7)
            stamp(a, 3, 2)
        if 67 <= t < 70:
            hooks = h1[3 * (t - 67):3 * (t - 66)]
        if PC <= t < NT:
            hooks = [o_load(1, i) for i in range((t - PC) * nper, min(10, (t - PC + 1) * nper))]
        if t in xh:
            hx = xh[t] + [[]] * (3 - len(xh[t]))
            assert len(hooks) <= 1
            hooks = [hx[0], hx[1], hx[2] + (hooks[0] if hooks else [])]
        if t < 14:
            a("s_nop 0")
        else:
            t0 = max(x for x in (14, 33, 49, 67) if x <= t)
            a(f"s_setprio {3 - (t - t0) % 4}")
        if t + 2 in (16, 32, 48):
            c = (t + 2) // 16
            a(f"v_add_u32 v{VK}, {(CH[c] - CH[c - 1]) & 0xffffffff}, v{VK}")
        if t in (16, 32, 48):
            c = t // 16
            a(f"v_add_u32 v{VV}, {(CH[c] - CH[c - 1]) & 0xffffffff}, v{VV}")
        if t == 62:
            a(f"v_mov_b32 v{VK}, v{VKT}")
        if t == 64:
            stamp(a, 9)
            stamp(a, 1, 2)
            a(adelta + [f"v_add_u32 v{VV}, s{T0}, v{VV}"])
        tile_step(t, NT, pf, off, off, cm, extra_k=lambda b, u: pen(KH[b], u - 64) if u >= 64 else [], hooks=hooks)
    a("s_setprio 0")
    a(f"s_cmp_lg_u32 s{sBAD}, 0")
    a("s_cbranch_scc1 L_slowB")
    a.label("L_chkA")
    a("s_nop 8")
    finite(0)
    a("s_nop 4")
    a("s_cbranch_vccnz L_slowA")
    a.label("L_epiA")
    epilogue(0)
    stamp(a, 11)
    stamp(a, 7, 2)

    GA = [148, 208]
    GW = lambda buf, ct: 72 + buf * 20 + 4 * ct
    FT = 168
    retries = []

    def g3reads(i):
        return [f"ds_read_b128 {vr(GW(i%3,ct),4)}, v{VW3} offset:{(i*5+ct)*1024}" for ct in range(5)]

    def part_out(p):
        a(f"v_add_u32 v10, {SCR[p]}, v{VRED}")
        for ct in range(5):
            a(f"ds_write_b128 v10, {vr(GA[p]+4*ct,4)} offset:{ct*1024}")

    def finish(p):
        a(f"v_add_u32 v10, {SCR[p]}, v{VRED}")
        for ct in range(5):
            a(f"ds_read_b128 {vr(FT+4*ct,4)}, v10 offset:{ct*1024}")
        a(f"""
        s_lshl_b32 s{T0}, s{sHEAD}, 2
        s_add_u32 s{T0}, s{T0}, s{sCW}
        s_mul_i32 s{T0}, s{T0}, {16*2560}
        s_mul_i32 s{T1}, s{sQB}, 160
        s_add_u32 s{T0}, s{T0}, s{T1}
        s_add_u32 s{T0}, s{T0}, {p*1280}
        """)
        for g, (lo, hi) in enumerate(((0, 8), (8, 16), (16, 20))):
            a(f"s_waitcnt lgkmcnt({[3, 1, 0][g]})")
            for i in range(lo, hi):
                a(f"v_add_f32 v{FT+i}, v{FT+i}, v{GA[p]+i}")
            for i in range(lo // 2, hi // 2):
                a(f"v_cvt_pk_bf16_f32 v{FT+20+i}, v{FT+2*i}, v{FT+2*i+1}")
            a(f"buffer_store_dwordx{4 if g < 2 else 2} {vr(FT+20+4*g, 4 if g < 2 else 2)}, v{VOUT if g < 2 else VOUT2}, {srd(SOUT)}, s{T0} offen offset:{64*g} {OUTP}")

    def o_check(p, i, n):
        d = OFB[p] + 4 * i
        a(f"""
        s_waitcnt vmcnt({n})
        L_gw{p}_{i}:
        v_max3_u32 v10, v{d}, v{d+1}, v{d+2}
        v_max_u32 v10, v10, v{d+3}
        v_cmp_eq_u32 vcc, -1, v10
        s_cbranch_vccnz L_gr{p}_{i}
        L_gc{p}_{i}:
        """)
        retries.append((p, i))

    a(f"s_mov_b32 s{sCNT}, 0x20000")
    OI = OPT.get("oi", 11)
    a("s_waitcnt vmcnt(12)")
    a("s_barrier")
    stamp(a, 8, 2)
    a(g3reads(0))
    a(g3reads(1))
    young = 2
    nd = no = 0
    for i in range(10):
        o_check(1, i, 9 - i + young)
        a(f"s_waitcnt lgkmcnt({5 if i < 9 else 0})")
        rs = g3reads(i + 2) if i < 8 else []
        for ct in range(5):
            a(mfma16(GA[1] + 4 * ct, GW(i % 3, ct), OFB[1] + 4 * i, None if i == 0 else GA[1] + 4 * ct))
            a(rs[ct:ct + 1])
        if nd < 5:
            a(wo_piece(0, 40 + 8 * nd, WOL[0][0] + (40 + 8 * nd) * 1024))
            nd += 1; young += 1
        if i >= OI:
            n = -(-10 // (10 - OI))
            for k in range(no, min(10, no + n)):
                a(o_load(0, k)); young += 1
            no = min(10, no + n)
    assert OI >= 5
    if OI <= 10:
        for k in range(no, 10):
            a(o_load(0, k))
    a("s_barrier")
    stamp(a, 9, 2)
    a(f"s_add_u32 s{T0}, s{sW1K}, {WOL[0][0]}\nv_add_u32 v11, s{T0}, v{VDMA}")
    MRG = OPT.get("mrg", 0)
    if not MRG:
        a(f"s_cmp_lt_u32 s{sWAVE}, 4\ns_cbranch_scc1 L_pb1")
        part_out(1)
        a.label("L_pb1")
    for k in range(5):
        a(f"ds_write_b128 v11, {vr(ST[k],4)} offset:{k*8192}")
    a(f"""
    s_cmp_lt_u32 s{sWAVE}, 4
    s_mov_b32 s{T0}, {(WOL[0][1] - WOL[1][1]) & 0xffffffff}
    s_cselect_b32 s{T0}, {(WOL[0][0] - WOL[1][0]) & 0xffffffff}, s{T0}
    v_add_u32 v{VW3}, s{T0}, v{VW3}
    """)
    if OI == 11:
        for k in range(10):
            a(o_load(0, k))
    a(f"s_waitcnt lgkmcnt(0) vmcnt({10 if OI <= 11 else 0})\ns_barrier")
    if OI == 12:
        for k in range(10):
            a(o_load(0, k))
    if not MRG:
        a(f"s_cmp_ge_u32 s{sWAVE}, 4\ns_cbranch_scc1 L_pb2")
        finish(1)
        a.label("L_pb2")
    stamp(a, 12)
    stamp(a, 13)
    stamp(a, 12, 2)
    a(g3reads(0))
    a(g3reads(1))
    for i in range(10):
        d = OFB[0] + 4 * i
        o_check(0, i, 9 - i)
        a(f"s_waitcnt lgkmcnt({5 if i < 9 else 0})")
        rs = g3reads(i + 2) if i < 8 else []
        for ct in range(5):
            a(mfma16(GA[0] + 4 * ct, GW(i % 3, ct), d, None if i == 0 else GA[0] + 4 * ct))
            a(rs[ct:ct + 1])
    stamp(a, 13, 2)
    if MRG:
        a(f"s_cmp_ge_u32 s{sWAVE}, 4\ns_cbranch_scc1 L_fin1")
        a("s_nop 2")
        part_out(0)
        a("s_waitcnt lgkmcnt(0)\ns_barrier")
        finish(1)
        a("s_branch L_fin2")
        a.label("L_fin1")
        part_out(1)
        a("s_waitcnt lgkmcnt(0)\ns_barrier")
        finish(0)
        a.label("L_fin2")
    else:
        a(f"s_cmp_lt_u32 s{sWAVE}, 4\ns_cbranch_scc1 L_fin1")
        a("s_nop 2")
        part_out(0)
        a("s_waitcnt lgkmcnt(0)\ns_barrier\ns_branch L_fin2")
        a.label("L_fin1")
        a("s_barrier")
        finish(0)
        a.label("L_fin2")
    lab = only_wave(4)
    a(f"""
    s_cmp_lg_u32 s2, 0
    s_cbranch_scc1 {lab}
    v_mov_b32 v1, s{sTAG}
    s_mov_b32 s{T4}, {EP_OFF}
    s_mov_b64 exec, 1
    buffer_store_dword v1, off, {srd(SWS)}, s{T4} sc1
    s_mov_b64 exec, -1
    """)
    a.label(lab)
    if STAMPS:
        a("s_waitcnt vmcnt(0)")
        stamp(a, 14)
        stamp(a, 14, 2)
        a("s_waitcnt lgkmcnt(0)")
        a(f"""
        s_lshl_b32 s{T0}, s2, 4
        s_add_u32 s{T0}, s{T0}, s{sWAVE}
        s_lshl_b32 s{T0}, s{T0}, 7
        s_add_u32 s{T0}, s{T0}, {STAMP_OFF}
        s_mov_b64 exec, 1
        """)
        for i in range(15):
            a(f"v_mov_b32 v1, s{SB+2*i}")
            a(f"buffer_store_dword v1, off, {srd(SWS)}, s{T0} offset:{4*i}")
    if OPT.get("pad"):
        if "padwg" in OPT:
            a(f"s_cmp_lg_u32 s2, {OPT['padwg']}\ns_cbranch_scc1 L_done")
        a(f"""
        L_pad:
        s_memrealtime s[{T0}:{T1}]
        s_waitcnt lgkmcnt(0)
        s_sub_u32 s{T0}, s{T0}, s{SB}
        s_cmp_lt_u32 s{T0}, {OPT["pad"]}
        s_cbranch_scc1 L_pad
        """)
    a.label("L_done")
    a("s_endpgm")

    for p, i in retries:
        a.label(f"L_gr{p}_{i}")
        a(f"""
        s_sub_u32 s{sCNT}, s{sCNT}, 1
        s_cmp_eq_u32 s{sCNT}, 0
        s_cbranch_scc1 L_gq{p}_{i}
        s_waitcnt vmcnt(0)
        s_sleep 1
        """)
        for k in range(i, 10):
            a(o_load(p, k))
        a(f"s_waitcnt vmcnt({9 - i if p == 0 else 0})")
        a(f"s_branch L_gw{p}_{i}")
        a.label(f"L_gq{p}_{i}")
        a(f"s_mov_b32 s{sCNT}, 1\ns_branch L_gc{p}_{i}")

    a.label("L_slowA")
    MF2 = OO[1]
    cmA = lambda u: MD if u == 8 else (MF2 if u == 0 else None)
    penA = lambda b, u: pen(KH[b], u)
    for i in range(16):
        a(f"v_sub_f32 v{MF2+i}, {NEGBIG}, v{MD+i}")
    reset_m(0)
    a(kreads(0, 0))
    a(penA(0, 0))
    for u in range(9):
        if u + 1 < 9:
            a(kreads((u + 1) & 1, (u + 1) * 2560))
            a("s_waitcnt lgkmcnt(2)")
        else:
            a("s_waitcnt lgkmcnt(0)")
        a("s_nop 0")
        a(qk(S[u & 3], u & 1, 0, cmA(u)))
        if u + 1 < 9:
            a(penA((u + 1) & 1, u + 1))
        if u >= 2:
            a(maxtree(19, S[(u - 2) & 3], u == 2))
    a(kreads(0, 0))
    a(kreads(1, 2560))
    zero_o(0)
    for u in (7, 8):
        a(maxtree(19, S[u & 3], False))
    set_m(0, 19)
    a(penA(0, 0) + penA(1, 1))
    a("s_waitcnt lgkmcnt(2)\ns_nop 0")
    a(qk(S[0], 0, 0, cmA(0)))
    for t in range(10):
        a("s_nop 0")
        tile_step(t, 9, lambda u: 0, lambda u: u * 2560, lambda u: u * 2560, cmA, extra_k=penA)
    a("s_nop 15\ns_branch L_epiA")

    a.label("L_idle")
    a(late)
    G3D = [128, 129, 130, 131, 132]
    for i in range(5):
        a([f"v_add_u32 v10, {64*i}, v0",
           "v_mul_u32_u24 v11, 6554, v10",
           "v_lshrrev_b32 v11, 16, v11",
           "v_mul_u32_u24 v12, 10, v11",
           "v_sub_u32 v12, v10, v12",
           "v_mul_u32_u24 v11, 1280, v11",
           f"v_lshl_add_u32 v{G3D[i]}, v12, 4, v11"])
    a(f"""
    s_cmp_ge_u32 s{sTB}, 8
    s_cselect_b32 s{SX[0]}, s{SWO[1]}, s{SWO[0]}
    s_cselect_b32 s{SX[0]+1}, s{SWO[1]+1}, s{SWO[0]+1}
    s_mov_b32 s{SX[0]+2}, {WO_BYTES}
    s_and_b32 s{T0}, s{sTB}, 7
    s_mul_i32 s{T0}, s{T0}, 160
    s_mul_i32 s{T1}, s{sWAVE}, {32*1280}
    s_add_u32 s{T0}, s{T0}, s{T1}
    s_mul_i32 s{T1}, s{sWAVE}, 5120
    """)
    for rnd in range(3):
        lab = a.uniq("L_id")
        if rnd == 2:
            a(f"s_cmp_ge_u32 s{sWAVE}, 4\ns_cbranch_scc1 {lab}")
        a(f"s_add_u32 s{T2}, s{T0}, {rnd*256*1280}")
        for i in range(5):
            a(f"s_add_u32 m0, s{T1}, {K + rnd*8*5120 + i*1024}\ns_nop 0")
            a(f"buffer_load_dwordx4 v{G3D[i]}, {srd(SX[0])}, s{T2} offen lds")
        a.label(lab)
    a(f"""
    v_lshrrev_b32 v10, 5, v0
    v_bfe_u32 v11, v0, 4, 1
    v_bfe_u32 v12, v0, 2, 2
    v_and_b32 v13, 3, v0
    v_lshlrev_b32 v136, 3, v13
    v_lshlrev_b32 v13, 4, v13
    v_add_u32 v13, {K}, v13
    v_mul_u32_u24 v14, 20, v10
    v_lshl_add_u32 v14, v11, 2, v14
    v_add_u32 v14, v14, v12
    v_mul_u32_u24 v14, 160, v14
    v_add_u32 v133, v14, v13
    v_mul_u32_u24 v14, 80, v10
    v_mul_u32_u24 v11, 20, v11
    v_add3_u32 v14, v14, v11, v12
    v_add_u32 v14, 16, v14
    v_mul_u32_u24 v14, 160, v14
    v_add_u32 v134, v14, v13
    s_mul_i32 s{T0}, s{sWAVE}, 6400
    v_add_u32 v133, s{T0}, v133
    s_mul_i32 s{T0}, s{sWAVE}, 25600
    v_add_u32 v134, s{T0}, v134
    v_lshlrev_b32 v135, 4, v0
    v_sub_u32 v137, v133, v136
    v_sub_u32 v138, v134, v136
    v_mov_b32 v10, 0
    v_mov_b32 v11, 0
    v_mov_b32 v12, 4
    ds_write_b64 v10, v[10:11]
    ds_write_b32 v10, v12 offset:8
    s_mul_i32 s{T0}, s{sTB}, 102400
    s_add_u32 s{T0}, s{T0}, {WP_OFF}
    s_mul_i32 s{T1}, s{sWAVE}, 5120
    s_add_u32 s{T1}, s{T1}, s{T0}              ; kh=0, i=w
    s_lshr_b32 s{T2}, s{sWAVE}, 1
    s_mul_i32 s{T2}, s{T2}, 51200
    s_and_b32 s{T3}, s{sWAVE}, 1
    s_mul_i32 s{T3}, s{T3}, 5120
    s_add_u32 s{T2}, s{T2}, s{T3}
    s_add_u32 s{T2}, s{T2}, s{T0}
    s_add_u32 s{T2}, s{T2}, {8*5120}
    s_waitcnt vmcnt(0) lgkmcnt(0)
    s_barrier
    """)
    for rnd in range(3):
        lab = a.uniq("L_id")
        if rnd == 2:
            a(f"s_cmp_ge_u32 s{sWAVE}, 4\ns_cbranch_scc1 {lab}")
        base = 64 + rnd * 20
        for ct in range(5):
            for rd in range(2):
                if rnd < 2:
                    a(f"ds_read_b64_tr_b16 {vr(base+4*ct+2*rd,2)}, v{133 if ct < 4 else 137} offset:{rnd*51200 + rd*1280 + (ct>>1)*64 + (ct&1)*8}")
                else:
                    a(f"ds_read_b64_tr_b16 {vr(base+4*ct+2*rd,2)}, v{134 if ct < 4 else 138} offset:{rd*6400 + (ct>>1)*64 + (ct&1)*8}")
        a("s_waitcnt lgkmcnt(0)")
        if rnd == 1:
            a(f"s_add_u32 s{T1}, s{T1}, 51200")
        sreg = T1 if rnd < 2 else T2
        for ct in range(5):
            if ct == 4:
                a(f"s_add_u32 s{T3}, s{sreg}, 4096")
                a(f"buffer_store_dwordx4 {vr(base+4*ct,4)}, v135, {srd(SWS)}, s{T3} offen {HST}")
            else:
                a(f"buffer_store_dwordx4 {vr(base+4*ct,4)}, v135, {srd(SWS)}, s{sreg} offen offset:{ct*1024} {HST}")
        a.label(lab)
    a("s_waitcnt vmcnt(0)\ns_barrier")
    publish(0, 0, 1)
    publish(0, 1, 2)
    a(f"v_add_u32 v{VPUB}, 4, v{VPUB}")
    publish(0, 0, 3)
    publish(0, 1, 4)
    poll_issue(0, 1)
    poll_check(0, 1, sleep=OPT.get('isl', 32))
    a("s_barrier")
    a(f"s_cmp_ge_u32 s{sWAVE}, 4")
    a("s_cbranch_scc1 L_attn_setup")
    a("s_branch L_x1")

    a.label("L_slowB")
    reset_m(1)
    a(f"""
    v_mov_b32 v19, 0xff800000
    s_mul_i32 s{T0}, s{sWAVE}, 2560
    s_add_u32 s{T0}, s{T0}, {A_OFF}
    v_subrev_u32 v10, s{T0}, v{VK}
    v_subrev_u32 v12, s{T0}, v{VV}
    s_not_b64 exec, s[{sLO}:{sLO+1}]
    v_mov_b32 v{KH[0]+1}, 0x3f80
    s_mov_b64 exec, -1
    s_add_u32 s{T0}, s{sKVB}, {32*163840}
    s_add_u32 s{T1}, s{T0}, 163840
    """)

    def gk():
        return f"""
        buffer_load_dwordx2 {vr(KL[0],2)}, v10, {srd(SWS)}, s{T0} offen {HS}
        buffer_load_dwordx2 {vr(KL[0]+2,2)}, v10, {srd(SWS)}, s{T0} offen offset:512 {HS}
        s_mov_b64 exec, s[{sLO}:{sLO+1}]
        buffer_load_dwordx2 {vr(KH[0],2)}, v10, {srd(SWS)}, s{T0} offen offset:1024 {HS}
        """
    a.label("L_slow1")
    a(gk())
    a("s_mov_b64 exec, -1\ns_waitcnt vmcnt(0)")
    a(qk(S[0], 0, 1))
    a("s_nop 15")
    a(maxtree(19, S[0], False))
    a(f"""
    s_add_u32 s{T0}, s{T0}, 2560
    s_cmp_lt_u32 s{T0}, s{T1}
    s_cbranch_scc1 L_slow1
    """)
    set_m(1, 19)
    zero_o(1)
    a(f"s_sub_u32 s{T0}, s{T1}, 163840")
    a.label("L_slow2")
    a(gk())
    a(f"""
    s_mov_b64 exec, s[{sVM}:{sVM+1}]
    buffer_load_dwordx4 {vr(VF[0],4)}, v12, {srd(SWS)}, s{T0} offen {HS}
    buffer_load_dwordx4 {vr(VF[0]+4,4)}, v12, {srd(SWS)}, s{T0} offen offset:640 {HS}
    s_mov_b64 exec, -1
    s_waitcnt vmcnt(0)
    """)
    a(qk(S[0], 0, 1))
    a("s_nop 15")
    a(exps(S[0]))
    a("s_nop 1")
    a(pv(S[0], 0, OO[1]))
    a(f"""
    s_add_u32 s{T0}, s{T0}, 2560
    s_cmp_lt_u32 s{T0}, s{T1}
    s_cbranch_scc1 L_slow2
    s_nop 15
    """)
    epilogue(1)
    a("s_branch L_chkA")


def main(out):
    global HST, HS, OUTP
    OUTP = ["", "nt", "sc1", "sc0 sc1"][OPT.get("outp", 0)]
    HST = ["sc1", "", "sc0 sc1", "nt", "sc1 nt"][OPT.get("st", 0)]
    HS = ["sc1", ""][OPT.get("ld", 0)]
    a = Asm()
    hdr = open(f"cdna_kernels/{NAME}.s.ref").read().split("\n")
    keep = [l for l in hdr if l.startswith(";") and "@launch" not in l]
    for l in keep:
        a.raw(l)
    a.raw(f"; @launch grid=(256,1,1) block=(512,1,1) lds={LDS_BYTES}")
    a.raw('.amdgcn_target "amdgcn-amd-amdhsa--gfx950"')
    a.raw(".text")
    gen(a)
    a.raw('.section .rodata,"a"')
    a.raw(".p2align 6")
    a.raw(f""".amdhsa_kernel {KNAME}
  .amdhsa_next_free_vgpr 256
  .amdhsa_next_free_sgpr {102 if STAMPS else 72}
  .amdhsa_accum_offset 256
  .amdhsa_group_segment_fixed_size 0
  .amdhsa_kernarg_size 72
  .amdhsa_user_sgpr_count 2
  .amdhsa_user_sgpr_kernarg_segment_ptr 1
  .amdhsa_system_sgpr_workgroup_id_x 1
.end_amdhsa_kernel""")
    open(out, "w").write(a.text())


if __name__ == "__main__":
    if "--stamps" in sys.argv:
        STAMPS = True
        sys.argv.remove("--stamps")
    for x in list(sys.argv):
        if x.startswith("-D"):
            k, _, v = x[2:].partition("=")
            OPT[k] = int(v) if v else 1
            sys.argv.remove(x)
    main(sys.argv[1] if len(sys.argv) > 1 else f"cdna_kernels/{NAME}.s")
```

```python
import sys, struct, re

NAME = "concat_heads__sliding_block__softmax_full_mha__prompt"
KNAME = NAME + "_kernel"

QW_OFF = 0x000000
KV_OFF = 0x500000
OW_OFF = 0xF00000
FL_OFF = 0x1400000
EP_OFF = 0x1409000
WP_OFF = 0x1500000
WS_USED = 0x1700000
X_BYTES = 2048 * 640 * 2
WQKV_BYTES = 640 * 1920 * 2
WO_BYTES = 640 * 640 * 2
OUT_BYTES = 2048 * 1280 * 2
SRD3 = 0x00020000
LDS_BYTES = 163840
K = 1024

STAMPS = False
STAMP_OFF = 0x2000000
SB = 72
OPT = {}


def f32bits(x):
    return struct.unpack("<I", struct.pack("<f", x))[0]


NEGBIG = f32bits(-1e30)
CSCALE = f32bits((20 ** -0.5) * 1.4426950408889634)


class Asm:
    def __init__(self):
        self.l = []
        self.n = 0

    def __call__(self, s):
        if isinstance(s, (list, tuple)):
            for x in s:
                self(x)
            return
        for line in s.strip("\n").split("\n"):
            line = line.strip()
            if line:
                self.l.append(("" if line.endswith(":") else "    ") + line)

    def label(self, s):
        self.l.append(s + ":")

    def raw(self, s):
        self.l.append(s)

    def uniq(self, p):
        self.n += 1
        return f"{p}_{self.n}"

    def text(self):
        return "\n".join(self.l) + "\n"


def vr(a, n):
    return f"v[{a}:{a + n - 1}]"


def mfma32(d, a_, b_, c):
    cs = vr(c, 16) if c is not None else "0"
    return f"v_mfma_f32_32x32x16_bf16 {vr(d,16)}, {vr(a_,4)}, {vr(b_,4)}, {cs}"


def mfma32k8(d, a_, b_, c):
    return f"v_mfma_f32_32x32x8_bf16 {vr(d,16)}, {vr(a_,2)}, {vr(b_,2)}, {vr(c,16)}"


def mfma16(d, a_, b_, c):
    cs = vr(c, 4) if c is not None else "0"
    return f"v_mfma_f32_16x16x32_bf16 {vr(d,4)}, {vr(a_,4)}, {vr(b_,4)}, {cs}"


def cstamp(a, i):
    if STAMPS and OPT.get("sm", 0) == 3:
        a(f"s_memrealtime s[{SB+2*i}:{SB+2*i+1}]")
        a(f"s_memtime s[{SB+2*i+2}:{SB+2*i+3}]")


def stamp(a, i, mode=0):
    if STAMPS and (i == 0 or OPT.get("sm", 0) == mode):
        a(f"s_memrealtime s[{SB+2*i}:{SB+2*i+1}]")


SX = [4, 12]
SW = [8, 16]
SWS, SDBG = 20, 24
SWO = [28, 32]
SOUT = 36
sWAVE, sCW, sTB, sM, sKS, sXB, sWB, sLP = 40, 41, 42, 43, 44, 45, 46, 47
T0, T1, T2, T3, T4, T5 = 48, 49, 50, 51, 52, 53
sEQ, sEK = 54, 55
sHEAD, sQB, sQT, sW1K = 56, 57, 58, 59
sVM, sLO = 60, 62
sCS, sONE, sKVB, sXCD, sJ, sROT = 64, 65, 66, 67, 68, 69
sCNT = 70
sKVS = 71
sTAG = 3
sBAD = 47


def srd(n):
    return f"s[{n}:{n+3}]"


HS = "sc1"
HST = "sc1"
OUTP = ""


SCHEDS = {
    0: ([2, 3], {0: [4], 1: [5], 2: [6], 3: [7], 4: [8], 5: [9], 6: [10], 7: [11], 8: [12], 9: [13],
                 10: [14], 11: [15, "S"], 13: ["P", 16, 17], 15: [18], 16: [19, "Z"], 17: []}),
    1: ([], {0: [2, 3], 1: [4], 2: [5], 3: [6], 4: [7], 5: [8], 6: [9], 7: [10], 8: [11], 9: [12],
             10: [13], 11: [14, "S", 15], 13: [16, 17], 15: ["P", 18], 16: [19, "Z"], 17: []}),
    2: ([], {0: [2, 3], 1: [4], 2: [5], 3: [6], 4: [7], 5: [8], 6: [9], 7: [10], 8: [11], 9: [12],
             10: [13, 14], 12: ["S", 15, 16], 14: ["P", 17, 18], 16: [19, "Z"], 18: []}),
    3: ([], {0: [2], 1: [3], 2: [4], 3: [5], 4: [6], 5: [7], 6: [8], 7: [9], 8: [10], 9: [11],
             10: [12, 13], 12: [14, "S", 15], 14: [16, 17, 18], 16: ["P", 19, "Z"], 18: []}),
    4: ([], {0: [2, 3], 1: [4, 5], 3: [6, 7], 5: [8, 9], 7: [10, 11], 9: [12],
             10: [13, 14], 12: ["S", 15, 16], 14: ["P", 17, 18], 16: [19, "Z"], 18: []}),
    5: ([], {0: [2, 3], 1: [4], 2: [5], 3: [6], 4: [7], 5: [8], 6: [9], 7: [10, 11], 8: [12], 9: [13],
             10: [14], 11: [15, "S"], 13: ["P", 16, 17], 15: [18], 16: [19, "Z"], 17: []}),
}


def plan():
    pre, sch = SCHEDS[OPT.get("sch", 5)]
    ns = sorted(sch)
    q = {"X": [0], "Y": [1] + pre}
    waits = {}
    assert 0 in sch and 10 in sch and ns[-1] >= 17
    for k, n in enumerate(ns):
        need = set(range(n, ns[k + 1] if k + 1 < len(ns) else 20))
        if "P" in sch[n]:
            need.add("S")
        assert need <= set(q["X"]) | set(q["Y"]), (n, need)
        for g in "XY":
            idx = [i for i, x in enumerate(q[g]) if x in need]
            waits[g, n] = 8 * (len(q[g]) - 1 - max(idx)) if idx else None
            if "P" in sch[n] and g == "X" and OPT.get("pz", 0):
                waits[g, n] = 0
        for x in sch[n]:
            if isinstance(x, int):
                assert x - 5 <= n - 1, (n, x)
            if x == "Z":
                assert n >= 16 and k + 1 < len(ns)
            if x not in ("P", "Z"):
                q["Y" if n < 10 else "X"].append(x)
    st = [x for x in q["X"] + q["Y"] if isinstance(x, int)]
    assert sorted(st) == list(range(20))
    return pre, sch, ns, waits, min(x for x in q["X"][1:] if isinstance(x, int))


def gen(a):
    PRE, SCH, NS, WAITS, XFIRST = plan()
    a.raw(f".globl {KNAME}\n.p2align 8\n.type {KNAME},@function")
    a.label(KNAME)
    a(f"""
    s_cmp_ge_u32 s2, 256
    s_cbranch_scc1 L_done
    """)
    stamp(a, 0)
    a(f"""
    s_load_dwordx2 s[{SX[1]}:{SX[1]+1}], s[0:1], 24
    s_load_dwordx2 s[{SW[1]}:{SW[1]+1}], s[0:1], 32
    s_load_dwordx2 s[{SX[0]}:{SX[0]+1}], s[0:1], 0
    s_load_dwordx2 s[{SW[0]}:{SW[0]+1}], s[0:1], 8
    s_load_dwordx2 s[{SWO[0]}:{SWO[0]+1}], s[0:1], 16
    s_load_dwordx2 s[{SWO[1]}:{SWO[1]+1}], s[0:1], 40
    s_load_dwordx2 s[{SOUT}:{SOUT+1}], s[0:1], 48
    s_load_dwordx2 s[{SWS}:{SWS+1}], s[0:1], 64
    v_lshrrev_b32 v1, 6, v0
    v_and_b32 v0, 63, v0
    s_and_b32 s{sXCD}, s2, 7
    v_readfirstlane_b32 s{sWAVE}, v1
    s_lshr_b32 s{sJ}, s2, 3
    s_and_b32 s{T0}, s{sXCD}, 1
    s_lshl_b32 s{T0}, s{T0}, 3
    s_and_b32 s{T1}, s{sJ}, 7
    s_add_u32 s{sTB}, s{T0}, s{T1}
    s_lshr_b32 s{T0}, s{sXCD}, 1
    s_lshl_b32 s{T0}, s{T0}, 2
    s_lshr_b32 s{T2}, s{sJ}, 3
    s_add_u32 s{sM}, s{T0}, s{T2}
    """)
    rm = OPT.get("rot", 2)
    if rm == 0:
        a(f"s_mov_b32 s{sROT}, 0")
    elif rm == 1:
        a(f"""
        s_mul_i32 s{T2}, s{T2}, 3
        s_add_u32 s{sROT}, s{T1}, s{T2}
        s_cmp_ge_u32 s{sROT}, 10
        s_cselect_b32 s{T0}, 10, 0
        s_sub_u32 s{sROT}, s{sROT}, s{T0}
        """)
    elif rm == 2:
        a(f"""
        s_add_u32 s{sROT}, s{T1}, s{T2}
        s_and_b32 s{sROT}, s{sROT}, 1
        s_mul_i32 s{sROT}, s{sROT}, 5
        """)
    else:
        a(f"""
        s_add_u32 s{sROT}, s{T1}, s{T2}
        s_and_b32 s{sROT}, s{sROT}, 3
        s_mul_i32 s{sROT}, s{sROT}, 5
        s_lshr_b32 s{sROT}, s{sROT}, 1
        """)
    a(f"""
    s_and_b32 s{sCW}, s{sWAVE}, 3
    """)
    for n, size in ((SX[0], X_BYTES), (SW[0], WQKV_BYTES), (SX[1], X_BYTES), (SW[1], WQKV_BYTES), (SWO[0], WO_BYTES),
                    (SWO[1], WO_BYTES), (SOUT, OUT_BYTES), (SWS, 0x4000000 if STAMPS else WS_USED)):
        a(f"s_mov_b32 s{n+2}, {size}\ns_mov_b32 s{n+3}, {SRD3}")
    a(f"""
    v_lshrrev_b32 v6, 3, v0
    v_mul_u32_u24 v2, 1280, v6
    v_lshrrev_b32 v7, 4, v0
    v_and_b32 v8, 7, v0
    v_xor_b32 v8, v8, v7
    v_lshl_add_u32 v2, v8, 4, v2
    v_xor_b32 v3, 64, v2
    v_mul_u32_u24 v9, 3840, v7
    v_and_b32 v8, 15, v0
    v_lshlrev_b32 v10, 1, v7
    v_xor_b32 v8, v8, v10
    """)
    a("""
    v_lshl_add_u32 v4, v8, 4, v9
    v_xor_b32 v5, 128, v4
    """)
    a(f"""
    s_lshl_b32 s{T0}, s{sTB}, 7
    s_lshl_b32 s{T1}, s{sCW}, 5
    s_add_u32 s{T0}, s{T0}, s{T1}
    s_mul_i32 s{sXB}, s{T0}, 1280
    s_mul_i32 s{sWB}, s{sCW}, {16*3840}
    s_lshl_b32 s{T0}, s{sM}, 8
    s_add_u32 s{sWB}, s{sWB}, s{T0}
    s_lshl_b32 s{sLP}, s{sCW}, 12
    s_lshr_b32 s{T3}, s{sWAVE}, 2              ; group
    s_add_u32 s{sKS}, s{sROT}, s{T3}
    s_cmp_eq_u32 s{sKS}, 10
    s_cselect_b32 s{sKS}, 0, s{sKS}
    s_lshl_b32 s{T3}, s{T3}, 15
    s_add_u32 s{T3}, s{T3}, s{sLP}
    """)

    def dma_stage(n, sLP=sLP):
        p = 1 - n // 10
        slot = (n % 5) * 32 * K
        out = [f"s_lshl_b32 s{T0}, s{sKS}, 7",
               f"s_add_u32 s{T0}, s{T0}, s{sXB}",
               f"s_mul_i32 s{T1}, s{sKS}, {64*3840}",
               f"s_add_u32 s{T1}, s{T1}, s{sWB}"]
        for i in range(4):
            out += [f"s_add_u32 m0, s{sLP}, {slot + i*1024}",
                    f"s_add_u32 s{T2}, s{T0}, {i*8*1280}",
                    f"buffer_load_dwordx4 v{2 + (i & 1)}, {srd(SX[p])}, s{T2} offen {'nt ' if OPT.get('nt', 0) & 1 else ''}lds",
                    f"s_add_u32 m0, s{sLP}, {slot + 16*K + i*1024}",
                    f"s_add_u32 s{T2}, s{T1}, {i*4*3840}",
                    f"buffer_load_dwordx4 v{4 + (i >> 1)}, {srd(SW[p])}, s{T2} offen {'nt ' if OPT.get('nt', 0) & 2 else ''}lds"]
        out += [f"s_add_u32 s{sKS}, s{sKS}, 1",
                f"s_cmp_eq_u32 s{sKS}, 10",
                f"s_cselect_b32 s{sKS}, 0, s{sKS}"]
        return out

    a("s_waitcnt lgkmcnt(0)")
    stamp(a, 1, 4)
    a(f"s_cmp_eq_u32 s{sM}, 15")
    a("s_cbranch_scc1 L_setup1")
    a(dma_stage(0, T3))
    stamp(a, 2, 4)
    a(f"s_cmp_lt_u32 s{sWAVE}, 4")
    a("s_cbranch_scc1 L_setup1")
    for n in PRE:
        a(dma_stage(n))
    a.label("L_setup1")
    stamp(a, 3, 4)
    a(f"""
    s_lshl_b32 s{T0}, s{sXCD}, 2
    s_and_b32 s{T1}, s{sJ}, 3
    s_add_u32 s{sHEAD}, s{T0}, s{T1}
    s_lshr_b32 s{sQB}, s{sJ}, 2
    s_add_u32 s{T0}, s{SWS}, {EP_OFF}
    s_addc_u32 s{T1}, s{SWS+1}, 0
    s_load_dword s{sTAG}, s[{T0}:{T1}], 0
    """)
    marks = [len(a.l)]
    S = [64, 80, 96, 112]
    O = 208
    OO = [48, 208]
    KL, KH = [128, 132], [240, 242]
    QL, QH = [136, 142], [140, 146]
    VF = [224, 232]
    MD, MF = 32, 48
    VK, VV, VIDX, VDMA, VQ, VOF, VW3, VOUT, VRED = 244, 245, 246, 247, 248, 249, 250, 251, 252
    VOUT2 = 253
    QB_OFF = 1 * K
    CH = [11 * K, 51 * K, 91 * K, 1 * K]
    A_OFF = 50 * K
    WOL = [[10 * K, 60 * K], [110 * K, 0]]
    SCR = [130 * K, 110 * K]
    OFB = [32, 148]
    ST = [188, 192, 196, 28, 4]

    a(f"""
    v_lshlrev_b32 v{VDMA}, 4, v0
    v_lshrrev_b32 v11, 5, v0               ; h
    v_and_b32 v12, 31, v0                  ; i
    v_and_b32 v13, 3, v12
    v_lshrrev_b32 v14, 3, v12
    v_lshl_add_u32 v13, v14, 2, v13        ; kappa & 15
    v_bfe_u32 v14, v12, 2, 1               ; kappa >> 4
    v_lshlrev_b32 v15, 4, v13
    v_lshl_add_u32 v16, v14, 3, v15
    v_lshl_add_u32 v16, v11, 8, v16
    v_add_u32 v{VK}, {CH[0]}, v16
    v_mul_u32_u24 v16, 20, v11
    v_add_u32 v16, v16, v12
    v_lshlrev_b32 v16, 4, v16
    v_add_u32 v{VV}, {CH[0] + 1280}, v16
    v_and_b32 v15, 15, v12
    v_lshlrev_b32 v15, 4, v15
    v_lshrrev_b32 v16, 4, v12
    v_lshl_add_u32 v15, v16, 3, v15        ; (q&15)*16 + (q>>4)*8
    v_lshl_add_u32 v{VQ}, v11, 8, v15
    v_mov_b32 v{VIDX}, 0xdddddddd
    v_and_b32 v17, 0x1b, v12
    v_cmp_eq_u32 vcc, 24, v17
    v_mov_b32 v16, 0x3f803f80
    s_nop 0
    v_cndmask_b32 v17, 0, v16, vcc
    """)
    for b in range(2):
        a(f"v_mov_b32 v{KH[b]}, 0x3f803f80")
        a(f"v_mov_b32 v{KH[b]+1}, 0x00003f80")
        for i in range(8):
            a(f"v_mov_b32 v{VF[b]+i}, v17")

    def mask_setup():
        out = [["v_lshrrev_b32 v13, 5, v0", "v_lshlrev_b32 v13, 4, v13", "v_and_b32 v12, 31, v0",
                "v_sub_u32 v13, v12, v13", f"v_mov_b32 v14, {NEGBIG}"]]
        for r in range(0, 16, 2):
            out.append([f"v_cmp_le_i32 s[{T0}:{T0+1}], {r}, v13",
                        f"v_cmp_le_i32 s[{T2}:{T2+1}], {r+1}, v13",
                        "s_nop 0",
                        f"v_cndmask_b32 v{MD+r}, v14, 0, s[{T0}:{T0+1}]",
                        f"v_cndmask_b32 v{MF+r}, 0, v14, s[{T0}:{T0+1}]",
                        f"v_cndmask_b32 v{MD+r+1}, v14, 0, s[{T2}:{T2+1}]",
                        f"v_cndmask_b32 v{MF+r+1}, 0, v14, s[{T2}:{T2+1}]"])
        return out

    def g3_setup():
        return [["v_lshrrev_b32 v10, 4, v0",
                 "v_lshlrev_b32 v11, 9, v10",
                 "v_and_b32 v12, 15, v0",
                 f"v_lshl_add_u32 v{VOF}, v12, 4, v11"],
                ["v_mul_u32_u24 v12, 2560, v12",
                 f"v_lshl_add_u32 v{VOUT}, v10, 4, v12",
                 f"v_lshl_add_u32 v{VOUT2}, v10, 3, v12"],
                [f"s_cmp_lt_u32 s{sWAVE}, 4",
                 f"s_cselect_b32 s{T0}, {WOL[1][0]}, {WOL[1][1]}",
                 f"v_add_u32 v{VW3}, s{T0}, v{VDMA}",
                 f"s_mul_i32 s{T0}, s{sCW}, 5120",
                 f"v_add_u32 v{VRED}, s{T0}, v{VDMA}"]]

    marks.append(len(a.l))
    a(mask_setup()[:5])
    marks.append(len(a.l))
    a(mask_setup()[5:])
    marks.append(len(a.l))
    a(g3_setup())
    for i in range(16):
        a(f"v_mov_b32 v{O+i}, 0")
    marks.append(len(a.l))

    XA = lambda sg, kk: 14 + sg * 6 + kk
    WA = lambda sg, ct: 14 + sg * 6 + 2 + ct
    a(f"""
    v_and_b32 v6, 15, v0
    v_lshrrev_b32 v8, 1, v6                ; f(row)
    v_xor_b32 v8, v8, v7                   ; o ^ f
    v_lshlrev_b32 v8, 4, v8
    v_lshl_add_u32 v8, v6, 7, v8
    s_lshr_b32 s{T0}, s{sCW}, 1
    s_lshl_b32 s{T0}, s{T0}, 13
    v_add_u32 v{XA(0,0)}, s{T0}, v8
    v_xor_b32 v{XA(0,1)}, 64, v{XA(0,0)}
    v_lshrrev_b32 v8, 2, v0
    v_and_b32 v8, 3, v8                    ; r
    v_lshl_add_u32 v9, v7, 3, v8           ; krow = 8o + r
    v_lshlrev_b32 v9, 8, v9
    v_add_u32 v9, {16*K}, v9
    v_and_b32 v10, 1, v7
    v_lshl_add_u32 v10, v10, 2, v8
    v_lshlrev_b32 v10, 1, v10              ; sigma
    v_bfe_u32 v11, v0, 1, 1                ; c>>1
    s_and_b32 s{T0}, s{sCW}, 1
    s_lshl_b32 s{T0}, s{T0}, 3
    v_or_b32 v11, s{T0}, v11               ; 8cg + (c>>1)
    v_xor_b32 v11, v11, v10
    v_lshl_add_u32 v11, v11, 4, v9
    v_and_b32 v12, 1, v0
    v_lshl_add_u32 v{WA(0,0)}, v12, 3, v11
    v_xor_b32 v{WA(0,1)}, 32, v{WA(0,0)}
    v_xor_b32 v{WA(0,2)}, 64, v{WA(0,0)}
    v_xor_b32 v{WA(0,3)}, 96, v{WA(0,0)}
    """)
    for sg in (1, 2):
        for i in range(6):
            a(f"v_add_u32 v{14+sg*6+i}, {sg*64*K}, v{14+i}")
    marks.append(len(a.l))
    EA = [196, 197, 198, 199]
    a(f"""
    s_lshl_b32 s{T0}, s{sTB}, 2
    s_and_b32 s{T1}, s{sCW}, 2
    s_add_u32 s{T0}, s{T0}, s{T1}
    s_lshr_b32 s{T1}, s{sWAVE}, 2
    s_xor_b32 s{T1}, s{T1}, 1
    s_lshl_b32 s{T1}, s{T1}, 11                ; p*32*64
    s_add_u32 s{T0}, s{T0}, s{T1}
    s_cmp_ge_u32 s{sM}, 5
    s_cselect_b32 s{T2}, 1, 0                  ; K or V
    s_lshl_b32 s{T3}, 1280, s{T2}
    s_mul_i32 s{sEQ}, s{T0}, s{T3}
    s_mul_i32 s{T0}, s{T2}, {KV_OFF}
    s_add_u32 s{sEQ}, s{sEQ}, s{T0}
    s_add_u32 s{sEK}, s{sEQ}, s{T3}
    s_lshl_b32 s{T3}, s{T3}, 6
    s_and_b32 s{T1}, s{sCW}, 1
    s_cmp_ge_u32 s{sM}, 10
    s_cbranch_scc1 L_ea1
    s_mul_i32 s{T0}, s{T2}, 5
    s_sub_u32 s{T0}, s{sM}, s{T0}
    s_lshl_b32 s{T0}, s{T0}, 5
    s_lshl_b32 s{T1}, s{T1}, 4
    s_add_u32 s{T0}, s{T0}, s{T1}
    v_add_u32 v8, s{T0}, v7
    v_lshlrev_b32 v10, 4, v6
    """)
    for ct in range(4):
        a(f"""
        v_add_u32 v9, {4*ct}, v8
        v_mul_u32_u24 v11, 205, v9
        v_lshrrev_b32 v11, 10, v11
        v_mul_u32_u24 v12, 5, v11
        v_sub_u32 v12, v9, v12
        v_mul_lo_u32 v11, v11, s{T3}
        v_lshl_add_u32 v12, v12, 8, v10
        v_add_u32 v{EA[ct]}, v11, v12
        """)
    a(f"""
    s_branch L_ea2
    L_ea1:
    s_sub_u32 s{T0}, s{sM}, 10
    s_lshl_b32 s{T0}, s{T0}, 7
    s_lshl_b32 s{T1}, s{T1}, 6
    s_add_u32 s{T0}, s{T0}, s{T1}
    v_add_u32 v8, s{T0}, v6
    v_mul_u32_u24 v10, 320, v7
    v_add_u32 v10, 1280, v10
    """)
    for ct in range(4):
        a(f"""
        v_add_u32 v9, {16*ct}, v8
        v_mul_u32_u24 v11, 3277, v9
        v_lshrrev_b32 v11, 16, v11
        v_mul_u32_u24 v12, 20, v11
        v_sub_u32 v12, v9, v12
        v_mul_lo_u32 v11, v11, s{T3}
        v_lshl_add_u32 v12, v12, 4, v10
        v_add_u32 v{EA[ct]}, v11, v12
        """)
    a.label("L_ea2")
    marks.append(len(a.l))
    a(f"""
    s_lshl_b32 s{sQT}, s{sQB}, 3
    s_add_u32 s{sQT}, s{sQT}, s{sWAVE}
    s_lshl_b32 s{sW1K}, s{sWAVE}, 10
    s_mov_b32 s{sVM}, 0x000fffff
    s_mov_b32 s{sVM+1}, 0x000fffff
    s_mov_b32 s{sLO}, -1
    s_mov_b32 s{sLO+1}, 0
    s_mov_b32 s{sCS}, {CSCALE}
    s_mov_b32 s{sONE}, 0x3f80
    s_mul_i32 s{sKVB}, s{sHEAD}, 163840
    s_add_u32 s{sKVB}, s{sKVB}, {KV_OFF}
    """)

    ACC = lambda ct, tt: 128 + (ct * 4 + tt) * 4
    XF = lambda buf, tt: 64 + buf * 32 + tt * 4
    WF = lambda buf, ct: 64 + buf * 32 + 16 + ct * 4

    def g1reads(i, kk):
        slot = i % 5
        sg, so = slot >> 1, (slot & 1) * 32 * K
        r = []
        for q in range(4):
            r.append(f"ds_read_b128 {vr(XF(kk,q),4)}, v{XA(sg,kk)} offset:{so + q*2048}")
            for rd in range(2):
                r.append(f"ds_read_b64_tr_b16 {vr(WF(kk,q)+2*rd,2)}, v{WA(sg,q)} offset:{so + kk*8192 + rd*1024}")
        return r

    VPG, VPUB, VPO, VPD = 202, 203, 206, 204
    sPM, sSTR = SDBG, SDBG + 2

    def only_wave(wave):
        lab = a.uniq("L_w")
        a(f"s_cmp_lg_u32 s{sWAVE}, {wave}")
        a(f"s_cbranch_scc1 {lab}")
        return lab

    def publish(kind, p, wave):
        lab = only_wave(wave)
        if kind == 0:
            a(f"""
            v_mov_b32 v1, s{sTAG}
            s_mov_b32 s{T4}, {FL_OFF + p*16384}
            s_mov_b64 exec, s[{sPM}:{sPM+1}]
            buffer_store_dword v1, v{VPUB}, {srd(SWS)}, s{T4} offen sc1
            s_mov_b64 exec, -1
            """)
        else:
            a(f"""
            s_lshl_b32 s{T4}, s{sQB}, 8
            s_lshl_b32 s{T5}, s{sHEAD}, 2
            s_add_u32 s{T4}, s{T4}, s{T5}
            s_add_u32 s{T4}, s{T4}, {FL_OFF + 32768}
            v_mov_b32 v1, s{sTAG}
            s_mov_b64 exec, 1
            buffer_store_dword v1, off, {srd(SWS)}, s{T4} sc1
            s_mov_b64 exec, -1
            """)
        a.label(lab)

    def poll_loads(kind, p):
        if kind == 0:
            return [f"s_mov_b32 s{T3}, {FL_OFF + p*16384}",
                    f"buffer_load_dwordx2 {vr(VPD,2)}, v{VPG}, {srd(SWS)}, s{T3} offen sc1"]
        return [f"s_mov_b32 s{T3}, {FL_OFF + 32768}",
                f"buffer_load_dword v{VPD}, v{VPO}, {srd(SWS)}, s{T3} offen sc1"]

    def poll_issue(kind, p, wave=0):
        lab = only_wave(wave) if wave is not None else a.uniq("L_w")
        a(poll_loads(kind, p))
        a.label(lab)

    def poll_check(kind, p, sleep=8, wave=0, first=0):
        lab = only_wave(wave) if wave is not None else a.uniq("L_w")
        loop = a.uniq("L_spin")
        a(f"s_mov_b32 s{sCNT}, 0x20000")
        a(f"s_waitcnt vmcnt({first})")
        a.label(loop)
        a(f"v_cmp_eq_u32 vcc, s{sTAG}, v{VPD}")
        if kind == 0:
            a(f"v_cmp_eq_u32 s[{T0}:{T0+1}], s{sTAG}, v{VPD+1}")
            a(f"s_orn2_b64 s[{T0}:{T0+1}], s[{T0}:{T0+1}], s[{sSTR}:{sSTR+1}]\ns_and_b64 vcc, vcc, s[{T0}:{T0+1}]")
        a(f"""
        s_cmp_eq_u64 vcc, -1
        s_cbranch_scc1 {lab}
        s_sleep {sleep}
        """)
        a(poll_loads(kind, p))
        a(f"""
        s_sub_u32 s{sCNT}, s{sCNT}, 1
        s_cmp_lg_u32 s{sCNT}, 0
        s_waitcnt vmcnt(0)
        s_cbranch_scc1 {loop}
        """)
        a.label(lab)

    a(f"""
    s_mul_i32 s{T0}, s{sHEAD}, 20
    s_add_u32 s{T1}, s{T0}, 19
    s_lshr_b32 s{T0}, s{T0}, 7
    s_lshr_b32 s{T1}, s{T1}, 7
    s_cmp_lg_u32 s{T0}, s{T1}
    s_cselect_b64 s[{sSTR}:{sSTR+1}], -1, 0
    s_lshl_b32 s{T0}, s{sHEAD}, 9
    v_lshl_add_u32 v{VPG}, v0, 3, s{T0}
    s_mul_i32 s{T0}, s{sM}, 52
    s_lshr_b32 s{T0}, s{T0}, 8                 ; type
    s_mul_i32 s{T1}, s{T0}, 5
    s_sub_u32 s{T1}, s{sM}, s{T1}
    s_mul_i32 s{T2}, s{T1}, 205
    s_lshr_b32 s{T2}, s{T2}, 5
    s_cmp_eq_u32 s{T1}, 2
    s_cselect_b32 s{sPM}, 0x80, 0
    s_or_b32 s{sPM}, s{sPM}, 0x7f
    s_cmp_eq_u32 s{sM}, 15
    s_cselect_b32 s{sPM}, -1, s{sPM}
    s_mov_b32 s{sPM+1}, 0
    s_lshl_b32 s{T2}, s{T2}, 9
    s_lshl_b32 s{T0}, s{T0}, 7
    s_add_u32 s{T2}, s{T2}, s{T0}
    s_lshl_b32 s{T0}, s{sTB}, 3
    s_add_u32 s{T2}, s{T2}, s{T0}
    v_lshl_add_u32 v{VPUB}, v0, 9, s{T2}
    s_min_u32 s{T1}, s{T1}, 1
    s_lshl_b32 s{T1}, s{T1}, 2
    s_mov_b64 exec, 1
    v_add_u32 v{VPUB}, s{T1}, v{VPUB}
    s_mov_b64 exec, -1
    v_and_b32 v8, 31, v0
    v_lshlrev_b32 v8, 2, v8
    s_lshl_b32 s{T0}, s{sXCD}, 8
    v_add_u32 v{VPO}, s{T0}, v8
    """)
    a(f"s_waitcnt lgkmcnt(0)\ns_add_u32 s{sTAG}, s{sTAG}, 0x9e3779b1")
    marks.append(len(a.l))
    late = a.l[marks[0]:marks[4]]
    del a.l[marks[0]:marks[4]]
    late = [re.sub(r"\bv(1[4-7])\b", lambda m: "v%d" % (int(m.group(1)) - 8), x.split(";")[0]).strip() for x in late]
    a(f"s_cmp_eq_u32 s{sM}, 15")
    a("s_cbranch_scc1 L_idle")

    stamp(a, 4, 4)
    a(f"s_cmp_lt_u32 s{sWAVE}, 4")
    a("s_cbranch_scc1 L_xstart")
    for n in NS:
        if n > 10:
            break
        if WAITS["Y", n] is not None:
            a(f"s_waitcnt vmcnt({WAITS['Y', n]})")
        a("s_barrier")
        if n < 10:
            for x in SCH[n]:
                a(dma_stage(x))
    a("s_setprio 3")
    a("s_branch L_compute")
    a.label("L_xstart")
    a(f"""
    s_add_u32 s{sKS}, s{sKS}, {XFIRST - 11}
    s_cmp_ge_u32 s{sKS}, 10
    s_cselect_b32 s{T0}, 10, 0
    s_sub_u32 s{sKS}, s{sKS}, s{T0}
    s_waitcnt vmcnt(0)
    """)
    stamp(a, 5, 4)
    a("s_barrier")
    a.label("L_compute")
    stamp(a, 6, 4)
    stamp(a, 1)
    stamp(a, 1, 1)
    a(g1reads(0, 0))
    a(f"s_cmp_ge_u32 s{sM}, 10")
    a("s_cbranch_scc1 L_comp1")

    def interleave(ms, rs, step):
        per = -(-len(late) // 18)
        ex = late[step * per:(step + 1) * per] if step < 18 else []
        out = []
        ri = xi = 0
        for i, m in enumerate(ms):
            out.append(m)
            if ri < len(rs):
                out.append(rs[ri]); ri += 1
            if i >= 16 - per and xi < len(ex):
                out.append(ex[xi]); xi += 1
        out += rs[ri:] + ex[xi:]
        return out

    for cg in range(2):
        if cg == 1:
            a.label("L_comp1")

        def mm(i, kk):
            out = []
            for ct in range(4):
                for tt in range(4):
                    c = None if (i == 0 and kk == 0) else ACC(ct, tt)
                    if cg == 1:
                        out.append(mfma16(ACC(ct, tt), XF(kk, tt), WF(kk, ct), c))
                    else:
                        out.append(mfma16(ACC(ct, tt), WF(kk, ct), XF(kk, tt), c))
            return out
        for i in range(10):
            a("s_waitcnt lgkmcnt(0)")
            a(interleave(mm(i, 0), g1reads(i, 1), 2 * i))
            wy = WAITS.get(("Y", i + 11))
            a("s_waitcnt lgkmcnt(0)" + (f" vmcnt({wy})" if wy is not None else ""))
            bx, by = (i + 1) in SCH, (i + 11) in SCH
            if bx and by:
                a("s_barrier")
            elif bx or by:
                lab = a.uniq("L_nb")
                a(f"s_cmp_{'ge' if bx else 'lt'}_u32 s{sWAVE}, 4\ns_cbranch_scc1 {lab}\ns_barrier\n{lab}:")
            if i in (1, 3, 5, 7, 9):
                stamp(a, 2 + i // 2, 1)
            a(interleave(mm(i, 1), g1reads(i + 1, 0) if i < 9 else [], 2 * i + 1))
        if cg == 0:
            a("s_branch L_g1epi")
    a.label("L_g1epi")
    stamp(a, 2)

    def g1_stores():
        t = 64
        for ct in range(4):
            for tp in range(2):
                for h in range(2):
                    s_ = ACC(ct, 2 * tp + h)
                    a(f"v_cvt_pk_bf16_f32 v{t+2*h}, v{s_}, v{s_+1}")
                    a(f"v_cvt_pk_bf16_f32 v{t+2*h+1}, v{s_+2}, v{s_+3}")
                a(f"buffer_store_dwordx4 {vr(t,4)}, v{EA[ct]}, {srd(SWS)}, s{sEQ if tp == 0 else sEK} offen {HST}")
                t += 4
    a(f"s_cmp_lt_u32 s{sWAVE}, 4")
    a("s_cbranch_scc1 L_xload")
    a("v_mov_b32 v10, 0\nv_mov_b32 v11, 1\ns_mov_b64 exec, 1\nds_add_u32 v10, v11 offset:8\ns_mov_b64 exec, -1")
    stamp(a, 7, 1)
    a("s_nop 2")
    g1_stores()
    stamp(a, 8, 1)
    a("s_branch L_attn_setup")

    def lds_wait(off, val, sleep=1):
        loop = a.uniq("L_lw")
        a(f"s_mov_b32 s{sCNT}, 0x400000\nv_mov_b32 v10, 0")
        a.label(loop)
        a(f"""
        ds_read_b32 v11, v10 offset:{off}
        s_waitcnt lgkmcnt(0)
        v_readfirstlane_b32 s{T0}, v11
        s_cmp_eq_u32 s{T0}, {val}
        s_cbranch_scc1 {loop}_ok
        s_sleep {sleep}
        s_sub_u32 s{sCNT}, s{sCNT}, 1
        s_cmp_lg_u32 s{sCNT}, 0
        s_cbranch_scc1 {loop}
        {loop}_ok:
        """)

    a.label("L_xload")
    a("s_nop 7")
    for n in NS:
        if n < 10:
            continue
        if n > 10:
            w = WAITS["X", n]
            if n == NS[-1]:
                lab = a.uniq("L_w0")
                a(f"s_waitcnt vmcnt(1) lgkmcnt(0)\ns_cmp_eq_u32 s{sWAVE}, 0\ns_cbranch_scc1 {lab}\ns_waitcnt vmcnt(0)\n{lab}:")
            elif w is not None:
                a(f"s_waitcnt vmcnt({w})")
            a("s_barrier")
        for x in SCH[n]:
            if x == "S":
                stamp(a, 7, 1)
                g1_stores()
                stamp(a, 8, 1)
            elif x == "P":
                stamp(a, 9, 1)
                publish(0, 1, 1)
            elif x == "Z":
                stamp(a, 10, 1)
                assert SCH[n][-1] == "Z" and NS[-2] == n
                poll_issue(0, 1)
                a("v_mov_b32 v10, 0\nv_mov_b32 v11, 0\nds_write_b64 v10, v[10:11]\nds_write_b32 v10, v10 offset:8")
            else:
                a(dma_stage(x))
    stamp(a, 3)
    stamp(a, 11, 1)
    poll_check(0, 1, sleep=4)
    lab = only_wave(0)
    a("v_mov_b32 v10, 0\nv_mov_b32 v11, 1\nds_write_b32 v10, v11")
    a.label(lab)
    lds_wait(0, 1)

    def first_loads(part):
        a(f"s_add_u32 s{T0}, s{sKVB}, s{sW1K}")
        if part == 0:
            a(f"""
            s_mul_i32 s{T3}, s{sHEAD}, 81920
            s_mul_i32 s{T4}, s{sQB}, 10240
            s_add_u32 s{T3}, s{T3}, s{T4}
            s_add_u32 s{T3}, s{T3}, s{sW1K}
            """)
            for j in range(3):
                lab = None
                if j == 2:
                    lab = a.uniq("L_q")
                    a(f"s_cmp_ge_u32 s{sWAVE}, 2\ns_cbranch_scc1 {lab}")
                a(f"""
                s_add_u32 m0, s{sW1K}, {QB_OFF + j*4096}
                s_add_u32 s{T2}, s{T3}, {QW_OFF + 32*81920 + j*4096}
                buffer_load_dwordx4 v{VDMA}, {srd(SWS)}, s{T2} offen {HS} lds
                """)
                if lab:
                    a.label(lab)
        for j in range(5 * part, 5 * part + 5):
            a(f"""
            s_add_u32 m0, s{sW1K}, {CH[0] + j*4096}
            s_add_u32 s{T2}, s{T0}, {32*163840 + j*4096}
            buffer_load_dwordx4 v{VDMA}, {srd(SWS)}, s{T2} offen {HS} lds
            """)
    a.label("L_x1")
    first_loads(0)
    a.label("L_x2")
    stamp(a, 4)
    stamp(a, 12, 1)
    first_loads(1)
    a.label("L_attn_setup")
    def scale_q(p):
        for r in [QL[p] + i for i in range(4)] + [QH[p], QH[p] + 1]:
            a(f"""
            v_lshlrev_b32 v15, 16, v{r}
            v_and_b32 v16, 0xffff0000, v{r}
            v_mul_f32 v15, s{sCS}, v15
            v_mul_f32 v16, s{sCS}, v16
            v_cvt_pk_bf16_f32 v{r}, v15, v16
            """)
        reset_m(p)

    def reset_m(p):
        a(f"""
        v_mov_b32 v15, 0x3f800000
        v_cndmask_b32 v{QH[p]}, 0, v{QH[p]}, s[{sLO}:{sLO+1}]
        v_cndmask_b32 v{QH[p]+1}, v15, v{QH[p]+1}, s[{sLO}:{sLO+1}]
        """)

    def set_m(p, M):
        a(f"""
        v_mov_b32 v15, v{M}
        s_nop 1
        v_permlane32_swap_b32 v15, v{M}
        s_nop 1
        v_max_f32 v15, v15, v{M}
        v_sub_f32 v15, 0, v15                  ; -m
        v_and_b32 v16, 0xffff0000, v15         ; hi
        v_sub_f32 v17, v15, v16
        v_and_b32 v18, 0xffff0000, v17         ; mid
        v_sub_f32 v17, v17, v18                ; lo
        v_lshrrev_b32 v16, 16, v16
        v_or_b32 v16, v16, v18
        v_lshrrev_b32 v17, 16, v17
        v_or_b32 v17, 0x3f800000, v17
        v_cndmask_b32 v{QH[p]}, v16, v{QH[p]}, s[{sLO}:{sLO+1}]
        v_cndmask_b32 v{QH[p]+1}, v17, v{QH[p]+1}, s[{sLO}:{sLO+1}]
        """)

    def kreads(buf, off, restore=True):
        return [f"ds_read2st64_b64 {vr(KL[buf],4)}, v{VK} offset0:{off//512} offset1:{off//512+1}",
                f"s_mov_b64 exec, s[{sLO}:{sLO+1}]",
                f"ds_read_b64 {vr(KH[buf],2)}, v{VK} offset:{off+1024}"] + (["s_mov_b64 exec, -1"] if restore else [])

    def vreads(buf, off):
        return [f"s_mov_b64 exec, s[{sVM}:{sVM+1}]",
                f"ds_read_b128 {vr(VF[buf],4)}, v{VV} offset:{off}",
                f"ds_read_b128 {vr(VF[buf]+4,4)}, v{VV} offset:{off+640}",
                "s_mov_b64 exec, -1"]

    def qk(Sd, buf, p, C=None):
        return [mfma32(Sd, KL[buf], QL[p], C), mfma32k8(Sd, KH[buf], QH[p], Sd)]

    def pv(Ss, buf, o):
        return [f"v_smfmac_f32_32x32x32_bf16 {vr(o,16)}, {vr(VF[buf],4)}, {vr(Ss,8)}, v{VIDX}",
                f"v_smfmac_f32_32x32x32_bf16 {vr(o,16)}, {vr(VF[buf]+4,4)}, {vr(Ss+8,8)}, v{VIDX}"]

    def cap(fn, *args):
        keep, a.l = a.l, []
        fn(*args)
        out, a.l = [x.strip() for x in a.l], keep
        return out

    def exps(Ss):
        return [f"v_exp_f32 v{Ss+i}, v{Ss+i}" for i in range(16)]

    def maxtree(M, Ss, first):
        out = []
        if first:
            out.append(f"v_max3_f32 v{M}, v{Ss}, v{Ss+1}, v{Ss+2}")
            rest = list(range(3, 16))
        else:
            rest = list(range(16))
        while len(rest) >= 2:
            out.append(f"v_max3_f32 v{M}, v{M}, v{Ss+rest[0]}, v{Ss+rest[1]}")
            rest = rest[2:]
        if rest:
            out.append(f"v_max_f32 v{M}, v{M}, v{Ss+rest[0]}")
        return out

    def zero_o(p):
        for i in range(16):
            a(f"v_mov_b32 v{OO[p]+i}, 0")

    def o_addr(p):
        return f"""
        s_mul_i32 s{T0}, s{sQT}, 40960
        s_add_u32 s{T0}, s{T0}, {OW_OFF + p*64*40960}
        s_lshl_b32 s{T1}, s{sHEAD}, 10
        s_add_u32 s{T1}, s{T1}, s{T0}
        s_lshr_b32 s{T2}, s{sHEAD}, 2
        s_add_u32 s{T2}, s{T2}, 32
        s_lshl_b32 s{T2}, s{T2}, 10
        s_add_u32 s{T2}, s{T2}, s{T0}
        s_and_b32 s{T3}, s{sHEAD}, 1
        s_lshl_b32 s{T3}, s{T3}, 9
        s_add_u32 s{T2}, s{T2}, s{T3}
        s_and_b32 s{T3}, s{sHEAD}, 2
        s_lshl_b32 s{T3}, s{T3}, 2
        s_add_u32 s{T2}, s{T2}, s{T3}
        """

    def o_store():
        return f"""
        buffer_store_dwordx4 v[20:23], v{VDMA}, {srd(SWS)}, s{T1} offen {HST}
        s_mov_b64 exec, s[{sLO}:{sLO+1}]
        buffer_store_dwordx2 v[24:25], v{VDMA}, {srd(SWS)}, s{T2} offen {HST}
        s_mov_b64 exec, -1
        """

    def epilogue(p):
        o = OO[p]
        a(f"v_rcp_f32 v15, v{o+12}")
        a(o_addr(p))
        for i in range(12):
            a(f"v_mul_f32 v{o+i}, v{o+i}, v15")
        for i in range(6):
            a(f"v_cvt_pk_bf16_f32 v{20+i}, v{o+2*i}, v{o+2*i+1}")
        a(o_store())

    def finite(p):
        a(f"v_mul_f32 v15, 0, v{OO[p]}")
        for i in range(1, 13):
            a(f"v_fmac_f32 v15, 0, v{OO[p]+i}")
        a("v_cmp_u_f32 vcc, v15, v15")

    def pen(reg, u):
        return [f"s_cmp_ge_u32 s{sQT}, {8 - u}",
                f"s_cselect_b32 s{T0}, s{sONE}, {(NEGBIG & 0xffff0000) | 0x3f80}",
                f"s_not_b64 exec, s[{sLO}:{sLO+1}]",
                f"v_mov_b32 v{reg+1}, s{T0}",
                "s_mov_b64 exec, -1"]

    def tile_step(t, n, pf, koff, voff, cmask, extra_k=None, hooks=None, midprio=None):
        a("s_waitcnt lgkmcnt(0)")
        rd = []
        if t + 2 < n:
            rd += kreads(t & 1, koff(t + 2), restore=(t >= n))
        if t < n:
            rd += vreads(t & 1, voff(t))
        if extra_k and t + 2 < n:
            rd += extra_k(t & 1, t + 2)
        q = qk(S[(t + 1) & 3], (t + 1) & 1, pf(t + 1), cmask(t + 1)) if t + 1 < n else []
        pp = pv(S[(t - 1) & 3], (t - 1) & 1, OO[pf(t - 1)]) if t >= 1 else []
        e = exps(S[t & 3]) if t < n else []
        if t == 0:
            a("s_nop 10")
        ms = q + pp
        if not e:
            a(["s_nop 1"] + ms)
            return
        order = OPT.get("ord", 1)
        if len(ms) == 4:
            ms = [ms, [q[0], pp[0], q[1], pp[1]], [q[0], pp[0], pp[1], q[1]]][order]
        rpos, roff = divmod(OPT.get("rp", 2), 10)
        hooks = hooks or []
        hp = [i for i in range(4) if i != rpos]
        nh = (len(hooks) + 2) // 3
        for i in range(4):
            if i == 2 and midprio is not None:
                a(f"s_setprio {midprio}")
            if i < len(ms):
                a(ms[i])
            if i == rpos:
                a(e[4 * i:4 * i + roff] + rd + e[4 * i + roff:4 * i + 4])
            else:
                a(e[4 * i:4 * i + 2])
                k = hp.index(i)
                for hk in hooks[k * nh:(k + 1) * nh]:
                    a(hk)
                a(e[4 * i + 2:4 * i + 4])
        if order == 2 and len(ms) == 4:
            a("s_nop 4")

    def wo_piece(p, q0, ldsbase, cond=None):
        o = [f"s_add_u32 m0, s{sW1K}, {ldsbase & 0xffffffff}",
             f"s_add_u32 s{T1}, s{sKVS}, {WP_OFF + p*819200 + q0*1024}",
             f"buffer_load_dwordx4 v{VDMA}, {srd(SWS)}, s{T1} offen {HS} lds"]
        if cond is not None:
            lab = a.uniq("L_wo")
            o = [f"s_cmp_ge_u32 s{sWAVE}, {cond}", f"s_cbranch_scc1 {lab}"] + o + [f"{lab}:"]
        return o

    def wo_half(p, kh):
        return [wo_piece(p, 50 * kh + 8 * k, WOL[p][kh] + 8 * k * 1024, cond=2 if k == 6 else None) for k in range(7)]

    def wo_base():
        return [f"s_mul_i32 s{sKVS}, s{sQB}, 102400", f"s_add_u32 s{sKVS}, s{sKVS}, s{sW1K}"]

    def o_base(p=0):
        return [f"s_lshl_b32 s{T0}, s{sHEAD}, 1",
                f"s_lshr_b32 s{T1}, s{sCW}, 1",
                f"s_add_u32 s{T0}, s{T0}, s{T1}",
                f"s_mul_i32 s{T0}, s{T0}, 40960",
                f"s_and_b32 s{T1}, s{sCW}, 1",
                f"s_lshl_b32 s{T1}, s{T1}, 8",
                f"s_add_u32 s{T0}, s{T0}, s{T1}",
                f"s_add_u32 s{T0}, s{T0}, {OW_OFF + p*64*40960}",
                f"s_lshr_b32 s{T1}, s{sWAVE}, 2",
                f"s_lshl_b32 s{sEK}, s{T1}, 12",
                f"s_add_u32 s{sEK}, s{sEK}, s{T0}",
                f"s_add_u32 s{sEK}, s{sEK}, {16*2048}",
                f"s_lshl_b32 s{T1}, s{T1}, 14",
                f"s_add_u32 s{sEQ}, s{T0}, s{T1}"]

    def o_load(p, i):
        d = OFB[p] + 4 * i
        if i < 8:
            return [f"s_add_u32 s{T5}, s{sEQ}, {p*64*40960 + (i>>1)*4096}",
                    f"buffer_load_dwordx4 {vr(d,4)}, v{VOF}, {srd(SWS)}, s{T5} offen offset:{(i&1)*2048} {HS}"]
        return [f"s_add_u32 s{T5}, s{sEK}, {p*64*40960}",
                f"buffer_load_dwordx4 {vr(d,4)}, v{VOF}, {srd(SWS)}, s{T5} offen offset:{(i-8)*2048} {HS}"]

    lab = a.uniq("L_xl")
    a(f"s_cmp_ge_u32 s{sWAVE}, 4\ns_cbranch_scc1 {lab}")
    a("s_waitcnt vmcnt(0)\nv_mov_b32 v10, 0\nv_mov_b32 v11, 1\ns_mov_b64 exec, 1\nds_add_u32 v10, v11 offset:4\ns_mov_b64 exec, -1")
    a(f"s_branch {lab}_j")
    a.label(lab)
    lds_wait(8, 4)
    a.label(lab + "_j")
    lds_wait(4, 4)
    stamp(a, 5)
    stamp(a, 13, 1)
    a(f"""
    s_mul_i32 s{T0}, s{sWAVE}, 1280
    s_add_u32 s{T0}, s{T0}, {QB_OFF}
    v_add_u32 v15, s{T0}, v{VQ}
    ds_read2st64_b64 {vr(QL[1],4)}, v15 offset0:0 offset1:1
    ds_read_b64 {vr(QH[1],2)}, v15 offset:1024
    s_add_u32 s{sKVS}, s{sKVB}, s{sW1K}
    """)
    a(kreads(0, 0))
    a(kreads(1, 2560))
    a("s_waitcnt lgkmcnt(4)")
    scale_q(1)
    a("s_waitcnt lgkmcnt(2)")
    a(qk(S[0], 0, 1))
    a("s_nop 15")
    a(maxtree(19, S[0], True))
    set_m(1, 19)
    a("s_nop 1")
    a(qk(S[0], 0, 1))

    def dmaY(j):
        lab = a.uniq("L_dy")
        return [f"s_cmp_lt_u32 s{sWAVE}, 4", f"s_cbranch_scc1 {lab}",
                f"s_add_u32 m0, s{sW1K}, {CH[1] + j*4096 - 4096}",
                f"s_add_u32 s{T2}, s{sKVS}, {32*163840 + 40960 + j*4096 - 4096}",
                f"buffer_load_dwordx4 v{VDMA}, {srd(SWS)}, s{T2} offen {HS} lds", f"{lab}:"]

    def dma3(r):
        return [f"s_add_u32 m0, s{sW1K}, {CH[3] + r*8192}",
                f"s_add_u32 s{T2}, s{sKVS}, {32*163840 + 3*40960 + r*8192}",
                f"buffer_load_dwordx4 v{VDMA}, {srd(SWS)}, s{T2} offen {HS} lds"]

    def dmaA(j):
        out = [f"s_mul_i32 s{T1}, s{sQB}, 20480", f"s_sub_u32 s{T1}, s{T1}, 20480"]
        if j < 2:
            out += [f"s_max_i32 s{T1}, s{T1}, 0"]
        elif j == 2:
            out += [f"s_max_i32 s{T0}, s{T1}, 0", f"s_cmp_lt_u32 s{sWAVE}, 4", f"s_cselect_b32 s{T1}, s{T0}, s{T1}"]
        out += [f"s_add_u32 s{T1}, s{T1}, s{sKVS}", f"s_add_u32 m0, s{sW1K}, {A_OFF + j*8192}",
                f"s_add_u32 s{T1}, s{T1}, {j*8192}",
                f"buffer_load_dwordx4 v{VDMA}, {srd(SWS)}, s{T1} offen {HS} lds"]
        return out

    qa_loads = [f"s_mul_i32 s{T0}, s{sHEAD}, 81920",
                f"s_mul_i32 s{T2}, s{sQT}, 1280",
                f"s_add_u32 s{T0}, s{T0}, s{T2}",
                f"buffer_load_dwordx2 {vr(QL[0],2)}, v{VQ}, {srd(SWS)}, s{T0} offen {HS}",
                f"buffer_load_dwordx2 {vr(QL[0]+2,2)}, v{VQ}, {srd(SWS)}, s{T0} offen offset:512 {HS}",
                f"s_mov_b64 exec, s[{sLO}:{sLO+1}]",
                f"buffer_load_dwordx2 {vr(QH[0],2)}, v{VQ}, {srd(SWS)}, s{T0} offen offset:1024 {HS}",
                "s_mov_b64 exec, -1"]
    assert QW_OFF == 0

    NT = 73
    PC = 64 + OPT.get("pc", 7)
    EB = OPT.get("eb", 65)
    h1 = wo_half(1, 1)
    nper = -(-10 // (NT - PC))
    ST0, ST1, KLT, KHT, VKT = 148, 164, 180, 184, 186
    sq = cap(scale_q, 0)

    def kt_reads(u):
        return [f"ds_read2st64_b64 {vr(KLT,4)}, v{VKT} offset0:{5*u} offset1:{5*u+1}",
                f"s_mov_b64 exec, s[{sLO}:{sLO+1}]",
                f"ds_read_b64 {vr(KHT,2)}, v{VKT} offset:{u*2560+1024}",
                "s_mov_b64 exec, -1"]
    adelta = [f"s_mul_i32 s{T0}, s{sWAVE}, 2560", f"s_add_u32 s{T0}, s{T0}, {A_OFF - CH[3]}"]
    xh = {50: [sq[:10], sq[10:20]], 51: [sq[20:30], sq[30:]],
          52: [adelta + [f"v_add_u32 v{VKT}, s{T0}, v{VK}", f"v_mov_b32 v{KHT}, 0x3f803f80"] + pen(KHT, 7), kt_reads(7)],
          53: [[mfma32(ST0, KLT, QL[0], None)], [mfma32k8(ST0, KHT, QH[0], ST0)] + kt_reads(8) + pen(KHT, 8)],
          54: [[mfma32(ST1, KLT, QL[0], MD)], [mfma32k8(ST1, KHT, QH[0], ST1)]],
          55: [maxtree(19, ST0, True)[:4], maxtree(19, ST0, True)[4:]],
          56: [maxtree(19, ST1, False)[:4], maxtree(19, ST1, False)[4:]],
          57: [cap(set_m, 0, 19)[:5], cap(set_m, 0, 19)[5:]],
          64: [[], cap(zero_o, 0)[:8], cap(zero_o, 0)[8:]]}
    ep = cap(epilogue, 1)
    xh[EB] = [cap(finite, 1)[:7], cap(finite, 1)[7:] + ["s_cmp_lg_u64 vcc, 0", f"s_cselect_b32 s{sBAD}, 1, 0"], ep[:21]]
    xh[EB + 1] = [ep[21:33] + [f"s_cmp_lg_u32 s{sBAD}, 0", "s_cbranch_scc1 L_nostB"] + ep[33:] + ["L_nostB:"]]
    assert ep[33].startswith("buffer_store") and ep[20].startswith("v_mul")
    pf = lambda u: 1 if u < 64 else 0
    off = lambda u: (u & 15) * 2560 if u < 64 else (u - 64) * 2560
    cm = lambda u: MF if u == 64 else (MD if u == 72 else None)
    for t in range(NT + 1):
        hooks = []
        if t < 10:
            hooks = [dmaY(2 * t), dmaY(2 * t + 1)]
        if t == 14:
            a("s_waitcnt vmcnt(0) lgkmcnt(0)\ns_barrier")
            stamp(a, 6)
            cstamp(a, 1)
            stamp(a, 14, 1)
            publish(0, 0, 4)
        if 14 <= t < 19:
            hooks = [dma3(t - 14)]
        if t == 26:
            hooks = [[f"v_mov_b32 v{20+i}, -1" for i in range(6)], o_addr(0), o_store()]
        if t == 27:
            hooks = [o_addr(1), o_store()]
        if t == 29:
            poll_issue(0, 0)
        if t == 33:
            poll_check(0, 0)
            a("s_waitcnt vmcnt(0) lgkmcnt(0)\ns_barrier")
            publish(1, 0, 1)
            stamp(a, 7)
            cstamp(a, 3)
        if 33 <= t < 38:
            hooks = [dmaA(t - 33)]
        if t == 38:
            hooks = [qa_loads]
        if t == 40:
            hooks = [wo_base(), o_base()]
        if 41 <= t < 46:
            k = t - 41
            hooks = [[f"s_add_u32 s{T1}, s{sKVS}, {WP_OFF + k*8192}",
                      f"buffer_load_dwordx4 {vr(ST[k],4)}, v{VDMA}, {srd(SWS)}, s{T1} offen {HS}"]]
        if 56 <= t < 59:
            k = t - 56
            hooks = [wo_piece(0, 80 + 8 * k, WOL[0][0] + (80 + 8 * k) * 1024, cond=4 if k == 2 else None)]
        if t == 46:
            poll_issue(1, 0)
        if t == 49:
            poll_check(1, 0)
            a("s_waitcnt vmcnt(0) lgkmcnt(0)\ns_barrier")
            stamp(a, 8)
            cstamp(a, 5)
        if 49 <= t < 56:
            hooks = [wo_half(1, 0)[t - 49]]
        if t == 67:
            a("s_barrier")
            stamp(a, 10)
            cstamp(a, 7)
            stamp(a, 3, 2)
        if 67 <= t < 70:
            hooks = h1[3 * (t - 67):3 * (t - 66)]
        if PC <= t < NT:
            hooks = [o_load(1, i) for i in range((t - PC) * nper, min(10, (t - PC + 1) * nper))]
        if t in xh:
            hx = xh[t] + [[]] * (3 - len(xh[t]))
            assert len(hooks) <= 1
            hooks = [hx[0], hx[1], hx[2] + (hooks[0] if hooks else [])]
        if t < 14:
            a("s_nop 0")
        else:
            t0 = max(x for x in (14, 33, 49, 67) if x <= t)
            a(f"s_setprio {3 - (t - t0) % 4}")
        if t + 2 in (16, 32, 48):
            c = (t + 2) // 16
            a(f"v_add_u32 v{VK}, {(CH[c] - CH[c - 1]) & 0xffffffff}, v{VK}")
        if t in (16, 32, 48):
            c = t // 16
            a(f"v_add_u32 v{VV}, {(CH[c] - CH[c - 1]) & 0xffffffff}, v{VV}")
        if t == 62:
            a(f"v_mov_b32 v{VK}, v{VKT}")
        if t == 64:
            stamp(a, 9)
            stamp(a, 1, 2)
            a(adelta + [f"v_add_u32 v{VV}, s{T0}, v{VV}"])
        tile_step(t, NT, pf, off, off, cm, extra_k=lambda b, u: pen(KH[b], u - 64) if u >= 64 else [], hooks=hooks)
    a("s_setprio 0")
    a(f"s_cmp_lg_u32 s{sBAD}, 0")
    a("s_cbranch_scc1 L_slowB")
    a.label("L_chkA")
    a("s_nop 8")
    finite(0)
    a("s_nop 4")
    a("s_cbranch_vccnz L_slowA")
    a.label("L_epiA")
    epilogue(0)
    stamp(a, 11)
    stamp(a, 7, 2)

    GA = [148, 208]
    GW = lambda buf, ct: 72 + buf * 20 + 4 * ct
    FT = 168
    retries = []

    def g3reads(i):
        return [f"ds_read_b128 {vr(GW(i%3,ct),4)}, v{VW3} offset:{(i*5+ct)*1024}" for ct in range(5)]

    def part_out(p):
        a(f"v_add_u32 v10, {SCR[p]}, v{VRED}")
        for ct in range(5):
            a(f"ds_write_b128 v10, {vr(GA[p]+4*ct,4)} offset:{ct*1024}")

    def finish(p):
        a(f"v_add_u32 v10, {SCR[p]}, v{VRED}")
        for ct in range(5):
            a(f"ds_read_b128 {vr(FT+4*ct,4)}, v10 offset:{ct*1024}")
        a(f"""
        s_lshl_b32 s{T0}, s{sHEAD}, 2
        s_add_u32 s{T0}, s{T0}, s{sCW}
        s_mul_i32 s{T0}, s{T0}, {16*2560}
        s_mul_i32 s{T1}, s{sQB}, 160
        s_add_u32 s{T0}, s{T0}, s{T1}
        s_add_u32 s{T0}, s{T0}, {p*1280}
        """)
        for g, (lo, hi) in enumerate(((0, 8), (8, 16), (16, 20))):
            a(f"s_waitcnt lgkmcnt({[3, 1, 0][g]})")
            for i in range(lo, hi):
                a(f"v_add_f32 v{FT+i}, v{FT+i}, v{GA[p]+i}")
            for i in range(lo // 2, hi // 2):
                a(f"v_cvt_pk_bf16_f32 v{FT+20+i}, v{FT+2*i}, v{FT+2*i+1}")
            a(f"buffer_store_dwordx{4 if g < 2 else 2} {vr(FT+20+4*g, 4 if g < 2 else 2)}, v{VOUT if g < 2 else VOUT2}, {srd(SOUT)}, s{T0} offen offset:{64*g} {OUTP}")

    def o_check(p, i, n):
        d = OFB[p] + 4 * i
        a(f"""
        s_waitcnt vmcnt({n})
        L_gw{p}_{i}:
        v_max3_u32 v10, v{d}, v{d+1}, v{d+2}
        v_max_u32 v10, v10, v{d+3}
        v_cmp_eq_u32 vcc, -1, v10
        s_cbranch_vccnz L_gr{p}_{i}
        L_gc{p}_{i}:
        """)
        retries.append((p, i))

    a(f"s_mov_b32 s{sCNT}, 0x20000")
    OI = OPT.get("oi", 11)
    a("s_waitcnt vmcnt(12)")
    a("s_barrier")
    stamp(a, 8, 2)
    a(g3reads(0))
    a(g3reads(1))
    young = 2
    nd = no = 0
    for i in range(10):
        o_check(1, i, 9 - i + young)
        a(f"s_waitcnt lgkmcnt({5 if i < 9 else 0})")
        rs = g3reads(i + 2) if i < 8 else []
        for ct in range(5):
            a(mfma16(GA[1] + 4 * ct, GW(i % 3, ct), OFB[1] + 4 * i, None if i == 0 else GA[1] + 4 * ct))
            a(rs[ct:ct + 1])
        if nd < 5:
            a(wo_piece(0, 40 + 8 * nd, WOL[0][0] + (40 + 8 * nd) * 1024))
            nd += 1; young += 1
        if i >= OI:
            n = -(-10 // (10 - OI))
            for k in range(no, min(10, no + n)):
                a(o_load(0, k)); young += 1
            no = min(10, no + n)
    assert OI >= 5
    if OI <= 10:
        for k in range(no, 10):
            a(o_load(0, k))
    a("s_barrier")
    stamp(a, 9, 2)
    a(f"s_add_u32 s{T0}, s{sW1K}, {WOL[0][0]}\nv_add_u32 v11, s{T0}, v{VDMA}")
    MRG = OPT.get("mrg", 0)
    if not MRG:
        a(f"s_cmp_lt_u32 s{sWAVE}, 4\ns_cbranch_scc1 L_pb1")
        part_out(1)
        a.label("L_pb1")
    for k in range(5):
        a(f"ds_write_b128 v11, {vr(ST[k],4)} offset:{k*8192}")
    a(f"""
    s_cmp_lt_u32 s{sWAVE}, 4
    s_mov_b32 s{T0}, {(WOL[0][1] - WOL[1][1]) & 0xffffffff}
    s_cselect_b32 s{T0}, {(WOL[0][0] - WOL[1][0]) & 0xffffffff}, s{T0}
    v_add_u32 v{VW3}, s{T0}, v{VW3}
    """)
    if OI == 11:
        for k in range(10):
            a(o_load(0, k))
    a(f"s_waitcnt lgkmcnt(0) vmcnt({10 if OI <= 11 else 0})\ns_barrier")
    if OI == 12:
        for k in range(10):
            a(o_load(0, k))
    if not MRG:
        a(f"s_cmp_ge_u32 s{sWAVE}, 4\ns_cbranch_scc1 L_pb2")
        finish(1)
        a.label("L_pb2")
    stamp(a, 12)
    stamp(a, 13)
    stamp(a, 12, 2)
    a(g3reads(0))
    a(g3reads(1))
    for i in range(10):
        d = OFB[0] + 4 * i
        o_check(0, i, 9 - i)
        a(f"s_waitcnt lgkmcnt({5 if i < 9 else 0})")
        rs = g3reads(i + 2) if i < 8 else []
        for ct in range(5):
            a(mfma16(GA[0] + 4 * ct, GW(i % 3, ct), d, None if i == 0 else GA[0] + 4 * ct))
            a(rs[ct:ct + 1])
    stamp(a, 13, 2)
    if MRG:
        a(f"s_cmp_ge_u32 s{sWAVE}, 4\ns_cbranch_scc1 L_fin1")
        a("s_nop 2")
        part_out(0)
        a("s_waitcnt lgkmcnt(0)\ns_barrier")
        finish(1)
        a("s_branch L_fin2")
        a.label("L_fin1")
        part_out(1)
        a("s_waitcnt lgkmcnt(0)\ns_barrier")
        finish(0)
        a.label("L_fin2")
    else:
        a(f"s_cmp_lt_u32 s{sWAVE}, 4\ns_cbranch_scc1 L_fin1")
        a("s_nop 2")
        part_out(0)
        a("s_waitcnt lgkmcnt(0)\ns_barrier\ns_branch L_fin2")
        a.label("L_fin1")
        a("s_barrier")
        finish(0)
        a.label("L_fin2")
    lab = only_wave(4)
    a(f"""
    s_cmp_lg_u32 s2, 0
    s_cbranch_scc1 {lab}
    v_mov_b32 v1, s{sTAG}
    s_mov_b32 s{T4}, {EP_OFF}
    s_mov_b64 exec, 1
    buffer_store_dword v1, off, {srd(SWS)}, s{T4} sc1
    s_mov_b64 exec, -1
    """)
    a.label(lab)
    if STAMPS:
        a("s_waitcnt vmcnt(0)")
        stamp(a, 14)
        stamp(a, 14, 2)
        a("s_waitcnt lgkmcnt(0)")
        a(f"""
        s_lshl_b32 s{T0}, s2, 4
        s_add_u32 s{T0}, s{T0}, s{sWAVE}
        s_lshl_b32 s{T0}, s{T0}, 7
        s_add_u32 s{T0}, s{T0}, {STAMP_OFF}
        s_mov_b64 exec, 1
        """)
        for i in range(15):
            a(f"v_mov_b32 v1, s{SB+2*i}")
            a(f"buffer_store_dword v1, off, {srd(SWS)}, s{T0} offset:{4*i}")
    if OPT.get("pad"):
        if "padwg" in OPT:
            a(f"s_cmp_lg_u32 s2, {OPT['padwg']}\ns_cbranch_scc1 L_done")
            a(f"s_cmp_lg_u32 s{sWAVE}, 0\ns_cbranch_scc1 L_done")
        a(f"""
        L_pad:
        s_memrealtime s[{T0}:{T1}]
        s_waitcnt lgkmcnt(0)
        s_sub_u32 s{T0}, s{T0}, s{SB + 2*OPT.get('padst', 0)}
        s_cmp_lt_u32 s{T0}, {OPT["pad"]}
        s_cbranch_scc1 L_pad
        """)
    a.label("L_done")
    a("s_endpgm")

    for p, i in retries:
        a.label(f"L_gr{p}_{i}")
        a(f"""
        s_sub_u32 s{sCNT}, s{sCNT}, 1
        s_cmp_eq_u32 s{sCNT}, 0
        s_cbranch_scc1 L_gq{p}_{i}
        s_waitcnt vmcnt(0)
        s_sleep 1
        """)
        for k in range(i, 10):
            a(o_load(p, k))
        a(f"s_waitcnt vmcnt({9 - i if p == 0 else 0})")
        a(f"s_branch L_gw{p}_{i}")
        a.label(f"L_gq{p}_{i}")
        a(f"s_mov_b32 s{sCNT}, 1\ns_branch L_gc{p}_{i}")

    a.label("L_slowA")
    MF2 = OO[1]
    cmA = lambda u: MD if u == 8 else (MF2 if u == 0 else None)
    penA = lambda b, u: pen(KH[b], u)
    for i in range(16):
        a(f"v_sub_f32 v{MF2+i}, {NEGBIG}, v{MD+i}")
    reset_m(0)
    a(kreads(0, 0))
    a(penA(0, 0))
    for u in range(9):
        if u + 1 < 9:
            a(kreads((u + 1) & 1, (u + 1) * 2560))
            a("s_waitcnt lgkmcnt(2)")
        else:
            a("s_waitcnt lgkmcnt(0)")
        a("s_nop 0")
        a(qk(S[u & 3], u & 1, 0, cmA(u)))
        if u + 1 < 9:
            a(penA((u + 1) & 1, u + 1))
        if u >= 2:
            a(maxtree(19, S[(u - 2) & 3], u == 2))
    a(kreads(0, 0))
    a(kreads(1, 2560))
    zero_o(0)
    for u in (7, 8):
        a(maxtree(19, S[u & 3], False))
    set_m(0, 19)
    a(penA(0, 0) + penA(1, 1))
    a("s_waitcnt lgkmcnt(2)\ns_nop 0")
    a(qk(S[0], 0, 0, cmA(0)))
    for t in range(10):
        a("s_nop 0")
        tile_step(t, 9, lambda u: 0, lambda u: u * 2560, lambda u: u * 2560, cmA, extra_k=penA)
    a("s_nop 15\ns_branch L_epiA")

    a.label("L_idle")
    a(late)
    G3D = [128, 129, 130, 131, 132]
    for i in range(5):
        a([f"v_add_u32 v10, {64*i}, v0",
           "v_mul_u32_u24 v11, 6554, v10",
           "v_lshrrev_b32 v11, 16, v11",
           "v_mul_u32_u24 v12, 10, v11",
           "v_sub_u32 v12, v10, v12",
           "v_mul_u32_u24 v11, 1280, v11",
           f"v_lshl_add_u32 v{G3D[i]}, v12, 4, v11"])
    a(f"""
    s_cmp_ge_u32 s{sTB}, 8
    s_cselect_b32 s{SX[0]}, s{SWO[1]}, s{SWO[0]}
    s_cselect_b32 s{SX[0]+1}, s{SWO[1]+1}, s{SWO[0]+1}
    s_mov_b32 s{SX[0]+2}, {WO_BYTES}
    s_and_b32 s{T0}, s{sTB}, 7
    s_mul_i32 s{T0}, s{T0}, 160
    s_mul_i32 s{T1}, s{sWAVE}, {32*1280}
    s_add_u32 s{T0}, s{T0}, s{T1}
    s_mul_i32 s{T1}, s{sWAVE}, 5120
    """)
    for rnd in range(3):
        lab = a.uniq("L_id")
        if rnd == 2:
            a(f"s_cmp_ge_u32 s{sWAVE}, 4\ns_cbranch_scc1 {lab}")
        a(f"s_add_u32 s{T2}, s{T0}, {rnd*256*1280}")
        for i in range(5):
            a(f"s_add_u32 m0, s{T1}, {K + rnd*8*5120 + i*1024}\ns_nop 0")
            a(f"buffer_load_dwordx4 v{G3D[i]}, {srd(SX[0])}, s{T2} offen lds")
        a.label(lab)
    a(f"""
    v_lshrrev_b32 v10, 5, v0
    v_bfe_u32 v11, v0, 4, 1
    v_bfe_u32 v12, v0, 2, 2
    v_and_b32 v13, 3, v0
    v_lshlrev_b32 v136, 3, v13
    v_lshlrev_b32 v13, 4, v13
    v_add_u32 v13, {K}, v13
    v_mul_u32_u24 v14, 20, v10
    v_lshl_add_u32 v14, v11, 2, v14
    v_add_u32 v14, v14, v12
    v_mul_u32_u24 v14, 160, v14
    v_add_u32 v133, v14, v13
    v_mul_u32_u24 v14, 80, v10
    v_mul_u32_u24 v11, 20, v11
    v_add3_u32 v14, v14, v11, v12
    v_add_u32 v14, 16, v14
    v_mul_u32_u24 v14, 160, v14
    v_add_u32 v134, v14, v13
    s_mul_i32 s{T0}, s{sWAVE}, 6400
    v_add_u32 v133, s{T0}, v133
    s_mul_i32 s{T0}, s{sWAVE}, 25600
    v_add_u32 v134, s{T0}, v134
    v_lshlrev_b32 v135, 4, v0
    v_sub_u32 v137, v133, v136
    v_sub_u32 v138, v134, v136
    v_mov_b32 v10, 0
    v_mov_b32 v11, 0
    v_mov_b32 v12, 4
    ds_write_b64 v10, v[10:11]
    ds_write_b32 v10, v12 offset:8
    s_mul_i32 s{T0}, s{sTB}, 102400
    s_add_u32 s{T0}, s{T0}, {WP_OFF}
    s_mul_i32 s{T1}, s{sWAVE}, 5120
    s_add_u32 s{T1}, s{T1}, s{T0}              ; kh=0, i=w
    s_lshr_b32 s{T2}, s{sWAVE}, 1
    s_mul_i32 s{T2}, s{T2}, 51200
    s_and_b32 s{T3}, s{sWAVE}, 1
    s_mul_i32 s{T3}, s{T3}, 5120
    s_add_u32 s{T2}, s{T2}, s{T3}
    s_add_u32 s{T2}, s{T2}, s{T0}
    s_add_u32 s{T2}, s{T2}, {8*5120}
    s_waitcnt vmcnt(0) lgkmcnt(0)
    s_barrier
    """)
    for rnd in range(3):
        lab = a.uniq("L_id")
        if rnd == 2:
            a(f"s_cmp_ge_u32 s{sWAVE}, 4\ns_cbranch_scc1 {lab}")
        base = 64 + rnd * 20
        for ct in range(5):
            for rd in range(2):
                if rnd < 2:
                    a(f"ds_read_b64_tr_b16 {vr(base+4*ct+2*rd,2)}, v{133 if ct < 4 else 137} offset:{rnd*51200 + rd*1280 + (ct>>1)*64 + (ct&1)*8}")
                else:
                    a(f"ds_read_b64_tr_b16 {vr(base+4*ct+2*rd,2)}, v{134 if ct < 4 else 138} offset:{rd*6400 + (ct>>1)*64 + (ct&1)*8}")
        a("s_waitcnt lgkmcnt(0)")
        if rnd == 1:
            a(f"s_add_u32 s{T1}, s{T1}, 51200")
        sreg = T1 if rnd < 2 else T2
        for ct in range(5):
            if ct == 4:
                a(f"s_add_u32 s{T3}, s{sreg}, 4096")
                a(f"buffer_store_dwordx4 {vr(base+4*ct,4)}, v135, {srd(SWS)}, s{T3} offen {HST}")
            else:
                a(f"buffer_store_dwordx4 {vr(base+4*ct,4)}, v135, {srd(SWS)}, s{sreg} offen offset:{ct*1024} {HST}")
        a.label(lab)
    a("s_waitcnt vmcnt(0)\ns_barrier")
    publish(0, 0, 1)
    publish(0, 1, 2)
    a(f"v_add_u32 v{VPUB}, 4, v{VPUB}")
    publish(0, 0, 3)
    publish(0, 1, 4)
    poll_issue(0, 1)
    poll_check(0, 1, sleep=OPT.get('isl', 32))
    a("s_barrier")
    a(f"s_cmp_ge_u32 s{sWAVE}, 4")
    a("s_cbranch_scc1 L_attn_setup")
    a("s_branch L_x1")

    a.label("L_slowB")
    reset_m(1)
    a(f"""
    v_mov_b32 v19, 0xff800000
    s_mul_i32 s{T0}, s{sWAVE}, 2560
    s_add_u32 s{T0}, s{T0}, {A_OFF}
    v_subrev_u32 v10, s{T0}, v{VK}
    v_subrev_u32 v12, s{T0}, v{VV}
    s_not_b64 exec, s[{sLO}:{sLO+1}]
    v_mov_b32 v{KH[0]+1}, 0x3f80
    s_mov_b64 exec, -1
    s_add_u32 s{T0}, s{sKVB}, {32*163840}
    s_add_u32 s{T1}, s{T0}, 163840
    """)

    def gk():
        return f"""
        buffer_load_dwordx2 {vr(KL[0],2)}, v10, {srd(SWS)}, s{T0} offen {HS}
        buffer_load_dwordx2 {vr(KL[0]+2,2)}, v10, {srd(SWS)}, s{T0} offen offset:512 {HS}
        s_mov_b64 exec, s[{sLO}:{sLO+1}]
        buffer_load_dwordx2 {vr(KH[0],2)}, v10, {srd(SWS)}, s{T0} offen offset:1024 {HS}
        """
    a.label("L_slow1")
    a(gk())
    a("s_mov_b64 exec, -1\ns_waitcnt vmcnt(0)")
    a(qk(S[0], 0, 1))
    a("s_nop 15")
    a(maxtree(19, S[0], False))
    a(f"""
    s_add_u32 s{T0}, s{T0}, 2560
    s_cmp_lt_u32 s{T0}, s{T1}
    s_cbranch_scc1 L_slow1
    """)
    set_m(1, 19)
    zero_o(1)
    a(f"s_sub_u32 s{T0}, s{T1}, 163840")
    a.label("L_slow2")
    a(gk())
    a(f"""
    s_mov_b64 exec, s[{sVM}:{sVM+1}]
    buffer_load_dwordx4 {vr(VF[0],4)}, v12, {srd(SWS)}, s{T0} offen {HS}
    buffer_load_dwordx4 {vr(VF[0]+4,4)}, v12, {srd(SWS)}, s{T0} offen offset:640 {HS}
    s_mov_b64 exec, -1
    s_waitcnt vmcnt(0)
    """)
    a(qk(S[0], 0, 1))
    a("s_nop 15")
    a(exps(S[0]))
    a("s_nop 1")
    a(pv(S[0], 0, OO[1]))
    a(f"""
    s_add_u32 s{T0}, s{T0}, 2560
    s_cmp_lt_u32 s{T0}, s{T1}
    s_cbranch_scc1 L_slow2
    s_nop 15
    """)
    epilogue(1)
    a("s_branch L_chkA")


def main(out):
    global HST, HS, OUTP
    OUTP = ["", "nt", "sc1", "sc0 sc1"][OPT.get("outp", 0)]
    HST = ["sc1", "", "sc0 sc1", "nt", "sc1 nt"][OPT.get("st", 0)]
    HS = ["sc1", ""][OPT.get("ld", 0)]
    a = Asm()
    hdr = open(f"cdna_kernels/{NAME}.s.ref").read().split("\n")
    keep = [l for l in hdr if l.startswith(";") and "@launch" not in l]
    for l in keep:
        a.raw(l)
    a.raw(f"; @launch grid=(256,1,1) block=(512,1,1) lds={LDS_BYTES}")
    a.raw('.amdgcn_target "amdgcn-amd-amdhsa--gfx950"')
    a.raw(".text")
    gen(a)
    a.raw('.section .rodata,"a"')
    a.raw(".p2align 6")
    a.raw(f""".amdhsa_kernel {KNAME}
  .amdhsa_next_free_vgpr 256
  .amdhsa_next_free_sgpr {102 if STAMPS else 72}
  .amdhsa_accum_offset 256
  .amdhsa_group_segment_fixed_size 0
  .amdhsa_kernarg_size 72
  .amdhsa_user_sgpr_count 2
  .amdhsa_user_sgpr_kernarg_segment_ptr 1
  .amdhsa_system_sgpr_workgroup_id_x 1
.end_amdhsa_kernel""")
    open(out, "w").write(a.text())


if __name__ == "__main__":
    if "--stamps" in sys.argv:
        STAMPS = True
        sys.argv.remove("--stamps")
    for x in list(sys.argv):
        if x.startswith("-D"):
            k, _, v = x[2:].partition("=")
            OPT[k] = int(v) if v else 1
            sys.argv.remove(x)
    main(sys.argv[1] if len(sys.argv) > 1 else f"cdna_kernels/{NAME}.s")
```

```python
import sys, struct, re

NAME = "concat_heads__sliding_block__softmax_full_mha__prompt"
KNAME = NAME + "_kernel"

QW_OFF = 0x000000
KV_OFF = 0x500000
OW_OFF = 0xF00000
FL_OFF = 0x1400000
EP_OFF = 0x1409000
WP_OFF = 0x1500000
WS_USED = 0x1700000
X_BYTES = 2048 * 640 * 2
WQKV_BYTES = 640 * 1920 * 2
WO_BYTES = 640 * 640 * 2
OUT_BYTES = 2048 * 1280 * 2
SRD3 = 0x00020000
LDS_BYTES = 163840
K = 1024

STAMPS = False
STAMP_OFF = 0x2000000
SB = 72
OPT = {}


def f32bits(x):
    return struct.unpack("<I", struct.pack("<f", x))[0]


NEGBIG = f32bits(-1e30)
CSCALE = f32bits((20 ** -0.5) * 1.4426950408889634)


class Asm:
    def __init__(self):
        self.l = []
        self.n = 0

    def __call__(self, s):
        if isinstance(s, (list, tuple)):
            for x in s:
                self(x)
            return
        for line in s.strip("\n").split("\n"):
            line = line.strip()
            if line:
                self.l.append(("" if line.endswith(":") else "    ") + line)

    def label(self, s):
        self.l.append(s + ":")

    def raw(self, s):
        self.l.append(s)

    def uniq(self, p):
        self.n += 1
        return f"{p}_{self.n}"

    def text(self):
        return "\n".join(self.l) + "\n"


def vr(a, n):
    return f"v[{a}:{a + n - 1}]"


def mfma32(d, a_, b_, c):
    cs = vr(c, 16) if c is not None else "0"
    return f"v_mfma_f32_32x32x16_bf16 {vr(d,16)}, {vr(a_,4)}, {vr(b_,4)}, {cs}"


def mfma32k8(d, a_, b_, c):
    return f"v_mfma_f32_32x32x8_bf16 {vr(d,16)}, {vr(a_,2)}, {vr(b_,2)}, {vr(c,16)}"


def mfma16(d, a_, b_, c):
    cs = vr(c, 4) if c is not None else "0"
    return f"v_mfma_f32_16x16x32_bf16 {vr(d,4)}, {vr(a_,4)}, {vr(b_,4)}, {cs}"


def cstamp(a, i):
    if STAMPS and OPT.get("sm", 0) == 3:
        a(f"s_memrealtime s[{SB+2*i}:{SB+2*i+1}]")
        a(f"s_memtime s[{SB+2*i+2}:{SB+2*i+3}]")


def stamp(a, i, mode=0):
    if STAMPS and (i == 0 or OPT.get("sm", 0) == mode):
        a(f"s_memrealtime s[{SB+2*i}:{SB+2*i+1}]")


SX = [4, 12]
SW = [8, 16]
SWS, SDBG = 20, 24
SWO = [28, 32]
SOUT = 36
sWAVE, sCW, sTB, sM, sKS, sXB, sWB, sLP = 40, 41, 42, 43, 44, 45, 46, 47
T0, T1, T2, T3, T4, T5 = 48, 49, 50, 51, 52, 53
sEQ, sEK = 54, 55
sHEAD, sQB, sQT, sW1K = 56, 57, 58, 59
sVM, sLO = 60, 62
sCS, sONE, sKVB, sXCD, sJ, sROT = 64, 65, 66, 67, 68, 69
sCNT = 70
sKVS = 71
sTAG = 3
sBAD = 47


def srd(n):
    return f"s[{n}:{n+3}]"


HS = "sc1"
HST = "sc1"
OUTP = ""


SCHEDS = {
    0: ([2, 3], {0: [4], 1: [5], 2: [6], 3: [7], 4: [8], 5: [9], 6: [10], 7: [11], 8: [12], 9: [13],
                 10: [14], 11: [15, "S"], 13: ["P", 16, 17], 15: [18], 16: [19, "Z"], 17: []}),
    1: ([], {0: [2, 3], 1: [4], 2: [5], 3: [6], 4: [7], 5: [8], 6: [9], 7: [10], 8: [11], 9: [12],
             10: [13], 11: [14, "S", 15], 13: [16, 17], 15: ["P", 18], 16: [19, "Z"], 17: []}),
    2: ([], {0: [2, 3], 1: [4], 2: [5], 3: [6], 4: [7], 5: [8], 6: [9], 7: [10], 8: [11], 9: [12],
             10: [13, 14], 12: ["S", 15, 16], 14: ["P", 17, 18], 16: [19, "Z"], 18: []}),
    3: ([], {0: [2], 1: [3], 2: [4], 3: [5], 4: [6], 5: [7], 6: [8], 7: [9], 8: [10], 9: [11],
             10: [12, 13], 12: [14, "S", 15], 14: [16, 17, 18], 16: ["P", 19, "Z"], 18: []}),
    4: ([], {0: [2, 3], 1: [4, 5], 3: [6, 7], 5: [8, 9], 7: [10, 11], 9: [12],
             10: [13, 14], 12: ["S", 15, 16], 14: ["P", 17, 18], 16: [19, "Z"], 18: []}),
    5: ([], {0: [2, 3], 1: [4], 2: [5], 3: [6], 4: [7], 5: [8], 6: [9], 7: [10, 11], 8: [12], 9: [13],
             10: [14], 11: [15, "S"], 13: ["P", 16, 17], 15: [18], 16: [19, "Z"], 17: []}),
}


def plan():
    pre, sch = SCHEDS[OPT.get("sch", 0)]
    ns = sorted(sch)
    q = {"X": [0], "Y": [1] + pre}
    waits = {}
    assert 0 in sch and 10 in sch and ns[-1] >= 17
    for k, n in enumerate(ns):
        need = set(range(n, ns[k + 1] if k + 1 < len(ns) else 20))
        if "P" in sch[n]:
            need.add("S")
        assert need <= set(q["X"]) | set(q["Y"]), (n, need)
        for g in "XY":
            idx = [i for i, x in enumerate(q[g]) if x in need]
            waits[g, n] = 8 * (len(q[g]) - 1 - max(idx)) if idx else None
            if "P" in sch[n] and g == "X" and OPT.get("pz", 0):
                waits[g, n] = 0
        for x in sch[n]:
            if isinstance(x, int):
                assert x - 5 <= n - 1, (n, x)
            if x == "Z":
                assert n >= 16 and k + 1 < len(ns)
            if x not in ("P", "Z"):
                q["Y" if n < 10 else "X"].append(x)
    st = [x for x in q["X"] + q["Y"] if isinstance(x, int)]
    assert sorted(st) == list(range(20))
    return pre, sch, ns, waits, min(x for x in q["X"][1:] if isinstance(x, int))


def gen(a):
    PRE, SCH, NS, WAITS, XFIRST = plan()
    a.raw(f".globl {KNAME}\n.p2align 8\n.type {KNAME},@function")
    a.label(KNAME)
    a(f"""
    s_cmp_ge_u32 s2, 256
    s_cbranch_scc1 L_done
    """)
    stamp(a, 0)
    a(f"""
    s_load_dwordx2 s[{SX[1]}:{SX[1]+1}], s[0:1], 24
    s_load_dwordx2 s[{SW[1]}:{SW[1]+1}], s[0:1], 32
    s_load_dwordx2 s[{SX[0]}:{SX[0]+1}], s[0:1], 0
    s_load_dwordx2 s[{SW[0]}:{SW[0]+1}], s[0:1], 8
    s_load_dwordx2 s[{SWO[0]}:{SWO[0]+1}], s[0:1], 16
    s_load_dwordx2 s[{SWO[1]}:{SWO[1]+1}], s[0:1], 40
    s_load_dwordx2 s[{SOUT}:{SOUT+1}], s[0:1], 48
    s_load_dwordx2 s[{SWS}:{SWS+1}], s[0:1], 64
    v_lshrrev_b32 v1, 6, v0
    v_and_b32 v0, 63, v0
    s_and_b32 s{sXCD}, s2, 7
    v_readfirstlane_b32 s{sWAVE}, v1
    s_lshr_b32 s{sJ}, s2, 3
    s_and_b32 s{T0}, s{sXCD}, 1
    s_lshl_b32 s{T0}, s{T0}, 3
    s_and_b32 s{T1}, s{sJ}, 7
    s_add_u32 s{sTB}, s{T0}, s{T1}
    s_lshr_b32 s{T0}, s{sXCD}, 1
    s_lshl_b32 s{T0}, s{T0}, 2
    s_lshr_b32 s{T2}, s{sJ}, 3
    s_add_u32 s{sM}, s{T0}, s{T2}
    """)
    rm = OPT.get("rot", 2)
    if rm == 0:
        a(f"s_mov_b32 s{sROT}, 0")
    elif rm == 1:
        a(f"""
        s_mul_i32 s{T2}, s{T2}, 3
        s_add_u32 s{sROT}, s{T1}, s{T2}
        s_cmp_ge_u32 s{sROT}, 10
        s_cselect_b32 s{T0}, 10, 0
        s_sub_u32 s{sROT}, s{sROT}, s{T0}
        """)
    elif rm == 2:
        a(f"""
        s_add_u32 s{sROT}, s{T1}, s{T2}
        s_and_b32 s{sROT}, s{sROT}, 1
        s_mul_i32 s{sROT}, s{sROT}, 5
        """)
    else:
        a(f"""
        s_add_u32 s{sROT}, s{T1}, s{T2}
        s_and_b32 s{sROT}, s{sROT}, 3
        s_mul_i32 s{sROT}, s{sROT}, 5
        s_lshr_b32 s{sROT}, s{sROT}, 1
        """)
    a(f"""
    s_and_b32 s{sCW}, s{sWAVE}, 3
    """)
    for n, size in ((SX[0], X_BYTES), (SW[0], WQKV_BYTES), (SX[1], X_BYTES), (SW[1], WQKV_BYTES), (SWO[0], WO_BYTES),
                    (SWO[1], WO_BYTES), (SOUT, OUT_BYTES), (SWS, 0x4000000 if STAMPS else WS_USED)):
        a(f"s_mov_b32 s{n+2}, {size}\ns_mov_b32 s{n+3}, {SRD3}")
    a(f"""
    v_lshrrev_b32 v6, 3, v0
    v_mul_u32_u24 v2, 1280, v6
    v_lshrrev_b32 v7, 4, v0
    v_and_b32 v8, 7, v0
    v_xor_b32 v8, v8, v7
    v_lshl_add_u32 v2, v8, 4, v2
    v_xor_b32 v3, 64, v2
    v_mul_u32_u24 v9, 3840, v7
    v_and_b32 v8, 15, v0
    v_lshlrev_b32 v10, 1, v7
    v_xor_b32 v8, v8, v10
    """)
    a("""
    v_lshl_add_u32 v4, v8, 4, v9
    v_xor_b32 v5, 128, v4
    """)
    a(f"""
    s_lshl_b32 s{T0}, s{sTB}, 7
    s_lshl_b32 s{T1}, s{sCW}, 5
    s_add_u32 s{T0}, s{T0}, s{T1}
    s_mul_i32 s{sXB}, s{T0}, 1280
    s_mul_i32 s{sWB}, s{sCW}, {16*3840}
    s_lshl_b32 s{T0}, s{sM}, 8
    s_add_u32 s{sWB}, s{sWB}, s{T0}
    s_lshl_b32 s{sLP}, s{sCW}, 12
    s_lshr_b32 s{T3}, s{sWAVE}, 2              ; group
    s_add_u32 s{sKS}, s{sROT}, s{T3}
    s_cmp_eq_u32 s{sKS}, 10
    s_cselect_b32 s{sKS}, 0, s{sKS}
    s_lshl_b32 s{T3}, s{T3}, 15
    s_add_u32 s{T3}, s{T3}, s{sLP}
    """)

    def dma_stage(n, sLP=sLP):
        p = 1 - n // 10
        slot = (n % 5) * 32 * K
        out = [f"s_lshl_b32 s{T0}, s{sKS}, 7",
               f"s_add_u32 s{T0}, s{T0}, s{sXB}",
               f"s_mul_i32 s{T1}, s{sKS}, {64*3840}",
               f"s_add_u32 s{T1}, s{T1}, s{sWB}"]
        for i in range(4):
            out += [f"s_add_u32 m0, s{sLP}, {slot + i*1024}",
                    f"s_add_u32 s{T2}, s{T0}, {i*8*1280}",
                    f"buffer_load_dwordx4 v{2 + (i & 1)}, {srd(SX[p])}, s{T2} offen {'nt ' if OPT.get('nt', 0) & 1 else ''}lds",
                    f"s_add_u32 m0, s{sLP}, {slot + 16*K + i*1024}",
                    f"s_add_u32 s{T2}, s{T1}, {i*4*3840}",
                    f"buffer_load_dwordx4 v{4 + (i >> 1)}, {srd(SW[p])}, s{T2} offen {'nt ' if OPT.get('nt', 0) & 2 else ''}lds"]
        out += [f"s_add_u32 s{sKS}, s{sKS}, 1",
                f"s_cmp_eq_u32 s{sKS}, 10",
                f"s_cselect_b32 s{sKS}, 0, s{sKS}"]
        return out

    a("s_waitcnt lgkmcnt(0)")
    stamp(a, 1, 4)
    a(f"s_cmp_eq_u32 s{sM}, 15")
    a("s_cbranch_scc1 L_setup1")
    a(dma_stage(0, T3))
    stamp(a, 2, 4)
    a(f"s_cmp_lt_u32 s{sWAVE}, 4")
    a("s_cbranch_scc1 L_setup1")
    for n in PRE:
        a(dma_stage(n))
    a.label("L_setup1")
    stamp(a, 3, 4)
    a(f"""
    s_lshl_b32 s{T0}, s{sXCD}, 2
    s_and_b32 s{T1}, s{sJ}, 3
    s_add_u32 s{sHEAD}, s{T0}, s{T1}
    s_lshr_b32 s{sQB}, s{sJ}, 2
    s_add_u32 s{T0}, s{SWS}, {EP_OFF}
    s_addc_u32 s{T1}, s{SWS+1}, 0
    s_load_dword s{sTAG}, s[{T0}:{T1}], 0
    """)
    marks = [len(a.l)]
    S = [64, 80, 96, 112]
    O = 208
    OO = [48, 208]
    KL, KH = [128, 132], [240, 242]
    QL, QH = [136, 142], [140, 146]
    VF = [224, 232]
    MD, MF = 32, 48
    VK, VV, VIDX, VDMA, VQ, VOF, VW3, VOUT, VRED = 244, 245, 246, 247, 248, 249, 250, 251, 252
    VOUT2 = 253
    QB_OFF = 1 * K
    CH = [11 * K, 51 * K, 91 * K, 0]
    A_OFF = 50 * K
    WOL = [60 * K, 0]
    SCR = [130 * K, 110 * K]
    OFB = [148, 32]
    ST = [188, 192, 196, 28, 4]

    a(f"""
    v_lshlrev_b32 v{VDMA}, 4, v0
    v_lshrrev_b32 v11, 5, v0               ; h
    v_and_b32 v12, 31, v0                  ; i
    v_and_b32 v13, 3, v12
    v_lshrrev_b32 v14, 3, v12
    v_lshl_add_u32 v13, v14, 2, v13        ; kappa & 15
    v_bfe_u32 v14, v12, 2, 1               ; kappa >> 4
    v_lshlrev_b32 v15, 4, v13
    v_lshl_add_u32 v16, v14, 3, v15
    v_lshl_add_u32 v16, v11, 8, v16
    v_add_u32 v{VK}, {CH[0]}, v16
    v_mul_u32_u24 v16, 20, v11
    v_add_u32 v16, v16, v12
    v_lshlrev_b32 v16, 4, v16
    v_add_u32 v{VV}, {CH[0] + 1280}, v16
    v_and_b32 v15, 15, v12
    v_lshlrev_b32 v15, 4, v15
    v_lshrrev_b32 v16, 4, v12
    v_lshl_add_u32 v15, v16, 3, v15        ; (q&15)*16 + (q>>4)*8
    v_lshl_add_u32 v{VQ}, v11, 8, v15
    v_mov_b32 v{VIDX}, 0xdddddddd
    v_and_b32 v17, 0x1b, v12
    v_cmp_eq_u32 vcc, 24, v17
    v_mov_b32 v16, 0x3f803f80
    s_nop 0
    v_cndmask_b32 v17, 0, v16, vcc
    """)
    for b in range(2):
        a(f"v_mov_b32 v{KH[b]}, 0x3f803f80")
        a(f"v_mov_b32 v{KH[b]+1}, 0x00003f80")
        for i in range(8):
            a(f"v_mov_b32 v{VF[b]+i}, v17")

    def mask_setup():
        out = [["v_lshrrev_b32 v13, 5, v0", "v_lshlrev_b32 v13, 4, v13", "v_and_b32 v12, 31, v0",
                "v_sub_u32 v13, v12, v13", f"v_mov_b32 v14, {NEGBIG}"]]
        for r in range(0, 16, 2):
            out.append([f"v_cmp_le_i32 s[{T0}:{T0+1}], {r}, v13",
                        f"v_cmp_le_i32 s[{T2}:{T2+1}], {r+1}, v13",
                        "s_nop 0",
                        f"v_cndmask_b32 v{MD+r}, v14, 0, s[{T0}:{T0+1}]",
                        f"v_cndmask_b32 v{MF+r}, 0, v14, s[{T0}:{T0+1}]",
                        f"v_cndmask_b32 v{MD+r+1}, v14, 0, s[{T2}:{T2+1}]",
                        f"v_cndmask_b32 v{MF+r+1}, 0, v14, s[{T2}:{T2+1}]"])
        return out

    def g3_setup():
        return [["v_lshrrev_b32 v10, 4, v0",
                 "v_lshlrev_b32 v11, 9, v10",
                 "v_and_b32 v12, 15, v0",
                 f"v_lshl_add_u32 v{VOF}, v12, 4, v11"],
                ["v_mul_u32_u24 v12, 2560, v12",
                 f"v_lshl_add_u32 v{VOUT}, v10, 4, v12",
                 f"v_lshl_add_u32 v{VOUT2}, v10, 3, v12"],
                [f"s_cmp_lt_u32 s{sWAVE}, 4",
                 f"s_cselect_b32 s{T0}, 0, {5*K}",
                 f"s_add_u32 s{T0}, s{T0}, {WOL[0]}",
                 f"v_add_u32 v{VW3}, s{T0}, v{VDMA}",
                 f"s_mul_i32 s{T0}, s{sCW}, 5120",
                 f"v_add_u32 v{VRED}, s{T0}, v{VDMA}"]]

    marks.append(len(a.l))
    a(mask_setup()[:5])
    marks.append(len(a.l))
    a(mask_setup()[5:])
    marks.append(len(a.l))
    a(g3_setup())
    for i in range(16):
        a(f"v_mov_b32 v{O+i}, 0")
    marks.append(len(a.l))

    XA = lambda sg, kk: 14 + sg * 6 + kk
    WA = lambda sg, ct: 14 + sg * 6 + 2 + ct
    a(f"""
    v_and_b32 v6, 15, v0
    v_lshrrev_b32 v8, 1, v6                ; f(row)
    v_xor_b32 v8, v8, v7                   ; o ^ f
    v_lshlrev_b32 v8, 4, v8
    v_lshl_add_u32 v8, v6, 7, v8
    s_lshr_b32 s{T0}, s{sCW}, 1
    s_lshl_b32 s{T0}, s{T0}, 13
    v_add_u32 v{XA(0,0)}, s{T0}, v8
    v_xor_b32 v{XA(0,1)}, 64, v{XA(0,0)}
    v_lshrrev_b32 v8, 2, v0
    v_and_b32 v8, 3, v8                    ; r
    v_lshl_add_u32 v9, v7, 3, v8           ; krow = 8o + r
    v_lshlrev_b32 v9, 8, v9
    v_add_u32 v9, {16*K}, v9
    v_and_b32 v10, 1, v7
    v_lshl_add_u32 v10, v10, 2, v8
    v_lshlrev_b32 v10, 1, v10              ; sigma
    v_bfe_u32 v11, v0, 1, 1                ; c>>1
    s_and_b32 s{T0}, s{sCW}, 1
    s_lshl_b32 s{T0}, s{T0}, 3
    v_or_b32 v11, s{T0}, v11               ; 8cg + (c>>1)
    v_xor_b32 v11, v11, v10
    v_lshl_add_u32 v11, v11, 4, v9
    v_and_b32 v12, 1, v0
    v_lshl_add_u32 v{WA(0,0)}, v12, 3, v11
    v_xor_b32 v{WA(0,1)}, 32, v{WA(0,0)}
    v_xor_b32 v{WA(0,2)}, 64, v{WA(0,0)}
    v_xor_b32 v{WA(0,3)}, 96, v{WA(0,0)}
    """)
    for sg in (1, 2):
        for i in range(6):
            a(f"v_add_u32 v{14+sg*6+i}, {sg*64*K}, v{14+i}")
    marks.append(len(a.l))
    EA = [196, 197, 198, 199]
    a(f"""
    s_lshl_b32 s{T0}, s{sTB}, 2
    s_and_b32 s{T1}, s{sCW}, 2
    s_add_u32 s{T0}, s{T0}, s{T1}
    s_lshr_b32 s{T1}, s{sWAVE}, 2
    s_xor_b32 s{T1}, s{T1}, 1
    s_lshl_b32 s{T1}, s{T1}, 11                ; p*32*64
    s_add_u32 s{T0}, s{T0}, s{T1}
    s_cmp_ge_u32 s{sM}, 5
    s_cselect_b32 s{T2}, 1, 0                  ; K or V
    s_lshl_b32 s{T3}, 1280, s{T2}
    s_mul_i32 s{sEQ}, s{T0}, s{T3}
    s_mul_i32 s{T0}, s{T2}, {KV_OFF}
    s_add_u32 s{sEQ}, s{sEQ}, s{T0}
    s_add_u32 s{sEK}, s{sEQ}, s{T3}
    s_lshl_b32 s{T3}, s{T3}, 6
    s_and_b32 s{T1}, s{sCW}, 1
    s_cmp_ge_u32 s{sM}, 10
    s_cbranch_scc1 L_ea1
    s_mul_i32 s{T0}, s{T2}, 5
    s_sub_u32 s{T0}, s{sM}, s{T0}
    s_lshl_b32 s{T0}, s{T0}, 5
    s_lshl_b32 s{T1}, s{T1}, 4
    s_add_u32 s{T0}, s{T0}, s{T1}
    v_add_u32 v8, s{T0}, v7
    v_lshlrev_b32 v10, 4, v6
    """)
    for ct in range(4):
        a(f"""
        v_add_u32 v9, {4*ct}, v8
        v_mul_u32_u24 v11, 205, v9
        v_lshrrev_b32 v11, 10, v11
        v_mul_u32_u24 v12, 5, v11
        v_sub_u32 v12, v9, v12
        v_mul_lo_u32 v11, v11, s{T3}
        v_lshl_add_u32 v12, v12, 8, v10
        v_add_u32 v{EA[ct]}, v11, v12
        """)
    a(f"""
    s_branch L_ea2
    L_ea1:
    s_sub_u32 s{T0}, s{sM}, 10
    s_lshl_b32 s{T0}, s{T0}, 7
    s_lshl_b32 s{T1}, s{T1}, 6
    s_add_u32 s{T0}, s{T0}, s{T1}
    v_add_u32 v8, s{T0}, v6
    v_mul_u32_u24 v10, 320, v7
    v_add_u32 v10, 1280, v10
    """)
    for ct in range(4):
        a(f"""
        v_add_u32 v9, {16*ct}, v8
        v_mul_u32_u24 v11, 3277, v9
        v_lshrrev_b32 v11, 16, v11
        v_mul_u32_u24 v12, 20, v11
        v_sub_u32 v12, v9, v12
        v_mul_lo_u32 v11, v11, s{T3}
        v_lshl_add_u32 v12, v12, 4, v10
        v_add_u32 v{EA[ct]}, v11, v12
        """)
    a.label("L_ea2")
    marks.append(len(a.l))
    a(f"""
    s_lshl_b32 s{sQT}, s{sQB}, 3
    s_add_u32 s{sQT}, s{sQT}, s{sWAVE}
    s_lshl_b32 s{sW1K}, s{sWAVE}, 10
    s_mov_b32 s{sVM}, 0x000fffff
    s_mov_b32 s{sVM+1}, 0x000fffff
    s_mov_b32 s{sLO}, -1
    s_mov_b32 s{sLO+1}, 0
    s_mov_b32 s{sCS}, {CSCALE}
    s_mov_b32 s{sONE}, 0x3f80
    s_mul_i32 s{sKVB}, s{sHEAD}, 163840
    s_add_u32 s{sKVB}, s{sKVB}, {KV_OFF}
    """)

    ACC = lambda ct, tt: 128 + (ct * 4 + tt) * 4
    XF = lambda buf, tt: 64 + buf * 32 + tt * 4
    WF = lambda buf, ct: 64 + buf * 32 + 16 + ct * 4

    def g1reads(i, kk):
        slot = i % 5
        sg, so = slot >> 1, (slot & 1) * 32 * K
        r = []
        for q in range(4):
            r.append(f"ds_read_b128 {vr(XF(kk,q),4)}, v{XA(sg,kk)} offset:{so + q*2048}")
            for rd in range(2):
                r.append(f"ds_read_b64_tr_b16 {vr(WF(kk,q)+2*rd,2)}, v{WA(sg,q)} offset:{so + kk*8192 + rd*1024}")
        return r

    VPG, VPUB, VPO, VPD = 202, 203, 206, 204
    sPM, sSTR = SDBG, SDBG + 2

    def only_wave(wave):
        lab = a.uniq("L_w")
        a(f"s_cmp_lg_u32 s{sWAVE}, {wave}")
        a(f"s_cbranch_scc1 {lab}")
        return lab

    def publish(kind, p, wave):
        lab = only_wave(wave)
        if kind == 0:
            a(f"""
            v_mov_b32 v1, s{sTAG}
            s_mov_b32 s{T4}, {FL_OFF + p*16384}
            s_mov_b64 exec, s[{sPM}:{sPM+1}]
            buffer_store_dword v1, v{VPUB}, {srd(SWS)}, s{T4} offen sc1
            s_mov_b64 exec, -1
            """)
        else:
            a(f"""
            s_lshl_b32 s{T4}, s{sQB}, 8
            s_lshl_b32 s{T5}, s{sHEAD}, 2
            s_add_u32 s{T4}, s{T4}, s{T5}
            s_add_u32 s{T4}, s{T4}, {FL_OFF + 32768}
            v_mov_b32 v1, s{sTAG}
            s_mov_b64 exec, 1
            buffer_store_dword v1, off, {srd(SWS)}, s{T4} sc1
            s_mov_b64 exec, -1
            """)
        a.label(lab)

    def poll_loads(kind, p):
        if kind == 0:
            return [f"s_mov_b32 s{T3}, {FL_OFF + p*16384}",
                    f"buffer_load_dwordx2 {vr(VPD,2)}, v{VPG}, {srd(SWS)}, s{T3} offen sc1"]
        return [f"s_mov_b32 s{T3}, {FL_OFF + 32768}",
                f"buffer_load_dword v{VPD}, v{VPO}, {srd(SWS)}, s{T3} offen sc1"]

    def poll_issue(kind, p, wave=0):
        lab = only_wave(wave) if wave is not None else a.uniq("L_w")
        a(poll_loads(kind, p))
        a.label(lab)

    def poll_check(kind, p, sleep=8, wave=0, first=0):
        lab = only_wave(wave) if wave is not None else a.uniq("L_w")
        loop = a.uniq("L_spin")
        a(f"s_mov_b32 s{sCNT}, 0x20000")
        a(f"s_waitcnt vmcnt({first})")
        a.label(loop)
        a(f"v_cmp_eq_u32 vcc, s{sTAG}, v{VPD}")
        if kind == 0:
            a(f"v_cmp_eq_u32 s[{T0}:{T0+1}], s{sTAG}, v{VPD+1}")
            a(f"s_orn2_b64 s[{T0}:{T0+1}], s[{T0}:{T0+1}], s[{sSTR}:{sSTR+1}]\ns_and_b64 vcc, vcc, s[{T0}:{T0+1}]")
        a(f"""
        s_cmp_eq_u64 vcc, -1
        s_cbranch_scc1 {lab}
        s_sleep {sleep}
        """)
        a(poll_loads(kind, p))
        a(f"""
        s_sub_u32 s{sCNT}, s{sCNT}, 1
        s_cmp_lg_u32 s{sCNT}, 0
        s_waitcnt vmcnt(0)
        s_cbranch_scc1 {loop}
        """)
        a.label(lab)

    a(f"""
    s_mul_i32 s{T0}, s{sHEAD}, 20
    s_add_u32 s{T1}, s{T0}, 19
    s_lshr_b32 s{T0}, s{T0}, 7
    s_lshr_b32 s{T1}, s{T1}, 7
    s_cmp_lg_u32 s{T0}, s{T1}
    s_cselect_b64 s[{sSTR}:{sSTR+1}], -1, 0
    s_lshl_b32 s{T0}, s{sHEAD}, 9
    v_lshl_add_u32 v{VPG}, v0, 3, s{T0}
    s_mul_i32 s{T0}, s{sM}, 52
    s_lshr_b32 s{T0}, s{T0}, 8                 ; type
    s_mul_i32 s{T1}, s{T0}, 5
    s_sub_u32 s{T1}, s{sM}, s{T1}
    s_mul_i32 s{T2}, s{T1}, 205
    s_lshr_b32 s{T2}, s{T2}, 5
    s_cmp_eq_u32 s{T1}, 2
    s_cselect_b32 s{sPM}, 0x80, 0
    s_or_b32 s{sPM}, s{sPM}, 0x7f
    s_cmp_eq_u32 s{sM}, 15
    s_cselect_b32 s{sPM}, -1, s{sPM}
    s_mov_b32 s{sPM+1}, 0
    s_lshl_b32 s{T2}, s{T2}, 9
    s_lshl_b32 s{T0}, s{T0}, 7
    s_add_u32 s{T2}, s{T2}, s{T0}
    s_lshl_b32 s{T0}, s{sTB}, 3
    s_add_u32 s{T2}, s{T2}, s{T0}
    v_lshl_add_u32 v{VPUB}, v0, 9, s{T2}
    s_min_u32 s{T1}, s{T1}, 1
    s_lshl_b32 s{T1}, s{T1}, 2
    s_mov_b64 exec, 1
    v_add_u32 v{VPUB}, s{T1}, v{VPUB}
    s_mov_b64 exec, -1
    v_and_b32 v8, 31, v0
    v_lshlrev_b32 v8, 2, v8
    s_lshl_b32 s{T0}, s{sXCD}, 8
    v_add_u32 v{VPO}, s{T0}, v8
    """)
    a(f"s_waitcnt lgkmcnt(0)\ns_add_u32 s{sTAG}, s{sTAG}, 0x9e3779b1")
    marks.append(len(a.l))
    late = a.l[marks[0]:marks[4]]
    del a.l[marks[0]:marks[4]]
    late = [re.sub(r"\bv(1[4-7])\b", lambda m: "v%d" % (int(m.group(1)) - 8), x.split(";")[0]).strip() for x in late]
    a(f"s_cmp_eq_u32 s{sM}, 15")
    a("s_cbranch_scc1 L_idle")

    stamp(a, 4, 4)
    a(f"s_cmp_lt_u32 s{sWAVE}, 4")
    a("s_cbranch_scc1 L_xstart")
    for n in NS:
        if n > 10:
            break
        if WAITS["Y", n] is not None:
            a(f"s_waitcnt vmcnt({WAITS['Y', n]})")
        a("s_barrier")
        if n < 10:
            for x in SCH[n]:
                a(dma_stage(x))
    a("s_setprio 3")
    a("s_branch L_compute")
    a.label("L_xstart")
    a(f"""
    s_add_u32 s{sKS}, s{sKS}, {XFIRST - 11}
    s_cmp_ge_u32 s{sKS}, 10
    s_cselect_b32 s{T0}, 10, 0
    s_sub_u32 s{sKS}, s{sKS}, s{T0}
    s_waitcnt vmcnt(0)
    """)
    stamp(a, 5, 4)
    a("s_barrier")
    a.label("L_compute")
    stamp(a, 6, 4)
    stamp(a, 1)
    stamp(a, 1, 1)
    a(g1reads(0, 0))
    a(f"s_cmp_ge_u32 s{sM}, 10")
    a("s_cbranch_scc1 L_comp1")

    def interleave(ms, rs, step):
        per = -(-len(late) // 18)
        ex = late[step * per:(step + 1) * per] if step < 18 else []
        out = []
        ri = xi = 0
        for i, m in enumerate(ms):
            out.append(m)
            if ri < len(rs):
                out.append(rs[ri]); ri += 1
            if i >= 16 - per and xi < len(ex):
                out.append(ex[xi]); xi += 1
        out += rs[ri:] + ex[xi:]
        return out

    for cg in range(2):
        if cg == 1:
            a.label("L_comp1")

        def mm(i, kk):
            out = []
            for ct in range(4):
                for tt in range(4):
                    c = None if (i == 0 and kk == 0) else ACC(ct, tt)
                    if cg == 1:
                        out.append(mfma16(ACC(ct, tt), XF(kk, tt), WF(kk, ct), c))
                    else:
                        out.append(mfma16(ACC(ct, tt), WF(kk, ct), XF(kk, tt), c))
            return out
        for i in range(10):
            a("s_waitcnt lgkmcnt(0)")
            a(interleave(mm(i, 0), g1reads(i, 1), 2 * i))
            wy = WAITS.get(("Y", i + 11))
            a("s_waitcnt lgkmcnt(0)" + (f" vmcnt({wy})" if wy is not None else ""))
            bx, by = (i + 1) in SCH, (i + 11) in SCH
            if bx and by:
                a("s_barrier")
            elif bx or by:
                lab = a.uniq("L_nb")
                a(f"s_cmp_{'ge' if bx else 'lt'}_u32 s{sWAVE}, 4\ns_cbranch_scc1 {lab}\ns_barrier\n{lab}:")
            if i in (1, 3, 5, 7, 9):
                stamp(a, 2 + i // 2, 1)
            a(interleave(mm(i, 1), g1reads(i + 1, 0) if i < 9 else [], 2 * i + 1))
        if cg == 0:
            a("s_branch L_g1epi")
    a.label("L_g1epi")
    stamp(a, 2)

    def g1_stores():
        t = 64
        for ct in range(4):
            for tp in range(2):
                for h in range(2):
                    s_ = ACC(ct, 2 * tp + h)
                    a(f"v_cvt_pk_bf16_f32 v{t+2*h}, v{s_}, v{s_+1}")
                    a(f"v_cvt_pk_bf16_f32 v{t+2*h+1}, v{s_+2}, v{s_+3}")
                a(f"buffer_store_dwordx4 {vr(t,4)}, v{EA[ct]}, {srd(SWS)}, s{sEQ if tp == 0 else sEK} offen {HST}")
                t += 4
    a(f"s_cmp_lt_u32 s{sWAVE}, 4")
    a("s_cbranch_scc1 L_xload")
    a("v_mov_b32 v10, 0\nv_mov_b32 v11, 1\ns_mov_b64 exec, 1\nds_add_u32 v10, v11 offset:8\ns_mov_b64 exec, -1")
    stamp(a, 7, 1)
    a("s_nop 2")
    g1_stores()
    stamp(a, 8, 1)
    a("s_branch L_attn_setup")

    def lds_wait(off, val, sleep=1):
        loop = a.uniq("L_lw")
        a(f"s_mov_b32 s{sCNT}, 0x400000\nv_mov_b32 v10, 0")
        a.label(loop)
        a(f"""
        ds_read_b32 v11, v10 offset:{off}
        s_waitcnt lgkmcnt(0)
        v_readfirstlane_b32 s{T0}, v11
        s_cmp_eq_u32 s{T0}, {val}
        s_cbranch_scc1 {loop}_ok
        s_sleep {sleep}
        s_sub_u32 s{sCNT}, s{sCNT}, 1
        s_cmp_lg_u32 s{sCNT}, 0
        s_cbranch_scc1 {loop}
        {loop}_ok:
        """)

    a.label("L_xload")
    a("s_nop 7")
    for n in NS:
        if n < 10:
            continue
        if n > 10:
            w = WAITS["X", n]
            if n == NS[-1]:
                lab = a.uniq("L_w0")
                a(f"s_waitcnt vmcnt(1) lgkmcnt(0)\ns_cmp_eq_u32 s{sWAVE}, 0\ns_cbranch_scc1 {lab}\ns_waitcnt vmcnt(0)\n{lab}:")
            elif w is not None:
                a(f"s_waitcnt vmcnt({w})")
            a("s_barrier")
        for x in SCH[n]:
            if x == "S":
                stamp(a, 7, 1)
                g1_stores()
                stamp(a, 8, 1)
            elif x == "P":
                stamp(a, 9, 1)
                publish(0, 1, 1)
            elif x == "Z":
                stamp(a, 10, 1)
                assert SCH[n][-1] == "Z" and NS[-2] == n
                poll_issue(0, 1)
                a("v_mov_b32 v10, 0\nv_mov_b32 v11, 0\nds_write_b64 v10, v[10:11]\nds_write_b32 v10, v10 offset:8")
            else:
                a(dma_stage(x))
    stamp(a, 3)
    stamp(a, 11, 1)
    poll_check(0, 1, sleep=4)
    lab = only_wave(0)
    a("v_mov_b32 v10, 0\nv_mov_b32 v11, 1\nds_write_b32 v10, v11")
    a.label(lab)
    lds_wait(0, 1)

    def first_loads(part):
        a(f"s_add_u32 s{T0}, s{sKVB}, s{sW1K}")
        if part == 0:
            a(f"""
            s_mul_i32 s{T3}, s{sHEAD}, 81920
            s_mul_i32 s{T4}, s{sQB}, 10240
            s_add_u32 s{T3}, s{T3}, s{T4}
            s_add_u32 s{T3}, s{T3}, s{sW1K}
            """)
            for j in range(3):
                lab = None
                if j == 2:
                    lab = a.uniq("L_q")
                    a(f"s_cmp_ge_u32 s{sWAVE}, 2\ns_cbranch_scc1 {lab}")
                a(f"""
                s_add_u32 m0, s{sW1K}, {QB_OFF + j*4096}
                s_add_u32 s{T2}, s{T3}, {QW_OFF + 32*81920 + j*4096}
                buffer_load_dwordx4 v{VDMA}, {srd(SWS)}, s{T2} offen {HS} lds
                """)
                if lab:
                    a.label(lab)
        for j in range(5 * part, 5 * part + 5):
            a(f"""
            s_add_u32 m0, s{sW1K}, {CH[0] + j*4096}
            s_add_u32 s{T2}, s{T0}, {32*163840 + j*4096}
            buffer_load_dwordx4 v{VDMA}, {srd(SWS)}, s{T2} offen {HS} lds
            """)
    a.label("L_x1")
    first_loads(0)
    a.label("L_x2")
    stamp(a, 4)
    stamp(a, 12, 1)
    first_loads(1)
    a.label("L_attn_setup")
    def scale_q(p):
        for r in [QL[p] + i for i in range(4)] + [QH[p], QH[p] + 1]:
            a(f"""
            v_lshlrev_b32 v15, 16, v{r}
            v_and_b32 v16, 0xffff0000, v{r}
            v_mul_f32 v15, s{sCS}, v15
            v_mul_f32 v16, s{sCS}, v16
            v_cvt_pk_bf16_f32 v{r}, v15, v16
            """)
        reset_m(p)

    def reset_m(p):
        a(f"""
        v_mov_b32 v15, 0x3f800000
        v_cndmask_b32 v{QH[p]}, 0, v{QH[p]}, s[{sLO}:{sLO+1}]
        v_cndmask_b32 v{QH[p]+1}, v15, v{QH[p]+1}, s[{sLO}:{sLO+1}]
        """)

    def set_m(p, M):
        a(f"""
        v_mov_b32 v15, v{M}
        s_nop 1
        v_permlane32_swap_b32 v15, v{M}
        s_nop 1
        v_max_f32 v15, v15, v{M}
        v_sub_f32 v15, 0, v15                  ; -m
        v_and_b32 v16, 0xffff0000, v15         ; hi
        v_sub_f32 v17, v15, v16
        v_and_b32 v18, 0xffff0000, v17         ; mid
        v_sub_f32 v17, v17, v18                ; lo
        v_lshrrev_b32 v16, 16, v16
        v_or_b32 v16, v16, v18
        v_lshrrev_b32 v17, 16, v17
        v_or_b32 v17, 0x3f800000, v17
        v_cndmask_b32 v{QH[p]}, v16, v{QH[p]}, s[{sLO}:{sLO+1}]
        v_cndmask_b32 v{QH[p]+1}, v17, v{QH[p]+1}, s[{sLO}:{sLO+1}]
        """)

    def kreads(buf, off, restore=True):
        return [f"ds_read2st64_b64 {vr(KL[buf],4)}, v{VK} offset0:{off//512} offset1:{off//512+1}",
                f"s_mov_b64 exec, s[{sLO}:{sLO+1}]",
                f"ds_read_b64 {vr(KH[buf],2)}, v{VK} offset:{off+1024}"] + (["s_mov_b64 exec, -1"] if restore else [])

    def vreads(buf, off):
        return [f"s_mov_b64 exec, s[{sVM}:{sVM+1}]",
                f"ds_read_b128 {vr(VF[buf],4)}, v{VV} offset:{off}",
                f"ds_read_b128 {vr(VF[buf]+4,4)}, v{VV} offset:{off+640}",
                "s_mov_b64 exec, -1"]

    def qk(Sd, buf, p, C=None):
        return [mfma32(Sd, KL[buf], QL[p], C), mfma32k8(Sd, KH[buf], QH[p], Sd)]

    def pv(Ss, buf, o):
        return [f"v_smfmac_f32_32x32x32_bf16 {vr(o,16)}, {vr(VF[buf],4)}, {vr(Ss,8)}, v{VIDX}",
                f"v_smfmac_f32_32x32x32_bf16 {vr(o,16)}, {vr(VF[buf]+4,4)}, {vr(Ss+8,8)}, v{VIDX}"]

    def cap(fn, *args):
        keep, a.l = a.l, []
        fn(*args)
        out, a.l = [x.strip() for x in a.l], keep
        return out

    def exps(Ss):
        return [f"v_exp_f32 v{Ss+i}, v{Ss+i}" for i in range(16)]

    def maxtree(M, Ss, first):
        out = []
        if first:
            out.append(f"v_max3_f32 v{M}, v{Ss}, v{Ss+1}, v{Ss+2}")
            rest = list(range(3, 16))
        else:
            rest = list(range(16))
        while len(rest) >= 2:
            out.append(f"v_max3_f32 v{M}, v{M}, v{Ss+rest[0]}, v{Ss+rest[1]}")
            rest = rest[2:]
        if rest:
            out.append(f"v_max_f32 v{M}, v{M}, v{Ss+rest[0]}")
        return out

    def zero_o(p):
        for i in range(16):
            a(f"v_mov_b32 v{OO[p]+i}, 0")

    def o_addr(p):
        return f"""
        s_mul_i32 s{T0}, s{sQT}, 40960
        s_add_u32 s{T0}, s{T0}, {OW_OFF + p*64*40960}
        s_lshl_b32 s{T1}, s{sHEAD}, 10
        s_add_u32 s{T1}, s{T1}, s{T0}
        s_lshr_b32 s{T2}, s{sHEAD}, 2
        s_add_u32 s{T2}, s{T2}, 32
        s_lshl_b32 s{T2}, s{T2}, 10
        s_add_u32 s{T2}, s{T2}, s{T0}
        s_and_b32 s{T3}, s{sHEAD}, 1
        s_lshl_b32 s{T3}, s{T3}, 9
        s_add_u32 s{T2}, s{T2}, s{T3}
        s_and_b32 s{T3}, s{sHEAD}, 2
        s_lshl_b32 s{T3}, s{T3}, 2
        s_add_u32 s{T2}, s{T2}, s{T3}
        """

    def o_store():
        return f"""
        buffer_store_dwordx4 v[20:23], v{VDMA}, {srd(SWS)}, s{T1} offen {HST}
        s_mov_b64 exec, s[{sLO}:{sLO+1}]
        buffer_store_dwordx2 v[24:25], v{VDMA}, {srd(SWS)}, s{T2} offen {HST}
        s_mov_b64 exec, -1
        """

    def epilogue(p):
        o = OO[p]
        a(f"v_rcp_f32 v15, v{o+12}")
        a(o_addr(p))
        for i in range(12):
            a(f"v_mul_f32 v{o+i}, v{o+i}, v15")
        for i in range(6):
            a(f"v_cvt_pk_bf16_f32 v{20+i}, v{o+2*i}, v{o+2*i+1}")
        a(o_store())

    def finite(p):
        a(f"v_mul_f32 v15, 0, v{OO[p]}")
        for i in range(1, 13):
            a(f"v_fmac_f32 v15, 0, v{OO[p]+i}")
        a("v_cmp_u_f32 vcc, v15, v15")

    def pen(reg, u):
        return [f"s_cmp_ge_u32 s{sQT}, {8 - u}",
                f"s_cselect_b32 s{T0}, s{sONE}, {(NEGBIG & 0xffff0000) | 0x3f80}",
                f"s_not_b64 exec, s[{sLO}:{sLO+1}]",
                f"v_mov_b32 v{reg+1}, s{T0}",
                "s_mov_b64 exec, -1"]

    def tile_step(t, n, pf, koff, voff, cmask, extra_k=None, hooks=None, midprio=None):
        a("s_waitcnt lgkmcnt(0)")
        rd = []
        if t + 2 < n:
            rd += kreads(t & 1, koff(t + 2), restore=(t >= n))
        if t < n:
            rd += vreads(t & 1, voff(t))
        if extra_k and t + 2 < n:
            rd += extra_k(t & 1, t + 2)
        q = qk(S[(t + 1) & 3], (t + 1) & 1, pf(t + 1), cmask(t + 1)) if t + 1 < n else []
        pp = pv(S[(t - 1) & 3], (t - 1) & 1, OO[pf(t - 1)]) if t >= 1 else []
        e = exps(S[t & 3]) if t < n else []
        if t == 0:
            a("s_nop 10")
        ms = q + pp
        if not e:
            a(["s_nop 1"] + ms)
            return
        order = OPT.get("ord", 1)
        if len(ms) == 4:
            ms = [ms, [q[0], pp[0], q[1], pp[1]], [q[0], pp[0], pp[1], q[1]]][order]
        rpos, roff = divmod(OPT.get("rp", 2), 10)
        hooks = hooks or []
        hp = [i for i in range(4) if i != rpos]
        nh = (len(hooks) + 2) // 3
        for i in range(4):
            if i == 2 and midprio is not None:
                a(f"s_setprio {midprio}")
            if i < len(ms):
                a(ms[i])
            if i == rpos:
                a(e[4 * i:4 * i + roff] + rd + e[4 * i + roff:4 * i + 4])
            else:
                a(e[4 * i:4 * i + 2])
                k = hp.index(i)
                for hk in hooks[k * nh:(k + 1) * nh]:
                    a(hk)
                a(e[4 * i + 2:4 * i + 4])
        if order == 2 and len(ms) == 4:
            a("s_nop 4")

    def wo_piece(p, q0, ldsbase, cond=None):
        o = [f"s_add_u32 m0, s{sW1K}, {ldsbase & 0xffffffff}",
             f"s_add_u32 s{T1}, s{sKVS}, {WP_OFF + p*819200 + q0*1024}",
             f"buffer_load_dwordx4 v{VDMA}, {srd(SWS)}, s{T1} offen {HS} lds"]
        if cond is not None:
            lab = a.uniq("L_wo")
            o = [f"s_cmp_ge_u32 s{sWAVE}, {cond}", f"s_cbranch_scc1 {lab}"] + o + [f"{lab}:"]
        return o

    def wo_rnd(p, q0, cnt=8):
        return wo_piece(p, q0, WOL[p] + q0 * 1024, cond=None if cnt == 8 else cnt)

    def wo_base():
        return [f"s_mul_i32 s{sKVS}, s{sQB}, 102400", f"s_add_u32 s{sKVS}, s{sKVS}, s{sW1K}"]

    def o_base(p=0):
        return [f"s_lshl_b32 s{T0}, s{sHEAD}, 1",
                f"s_lshr_b32 s{T1}, s{sCW}, 1",
                f"s_add_u32 s{T0}, s{T0}, s{T1}",
                f"s_mul_i32 s{T0}, s{T0}, 40960",
                f"s_and_b32 s{T1}, s{sCW}, 1",
                f"s_lshl_b32 s{T1}, s{T1}, 8",
                f"s_add_u32 s{T0}, s{T0}, s{T1}",
                f"s_add_u32 s{T0}, s{T0}, {OW_OFF + p*64*40960}",
                f"s_lshr_b32 s{T1}, s{sWAVE}, 2",
                f"s_lshl_b32 s{sEK}, s{T1}, 12",
                f"s_add_u32 s{sEK}, s{sEK}, s{T0}",
                f"s_add_u32 s{sEK}, s{sEK}, {16*2048}",
                f"s_lshl_b32 s{T1}, s{T1}, 14",
                f"s_add_u32 s{sEQ}, s{T0}, s{T1}"]

    def o_load(p, i):
        d = OFB[p] + 4 * i
        if i < 8:
            return [f"s_add_u32 s{T5}, s{sEQ}, {p*64*40960 + (i>>1)*4096}",
                    f"buffer_load_dwordx4 {vr(d,4)}, v{VOF}, {srd(SWS)}, s{T5} offen offset:{(i&1)*2048} {HS}"]
        return [f"s_add_u32 s{T5}, s{sEK}, {p*64*40960}",
                f"buffer_load_dwordx4 {vr(d,4)}, v{VOF}, {srd(SWS)}, s{T5} offen offset:{(i-8)*2048} {HS}"]

    lab = a.uniq("L_xl")
    a(f"s_cmp_ge_u32 s{sWAVE}, 4\ns_cbranch_scc1 {lab}")
    a("s_waitcnt vmcnt(0)\nv_mov_b32 v10, 0\nv_mov_b32 v11, 1\ns_mov_b64 exec, 1\nds_add_u32 v10, v11 offset:4\ns_mov_b64 exec, -1")
    a(f"s_branch {lab}_j")
    a.label(lab)
    lds_wait(8, 4)
    a.label(lab + "_j")
    lds_wait(4, 4)
    stamp(a, 5)
    stamp(a, 13, 1)
    a(f"""
    s_mul_i32 s{T0}, s{sWAVE}, 1280
    s_add_u32 s{T0}, s{T0}, {QB_OFF}
    v_add_u32 v15, s{T0}, v{VQ}
    ds_read2st64_b64 {vr(QL[1],4)}, v15 offset0:0 offset1:1
    ds_read_b64 {vr(QH[1],2)}, v15 offset:1024
    s_add_u32 s{sKVS}, s{sKVB}, s{sW1K}
    """)
    a(kreads(0, 0))
    a(kreads(1, 2560))
    a("s_waitcnt lgkmcnt(4)")
    scale_q(1)
    a("s_waitcnt lgkmcnt(2)")
    a(qk(S[0], 0, 1))
    a("s_nop 15")
    a(maxtree(19, S[0], True))
    set_m(1, 19)
    a("s_nop 1")
    a(qk(S[0], 0, 1))

    def dmaY(j):
        lab = a.uniq("L_dy")
        return [f"s_cmp_lt_u32 s{sWAVE}, 4", f"s_cbranch_scc1 {lab}",
                f"s_add_u32 m0, s{sW1K}, {CH[1] + j*4096 - 4096}",
                f"s_add_u32 s{T2}, s{sKVS}, {32*163840 + 40960 + j*4096 - 4096}",
                f"buffer_load_dwordx4 v{VDMA}, {srd(SWS)}, s{T2} offen {HS} lds", f"{lab}:"]

    def dma3(r):
        return [f"s_add_u32 m0, s{sW1K}, {CH[3] + r*8192}",
                f"s_add_u32 s{T2}, s{sKVS}, {32*163840 + 3*40960 + r*8192}",
                f"buffer_load_dwordx4 v{VDMA}, {srd(SWS)}, s{T2} offen {HS} lds"]

    def dmaA(j):
        out = [f"s_mul_i32 s{T1}, s{sQB}, 20480", f"s_sub_u32 s{T1}, s{T1}, 20480"]
        if j < 2:
            out += [f"s_max_i32 s{T1}, s{T1}, 0"]
        elif j == 2:
            out += [f"s_max_i32 s{T0}, s{T1}, 0", f"s_cmp_lt_u32 s{sWAVE}, 4", f"s_cselect_b32 s{T1}, s{T0}, s{T1}"]
        out += [f"s_add_u32 s{T1}, s{T1}, s{sKVS}", f"s_add_u32 m0, s{sW1K}, {A_OFF + j*8192}",
                f"s_add_u32 s{T1}, s{T1}, {j*8192}",
                f"buffer_load_dwordx4 v{VDMA}, {srd(SWS)}, s{T1} offen {HS} lds"]
        return out

    qa_loads = [f"s_mul_i32 s{T0}, s{sHEAD}, 81920",
                f"s_mul_i32 s{T2}, s{sQT}, 1280",
                f"s_add_u32 s{T0}, s{T0}, s{T2}",
                f"buffer_load_dwordx2 {vr(QL[0],2)}, v{VQ}, {srd(SWS)}, s{T0} offen {HS}",
                f"buffer_load_dwordx2 {vr(QL[0]+2,2)}, v{VQ}, {srd(SWS)}, s{T0} offen offset:512 {HS}",
                f"s_mov_b64 exec, s[{sLO}:{sLO+1}]",
                f"buffer_load_dwordx2 {vr(QH[0],2)}, v{VQ}, {srd(SWS)}, s{T0} offen offset:1024 {HS}",
                "s_mov_b64 exec, -1"]
    assert QW_OFF == 0

    NT, AP = 73, 52
    ST0, ST1, KLT, KHT, VKT = 148, 164, 180, 184, 186
    sq = cap(scale_q, 0)

    def kt_reads(u):
        return [f"ds_read2st64_b64 {vr(KLT,4)}, v{VKT} offset0:{5*u} offset1:{5*u+1}",
                f"s_mov_b64 exec, s[{sLO}:{sLO+1}]",
                f"ds_read_b64 {vr(KHT,2)}, v{VKT} offset:{u*2560+1024}",
                "s_mov_b64 exec, -1"]

    def adelta(frm):
        return [f"s_mul_i32 s{T0}, s{sWAVE}, 2560", f"s_add_u32 s{T0}, s{T0}, {(A_OFF - frm) & 0xffffffff}"]
    xh = {42: [sq[:10], sq[10:20], adelta(CH[2]) + [f"v_add_u32 v{VKT}, s{T0}, v{VK}", f"v_mov_b32 v{KHT}, 0x3f803f80"] + pen(KHT, 7)],
          43: [sq[20:30], sq[30:], kt_reads(7)],
          44: [[mfma32(ST0, KLT, QL[0], None)], [mfma32k8(ST0, KHT, QH[0], ST0)] + kt_reads(8) + pen(KHT, 8)],
          45: [[mfma32(ST1, KLT, QL[0], MD)], [mfma32k8(ST1, KHT, QH[0], ST1)]],
          46: [maxtree(19, ST0, True)[:4], maxtree(19, ST0, True)[4:]],
          47: [maxtree(19, ST1, False)[:4], maxtree(19, ST1, False)[4:]],
          48: [cap(set_m, 0, 19)[:5], cap(set_m, 0, 19)[5:]],
          AP: [cap(zero_o, 0)[:8], cap(zero_o, 0)[8:]]}
    EA_ = AP + 10
    ep = cap(epilogue, 0)
    xh[EA_] = [cap(finite, 0)[:7], cap(finite, 0)[7:] + ["s_cmp_lg_u64 vcc, 0", f"s_cselect_b32 s{sBAD}, 1, 0"], ep[:21]]
    xh[EA_ + 1] = [ep[21:33] + [f"s_cmp_lg_u32 s{sBAD}, 0", "s_cbranch_scc1 L_nostA"] + ep[33:] + ["L_nostA:"]]
    assert ep[33].startswith("buffer_store") and ep[20].startswith("v_mul")
    isA = lambda u: AP <= u < AP + 9
    pf = lambda u: 0 if isA(u) else 1
    off = lambda u: (u - AP) * 2560 if isA(u) else ((u if u < AP else u - 9) & 15) * 2560
    cm = lambda u: MF if u == AP else (MD if u == AP + 8 else None)

    def xk(b, u):
        if isA(u):
            return pen(KH[b], u - AP)
        if u == AP + 9:
            return pen(KH[b], 8)
        return []
    E3 = EA_ + 2
    latew = [wo_rnd(0, 0), wo_rnd(0, 8), wo_rnd(0, 16), wo_rnd(0, 24), wo_rnd(0, 32, 4), wo_rnd(1, 40), wo_rnd(1, 48), wo_rnd(1, 56, 4)]
    PC = OPT.get("pc", 68)
    nper = -(-10 // (NT - PC))
    for t in range(NT + 1):
        hooks = []
        if t < 10:
            hooks = [dmaY(2 * t), dmaY(2 * t + 1)]
        if t == 14:
            a("s_waitcnt vmcnt(0) lgkmcnt(0)\ns_barrier")
            stamp(a, 6)
            cstamp(a, 1)
            stamp(a, 14, 1)
            publish(0, 0, 4)
        if 14 <= t < 19:
            hooks = [dma3(t - 14)]
        if t == 21:
            hooks = [[f"v_mov_b32 v{20+i}, -1" for i in range(6)], o_addr(0), o_store()]
        if t == 22:
            hooks = [o_addr(1), o_store()]
        if t == 29:
            poll_issue(0, 0)
        if t == 33:
            poll_check(0, 0)
            a("s_waitcnt vmcnt(0) lgkmcnt(0)\ns_barrier")
            publish(1, 0, 1)
            stamp(a, 7)
            cstamp(a, 3)
            hooks = [qa_loads, dmaA(4)]
        if t in (34, 35):
            hooks = [dmaA(2 * (t - 34)), dmaA(2 * (t - 34) + 1)]
        if t == 36:
            hooks = [wo_base(), o_base()]
        if 37 <= t < 42:
            k = t - 37
            hooks = [[f"s_add_u32 s{T1}, s{sKVS}, {WP_OFF + 819200 + (60 + 8*k)*1024}",
                      f"buffer_load_dwordx4 {vr(ST[k],4)}, v{VDMA}, {srd(SWS)}, s{T1} offen {HS}"]]
        if t == 42:
            a("s_waitcnt vmcnt(5)\ns_barrier")
        if t == 46:
            poll_issue(1, 0)
        if t == 49:
            poll_check(1, 0)
            a("s_waitcnt lgkmcnt(0)\ns_barrier")
            stamp(a, 8)
            cstamp(a, 5)
        if 49 <= t < 57:
            hooks = [wo_rnd(0, 36 + 8 * (t - 49))]
        if t == E3:
            a("s_barrier")
            stamp(a, 10)
            cstamp(a, 7)
            stamp(a, 3, 2)
        if E3 <= t < E3 + 4:
            hooks = latew[2 * (t - E3):2 * (t - E3) + 2]
        if PC <= t < NT:
            assert not hooks
            hooks = [o_load(0, i) for i in range((t - PC) * nper, min(10, (t - PC + 1) * nper))]
        if t in xh:
            hx = xh[t] + [[]] * (3 - len(xh[t]))
            assert len(hooks) <= 1
            hooks = [hx[0], hx[1], hx[2] + (hooks[0] if hooks else [])]
        if t < 14:
            a("s_nop 0")
        else:
            t0 = max(x for x in (14, 33, 42, 49, E3) if x <= t)
            a(f"s_setprio {3 - (t - t0) % 4}")
        if t + 2 in (16, 32, 48):
            c = (t + 2) // 16
            a(f"v_add_u32 v{VK}, {(CH[c] - CH[c - 1]) & 0xffffffff}, v{VK}")
        if t in (16, 32, 48):
            c = t // 16
            a(f"v_add_u32 v{VV}, {(CH[c] - CH[c - 1]) & 0xffffffff}, v{VV}")
        for reg, tt in ((VK, t + 2), (VV, t)):
            if tt == AP:
                a(adelta(CH[3]) + [f"v_add_u32 v{reg}, s{T0}, v{reg}"])
            if tt == AP + 9:
                a(adelta(CH[3]) + [f"v_subrev_u32 v{reg}, s{T0}, v{reg}"])
        if t == 64:
            stamp(a, 9)
            stamp(a, 1, 2)
        tile_step(t, NT, pf, off, off, cm, extra_k=xk, hooks=hooks)
    a("s_setprio 0")
    a(f"s_cmp_lg_u32 s{sBAD}, 0")
    a("s_cbranch_scc1 L_slowA")
    a.label("L_chkB")
    a("s_nop 8")
    finite(1)
    a("s_nop 4")
    a("s_cbranch_vccnz L_slowB")
    a.label("L_epiB")
    epilogue(1)
    stamp(a, 11)
    stamp(a, 7, 2)

    GA = [208, 148]
    GW = lambda buf, ct: 72 + buf * 20 + 4 * ct
    FT = 168
    retries = []

    def g3reads(i):
        return [f"ds_read_b128 {vr(GW(i%3,ct),4)}, v{VW3 if i < 6 else 12} offset:{((i % 6)*10+ct)*1024}" for ct in range(5)]

    def part_out(p):
        a(f"v_add_u32 v10, {SCR[p]}, v{VRED}")
        for ct in range(5):
            a(f"ds_write_b128 v10, {vr(GA[p]+4*ct,4)} offset:{ct*1024}")

    def finish(p, extra=0):
        a(f"v_add_u32 v10, {SCR[p]}, v{VRED}")
        for ct in range(5):
            a(f"ds_read_b128 {vr(FT+4*ct,4)}, v10 offset:{ct*1024}")
        a(f"""
        s_lshl_b32 s{T0}, s{sHEAD}, 2
        s_add_u32 s{T0}, s{T0}, s{sCW}
        s_mul_i32 s{T0}, s{T0}, {16*2560}
        s_mul_i32 s{T1}, s{sQB}, 160
        s_add_u32 s{T0}, s{T0}, s{T1}
        s_add_u32 s{T0}, s{T0}, {p*1280}
        """)
        for g, (lo, hi) in enumerate(((0, 8), (8, 16), (16, 20))):
            a(f"s_waitcnt lgkmcnt({[3, 1, 0][g]})")
            for i in range(lo, hi):
                a(f"v_add_f32 v{FT+i}, v{FT+i}, v{GA[p]+i}")
            for i in range(lo // 2, hi // 2):
                a(f"v_cvt_pk_bf16_f32 v{FT+20+i}, v{FT+2*i}, v{FT+2*i+1}")
            a(f"buffer_store_dwordx{4 if g < 2 else 2} {vr(FT+20+4*g, 4 if g < 2 else 2)}, v{VOUT if g < 2 else VOUT2}, {srd(SOUT)}, s{T0} offen offset:{64*g} {OUTP if (p == 0 or OPT.get('outb', 0)) else ''}")

    def o_check(p, i, n):
        d = OFB[p] + 4 * i
        a(f"""
        s_waitcnt vmcnt({n})
        L_gw{p}_{i}:
        v_max3_u32 v10, v{d}, v{d+1}, v{d+2}
        v_max_u32 v10, v10, v{d+3}
        v_cmp_eq_u32 vcc, -1, v10
        s_cbranch_vccnz L_gr{p}_{i}
        L_gc{p}_{i}:
        """)
        retries.append((p, i))

    a(f"s_mov_b32 s{sCNT}, 0x20000")
    F, L = 0, 1
    OI = OPT.get("oi", 9)
    a(f"v_add_u32 v12, {60*K}, v{VW3}")
    a("s_waitcnt vmcnt(12)")
    a("s_barrier")
    stamp(a, 8, 2)
    a(g3reads(0))
    a(g3reads(1))
    young = 2
    nd = no = 0
    for i in range(10):
        o_check(F, i, 9 - i + young)
        a(f"s_waitcnt lgkmcnt({5 if i < 9 else 0})")
        rs = g3reads(i + 2) if i < 8 else []
        for ct in range(5):
            a(mfma16(GA[F] + 4 * ct, GW(i % 3, ct), OFB[F] + 4 * i, None if i == 0 else GA[F] + 4 * ct))
            a(rs[ct:ct + 1])
        if nd < 5:
            a(wo_rnd(L, 8 * nd))
            nd += 1; young += 1
        if i >= OI:
            n = -(-10 // (10 - OI))
            for k in range(no, min(10, no + n)):
                a(o_load(L, k)); young += 1
            no = min(10, no + n)
    assert OI >= 5
    stamp(a, 2, 2)
    if OI <= 10:
        for k in range(no, 10):
            a(o_load(L, k))
    a(f"""
    v_mov_b32 v12, v{VW3}
    v_add_u32 v{VW3}, {(WOL[L] - WOL[F]) & 0xffffffff}, v{VW3}
    s_add_u32 s{T0}, s{sW1K}, {WOL[L] + 60*K}
    v_add_u32 v11, s{T0}, v{VDMA}
    s_waitcnt vmcnt({10 if OI <= 10 else 0})
    s_barrier
    """)
    assert WOL[F] == WOL[L] + 60 * K
    stamp(a, 9, 2)
    if OI > 10:
        for k in range(10):
            a(o_load(L, k))
    for k in range(5):
        a(f"ds_write_b128 v11, {vr(ST[k],4)} offset:{k*8192}")
    a(f"s_cmp_lt_u32 s{sWAVE}, 4\ns_cbranch_scc1 L_pb1")
    part_out(F)
    a.label("L_pb1")
    stamp(a, 12)
    stamp(a, 13)
    stamp(a, 12, 2)
    a(g3reads(0))
    a(g3reads(1))
    R2 = OPT.get("r2", 1)
    for i in range(10):
        d = OFB[L] + 4 * i
        if i == R2:
            a("s_barrier")
            a(f"s_cmp_ge_u32 s{sWAVE}, 4\ns_cbranch_scc1 L_pb2")
            finish(F, extra=0)
            a.label("L_pb2")
        o_check(L, i, 9 - i)
        a(f"s_waitcnt lgkmcnt({5 if i < 9 else 0})")
        rs = g3reads(i + 2) if i < 8 else []
        for ct in range(5):
            a(mfma16(GA[L] + 4 * ct, GW(i % 3, ct), d, None if i == 0 else GA[L] + 4 * ct))
            a(rs[ct:ct + 1])
    assert 1 <= R2 <= 4
    stamp(a, 13, 2)
    a(f"s_cmp_lt_u32 s{sWAVE}, 4\ns_cbranch_scc1 L_fin1")
    a("s_nop 2")
    part_out(L)
    a("s_waitcnt lgkmcnt(0)\ns_barrier\ns_branch L_fin2")
    a.label("L_fin1")
    a("s_barrier")
    finish(L)
    a.label("L_fin2")
    lab = only_wave(4)
    a(f"""
    s_cmp_lg_u32 s2, 0
    s_cbranch_scc1 {lab}
    v_mov_b32 v1, s{sTAG}
    s_mov_b32 s{T4}, {EP_OFF}
    s_mov_b64 exec, 1
    buffer_store_dword v1, off, {srd(SWS)}, s{T4} sc1
    s_mov_b64 exec, -1
    """)
    a.label(lab)
    if STAMPS:
        a("s_waitcnt vmcnt(0)")
        stamp(a, 14)
        stamp(a, 14, 2)
        a("s_waitcnt lgkmcnt(0)")
        a(f"""
        s_lshl_b32 s{T0}, s2, 4
        s_add_u32 s{T0}, s{T0}, s{sWAVE}
        s_lshl_b32 s{T0}, s{T0}, 7
        s_add_u32 s{T0}, s{T0}, {STAMP_OFF}
        s_mov_b64 exec, 1
        """)
        for i in range(15):
            a(f"v_mov_b32 v1, s{SB+2*i}")
            a(f"buffer_store_dword v1, off, {srd(SWS)}, s{T0} offset:{4*i}")
    if OPT.get("pad"):
        if "padwg" in OPT:
            a(f"s_cmp_lg_u32 s2, {OPT['padwg']}\ns_cbranch_scc1 L_done")
            a(f"s_cmp_lg_u32 s{sWAVE}, 0\ns_cbranch_scc1 L_done")
        a(f"""
        L_pad:
        s_memrealtime s[{T0}:{T1}]
        s_waitcnt lgkmcnt(0)
        s_sub_u32 s{T0}, s{T0}, s{SB + 2*OPT.get('padst', 0)}
        s_cmp_lt_u32 s{T0}, {OPT["pad"]}
        s_cbranch_scc1 L_pad
        """)
    a.label("L_done")
    a("s_endpgm")

    for p, i in retries:
        a.label(f"L_gr{p}_{i}")
        a(f"""
        s_sub_u32 s{sCNT}, s{sCNT}, 1
        s_cmp_eq_u32 s{sCNT}, 0
        s_cbranch_scc1 L_gq{p}_{i}
        s_waitcnt vmcnt(0)
        s_sleep 1
        """)
        for k in range(i, 10):
            a(o_load(p, k))
        a(f"s_waitcnt vmcnt({9 - i if p == L else 0})")
        a(f"s_branch L_gw{p}_{i}")
        a.label(f"L_gq{p}_{i}")
        a(f"s_mov_b32 s{sCNT}, 1\ns_branch L_gc{p}_{i}")

    a.label("L_idle")
    a(late)
    G3D = [128, 129, 130, 131, 132]
    for i in range(5):
        a([f"v_add_u32 v10, {64*i}, v0",
           "v_mul_u32_u24 v11, 6554, v10",
           "v_lshrrev_b32 v11, 16, v11",
           "v_mul_u32_u24 v12, 10, v11",
           "v_sub_u32 v12, v10, v12",
           "v_mul_u32_u24 v11, 1280, v11",
           f"v_lshl_add_u32 v{G3D[i]}, v12, 4, v11"])
    a(f"""
    s_cmp_ge_u32 s{sTB}, 8
    s_cselect_b32 s{SX[0]}, s{SWO[1]}, s{SWO[0]}
    s_cselect_b32 s{SX[0]+1}, s{SWO[1]+1}, s{SWO[0]+1}
    s_mov_b32 s{SX[0]+2}, {WO_BYTES}
    s_and_b32 s{T0}, s{sTB}, 7
    s_mul_i32 s{T0}, s{T0}, 160
    s_mul_i32 s{T1}, s{sWAVE}, {32*1280}
    s_add_u32 s{T0}, s{T0}, s{T1}
    s_mul_i32 s{T1}, s{sWAVE}, 5120
    """)
    for rnd in range(3):
        lab = a.uniq("L_id")
        if rnd == 2:
            a(f"s_cmp_ge_u32 s{sWAVE}, 4\ns_cbranch_scc1 {lab}")
        a(f"s_add_u32 s{T2}, s{T0}, {rnd*256*1280}")
        for i in range(5):
            a(f"s_add_u32 m0, s{T1}, {K + rnd*8*5120 + i*1024}\ns_nop 0")
            a(f"buffer_load_dwordx4 v{G3D[i]}, {srd(SX[0])}, s{T2} offen lds")
        a.label(lab)
    a(f"""
    v_lshrrev_b32 v10, 5, v0
    v_bfe_u32 v11, v0, 4, 1
    v_bfe_u32 v12, v0, 2, 2
    v_and_b32 v13, 3, v0
    v_lshlrev_b32 v136, 3, v13
    v_lshlrev_b32 v13, 4, v13
    v_add_u32 v13, {K}, v13
    v_mul_u32_u24 v14, 20, v10
    v_lshl_add_u32 v14, v11, 2, v14
    v_add_u32 v14, v14, v12
    v_mul_u32_u24 v14, 160, v14
    v_add_u32 v133, v14, v13
    v_mul_u32_u24 v14, 80, v10
    v_mul_u32_u24 v11, 20, v11
    v_add3_u32 v14, v14, v11, v12
    v_add_u32 v14, 16, v14
    v_mul_u32_u24 v14, 160, v14
    v_add_u32 v134, v14, v13
    s_mul_i32 s{T0}, s{sWAVE}, 6400
    v_add_u32 v133, s{T0}, v133
    s_mul_i32 s{T0}, s{sWAVE}, 25600
    v_add_u32 v134, s{T0}, v134
    v_lshlrev_b32 v135, 4, v0
    v_sub_u32 v137, v133, v136
    v_sub_u32 v138, v134, v136
    v_mov_b32 v10, 0
    v_mov_b32 v11, 0
    v_mov_b32 v12, 4
    ds_write_b64 v10, v[10:11]
    ds_write_b32 v10, v12 offset:8
    s_mul_i32 s{T0}, s{sTB}, 102400
    s_add_u32 s{T0}, s{T0}, {WP_OFF}
    s_mul_i32 s{T1}, s{sWAVE}, 10240
    s_add_u32 s{T1}, s{T1}, s{T0}              ; kh=0, i=w
    s_lshr_b32 s{T2}, s{sWAVE}, 1
    s_mul_i32 s{T2}, s{T2}, 5120
    s_and_b32 s{T3}, s{sWAVE}, 1
    s_mul_i32 s{T3}, s{T3}, 10240
    s_add_u32 s{T2}, s{T2}, s{T3}
    s_add_u32 s{T2}, s{T2}, s{T0}
    s_add_u32 s{T2}, s{T2}, {8*10240}
    s_waitcnt vmcnt(0) lgkmcnt(0)
    s_barrier
    """)
    for rnd in range(3):
        lab = a.uniq("L_id")
        if rnd == 2:
            a(f"s_cmp_ge_u32 s{sWAVE}, 4\ns_cbranch_scc1 {lab}")
        base = 64 + rnd * 20
        for ct in range(5):
            for rd in range(2):
                if rnd < 2:
                    a(f"ds_read_b64_tr_b16 {vr(base+4*ct+2*rd,2)}, v{133 if ct < 4 else 137} offset:{rnd*51200 + rd*1280 + (ct>>1)*64 + (ct&1)*8}")
                else:
                    a(f"ds_read_b64_tr_b16 {vr(base+4*ct+2*rd,2)}, v{134 if ct < 4 else 138} offset:{rd*6400 + (ct>>1)*64 + (ct&1)*8}")
        a("s_waitcnt lgkmcnt(0)")
        if rnd == 1:
            a(f"s_add_u32 s{T1}, s{T1}, 5120")
        sreg = T1 if rnd < 2 else T2
        for ct in range(5):
            if ct == 4:
                a(f"s_add_u32 s{T3}, s{sreg}, 4096")
                a(f"buffer_store_dwordx4 {vr(base+4*ct,4)}, v135, {srd(SWS)}, s{T3} offen {HST}")
            else:
                a(f"buffer_store_dwordx4 {vr(base+4*ct,4)}, v135, {srd(SWS)}, s{sreg} offen offset:{ct*1024} {HST}")
        a.label(lab)
    a("s_waitcnt vmcnt(0)\ns_barrier")
    publish(0, 0, 1)
    publish(0, 1, 2)
    a(f"v_add_u32 v{VPUB}, 4, v{VPUB}")
    publish(0, 0, 3)
    publish(0, 1, 4)
    poll_issue(0, 1)
    poll_check(0, 1, sleep=OPT.get('isl', 32))
    a("s_barrier")
    a(f"s_cmp_ge_u32 s{sWAVE}, 4")
    a("s_cbranch_scc1 L_attn_setup")
    a("s_branch L_x1")

    def gk():
        return f"""
        buffer_load_dwordx2 {vr(KL[0],2)}, v{VK}, {srd(SWS)}, s{T2} offen {HS}
        buffer_load_dwordx2 {vr(KL[0]+2,2)}, v{VK}, {srd(SWS)}, s{T2} offen offset:512 {HS}
        s_mov_b64 exec, s[{sLO}:{sLO+1}]
        buffer_load_dwordx2 {vr(KH[0],2)}, v{VK}, {srd(SWS)}, s{T2} offen offset:1024 {HS}
        """

    def gv():
        return f"""
        s_mov_b64 exec, s[{sVM}:{sVM+1}]
        buffer_load_dwordx4 {vr(VF[0],4)}, v{VV}, {srd(SWS)}, s{T2} offen {HS}
        buffer_load_dwordx4 {vr(VF[0]+4,4)}, v{VV}, {srd(SWS)}, s{T2} offen offset:640 {HS}
        """
    assert CH[3] == 0

    def slow_tile(p, second, C):
        a(gk())
        if second:
            a(gv())
        a("s_mov_b64 exec, -1\ns_waitcnt vmcnt(0)")
        a(qk(S[0], 0, p, C))
        a("s_nop 15")
        if second:
            a(exps(S[0]))
            a("s_nop 1")
            a(pv(S[0], 0, OO[p]))
        else:
            a(maxtree(19, S[0], False))

    a.label("L_slowA")
    a("s_nop 15")
    MF2 = S[1]
    for i in range(16):
        a(f"v_sub_f32 v{MF2+i}, {NEGBIG}, v{MD+i}")
    reset_m(0)
    a("v_mov_b32 v19, 0xff800000")
    for second in (0, 1):
        for u in range(9):
            a(pen(KH[0], u))
            a(f"""
            s_add_i32 s{T2}, s{sQT}, {u - 8}
            s_max_i32 s{T2}, s{T2}, 0
            s_mul_i32 s{T2}, s{T2}, 2560
            s_add_u32 s{T2}, s{T2}, s{sKVB}
            """)
            slow_tile(0, second, MF2 if u == 0 else (MD if u == 8 else None))
        if not second:
            set_m(0, 19)
            zero_o(0)
    a("s_nop 15")
    epilogue(0)
    a("s_branch L_chkB")

    a.label("L_slowB")
    reset_m(1)
    a("v_mov_b32 v19, 0xff800000")
    a(f"s_add_u32 s{T3}, s{sKVB}, {33*163840}")
    for second in (0, 1):
        a(f"s_sub_u32 s{T2}, s{T3}, 163840")
        a.label(f"L_slow{second}")
        slow_tile(1, second, None)
        a(f"""
        s_add_u32 s{T2}, s{T2}, 2560
        s_cmp_lt_u32 s{T2}, s{T3}
        s_cbranch_scc1 L_slow{second}
        """)
        if not second:
            set_m(1, 19)
            zero_o(1)
    a("s_nop 15\ns_branch L_epiB")


def main(out):
    global HST, HS, OUTP
    OUTP = ["", "nt", "sc1", "sc0 sc1"][OPT.get("outp", 0)]
    HST = ["sc1", "", "sc0 sc1", "nt", "sc1 nt"][OPT.get("st", 0)]
    HS = ["sc1", ""][OPT.get("ld", 0)]
    a = Asm()
    hdr = open(f"cdna_kernels/{NAME}.s.ref").read().split("\n")
    keep = [l for l in hdr if l.startswith(";") and "@launch" not in l]
    for l in keep:
        a.raw(l)
    a.raw(f"; @launch grid=(256,1,1) block=(512,1,1) lds={LDS_BYTES}")
    a.raw('.amdgcn_target "amdgcn-amd-amdhsa--gfx950"')
    a.raw(".text")
    gen(a)
    a.raw('.section .rodata,"a"')
    a.raw(".p2align 6")
    a.raw(f""".amdhsa_kernel {KNAME}
  .amdhsa_next_free_vgpr 256
  .amdhsa_next_free_sgpr {102 if STAMPS else 72}
  .amdhsa_accum_offset 256
  .amdhsa_group_segment_fixed_size 0
  .amdhsa_kernarg_size 72
  .amdhsa_user_sgpr_count 2
  .amdhsa_user_sgpr_kernarg_segment_ptr 1
  .amdhsa_system_sgpr_workgroup_id_x 1
.end_amdhsa_kernel""")
    open(out, "w").write(a.text())


if __name__ == "__main__":
    if "--stamps" in sys.argv:
        STAMPS = True
        sys.argv.remove("--stamps")
    for x in list(sys.argv):
        if x.startswith("-D"):
            k, _, v = x[2:].partition("=")
            OPT[k] = int(v) if v else 1
            sys.argv.remove(x)
    main(sys.argv[1] if len(sys.argv) > 1 else f"cdna_kernels/{NAME}.s")
```

```python
import sys, struct, re

NAME = "concat_heads__sliding_block__softmax_full_mha__prompt"
KNAME = NAME + "_kernel"

QW_OFF = 0x000000
KV_OFF = 0x500000
OW_OFF = 0xF00000
FL_OFF = 0x1400000
EP_OFF = 0x1409000
WP_OFF = 0x1500000
WS_USED = 0x1700000
X_BYTES = 2048 * 640 * 2
WQKV_BYTES = 640 * 1920 * 2
WO_BYTES = 640 * 640 * 2
OUT_BYTES = 2048 * 1280 * 2
SRD3 = 0x00020000
LDS_BYTES = 163840
K = 1024

STAMPS = False
STAMP_OFF = 0x2000000
SB = 72
OPT = {}


def f32bits(x):
    return struct.unpack("<I", struct.pack("<f", x))[0]


NEGBIG = f32bits(-1e30)
CSCALE = f32bits((20 ** -0.5) * 1.4426950408889634)


class Asm:
    def __init__(self):
        self.l = []
        self.n = 0

    def __call__(self, s):
        if isinstance(s, (list, tuple)):
            for x in s:
                self(x)
            return
        for line in s.strip("\n").split("\n"):
            line = line.strip()
            if line:
                self.l.append(("" if line.endswith(":") else "    ") + line)

    def label(self, s):
        self.l.append(s + ":")

    def raw(self, s):
        self.l.append(s)

    def uniq(self, p):
        self.n += 1
        return f"{p}_{self.n}"

    def text(self):
        return "\n".join(self.l) + "\n"


def vr(a, n):
    return f"v[{a}:{a + n - 1}]"


def mfma32(d, a_, b_, c):
    cs = vr(c, 16) if c is not None else "0"
    return f"v_mfma_f32_32x32x16_bf16 {vr(d,16)}, {vr(a_,4)}, {vr(b_,4)}, {cs}"


def mfma32k8(d, a_, b_, c):
    return f"v_mfma_f32_32x32x8_bf16 {vr(d,16)}, {vr(a_,2)}, {vr(b_,2)}, {vr(c,16)}"


def mfma16(d, a_, b_, c):
    cs = vr(c, 4) if c is not None else "0"
    return f"v_mfma_f32_16x16x32_bf16 {vr(d,4)}, {vr(a_,4)}, {vr(b_,4)}, {cs}"


def cstamp(a, i):
    if STAMPS and OPT.get("sm", 0) == 3:
        a(f"s_memrealtime s[{SB+2*i}:{SB+2*i+1}]")
        a(f"s_memtime s[{SB+2*i+2}:{SB+2*i+3}]")


def stamp(a, i, mode=0):
    if STAMPS and (i == 0 or OPT.get("sm", 0) == mode):
        a(f"s_memrealtime s[{SB+2*i}:{SB+2*i+1}]")


SX = [4, 12]
SW = [8, 16]
SWS, SDBG = 20, 24
SWO = [28, 32]
SOUT = 36
sWAVE, sCW, sTB, sM, sKS, sXB, sWB, sLP = 40, 41, 42, 43, 44, 45, 46, 47
T0, T1, T2, T3, T4, T5 = 48, 49, 50, 51, 52, 53
sEQ, sEK = 54, 55
sHEAD, sQB, sQT, sW1K = 56, 57, 58, 59
sVM, sLO = 60, 62
sCS, sONE, sKVB, sXCD, sJ, sROT = 64, 65, 66, 67, 68, 69
sCNT = 70
sKVS = 71
sTAG = 3
sOA1, sOA2, sOB1, sOB2, sWOB, sQA, sAS, sAD = range(28, 36)
sTINY = 46
sBAD = 47


def srd(n):
    return f"s[{n}:{n+3}]"


HS = "sc1"
HST = "sc1"
OUTP = ""


P4 = {n: [n + 4] for n in range(10)}
SCHEDS = {
    0: ([2, 3], {0: [4], 1: [5], 2: [6], 3: [7], 4: [8], 5: [9], 6: [10], 7: [11], 8: [12], 9: [13],
                 10: [14], 11: [15, "S"], 13: ["P", 16, 17], 15: [18], 16: [19, "Z"], 17: []}),
    1: ([], {0: [2, 3], 1: [4], 2: [5], 3: [6], 4: [7], 5: [8], 6: [9], 7: [10], 8: [11], 9: [12],
             10: [13], 11: [14, "S", 15], 13: [16, 17], 15: ["P", 18], 16: [19, "Z"], 17: []}),
    2: ([], {0: [2, 3], 1: [4], 2: [5], 3: [6], 4: [7], 5: [8], 6: [9], 7: [10], 8: [11], 9: [12],
             10: [13, 14], 12: ["S", 15, 16], 14: ["P", 17, 18], 16: [19, "Z"], 18: []}),
    3: ([], {0: [2], 1: [3], 2: [4], 3: [5], 4: [6], 5: [7], 6: [8], 7: [9], 8: [10], 9: [11],
             10: [12, 13], 12: [14, "S", 15], 14: [16, 17, 18], 16: ["P", 19, "Z"], 18: []}),
    4: ([], {0: [2, 3], 1: [4, 5], 3: [6, 7], 5: [8, 9], 7: [10, 11], 9: [12],
             10: [13, 14], 12: ["S", 15, 16], 14: ["P", 17, 18], 16: [19, "Z"], 18: []}),
    6: ([2, 3], {**P4, 10: [14], 11: [15], 12: ["F", "S", 16], 14: [17, 18], 15: [19], 16: ["P", "Z"], 17: []}),
    7: ([2, 3], {**P4, 10: [14], 11: ["F", "S", 15], 13: [16, 17], 15: ["P", 18, 19], 16: ["Z"], 17: []}),
    8: ([2, 3], {**P4, 10: [14], 11: ["F", "S", 15], 13: [16, 17], 14: [18], 15: ["P", 19], 16: ["Z"], 17: []}),
    9: ([2, 3], {**P4, 10: ["S", 14], 12: [15, 16], 14: ["P", 17, 18], 15: [19], 16: ["Z"], 17: []}),
    10: ([2, 3], {**P4, 10: [14], 11: [15], 12: ["F", "S", 16], 14: [17, 18], 15: ["P", 19], 16: ["Z"], 17: []}),
    5: ([], {0: [2, 3], 1: [4], 2: [5], 3: [6], 4: [7], 5: [8], 6: [9], 7: [10, 11], 8: [12], 9: [13],
             10: [14], 11: [15, "S"], 13: ["P", 16, 17], 15: [18], 16: [19, "Z"], 17: []}),
}


def plan():
    pre, sch = SCHEDS[OPT.get("sch", 0)]
    ns = sorted(sch)
    q = {"X": [0], "Y": [1] + pre}
    waits = {}
    done = set()
    assert 0 in sch and 10 in sch and ns[-1] >= 17
    for k, n in enumerate(ns):
        need = set(range(n, ns[k + 1] if k + 1 < len(ns) else 20))
        if "P" in sch[n]:
            need.add("S")
        assert need <= set(q["X"]) | set(q["Y"]), (n, need)
        if "F" in sch[n]:
            need |= set(q["X"])
        need -= done
        for g in "XY":
            idx = [i for i, x in enumerate(q[g]) if x in need]
            if idx:
                done |= set(q[g][:max(idx) + 1])
            waits[g, n] = 8 * (len(q[g]) - 1 - max(idx)) if idx else None
            if "P" in sch[n] and g == "X" and OPT.get("pz", 0):
                waits[g, n] = 0
        for x in sch[n]:
            if isinstance(x, int):
                assert x - 5 <= n - 1, (n, x)
            if x == "Z":
                assert n >= 16 and k + 1 < len(ns)
            if x not in ("P", "Z", "F"):
                q["Y" if n < 10 else "X"].append(x)
    st = [x for x in q["X"] + q["Y"] if isinstance(x, int)]
    assert sorted(st) == list(range(20))
    return pre, sch, ns, waits, min(x for x in q["X"][1:] if isinstance(x, int))


def gen(a):
    PRE, SCH, NS, WAITS, XFIRST = plan()
    a.raw(f".globl {KNAME}\n.p2align 8\n.type {KNAME},@function")
    a.label(KNAME)
    a(f"""
    s_cmp_ge_u32 s2, 256
    s_cbranch_scc1 L_done
    """)
    stamp(a, 0)
    a(f"""
    s_load_dwordx2 s[{SX[1]}:{SX[1]+1}], s[0:1], 24
    s_load_dwordx2 s[{SW[1]}:{SW[1]+1}], s[0:1], 32
    s_load_dwordx2 s[{SX[0]}:{SX[0]+1}], s[0:1], 0
    s_load_dwordx2 s[{SW[0]}:{SW[0]+1}], s[0:1], 8
    s_load_dwordx2 s[{SWO[0]}:{SWO[0]+1}], s[0:1], 16
    s_load_dwordx2 s[{SWO[1]}:{SWO[1]+1}], s[0:1], 40
    s_load_dwordx2 s[{SOUT}:{SOUT+1}], s[0:1], 48
    s_load_dwordx2 s[{SWS}:{SWS+1}], s[0:1], 64
    v_lshrrev_b32 v1, 6, v0
    v_and_b32 v0, 63, v0
    s_and_b32 s{sXCD}, s2, 7
    v_readfirstlane_b32 s{sWAVE}, v1
    s_lshr_b32 s{sJ}, s2, 3
    s_and_b32 s{T0}, s{sXCD}, 1
    s_lshl_b32 s{T0}, s{T0}, 3
    s_and_b32 s{T1}, s{sJ}, 7
    s_add_u32 s{sTB}, s{T0}, s{T1}
    s_lshr_b32 s{T0}, s{sXCD}, 1
    s_lshl_b32 s{T0}, s{T0}, 2
    s_lshr_b32 s{T2}, s{sJ}, 3
    s_add_u32 s{sM}, s{T0}, s{T2}
    """)
    if OPT.get("bal", 1):
        a(f"""
        s_lshr_b32 s{T0}, s{sXCD}, 1
        s_mul_i32 s{T0}, s{T0}, 30
        s_add_u32 s{T0}, s{T0}, s{sJ}
        s_and_b32 s{T1}, s{T0}, 7
        s_lshr_b32 s{T2}, s{T0}, 3
        s_and_b32 s{T0}, s{sXCD}, 1
        s_lshl_b32 s{T0}, s{T0}, 3
        s_add_u32 s{sTB}, s{T0}, s{T1}
        s_lshl_b32 s{T0}, s{sXCD}, 1
        s_add_u32 s{T0}, s{T0}, s{sJ}
        s_sub_u32 s{T0}, s{T0}, 30
        s_cmp_ge_u32 s{sJ}, 30
        s_cselect_b32 s{sM}, 15, s{T2}
        s_cselect_b32 s{sTB}, s{T0}, s{sTB}
        """)
    rm = OPT.get("rot", 2)
    if rm == 0:
        a(f"s_mov_b32 s{sROT}, 0")
    elif rm == 1:
        a(f"""
        s_mul_i32 s{T2}, s{T2}, 3
        s_add_u32 s{sROT}, s{T1}, s{T2}
        s_cmp_ge_u32 s{sROT}, 10
        s_cselect_b32 s{T0}, 10, 0
        s_sub_u32 s{sROT}, s{sROT}, s{T0}
        """)
    elif rm == 2:
        a(f"""
        s_add_u32 s{sROT}, s{T1}, s{T2}
        s_and_b32 s{sROT}, s{sROT}, 1
        s_mul_i32 s{sROT}, s{sROT}, 5
        """)
    else:
        a(f"""
        s_add_u32 s{sROT}, s{T1}, s{T2}
        s_and_b32 s{sROT}, s{sROT}, 3
        s_mul_i32 s{sROT}, s{sROT}, 5
        s_lshr_b32 s{sROT}, s{sROT}, 1
        """)
    a(f"""
    s_and_b32 s{sCW}, s{sWAVE}, 3
    """)
    for n, size in ((SX[0], X_BYTES), (SW[0], WQKV_BYTES), (SX[1], X_BYTES), (SW[1], WQKV_BYTES),
                    (SOUT, OUT_BYTES), (SWS, 0x4000000 if STAMPS else WS_USED)):
        a(f"s_mov_b32 s{n+2}, {size}\ns_mov_b32 s{n+3}, {SRD3}")
    a(f"""
    v_lshrrev_b32 v6, 3, v0
    v_mul_u32_u24 v2, 1280, v6
    v_lshrrev_b32 v7, 4, v0
    v_and_b32 v8, 7, v0
    v_xor_b32 v8, v8, v7
    v_lshl_add_u32 v2, v8, 4, v2
    v_xor_b32 v3, 64, v2
    v_mul_u32_u24 v9, 3840, v7
    v_and_b32 v8, 15, v0
    v_lshlrev_b32 v10, 1, v7
    v_xor_b32 v8, v8, v10
    """)
    a("""
    v_lshl_add_u32 v4, v8, 4, v9
    v_xor_b32 v5, 128, v4
    """)
    a(f"""
    s_lshl_b32 s{T0}, s{sTB}, 7
    s_lshl_b32 s{T1}, s{sCW}, 5
    s_add_u32 s{T0}, s{T0}, s{T1}
    s_mul_i32 s{sXB}, s{T0}, 1280
    s_mul_i32 s{sWB}, s{sCW}, {16*3840}
    s_lshl_b32 s{T0}, s{sM}, 8
    s_add_u32 s{sWB}, s{sWB}, s{T0}
    s_lshl_b32 s{sLP}, s{sCW}, 12
    s_lshr_b32 s{T3}, s{sWAVE}, 2              ; group
    s_add_u32 s{sKS}, s{sROT}, s{T3}
    s_cmp_eq_u32 s{sKS}, 10
    s_cselect_b32 s{sKS}, 0, s{sKS}
    s_lshl_b32 s{T3}, s{T3}, 15
    s_add_u32 s{T3}, s{T3}, s{sLP}
    """)

    def dma_stage(n, sLP=sLP):
        p = 1 - n // 10
        slot = (n % 5) * 32 * K
        out = [f"s_lshl_b32 s{T0}, s{sKS}, 7",
               f"s_add_u32 s{T0}, s{T0}, s{sXB}",
               f"s_mul_i32 s{T1}, s{sKS}, {64*3840}",
               f"s_add_u32 s{T1}, s{T1}, s{sWB}"]
        for i in range(4):
            out += [f"s_add_u32 m0, s{sLP}, {slot + i*1024}",
                    f"s_add_u32 s{T2}, s{T0}, {i*8*1280}",
                    f"buffer_load_dwordx4 v{2 + (i & 1)}, {srd(SX[p])}, s{T2} offen {'nt ' if OPT.get('nt', 0) & 1 else ''}lds",
                    f"s_add_u32 m0, s{sLP}, {slot + 16*K + i*1024}",
                    f"s_add_u32 s{T2}, s{T1}, {i*4*3840}",
                    f"buffer_load_dwordx4 v{4 + (i >> 1)}, {srd(SW[p])}, s{T2} offen {'nt ' if OPT.get('nt', 0) & 2 else ''}lds"]
        out += [f"s_add_u32 s{sKS}, s{sKS}, 1",
                f"s_cmp_eq_u32 s{sKS}, 10",
                f"s_cselect_b32 s{sKS}, 0, s{sKS}"]
        return out

    a("s_waitcnt lgkmcnt(0)")
    stamp(a, 1, 4)
    a(f"s_cmp_eq_u32 s{sM}, 15")
    a("s_cbranch_scc1 L_setup1")
    a(dma_stage(0, T3))
    stamp(a, 2, 4)
    a(f"s_cmp_lt_u32 s{sWAVE}, 4")
    a("s_cbranch_scc1 L_setup1")
    for n in PRE:
        a(dma_stage(n))
    a.label("L_setup1")
    stamp(a, 3, 4)
    a(f"""
    s_lshl_b32 s{T0}, s{sXCD}, 2
    s_and_b32 s{T1}, s{sJ}, 3
    s_add_u32 s{sHEAD}, s{T0}, s{T1}
    s_lshr_b32 s{sQB}, s{sJ}, 2
    s_add_u32 s{T0}, s{SWS}, {EP_OFF}
    s_addc_u32 s{T1}, s{SWS+1}, 0
    s_load_dword s{sTAG}, s[{T0}:{T1}], 0
    """)
    marks = [len(a.l)]
    S = [64, 80, 96, 112]
    O = 208
    OO = [48, 208]
    KL, KH = [128, 132], [240, 242]
    QL, QH = [136, 142], [140, 146]
    VF = [224, 232]
    MD, MF = 32, 48
    VK, VV, VIDX, VDMA, VQ, VOF, VW3, VOUT, VRED = 244, 245, 246, 247, 248, 249, 250, 251, 252
    VOUT2 = 253
    QB_OFF = 1 * K
    CH = [11 * K, 51 * K, 91 * K, 0]
    A_OFF = 40 * K
    WOL = [60 * K, 0]
    SCR = [130 * K, 110 * K]
    OFB = [148, 32]
    ST = [188, 192, 196, 28, 4]

    a(f"""
    v_lshlrev_b32 v{VDMA}, 4, v0
    v_lshrrev_b32 v11, 5, v0               ; h
    v_and_b32 v12, 31, v0                  ; i
    v_and_b32 v13, 3, v12
    v_lshrrev_b32 v14, 3, v12
    v_lshl_add_u32 v13, v14, 2, v13        ; kappa & 15
    v_bfe_u32 v14, v12, 2, 1               ; kappa >> 4
    v_lshlrev_b32 v15, 4, v13
    v_lshl_add_u32 v16, v14, 3, v15
    v_lshl_add_u32 v16, v11, 8, v16
    v_add_u32 v{VK}, {CH[0]}, v16
    v_mul_u32_u24 v16, 20, v11
    v_add_u32 v16, v16, v12
    v_lshlrev_b32 v16, 4, v16
    v_add_u32 v{VV}, {CH[0] + 1280}, v16
    v_and_b32 v15, 15, v12
    v_lshlrev_b32 v15, 4, v15
    v_lshrrev_b32 v16, 4, v12
    v_lshl_add_u32 v15, v16, 3, v15        ; (q&15)*16 + (q>>4)*8
    v_lshl_add_u32 v{VQ}, v11, 8, v15
    v_mov_b32 v{VIDX}, 0xdddddddd
    v_mov_b32 v254, 0
    v_mov_b32 v255, 0
    v_and_b32 v17, 0x1b, v12
    v_cmp_eq_u32 vcc, 24, v17
    v_mov_b32 v16, 0x3f803f80
    s_nop 0
    v_cndmask_b32 v17, 0, v16, vcc
    """)
    for b in range(2):
        a(f"v_mov_b32 v{KH[b]}, 0x3f803f80")
        a(f"v_mov_b32 v{KH[b]+1}, 0x00003f80")
        for i in range(8):
            a(f"v_mov_b32 v{VF[b]+i}, v17")

    def mask_setup():
        out = [["v_lshrrev_b32 v13, 5, v0", "v_lshlrev_b32 v13, 4, v13", "v_and_b32 v12, 31, v0",
                "v_sub_u32 v13, v12, v13", f"v_mov_b32 v14, {NEGBIG}"]]
        for r in range(0, 16, 2):
            out.append([f"v_cmp_le_i32 s[{T0}:{T0+1}], {r}, v13",
                        f"v_cmp_le_i32 s[{T2}:{T2+1}], {r+1}, v13",
                        "s_nop 0",
                        f"v_cndmask_b32 v{MD+r}, v14, 0, s[{T0}:{T0+1}]",
                        f"v_cndmask_b32 v{MF+r}, 0, v14, s[{T0}:{T0+1}]",
                        f"v_cndmask_b32 v{MD+r+1}, v14, 0, s[{T2}:{T2+1}]",
                        f"v_cndmask_b32 v{MF+r+1}, 0, v14, s[{T2}:{T2+1}]"])
        return out

    def g3_setup():
        return [["v_lshrrev_b32 v10, 4, v0",
                 "v_lshlrev_b32 v11, 9, v10",
                 "v_and_b32 v12, 15, v0",
                 f"v_lshl_add_u32 v{VOF}, v12, 4, v11"],
                ["v_mul_u32_u24 v12, 2560, v12",
                 f"v_lshl_add_u32 v{VOUT}, v10, 4, v12",
                 f"v_lshl_add_u32 v{VOUT2}, v10, 3, v12"],
                [f"s_cmp_lt_u32 s{sWAVE}, 4",
                 f"s_cselect_b32 s{T0}, 0, {5*K}",
                 f"s_add_u32 s{T0}, s{T0}, {WOL[0]}",
                 f"v_add_u32 v{VW3}, s{T0}, v{VDMA}",
                 f"s_mul_i32 s{T0}, s{sCW}, 5120",
                 f"v_add_u32 v{VRED}, s{T0}, v{VDMA}"]]

    marks.append(len(a.l))
    a(mask_setup()[:5])
    marks.append(len(a.l))
    a(mask_setup()[5:])
    marks.append(len(a.l))
    a(g3_setup())
    a(f"""
    s_lshl_b32 s{T0}, s{sQB}, 3
    s_add_u32 s{T0}, s{T0}, s{sWAVE}
    s_mul_i32 s{sQA}, s{sHEAD}, 64
    s_add_u32 s{sQA}, s{sQA}, s{T0}
    s_mul_i32 s{sQA}, s{sQA}, 1280
    s_mul_i32 s{T0}, s{T0}, 40960
    s_add_u32 s{T0}, s{T0}, {OW_OFF}
    s_lshl_b32 s{sOA1}, s{sHEAD}, 10
    s_add_u32 s{sOA1}, s{sOA1}, s{T0}
    s_lshr_b32 s{sOA2}, s{sHEAD}, 2
    s_add_u32 s{sOA2}, s{sOA2}, 32
    s_lshl_b32 s{sOA2}, s{sOA2}, 10
    s_add_u32 s{sOA2}, s{sOA2}, s{T0}
    s_and_b32 s{T0}, s{sHEAD}, 1
    s_lshl_b32 s{T0}, s{T0}, 9
    s_add_u32 s{sOA2}, s{sOA2}, s{T0}
    s_and_b32 s{T0}, s{sHEAD}, 2
    s_lshl_b32 s{T0}, s{T0}, 2
    s_add_u32 s{sOA2}, s{sOA2}, s{T0}
    s_lshl_b32 s{T0}, s{sHEAD}, 1
    s_lshr_b32 s{T1}, s{sCW}, 1
    s_add_u32 s{T0}, s{T0}, s{T1}
    s_mul_i32 s{T0}, s{T0}, 40960
    s_and_b32 s{T1}, s{sCW}, 1
    s_lshl_b32 s{T1}, s{T1}, 8
    s_add_u32 s{T0}, s{T0}, s{T1}
    s_add_u32 s{T0}, s{T0}, {OW_OFF}
    s_lshr_b32 s{T1}, s{sWAVE}, 2
    s_lshl_b32 s{sOB2}, s{T1}, 12
    s_add_u32 s{sOB2}, s{sOB2}, s{T0}
    s_add_u32 s{sOB2}, s{sOB2}, {16*2048}
    s_lshl_b32 s{T1}, s{T1}, 14
    s_add_u32 s{sOB1}, s{T0}, s{T1}
    s_mul_i32 s{sWOB}, s{sQB}, 102400
    s_lshl_b32 s{T0}, s{sWAVE}, 10
    s_add_u32 s{sWOB}, s{sWOB}, s{T0}
    s_mul_i32 s{sAS}, s{sQB}, 20480
    s_sub_u32 s{sAS}, s{sAS}, 20480
    s_add_u32 s{sAS}, s{sAS}, s{T0}
    s_mul_i32 s{sAD}, s{sWAVE}, 2560
    s_add_u32 s{sAD}, s{sAD}, {A_OFF}
    """)
    for i in range(16):
        a(f"v_mov_b32 v{O+i}, 0")
    marks.append(len(a.l))

    XA = lambda sg, kk: 14 + sg * 6 + kk
    WA = lambda sg, ct: 14 + sg * 6 + 2 + ct
    a(f"""
    v_and_b32 v6, 15, v0
    v_lshrrev_b32 v8, 1, v6                ; f(row)
    v_xor_b32 v8, v8, v7                   ; o ^ f
    v_lshlrev_b32 v8, 4, v8
    v_lshl_add_u32 v8, v6, 7, v8
    s_lshr_b32 s{T0}, s{sCW}, 1
    s_lshl_b32 s{T0}, s{T0}, 13
    v_add_u32 v{XA(0,0)}, s{T0}, v8
    v_xor_b32 v{XA(0,1)}, 64, v{XA(0,0)}
    v_lshrrev_b32 v8, 2, v0
    v_and_b32 v8, 3, v8                    ; r
    v_lshl_add_u32 v9, v7, 3, v8           ; krow = 8o + r
    v_lshlrev_b32 v9, 8, v9
    v_add_u32 v9, {16*K}, v9
    v_and_b32 v10, 1, v7
    v_lshl_add_u32 v10, v10, 2, v8
    v_lshlrev_b32 v10, 1, v10              ; sigma
    v_bfe_u32 v11, v0, 1, 1                ; c>>1
    s_and_b32 s{T0}, s{sCW}, 1
    s_lshl_b32 s{T0}, s{T0}, 3
    v_or_b32 v11, s{T0}, v11               ; 8cg + (c>>1)
    v_xor_b32 v11, v11, v10
    v_lshl_add_u32 v11, v11, 4, v9
    v_and_b32 v12, 1, v0
    v_lshl_add_u32 v{WA(0,0)}, v12, 3, v11
    v_xor_b32 v{WA(0,1)}, 32, v{WA(0,0)}
    v_xor_b32 v{WA(0,2)}, 64, v{WA(0,0)}
    v_xor_b32 v{WA(0,3)}, 96, v{WA(0,0)}
    """)
    for sg in (1, 2):
        for i in range(6):
            a(f"v_add_u32 v{14+sg*6+i}, {sg*64*K}, v{14+i}")
    marks.append(len(a.l))
    EA = [196, 197, 198, 199]
    a(f"""
    s_lshl_b32 s{T0}, s{sTB}, 2
    s_and_b32 s{T1}, s{sCW}, 2
    s_add_u32 s{T0}, s{T0}, s{T1}
    s_lshr_b32 s{T1}, s{sWAVE}, 2
    s_xor_b32 s{T1}, s{T1}, 1
    s_lshl_b32 s{T1}, s{T1}, 11                ; p*32*64
    s_add_u32 s{T0}, s{T0}, s{T1}
    s_cmp_ge_u32 s{sM}, 5
    s_cselect_b32 s{T2}, 1, 0                  ; K or V
    s_lshl_b32 s{T3}, 1280, s{T2}
    s_mul_i32 s{sEQ}, s{T0}, s{T3}
    s_mul_i32 s{T0}, s{T2}, {KV_OFF}
    s_add_u32 s{sEQ}, s{sEQ}, s{T0}
    s_add_u32 s{sEK}, s{sEQ}, s{T3}
    s_lshl_b32 s{T3}, s{T3}, 6
    s_and_b32 s{T1}, s{sCW}, 1
    s_cmp_ge_u32 s{sM}, 10
    s_cbranch_scc1 L_ea1
    s_mul_i32 s{T0}, s{T2}, 5
    s_sub_u32 s{T0}, s{sM}, s{T0}
    s_lshl_b32 s{T0}, s{T0}, 5
    s_lshl_b32 s{T1}, s{T1}, 4
    s_add_u32 s{T0}, s{T0}, s{T1}
    v_add_u32 v8, s{T0}, v7
    v_lshlrev_b32 v10, 4, v6
    """)
    for ct in range(4):
        a(f"""
        v_add_u32 v9, {4*ct}, v8
        v_mul_u32_u24 v11, 205, v9
        v_lshrrev_b32 v11, 10, v11
        v_mul_u32_u24 v12, 5, v11
        v_sub_u32 v12, v9, v12
        v_mul_lo_u32 v11, v11, s{T3}
        v_lshl_add_u32 v12, v12, 8, v10
        v_add_u32 v{EA[ct]}, v11, v12
        """)
    a(f"""
    s_branch L_ea2
    L_ea1:
    s_sub_u32 s{T0}, s{sM}, 10
    s_lshl_b32 s{T0}, s{T0}, 7
    s_lshl_b32 s{T1}, s{T1}, 6
    s_add_u32 s{T0}, s{T0}, s{T1}
    v_add_u32 v8, s{T0}, v6
    v_mul_u32_u24 v10, 320, v7
    v_add_u32 v10, 1280, v10
    """)
    for ct in range(4):
        a(f"""
        v_add_u32 v9, {16*ct}, v8
        v_mul_u32_u24 v11, 3277, v9
        v_lshrrev_b32 v11, 16, v11
        v_mul_u32_u24 v12, 20, v11
        v_sub_u32 v12, v9, v12
        v_mul_lo_u32 v11, v11, s{T3}
        v_lshl_add_u32 v12, v12, 4, v10
        v_add_u32 v{EA[ct]}, v11, v12
        """)
    a.label("L_ea2")
    marks.append(len(a.l))
    a(f"""
    s_lshl_b32 s{sQT}, s{sQB}, 3
    s_add_u32 s{sQT}, s{sQT}, s{sWAVE}
    s_lshl_b32 s{sW1K}, s{sWAVE}, 10
    s_mov_b32 s{sVM}, 0x000fffff
    s_mov_b32 s{sVM+1}, 0x000fffff
    s_mov_b32 s{sLO}, -1
    s_mov_b32 s{sLO+1}, 0
    s_mov_b32 s{sCS}, {CSCALE}
    s_mov_b32 s{sONE}, 0x3f80
    s_mul_i32 s{sKVB}, s{sHEAD}, 163840
    s_add_u32 s{sKVB}, s{sKVB}, {KV_OFF}
    """)

    ACC = lambda ct, tt: 128 + (ct * 4 + tt) * 4
    XF = lambda buf, tt: 64 + buf * 32 + tt * 4
    WF = lambda buf, ct: 64 + buf * 32 + 16 + ct * 4

    def g1reads(i, kk):
        slot = i % 5
        sg, so = slot >> 1, (slot & 1) * 32 * K
        r = []
        for q in range(4):
            r.append(f"ds_read_b128 {vr(XF(kk,q),4)}, v{XA(sg,kk)} offset:{so + q*2048}")
            for rd in range(2):
                r.append(f"ds_read_b64_tr_b16 {vr(WF(kk,q)+2*rd,2)}, v{WA(sg,q)} offset:{so + kk*8192 + rd*1024}")
        return r

    VPG, VPUB, VPO, VPD = 202, 203, 206, 204
    sPM, sSTR = SDBG, SDBG + 2

    def only_wave(wave):
        lab = a.uniq("L_w")
        a(f"s_cmp_lg_u32 s{sWAVE}, {wave}")
        a(f"s_cbranch_scc1 {lab}")
        return lab

    def publish(kind, p, wave):
        lab = only_wave(wave)
        if kind == 0:
            a(f"""
            v_mov_b32 v1, s{sTAG}
            s_mov_b32 s{T4}, {FL_OFF + p*16384}
            s_mov_b64 exec, s[{sPM}:{sPM+1}]
            buffer_store_dword v1, v{VPUB}, {srd(SWS)}, s{T4} offen sc1
            s_mov_b64 exec, -1
            """)
        else:
            a(f"""
            s_lshl_b32 s{T4}, s{sQB}, 8
            s_lshl_b32 s{T5}, s{sHEAD}, 2
            s_add_u32 s{T4}, s{T4}, s{T5}
            s_add_u32 s{T4}, s{T4}, {FL_OFF + 32768}
            v_mov_b32 v1, s{sTAG}
            s_mov_b64 exec, 1
            buffer_store_dword v1, off, {srd(SWS)}, s{T4} sc1
            s_mov_b64 exec, -1
            """)
        a.label(lab)

    def poll_loads(kind, p):
        if kind == 0:
            return [f"s_mov_b32 s{T3}, {FL_OFF + p*16384}",
                    f"buffer_load_dwordx2 {vr(VPD,2)}, v{VPG}, {srd(SWS)}, s{T3} offen sc1"]
        return [f"s_mov_b32 s{T3}, {FL_OFF + 32768}",
                f"buffer_load_dword v{VPD}, v{VPO}, {srd(SWS)}, s{T3} offen sc1"]

    def poll_issue(kind, p, wave=0):
        lab = only_wave(wave) if wave is not None else a.uniq("L_w")
        a(poll_loads(kind, p))
        a.label(lab)

    def poll_check(kind, p, sleep=8, wave=0, first=0):
        lab = only_wave(wave) if wave is not None else a.uniq("L_w")
        loop = a.uniq("L_spin")
        a(f"s_mov_b32 s{sCNT}, 0x20000")
        a(f"s_waitcnt vmcnt({first})")
        a.label(loop)
        a(f"v_cmp_eq_u32 vcc, s{sTAG}, v{VPD}")
        if kind == 0:
            a(f"v_cmp_eq_u32 s[{T0}:{T0+1}], s{sTAG}, v{VPD+1}")
            a(f"s_orn2_b64 s[{T0}:{T0+1}], s[{T0}:{T0+1}], s[{sSTR}:{sSTR+1}]\ns_and_b64 vcc, vcc, s[{T0}:{T0+1}]")
        a(f"""
        s_cmp_eq_u64 vcc, -1
        s_cbranch_scc1 {lab}
        s_sleep {sleep}
        """)
        a(poll_loads(kind, p))
        a(f"""
        s_sub_u32 s{sCNT}, s{sCNT}, 1
        s_cmp_lg_u32 s{sCNT}, 0
        s_waitcnt vmcnt(0)
        s_cbranch_scc1 {loop}
        """)
        a.label(lab)

    a(f"""
    s_mul_i32 s{T0}, s{sHEAD}, 20
    s_add_u32 s{T1}, s{T0}, 19
    s_lshr_b32 s{T0}, s{T0}, 7
    s_lshr_b32 s{T1}, s{T1}, 7
    s_cmp_lg_u32 s{T0}, s{T1}
    s_cselect_b64 s[{sSTR}:{sSTR+1}], -1, 0
    s_lshl_b32 s{T0}, s{sHEAD}, 9
    v_lshl_add_u32 v{VPG}, v0, 3, s{T0}
    s_mul_i32 s{T0}, s{sM}, 52
    s_lshr_b32 s{T0}, s{T0}, 8                 ; type
    s_mul_i32 s{T1}, s{T0}, 5
    s_sub_u32 s{T1}, s{sM}, s{T1}
    s_mul_i32 s{T2}, s{T1}, 205
    s_lshr_b32 s{T2}, s{T2}, 5
    s_cmp_eq_u32 s{T1}, 2
    s_cselect_b32 s{sPM}, 0x80, 0
    s_or_b32 s{sPM}, s{sPM}, 0x7f
    s_cmp_eq_u32 s{sM}, 15
    s_cselect_b32 s{sPM}, -1, s{sPM}
    s_mov_b32 s{sPM+1}, 0
    s_lshl_b32 s{T2}, s{T2}, 9
    s_lshl_b32 s{T0}, s{T0}, 7
    s_add_u32 s{T2}, s{T2}, s{T0}
    s_lshl_b32 s{T0}, s{sTB}, 3
    s_add_u32 s{T2}, s{T2}, s{T0}
    v_lshl_add_u32 v{VPUB}, v0, 9, s{T2}
    s_min_u32 s{T1}, s{T1}, 1
    s_lshl_b32 s{T1}, s{T1}, 2
    s_mov_b64 exec, 1
    v_add_u32 v{VPUB}, s{T1}, v{VPUB}
    s_mov_b64 exec, -1
    v_and_b32 v8, 31, v0
    v_lshlrev_b32 v8, 2, v8
    s_lshl_b32 s{T0}, s{sXCD}, 8
    v_add_u32 v{VPO}, s{T0}, v8
    """)
    a(f"s_waitcnt lgkmcnt(0)\ns_add_u32 s{sTAG}, s{sTAG}, 0x9e3779b1")
    marks.append(len(a.l))
    late = a.l[marks[0]:marks[4]]
    del a.l[marks[0]:marks[4]]
    late = [re.sub(r"\bv(1[4-7])\b", lambda m: "v%d" % (int(m.group(1)) - 8), x.split(";")[0]).strip() for x in late]
    a(f"s_cmp_eq_u32 s{sM}, 15")
    a("s_cbranch_scc1 L_idle")

    stamp(a, 4, 4)
    a(f"s_cmp_lt_u32 s{sWAVE}, 4")
    a("s_cbranch_scc1 L_xstart")
    for n in NS:
        if n > 10:
            break
        if WAITS["Y", n] is not None:
            a(f"s_waitcnt vmcnt({WAITS['Y', n]})")
        a("s_barrier")
        if n < 10:
            for x in SCH[n]:
                a(dma_stage(x))
    a("s_setprio 3")
    a("s_branch L_compute")
    a.label("L_xstart")
    a(f"""
    s_add_u32 s{sKS}, s{sKS}, {XFIRST - 11}
    s_cmp_ge_u32 s{sKS}, 10
    s_cselect_b32 s{T0}, 10, 0
    s_sub_u32 s{sKS}, s{sKS}, s{T0}
    s_waitcnt vmcnt(0)
    """)
    stamp(a, 5, 4)
    a("s_barrier")
    a.label("L_compute")
    stamp(a, 6, 4)
    stamp(a, 1)
    stamp(a, 1, 1)
    a(g1reads(0, 0))
    a(f"s_cmp_ge_u32 s{sM}, 10")
    a("s_cbranch_scc1 L_comp1")

    def interleave(ms, rs, step):
        per = -(-len(late) // 18)
        ex = late[step * per:(step + 1) * per] if step < 18 else []
        out = []
        ri = xi = 0
        for i, m in enumerate(ms):
            out.append(m)
            if ri < len(rs):
                out.append(rs[ri]); ri += 1
            if i >= 16 - per and xi < len(ex):
                out.append(ex[xi]); xi += 1
        out += rs[ri:] + ex[xi:]
        return out

    for cg in range(2):
        if cg == 1:
            a.label("L_comp1")

        def mm(i, kk):
            out = []
            for ct in range(4):
                for tt in range(4):
                    c = None if (i == 0 and kk == 0) else ACC(ct, tt)
                    if cg == 1:
                        out.append(mfma16(ACC(ct, tt), XF(kk, tt), WF(kk, ct), c))
                    else:
                        out.append(mfma16(ACC(ct, tt), WF(kk, ct), XF(kk, tt), c))
            return out
        for i in range(10):
            a("s_waitcnt lgkmcnt(0)")
            a(interleave(mm(i, 0), g1reads(i, 1), 2 * i))
            wy = WAITS.get(("Y", i + 11))
            a("s_waitcnt lgkmcnt(0)" + (f" vmcnt({wy})" if wy is not None else ""))
            bx, by = (i + 1) in SCH, (i + 11) in SCH
            if bx and by:
                a("s_barrier")
            elif bx or by:
                lab = a.uniq("L_nb")
                a(f"s_cmp_{'ge' if bx else 'lt'}_u32 s{sWAVE}, 4\ns_cbranch_scc1 {lab}\ns_barrier\n{lab}:")
            if i in (1, 3, 5, 7, 9):
                stamp(a, 2 + i // 2, 1)
            a(interleave(mm(i, 1), g1reads(i + 1, 0) if i < 9 else [], 2 * i + 1))
        if cg == 0:
            a("s_branch L_g1epi")
    a.label("L_g1epi")
    stamp(a, 2)

    QS = OPT.get("qs", 0)

    def g1_stores():
        if QS:
            lab = a.uniq("L_qs")
            a(f"s_cmp_ge_u32 s{sM}, 5\ns_cbranch_scc1 {lab}")
            for i in range(64):
                a(f"v_mul_f32 v{128+i}, s{sCS}, v{128+i}")
            a.label(lab)
        t = 64
        for ct in range(4):
            for tp in range(2):
                for h in range(2):
                    s_ = ACC(ct, 2 * tp + h)
                    a(f"v_cvt_pk_bf16_f32 v{t+2*h}, v{s_}, v{s_+1}")
                    a(f"v_cvt_pk_bf16_f32 v{t+2*h+1}, v{s_+2}, v{s_+3}")
                a(f"buffer_store_dwordx4 {vr(t,4)}, v{EA[ct]}, {srd(SWS)}, s{sEQ if tp == 0 else sEK} offen {HST}")
                t += 4
    a(f"s_cmp_lt_u32 s{sWAVE}, 4")
    a("s_cbranch_scc1 L_xload")
    a("v_mov_b32 v10, 0\nv_mov_b32 v11, 1\ns_mov_b64 exec, 1\nds_add_u32 v10, v11 offset:8\ns_mov_b64 exec, -1")
    stamp(a, 7, 1)
    a("s_nop 2")
    DEFER = OPT.get("defer", 3)
    if DEFER:
        for k in range(7, -1, -1):
            for i in range(3, -1, -1):
                a(f"v_cvt_pk_bf16_f32 v{160+4*k+i}, v{128+8*k+2*i}, v{128+8*k+2*i+1}")
    else:
        g1_stores()
    stamp(a, 8, 1)
    a("s_branch L_attn_setup")

    def lds_wait(off, val, sleep=1):
        loop = a.uniq("L_lw")
        a(f"s_mov_b32 s{sCNT}, 0x400000\nv_mov_b32 v10, 0")
        a.label(loop)
        a(f"""
        ds_read_b32 v11, v10 offset:{off}
        s_waitcnt lgkmcnt(0)
        v_readfirstlane_b32 s{T0}, v11
        s_cmp_eq_u32 s{T0}, {val}
        s_cbranch_scc1 {loop}_ok
        s_sleep {sleep}
        s_sub_u32 s{sCNT}, s{sCNT}, 1
        s_cmp_lg_u32 s{sCNT}, 0
        s_cbranch_scc1 {loop}
        {loop}_ok:
        """)

    a.label("L_xload")
    a("s_nop 7")
    for n in NS:
        if n < 10:
            continue
        if n > 10:
            w = WAITS["X", n]
            if n == NS[-1]:
                lab = a.uniq("L_w0")
                a(f"s_waitcnt vmcnt(1) lgkmcnt(0)\ns_cmp_eq_u32 s{sWAVE}, 0\ns_cbranch_scc1 {lab}\ns_waitcnt vmcnt(0)\n{lab}:")
            elif w is not None:
                a(f"s_waitcnt vmcnt({w})")
            a("s_barrier")
        for x in SCH[n]:
            if x == "S":
                stamp(a, 7, 1)
                g1_stores()
                stamp(a, 8, 1)
            elif x == "F":
                pass
            elif x == "P":
                stamp(a, 9, 1)
                publish(0, 1, 1)
            elif x == "Z":
                stamp(a, 10, 1)
                assert SCH[n][-1] == "Z" and NS[-2] == n
                poll_issue(0, 1)
                a("v_mov_b32 v10, 0\nv_mov_b32 v11, 0\nds_write_b64 v10, v[10:11]\nds_write_b64 v10, v[10:11] offset:8")
            else:
                a(dma_stage(x))
    stamp(a, 3)
    stamp(a, 11, 1)
    poll_check(0, 1, sleep=4)
    lab = only_wave(0)
    a("v_mov_b32 v10, 0\nv_mov_b32 v11, 1\nds_write_b32 v10, v11")
    a.label(lab)
    lds_wait(0, 1)

    def first_loads(part):
        a(f"s_add_u32 s{T0}, s{sKVB}, s{sW1K}")
        if part == 0:
            a(f"""
            s_mul_i32 s{T3}, s{sHEAD}, 81920
            s_mul_i32 s{T4}, s{sQB}, 10240
            s_add_u32 s{T3}, s{T3}, s{T4}
            s_add_u32 s{T3}, s{T3}, s{sW1K}
            """)
            for j in range(3):
                lab = None
                if j == 2:
                    lab = a.uniq("L_q")
                    a(f"s_cmp_ge_u32 s{sWAVE}, 2\ns_cbranch_scc1 {lab}")
                a(f"""
                s_add_u32 m0, s{sW1K}, {QB_OFF + j*4096}
                s_add_u32 s{T2}, s{T3}, {QW_OFF + 32*81920 + j*4096}
                buffer_load_dwordx4 v{VDMA}, {srd(SWS)}, s{T2} offen {HS} lds
                """)
                if lab:
                    a.label(lab)
        for j in range(5 * part, 5 * part + 5):
            a(f"""
            s_add_u32 m0, s{sW1K}, {CH[0] + j*4096}
            s_add_u32 s{T2}, s{T0}, {32*163840 + j*4096}
            buffer_load_dwordx4 v{VDMA}, {srd(SWS)}, s{T2} offen {HS} lds
            """)
    a.label("L_x1")
    first_loads(0)
    a.label("L_x2")
    stamp(a, 4)
    stamp(a, 12, 1)
    first_loads(1)
    a.label("L_attn_setup")
    def scale_q(p):
        for r in [QL[p] + i for i in range(4)] + [QH[p], QH[p] + 1]:
            a(f"""
            v_lshlrev_b32 v15, 16, v{r}
            v_and_b32 v16, 0xffff0000, v{r}
            v_mul_f32 v15, s{sCS}, v15
            v_mul_f32 v16, s{sCS}, v16
            v_cvt_pk_bf16_f32 v{r}, v15, v16
            """)
        reset_m(p)

    def reset_m(p):
        a(f"""
        v_mov_b32 v15, 0x3f800000
        v_cndmask_b32 v{QH[p]}, 0, v{QH[p]}, s[{sLO}:{sLO+1}]
        v_cndmask_b32 v{QH[p]+1}, v15, v{QH[p]+1}, s[{sLO}:{sLO+1}]
        """)

    def set_m(p, M):
        a(f"""
        v_mov_b32 v15, v{M}
        s_nop 1
        v_permlane32_swap_b32 v15, v{M}
        s_nop 1
        v_max_f32 v15, v15, v{M}
        v_sub_f32 v15, 0, v15                  ; -m
        v_and_b32 v16, 0xffff0000, v15         ; hi
        v_sub_f32 v17, v15, v16
        v_and_b32 v18, 0xffff0000, v17         ; mid
        v_sub_f32 v17, v17, v18                ; lo
        v_lshrrev_b32 v16, 16, v16
        v_or_b32 v16, v16, v18
        v_lshrrev_b32 v17, 16, v17
        v_or_b32 v17, 0x3f800000, v17
        v_cndmask_b32 v{QH[p]}, v16, v{QH[p]}, s[{sLO}:{sLO+1}]
        v_cndmask_b32 v{QH[p]+1}, v17, v{QH[p]+1}, s[{sLO}:{sLO+1}]
        """)

    def set_m_fast(p, M, delta):
        a(f"""
        v_mov_b32 v15, v{M}
        s_nop 1
        v_permlane32_swap_b32 v15, v{M}
        s_nop 1
        v_max_f32 v15, v15, v{M}
        v_sub_f32 v15, {f32bits(-float(delta)) if delta else 0}, v15
        v_lshrrev_b32 v15, 16, v15
        v_cndmask_b32 v{QH[p]}, v15, v{QH[p]}, s[{sLO}:{sLO+1}]
        """)

    def kreads(buf, off, restore=True):
        return [f"ds_read2st64_b64 {vr(KL[buf],4)}, v{VK} offset0:{off//512} offset1:{off//512+1}",
                f"s_mov_b64 exec, s[{sLO}:{sLO+1}]",
                f"ds_read_b64 {vr(KH[buf],2)}, v{VK} offset:{off+1024}"] + (["s_mov_b64 exec, -1"] if restore else [])

    def vreads(buf, off):
        return [f"s_mov_b64 exec, s[{sVM}:{sVM+1}]",
                f"ds_read_b128 {vr(VF[buf],4)}, v{VV} offset:{off}",
                f"ds_read_b128 {vr(VF[buf]+4,4)}, v{VV} offset:{off+640}",
                "s_mov_b64 exec, -1"]

    def qk(Sd, buf, p, C=None):
        return [mfma32(Sd, KL[buf], QL[p], C), mfma32k8(Sd, KH[buf], QH[p], Sd)]

    def pv(Ss, buf, o):
        return [f"v_smfmac_f32_32x32x32_bf16 {vr(o,16)}, {vr(VF[buf],4)}, {vr(Ss,8)}, v{VIDX}",
                f"v_smfmac_f32_32x32x32_bf16 {vr(o,16)}, {vr(VF[buf]+4,4)}, {vr(Ss+8,8)}, v{VIDX}"]

    def cap(fn, *args):
        keep, a.l = a.l, []
        fn(*args)
        out, a.l = [x.strip() for x in a.l], keep
        return out

    def exps(Ss):
        return [f"v_exp_f32 v{Ss+i}, v{Ss+i}" for i in range(16)]

    def maxtree(M, Ss, first):
        out = []
        if first:
            out.append(f"v_max3_f32 v{M}, v{Ss}, v{Ss+1}, v{Ss+2}")
            rest = list(range(3, 16))
        else:
            rest = list(range(16))
        while len(rest) >= 2:
            out.append(f"v_max3_f32 v{M}, v{M}, v{Ss+rest[0]}, v{Ss+rest[1]}")
            rest = rest[2:]
        if rest:
            out.append(f"v_max_f32 v{M}, v{M}, v{Ss+rest[0]}")
        return out

    def zero_o(p):
        for i in range(16):
            a(f"v_mov_b32 v{OO[p]+i}, 0")

    def o_addr(p):
        return f"""
        s_add_u32 s{T1}, s{sOA1}, {p*64*40960}
        s_add_u32 s{T2}, s{sOA2}, {p*64*40960}
        """

    def o_store():
        return f"""
        buffer_store_dwordx4 v[20:23], v{VDMA}, {srd(SWS)}, s{T1} offen {HST}
        s_mov_b64 exec, s[{sLO}:{sLO+1}]
        buffer_store_dwordx2 v[24:25], v{VDMA}, {srd(SWS)}, s{T2} offen {HST}
        s_mov_b64 exec, -1
        """

    def epilogue(p):
        o = OO[p]
        a(f"v_rcp_f32 v15, v{o+12}")
        a(o_addr(p))
        for i in range(12):
            a(f"v_mul_f32 v{o+i}, v{o+i}, v15")
        for i in range(6):
            a(f"v_cvt_pk_bf16_f32 v{20+i}, v{o+2*i}, v{o+2*i+1}")
        a(o_store())

    def finite(p):
        o = OO[p]
        a("v_mov_b32 v17, 0x7f800000")
        a(f"v_maximum3_f32 v15, abs(v{o}), abs(v{o+1}), abs(v{o+2})")
        a(f"v_maximum3_f32 v16, abs(v{o+3}), abs(v{o+4}), abs(v{o+5})")
        for i in range(3):
            a(f"v_maximum3_f32 v{15+(i&1)}, v{15+(i&1)}, abs(v{o+6+2*i}), abs(v{o+7+2*i})")
        a(f"v_maximum3_f32 v15, v15, v16, abs(v{o+12})")
        a("v_cmp_nlt_f32 vcc, v15, v17")
        a(f"v_cmp_gt_f32 s[{T4}:{T5}], s{sTINY}, v{OO[p]+12}")
        a(f"s_or_b64 vcc, vcc, s[{T4}:{T5}]")

    def pen(reg, u):
        return [f"s_cmp_ge_u32 s{sQT}, {8 - u}",
                f"s_cselect_b32 s{T0}, s{sONE}, {(NEGBIG & 0xffff0000) | 0x3f80}",
                f"v_mov_b32 v{reg+1}, s{T0}"]

    def tile_step(t, n, pf, koff, voff, cmask, extra_k=None, hooks=None, midprio=None):
        a("s_waitcnt lgkmcnt(0)")
        rd = []
        if extra_k and t + 2 < n:
            rd += extra_k(t & 1, t + 2)
        if t + 2 < n:
            rd += kreads(t & 1, koff(t + 2), restore=(t >= n))
        if t < n:
            rd += vreads(t & 1, voff(t))
        q = qk(S[(t + 1) & 3], (t + 1) & 1, pf(t + 1), cmask(t + 1)) if t + 1 < n else []
        pp = pv(S[(t - 1) & 3], (t - 1) & 1, OO[pf(t - 1)]) if t >= 1 else []
        e = exps(S[t & 3]) if t < n else []
        if t == 0:
            a("s_nop 10")
        ms = q + pp
        if not e:
            a(["s_nop 1"] + ms)
            return
        order = OPT.get("ord", 1)
        if len(ms) == 4:
            ms = [ms, [q[0], pp[0], q[1], pp[1]], [q[0], pp[0], pp[1], q[1]]][order]
        rpos, roff = divmod(OPT.get("rp", 2), 10)
        hooks = hooks or []
        hp = [i for i in range(4) if i != rpos]
        nh = (len(hooks) + 2) // 3
        for i in range(4):
            if i == 2 and midprio is not None:
                a(f"s_setprio {midprio}")
            if i < len(ms):
                a(ms[i])
            if i == rpos:
                a(e[4 * i:4 * i + roff] + rd + e[4 * i + roff:4 * i + 4])
            else:
                a(e[4 * i:4 * i + 2])
                k = hp.index(i)
                for hk in hooks[k * nh:(k + 1) * nh]:
                    a(hk)
                a(e[4 * i + 2:4 * i + 4])
        if order == 2 and len(ms) == 4:
            a("s_nop 4")

    def wo_piece(p, q0, ldsbase, cond=None):
        o = [f"s_add_u32 m0, s{sW1K}, {ldsbase & 0xffffffff}",
             f"s_add_u32 s{T1}, s{sWOB}, {WP_OFF + p*819200 + q0*1024}",
             f"buffer_load_dwordx4 v{VDMA}, {srd(SWS)}, s{T1} offen {HS} lds"]
        if cond is not None:
            lab = a.uniq("L_wo")
            o = [f"s_cmp_ge_u32 s{sWAVE}, {cond}", f"s_cbranch_scc1 {lab}"] + o + [f"{lab}:"]
        return o

    def wo_rnd(p, q0, cnt=8):
        return wo_piece(p, q0, WOL[p] + q0 * 1024, cond=None if cnt == 8 else cnt)

    def o_load(p, i):
        d = OFB[p] + 4 * i
        if i < 8:
            return [f"s_add_u32 s{T5}, s{sOB1}, {p*64*40960 + (i>>1)*4096}",
                    f"buffer_load_dwordx4 {vr(d,4)}, v{VOF}, {srd(SWS)}, s{T5} offen offset:{(i&1)*2048} {HS}"]
        return [f"s_add_u32 s{T5}, s{sOB2}, {p*64*40960}",
                f"buffer_load_dwordx4 {vr(d,4)}, v{VOF}, {srd(SWS)}, s{T5} offen offset:{(i-8)*2048} {HS}"]

    lab = a.uniq("L_xl")
    a(f"s_cmp_ge_u32 s{sWAVE}, 4\ns_cbranch_scc1 {lab}")
    TWO = OPT.get("two", 0)
    a(f"s_waitcnt vmcnt({5 if TWO else 0})\nv_mov_b32 v10, 0\nv_mov_b32 v11, 1\ns_mov_b64 exec, 1\nds_add_u32 v10, v11 offset:4\ns_mov_b64 exec, -1")
    a(f"s_branch {lab}_j")
    a.label(lab)
    lds_wait(8, 4)
    a.label(lab + "_j")
    lds_wait(4, 4)
    stamp(a, 5)
    stamp(a, 13, 1)
    a(f"""
    s_mul_i32 s{T0}, s{sWAVE}, 1280
    s_add_u32 s{T0}, s{T0}, {QB_OFF}
    v_add_u32 v15, s{T0}, v{VQ}
    ds_read2st64_b64 {vr(QL[1],4)}, v15 offset0:0 offset1:1
    ds_read_b64 {vr(QH[1],2)}, v15 offset:1024
    s_add_u32 s{sKVS}, s{sKVB}, s{sW1K}
    s_mov_b32 s{sTINY}, {f32bits(2.0 ** -64)}
    """)
    a(kreads(0, 0))
    a(kreads(1, 2560))
    a("s_waitcnt lgkmcnt(4)")
    if QS:
        assert DEFER
        reset_m(1)
        a("s_nop 0")
    else:
        scale_q(1)
    a("s_waitcnt lgkmcnt(2)")
    a(qk(S[0], 0, 1))
    a("s_nop 15")
    a(maxtree(19, S[0], True))
    set_m_fast(1, 19, 0)
    a("s_nop 1")
    a(qk(S[0], 0, 1))

    def dmaX(j):
        lab = a.uniq("L_dx")
        return [f"s_cmp_ge_u32 s{sWAVE}, 4", f"s_cbranch_scc1 {lab}",
                f"s_add_u32 m0, s{sW1K}, {CH[1] + j*4096}",
                f"s_add_u32 s{T2}, s{sKVS}, {32*163840 + 40960 + j*4096}",
                f"buffer_load_dwordx4 v{VDMA}, {srd(SWS)}, s{T2} offen {HS} lds", f"{lab}:"]

    def dmaY(j):
        lab = a.uniq("L_dy")
        return [f"s_cmp_lt_u32 s{sWAVE}, 4", f"s_cbranch_scc1 {lab}",
                f"s_add_u32 m0, s{sW1K}, {CH[1] + j*4096 - 4096}",
                f"s_add_u32 s{T2}, s{sKVS}, {32*163840 + 40960 + j*4096 - 4096}",
                f"buffer_load_dwordx4 v{VDMA}, {srd(SWS)}, s{T2} offen {HS} lds", f"{lab}:"]

    def dma3(r):
        c, rr = 2 + r // 5, r % 5
        return [f"s_add_u32 m0, s{sW1K}, {CH[c] + rr*8192}",
                f"s_add_u32 s{T2}, s{sKVS}, {32*163840 + c*40960 + rr*8192}",
                f"buffer_load_dwordx4 v{VDMA}, {srd(SWS)}, s{T2} offen {HS} lds"]

    def dmaA(j):
        return [f"s_add_u32 s{T1}, s{sAS}, {j*8192}"] + ([f"s_max_i32 s{T1}, s{T1}, 0"] if j < 3 else []) + [
                f"s_add_u32 m0, s{sW1K}, {A_OFF + j*8192}",
                f"s_add_u32 s{T1}, s{T1}, s{sKVB}",
                f"buffer_load_dwordx4 v{VDMA}, {srd(SWS)}, s{T1} offen {HS} lds"]

    qa_loads = [f"buffer_load_dwordx2 {vr(QL[0],2)}, v{VQ}, {srd(SWS)}, s{sQA} offen {HS}",
                f"buffer_load_dwordx2 {vr(QL[0]+2,2)}, v{VQ}, {srd(SWS)}, s{sQA} offen offset:512 {HS}",
                f"s_mov_b64 exec, s[{sLO}:{sLO+1}]",
                f"buffer_load_dwordx2 {vr(QH[0],2)}, v{VQ}, {srd(SWS)}, s{sQA} offen offset:1024 {HS}",
                "s_mov_b64 exec, -1"]
    assert QW_OFF == 0

    NT, AP = 73, OPT.get("ap", 52)
    ST0, ST1, KLT, KHT, VKT = 148, 164, 180, 184, 186
    sq = cap(scale_q, 0)

    def kt_reads(u):
        return [f"ds_read2st64_b64 {vr(KLT,4)}, v{VKT} offset0:{5*u} offset1:{5*u+1}",
                f"s_mov_b64 exec, s[{sLO}:{sLO+1}]",
                f"ds_read_b64 {vr(KHT,2)}, v{VKT} offset:{u*2560+1024}",
                "s_mov_b64 exec, -1"]

    XB = OPT.get("xb", 42)
    xh = {XB: [sq[:10], sq[10:20], [f"s_cmp_eq_u32 s{sQT}, 0", f"s_cselect_b32 s{T0}, 2560, 0", f"s_add_u32 s{T0}, s{T0}, s{sAD}",
                                    f"s_sub_u32 s{T0}, s{T0}, {CH[2]}", f"v_add_u32 v{VKT}, s{T0}, v{VK}",
                                    f"v_mov_b32 v{KHT}, 0x3f803f80", f"v_mov_b32 v{KHT+1}, 0x3f80"]],
          XB + 1: [sq[20:30], sq[30:], kt_reads(7)],
          XB + 2: [[f"s_cmp_eq_u32 s{sQT}, 0", "s_cbranch_scc1 L_mp0", mfma32(ST0, KLT, QL[0], None), "s_branch L_mp1",
                    "L_mp0:", mfma32(ST0, KLT, QL[0], MD), "L_mp1:"], [mfma32k8(ST0, KHT, QH[0], ST0)]],
          XB + 3: [[], maxtree(19, ST0, True)[:4], maxtree(19, ST0, True)[4:]],
          XB + 4: [cap(set_m_fast, 0, 19, 32)[:5], cap(set_m_fast, 0, 19, 32)[5:]],
          AP: [[f"v_mfma_f32_32x32x8_bf16 {vr(OO[0],16)}, v[254:255], v[254:255], 0"]]}
    assert XB < 46
    EA_ = AP + 10
    ep = cap(epilogue, 0)
    xh[EA_] = [cap(finite, 0)[:4], cap(finite, 0)[4:] + ["s_cmp_lg_u64 vcc, 0", f"s_cselect_b32 s{sBAD}, 1, 0"], ep[:9]]
    xh[EA_ + 1] = [ep[9:21] + [f"s_cmp_lg_u32 s{sBAD}, 0", "s_cbranch_scc1 L_nostA"] + ep[21:] + ["L_nostA:"]]
    assert ep[21].startswith("buffer_store") and ep[8].startswith("v_mul")
    isA = lambda u: AP <= u < AP + 9
    pf = lambda u: 0 if isA(u) else 1
    off = lambda u: (u - AP) * 2560 if isA(u) else ((u if u < AP else u - 9) & 15) * 2560
    cm = lambda u: MF if u == AP else (MD if u == AP + 8 else None)

    def xk(b, u):
        if isA(u):
            return pen(KH[b], u - AP)
        if u == AP + 9:
            return pen(KH[b], 8)
        return []
    E3 = EA_ + 2
    latew = [wo_rnd(0, 0), wo_rnd(0, 8), wo_rnd(0, 16, 4), wo_rnd(1, 40), wo_rnd(1, 48), wo_rnd(1, 56, 4)]
    PC = OPT.get("pc", 68)
    nper = -(-10 // (NT - PC))
    for t in range(NT + 1):
        hooks = []
        if t < 10:
            hooks = [dmaY(t)]
            ks = t - (DEFER - 1)
            if DEFER and 0 <= ks < 8:
                lab = a.uniq("L_ys")
                hooks.append([f"s_cmp_lt_u32 s{sWAVE}, 4", f"s_cbranch_scc1 {lab}", f"s_cmp_eq_u32 s{sM}, 15", f"s_cbranch_scc1 {lab}",
                              f"buffer_store_dwordx4 {vr(160+4*ks,4)}, v{EA[ks>>1]}, {srd(SWS)}, s{sEQ if (ks & 1) == 0 else sEK} offen {HST}", f"{lab}:"])
        if t == 2 and TWO:
            lab = a.uniq("L_x3")
            a(f"s_cmp_ge_u32 s{sWAVE}, 4\ns_cbranch_scc1 {lab}")
            a("s_waitcnt vmcnt(0)\nv_mov_b32 v10, 0\nv_mov_b32 v11, 1\ns_mov_b64 exec, 1\nds_add_u32 v10, v11 offset:12\ns_mov_b64 exec, -1")
            a.label(lab)
        if t == 6 and TWO:
            lds_wait(12, 4)
        if t == 14:
            a("s_waitcnt vmcnt(0) lgkmcnt(0)\ns_barrier")
            stamp(a, 6)
            cstamp(a, 1)
            stamp(a, 14, 1)
            publish(0, 0, 4)
        if t == 14:
            hooks = [[f"v_mov_b32 v{20+i}, -1" for i in range(6)], o_addr(0), o_store()]
        if t == 15:
            hooks = [o_addr(1), o_store()]
        if 16 <= t < 26:
            hooks = [dma3(t - 16)]
        if t == 27:
            poll_issue(0, 0)
        if t == 30:
            poll_check(0, 0)
            a("s_waitcnt vmcnt(0) lgkmcnt(0)\ns_barrier")
            publish(1, 0, 1)
            stamp(a, 7)
            cstamp(a, 3)
            hooks = [qa_loads]
        if 31 <= t < 36:
            hooks = [dmaA((t - 31 + 4) % 5)]
        if 36 <= t < 41:
            k = t - 36
            hooks = [[f"s_add_u32 s{T1}, s{sWOB}, {WP_OFF + 819200 + (60 + 8*k)*1024}",
                      f"buffer_load_dwordx4 {vr(ST[k],4)}, v{VDMA}, {srd(SWS)}, s{T1} offen {HS}"]]
        if t == XB:
            a("s_waitcnt vmcnt(5)\ns_barrier")
        if t == 46:
            poll_issue(1, 0)
        if t == 49:
            poll_check(1, 0)
            a("s_waitcnt lgkmcnt(0)\ns_barrier")
            stamp(a, 8)
            cstamp(a, 5)
        if 49 <= t < 59:
            hooks = [wo_rnd(0, 20 + 8 * (t - 49))]
        if t == E3:
            a("s_barrier")
            stamp(a, 10)
            cstamp(a, 7)
            stamp(a, 3, 2)
        if E3 <= t < E3 + 3:
            hooks = latew[2 * (t - E3):2 * (t - E3) + 2]
        if PC <= t < NT:
            assert not hooks
            hooks = [o_load(0, i) for i in range((t - PC) * nper, min(10, (t - PC + 1) * nper))]
        if t in xh:
            hx = xh[t] + [[]] * (3 - len(xh[t]))
            assert len(hooks) <= 1
            hooks = [hx[0], hx[1], hx[2] + (hooks[0] if hooks else [])]
        P0 = OPT.get("p0", 2)
        if t < P0:
            a("s_nop 0")
        elif t < 14 and OPT.get("pq", 0):
            a(f"s_setprio {3 - min(3, (t - P0) * 4 // (14 - P0))}")
        else:
            t0 = max(x for x in (P0, 14, 30, XB, 49, E3) if x <= t)
            a(f"s_setprio {3 - (t - t0) % 4}")
        if t + 2 in (16, 32, 48):
            c = (t + 2) // 16
            a(f"v_add_u32 v{VK}, {(CH[c] - CH[c - 1]) & 0xffffffff}, v{VK}")
        if t in (16, 32, 48):
            c = t // 16
            a(f"v_add_u32 v{VV}, {(CH[c] - CH[c - 1]) & 0xffffffff}, v{VV}")
        for reg, tt in ((VK, t + 2), (VV, t)):
            if tt == AP:
                a(f"v_add_u32 v{reg}, s{sAD}, v{reg}")
            if tt == AP + 9:
                a(f"v_subrev_u32 v{reg}, s{sAD}, v{reg}")
        if t == 64:
            stamp(a, 9)
            stamp(a, 1, 2)
        tile_step(t, NT, pf, off, off, cm, extra_k=xk, hooks=hooks)
    a("s_setprio 0")
    a(f"s_cmp_lg_u32 s{sBAD}, 0")
    a("s_cbranch_scc1 L_slowA")
    a.label("L_chkB")
    a("s_nop 8")
    finite(1)
    a("s_nop 4")
    a("s_cbranch_vccnz L_slowB")
    a.label("L_epiB")
    epilogue(1)
    stamp(a, 11)
    stamp(a, 7, 2)

    GA = [208, 148]
    GW = lambda buf, ct: 72 + buf * 20 + 4 * ct
    FT = 168
    retries = []

    def g3reads(i):
        return [f"ds_read_b128 {vr(GW(i%3,ct),4)}, v{VW3 if i < 6 else 12} offset:{((i % 6)*10+ct)*1024}" for ct in range(5)]

    def part_out(p):
        a(f"v_add_u32 v10, {SCR[p]}, v{VRED}")
        for ct in range(5):
            a(f"ds_write_b128 v10, {vr(GA[p]+4*ct,4)} offset:{ct*1024}")

    def finish(p, extra=0):
        a(f"v_add_u32 v10, {SCR[p]}, v{VRED}")
        for ct in range(5):
            a(f"ds_read_b128 {vr(FT+4*ct,4)}, v10 offset:{ct*1024}")
        a(f"""
        s_lshl_b32 s{T0}, s{sHEAD}, 2
        s_add_u32 s{T0}, s{T0}, s{sCW}
        s_mul_i32 s{T0}, s{T0}, {16*2560}
        s_mul_i32 s{T1}, s{sQB}, 160
        s_add_u32 s{T0}, s{T0}, s{T1}
        s_add_u32 s{T0}, s{T0}, {p*1280}
        """)
        for g, (lo, hi) in enumerate(((0, 8), (8, 16), (16, 20))):
            a(f"s_waitcnt lgkmcnt({[3, 1, 0][g]})")
            for i in range(lo, hi):
                a(f"v_add_f32 v{FT+i}, v{FT+i}, v{GA[p]+i}")
            for i in range(lo // 2, hi // 2):
                a(f"v_cvt_pk_bf16_f32 v{FT+20+i}, v{FT+2*i}, v{FT+2*i+1}")
            a(f"buffer_store_dwordx{4 if g < 2 else 2} {vr(FT+20+4*g, 4 if g < 2 else 2)}, v{VOUT if g < 2 else VOUT2}, {srd(SOUT)}, s{T0} offen offset:{64*g} {OUTP if (p == 0 or OPT.get('outb', 0)) else ''}")

    def o_check(p, i, n):
        d = OFB[p] + 4 * i
        a(f"""
        s_waitcnt vmcnt({n})
        L_gw{p}_{i}:
        v_max3_u32 v10, v{d}, v{d+1}, v{d+2}
        v_max_u32 v10, v10, v{d+3}
        v_cmp_eq_u32 vcc, -1, v10
        s_cbranch_vccnz L_gr{p}_{i}
        L_gc{p}_{i}:
        """)
        retries.append((p, i))

    a(f"s_mov_b32 s{sCNT}, 0x20000")
    F, L = 0, 1
    OI = OPT.get("oi", 9)
    a(f"v_add_u32 v12, {60*K}, v{VW3}")
    a("s_waitcnt vmcnt(12)")
    a("s_barrier")
    stamp(a, 8, 2)
    a(g3reads(0))
    a(g3reads(1))
    young = 2
    nd = no = 0
    for i in range(10):
        o_check(F, i, 9 - i + young)
        a(f"s_waitcnt lgkmcnt({5 if i < 9 else 0})")
        rs = g3reads(i + 2) if i < 8 else []
        for ct in range(5):
            a(mfma16(GA[F] + 4 * ct, GW(i % 3, ct), OFB[F] + 4 * i, None if i == 0 else GA[F] + 4 * ct))
            a(rs[ct:ct + 1])
        if nd < 5:
            a(wo_rnd(L, 8 * nd))
            nd += 1; young += 1
        if i >= OI:
            n = -(-10 // (10 - OI))
            for k in range(no, min(10, no + n)):
                a(o_load(L, k)); young += 1
            no = min(10, no + n)
    assert OI >= 5
    stamp(a, 2, 2)
    if OI <= 10:
        for k in range(no, 10):
            a(o_load(L, k))
    a(f"""
    v_mov_b32 v12, v{VW3}
    v_add_u32 v{VW3}, {(WOL[L] - WOL[F]) & 0xffffffff}, v{VW3}
    s_add_u32 s{T0}, s{sW1K}, {WOL[L] + 60*K}
    v_add_u32 v11, s{T0}, v{VDMA}
    s_waitcnt vmcnt({10 if OI <= 10 else 0})
    s_barrier
    """)
    assert WOL[F] == WOL[L] + 60 * K
    stamp(a, 9, 2)
    if OI > 10:
        for k in range(10):
            a(o_load(L, k))
    for k in range(5):
        a(f"ds_write_b128 v11, {vr(ST[k],4)} offset:{k*8192}")
    a(f"s_cmp_lt_u32 s{sWAVE}, 4\ns_cbranch_scc1 L_pb1")
    part_out(F)
    a.label("L_pb1")
    stamp(a, 12)
    stamp(a, 13)
    stamp(a, 12, 2)
    a(g3reads(0))
    a(g3reads(1))
    R2 = OPT.get("r2", 1)
    for i in range(10):
        d = OFB[L] + 4 * i
        if i == R2:
            a("s_barrier")
            a(f"s_cmp_ge_u32 s{sWAVE}, 4\ns_cbranch_scc1 L_pb2")
            finish(F, extra=0)
            a.label("L_pb2")
        o_check(L, i, 9 - i)
        a(f"s_waitcnt lgkmcnt({5 if i < 9 else 0})")
        rs = g3reads(i + 2) if i < 8 else []
        for ct in range(5):
            a(mfma16(GA[L] + 4 * ct, GW(i % 3, ct), d, None if i == 0 else GA[L] + 4 * ct))
            a(rs[ct:ct + 1])
    assert 1 <= R2 <= 4
    stamp(a, 13, 2)
    a(f"s_cmp_lt_u32 s{sWAVE}, 4\ns_cbranch_scc1 L_fin1")
    a("s_nop 2")
    part_out(L)
    a("s_waitcnt lgkmcnt(0)\ns_barrier\ns_branch L_fin2")
    a.label("L_fin1")
    a("s_barrier")
    finish(L)
    a.label("L_fin2")
    lab = only_wave(4)
    a(f"""
    s_cmp_lg_u32 s2, 0
    s_cbranch_scc1 {lab}
    v_mov_b32 v1, s{sTAG}
    s_mov_b32 s{T4}, {EP_OFF}
    s_mov_b64 exec, 1
    buffer_store_dword v1, off, {srd(SWS)}, s{T4} sc1
    s_mov_b64 exec, -1
    """)
    a.label(lab)
    if STAMPS:
        a("s_waitcnt vmcnt(0)")
        stamp(a, 14)
        stamp(a, 14, 2)
        a("s_waitcnt lgkmcnt(0)")
        a(f"""
        s_lshl_b32 s{T0}, s2, 4
        s_add_u32 s{T0}, s{T0}, s{sWAVE}
        s_lshl_b32 s{T0}, s{T0}, 7
        s_add_u32 s{T0}, s{T0}, {STAMP_OFF}
        s_mov_b64 exec, 1
        """)
        for i in range(15):
            a(f"v_mov_b32 v1, s{SB+2*i}")
            a(f"buffer_store_dword v1, off, {srd(SWS)}, s{T0} offset:{4*i}")
    if OPT.get("pad"):
        if "padwg" in OPT:
            a(f"s_cmp_lg_u32 s2, {OPT['padwg']}\ns_cbranch_scc1 L_done")
            a(f"s_cmp_lg_u32 s{sWAVE}, 0\ns_cbranch_scc1 L_done")
        a(f"""
        L_pad:
        s_memrealtime s[{T0}:{T1}]
        s_waitcnt lgkmcnt(0)
        s_sub_u32 s{T0}, s{T0}, s{SB + 2*OPT.get('padst', 0)}
        s_cmp_lt_u32 s{T0}, {OPT["pad"]}
        s_cbranch_scc1 L_pad
        """)
    a.label("L_done")
    a("s_endpgm")

    for p, i in retries:
        a.label(f"L_gr{p}_{i}")
        a(f"""
        s_sub_u32 s{sCNT}, s{sCNT}, 1
        s_cmp_eq_u32 s{sCNT}, 0
        s_cbranch_scc1 L_gq{p}_{i}
        s_waitcnt vmcnt(0)
        s_sleep 1
        """)
        for k in range(i, 10):
            a(o_load(p, k))
        a(f"s_waitcnt vmcnt({9 - i if p == L else 0})")
        a(f"s_branch L_gw{p}_{i}")
        a.label(f"L_gq{p}_{i}")
        a(f"s_mov_b32 s{sCNT}, 1\ns_branch L_gc{p}_{i}")

    a.label("L_idle")
    a(f"""
    s_cmp_ge_u32 s{sTB}, 8
    s_cselect_b32 s{SX[0]}, s{SWO[1]}, s{SWO[0]}
    s_cselect_b32 s{SX[0]+1}, s{SWO[1]+1}, s{SWO[0]+1}
    s_mov_b32 s{SX[0]+2}, {WO_BYTES}
    """)
    a(late)
    G3D = [128, 129, 130, 131, 132]
    for i in range(5):
        a([f"v_add_u32 v10, {64*i}, v0",
           "v_mul_u32_u24 v11, 6554, v10",
           "v_lshrrev_b32 v11, 16, v11",
           "v_mul_u32_u24 v12, 10, v11",
           "v_sub_u32 v12, v10, v12",
           "v_mul_u32_u24 v11, 1280, v11",
           f"v_lshl_add_u32 v{G3D[i]}, v12, 4, v11"])
    a(f"""
    s_and_b32 s{T0}, s{sTB}, 7
    s_mul_i32 s{T0}, s{T0}, 160
    s_mul_i32 s{T1}, s{sWAVE}, {32*1280}
    s_add_u32 s{T0}, s{T0}, s{T1}
    s_mul_i32 s{T1}, s{sWAVE}, 5120
    """)
    for rnd in range(3):
        lab = a.uniq("L_id")
        if rnd == 2:
            a(f"s_cmp_ge_u32 s{sWAVE}, 4\ns_cbranch_scc1 {lab}")
        a(f"s_add_u32 s{T2}, s{T0}, {rnd*256*1280}")
        for i in range(5):
            a(f"s_add_u32 m0, s{T1}, {K + rnd*8*5120 + i*1024}\ns_nop 0")
            a(f"buffer_load_dwordx4 v{G3D[i]}, {srd(SX[0])}, s{T2} offen lds")
        a.label(lab)
    a(f"""
    v_lshrrev_b32 v10, 5, v0
    v_bfe_u32 v11, v0, 4, 1
    v_bfe_u32 v12, v0, 2, 2
    v_and_b32 v13, 3, v0
    v_lshlrev_b32 v136, 3, v13
    v_lshlrev_b32 v13, 4, v13
    v_add_u32 v13, {K}, v13
    v_mul_u32_u24 v14, 20, v10
    v_lshl_add_u32 v14, v11, 2, v14
    v_add_u32 v14, v14, v12
    v_mul_u32_u24 v14, 160, v14
    v_add_u32 v133, v14, v13
    v_mul_u32_u24 v14, 80, v10
    v_mul_u32_u24 v11, 20, v11
    v_add3_u32 v14, v14, v11, v12
    v_add_u32 v14, 16, v14
    v_mul_u32_u24 v14, 160, v14
    v_add_u32 v134, v14, v13
    s_mul_i32 s{T0}, s{sWAVE}, 6400
    v_add_u32 v133, s{T0}, v133
    s_mul_i32 s{T0}, s{sWAVE}, 25600
    v_add_u32 v134, s{T0}, v134
    v_lshlrev_b32 v135, 4, v0
    v_sub_u32 v137, v133, v136
    v_sub_u32 v138, v134, v136
    v_mov_b32 v10, 0
    v_mov_b32 v11, 0
    v_mov_b32 v12, 4
    ds_write_b64 v10, v[10:11]
    ds_write_b32 v10, v12 offset:8
    ds_write_b32 v10, v10 offset:12
    s_mul_i32 s{T0}, s{sTB}, 102400
    s_add_u32 s{T0}, s{T0}, {WP_OFF}
    s_mul_i32 s{T1}, s{sWAVE}, 10240
    s_add_u32 s{T1}, s{T1}, s{T0}              ; kh=0, i=w
    s_lshr_b32 s{T2}, s{sWAVE}, 1
    s_mul_i32 s{T2}, s{T2}, 5120
    s_and_b32 s{T3}, s{sWAVE}, 1
    s_mul_i32 s{T3}, s{T3}, 10240
    s_add_u32 s{T2}, s{T2}, s{T3}
    s_add_u32 s{T2}, s{T2}, s{T0}
    s_add_u32 s{T2}, s{T2}, {8*10240}
    s_waitcnt vmcnt(0) lgkmcnt(0)
    s_barrier
    """)
    for rnd in range(3):
        lab = a.uniq("L_id")
        if rnd == 2:
            a(f"s_cmp_ge_u32 s{sWAVE}, 4\ns_cbranch_scc1 {lab}")
        base = 64 + rnd * 20
        for ct in range(5):
            for rd in range(2):
                if rnd < 2:
                    a(f"ds_read_b64_tr_b16 {vr(base+4*ct+2*rd,2)}, v{133 if ct < 4 else 137} offset:{rnd*51200 + rd*1280 + (ct>>1)*64 + (ct&1)*8}")
                else:
                    a(f"ds_read_b64_tr_b16 {vr(base+4*ct+2*rd,2)}, v{134 if ct < 4 else 138} offset:{rd*6400 + (ct>>1)*64 + (ct&1)*8}")
        a("s_waitcnt lgkmcnt(0)")
        if rnd == 1:
            a(f"s_add_u32 s{T1}, s{T1}, 5120")
        sreg = T1 if rnd < 2 else T2
        for ct in range(5):
            if ct == 4:
                a(f"s_add_u32 s{T3}, s{sreg}, 4096")
                a(f"buffer_store_dwordx4 {vr(base+4*ct,4)}, v135, {srd(SWS)}, s{T3} offen {HST}")
            else:
                a(f"buffer_store_dwordx4 {vr(base+4*ct,4)}, v135, {srd(SWS)}, s{sreg} offen offset:{ct*1024} {HST}")
        a.label(lab)
    a("s_waitcnt vmcnt(0)\ns_barrier")
    publish(0, 0, 1)
    publish(0, 1, 2)
    a(f"v_add_u32 v{VPUB}, 4, v{VPUB}")
    publish(0, 0, 3)
    publish(0, 1, 4)
    poll_issue(0, 1)
    poll_check(0, 1, sleep=OPT.get('isl', 32))
    a("s_barrier")
    a(f"s_cmp_ge_u32 s{sWAVE}, 4")
    a("s_cbranch_scc1 L_attn_setup")
    a("s_branch L_x1")

    def gk():
        return f"""
        buffer_load_dwordx2 {vr(KL[0],2)}, v{VK}, {srd(SWS)}, s{T2} offen {HS}
        buffer_load_dwordx2 {vr(KL[0]+2,2)}, v{VK}, {srd(SWS)}, s{T2} offen offset:512 {HS}
        s_mov_b64 exec, s[{sLO}:{sLO+1}]
        buffer_load_dwordx2 {vr(KH[0],2)}, v{VK}, {srd(SWS)}, s{T2} offen offset:1024 {HS}
        """

    def gv():
        return f"""
        s_mov_b64 exec, s[{sVM}:{sVM+1}]
        buffer_load_dwordx4 {vr(VF[0],4)}, v{VV}, {srd(SWS)}, s{T2} offen {HS}
        buffer_load_dwordx4 {vr(VF[0]+4,4)}, v{VV}, {srd(SWS)}, s{T2} offen offset:640 {HS}
        """
    assert CH[3] == 0

    def slow_tile(p, second, C):
        a(gk())
        if second:
            a(gv())
        a("s_mov_b64 exec, -1\ns_waitcnt vmcnt(0)")
        a(qk(S[0], 0, p, C))
        a("s_nop 15")
        if second:
            a(exps(S[0]))
            a("s_nop 1")
            a(pv(S[0], 0, OO[p]))
        else:
            a(maxtree(19, S[0], False))

    a.label("L_slowA")
    a("s_nop 15")
    MF2 = S[1]
    for i in range(16):
        a(f"v_sub_f32 v{MF2+i}, {NEGBIG}, v{MD+i}")
    reset_m(0)
    a("v_mov_b32 v19, 0xff800000")
    for second in (0, 1):
        for u in range(9):
            a(pen(KH[0], u))
            a(f"""
            s_add_i32 s{T2}, s{sQT}, {u - 8}
            s_max_i32 s{T2}, s{T2}, 0
            s_mul_i32 s{T2}, s{T2}, 2560
            s_add_u32 s{T2}, s{T2}, s{sKVB}
            """)
            slow_tile(0, second, MF2 if u == 0 else (MD if u == 8 else None))
        if not second:
            set_m(0, 19)
            zero_o(0)
    a("s_nop 15")
    epilogue(0)
    a("s_branch L_chkB")

    a.label("L_slowB")
    reset_m(1)
    a("v_mov_b32 v19, 0xff800000")
    a(f"s_add_u32 s{T3}, s{sKVB}, {33*163840}")
    for second in (0, 1):
        a(f"s_sub_u32 s{T2}, s{T3}, 163840")
        a.label(f"L_slow{second}")
        slow_tile(1, second, None)
        a(f"""
        s_add_u32 s{T2}, s{T2}, 2560
        s_cmp_lt_u32 s{T2}, s{T3}
        s_cbranch_scc1 L_slow{second}
        """)
        if not second:
            set_m(1, 19)
            zero_o(1)
    a("s_nop 15\ns_branch L_epiB")


def main(out):
    global HST, HS, OUTP
    OUTP = ["", "nt", "sc1", "sc0 sc1"][OPT.get("outp", 0)]
    HST = ["sc1", "", "sc0 sc1", "nt", "sc1 nt"][OPT.get("st", 0)]
    HS = ["sc1", ""][OPT.get("ld", 0)]
    a = Asm()
    hdr = open(f"cdna_kernels/{NAME}.s.ref").read().split("\n")
    keep = [l for l in hdr if l.startswith(";") and "@launch" not in l]
    for l in keep:
        a.raw(l)
    a.raw(f"; @launch grid=(256,1,1) block=(512,1,1) lds={LDS_BYTES}")
    a.raw('.amdgcn_target "amdgcn-amd-amdhsa--gfx950"')
    a.raw(".text")
    gen(a)
    a.raw('.section .rodata,"a"')
    a.raw(".p2align 6")
    a.raw(f""".amdhsa_kernel {KNAME}
  .amdhsa_next_free_vgpr 256
  .amdhsa_next_free_sgpr {102 if STAMPS else 72}
  .amdhsa_accum_offset 256
  .amdhsa_group_segment_fixed_size 0
  .amdhsa_kernarg_size 72
  .amdhsa_user_sgpr_count 2
  .amdhsa_user_sgpr_kernarg_segment_ptr 1
  .amdhsa_system_sgpr_workgroup_id_x 1
.end_amdhsa_kernel""")
    open(out, "w").write(a.text())


if __name__ == "__main__":
    if "--stamps" in sys.argv:
        STAMPS = True
        sys.argv.remove("--stamps")
    for x in list(sys.argv):
        if x.startswith("-D"):
            k, _, v = x[2:].partition("=")
            OPT[k] = int(v) if v else 1
            sys.argv.remove(x)
    main(sys.argv[1] if len(sys.argv) > 1 else f"cdna_kernels/{NAME}.s")
```

```python
import sys, struct, re

NAME = "concat_heads__sliding_block__softmax_full_mha__prompt"
KNAME = NAME + "_kernel"

QW_OFF = 0x000000
KV_OFF = 0x500000
OW_OFF = 0xF00000
FL_OFF = 0x1400000
EP_OFF = 0x1409000
WP_OFF = 0x1500000
WS_USED = 0x1700000
X_BYTES = 2048 * 640 * 2
WQKV_BYTES = 640 * 1920 * 2
WO_BYTES = 640 * 640 * 2
OUT_BYTES = 2048 * 1280 * 2
SRD3 = 0x00020000
LDS_BYTES = 163840
K = 1024

STAMPS = False
STAMP_OFF = 0x2000000
SB = 72
OPT = {}


def f32bits(x):
    return struct.unpack("<I", struct.pack("<f", x))[0]


NEGBIG = f32bits(-1e30)
CSCALE = f32bits((20 ** -0.5) * 1.4426950408889634)


class Asm:
    def __init__(self):
        self.l = []
        self.n = 0

    def __call__(self, s):
        if isinstance(s, (list, tuple)):
            for x in s:
                self(x)
            return
        for line in s.strip("\n").split("\n"):
            line = line.strip()
            if line:
                self.l.append(("" if line.endswith(":") else "    ") + line)

    def label(self, s):
        self.l.append(s + ":")

    def raw(self, s):
        self.l.append(s)

    def uniq(self, p):
        self.n += 1
        return f"{p}_{self.n}"

    def text(self):
        return "\n".join(self.l) + "\n"


def vr(a, n):
    return f"v[{a}:{a + n - 1}]"


def mfma32(d, a_, b_, c):
    cs = vr(c, 16) if c is not None else "0"
    return f"v_mfma_f32_32x32x16_bf16 {vr(d,16)}, {vr(a_,4)}, {vr(b_,4)}, {cs}"


def mfma32k8(d, a_, b_, c):
    return f"v_mfma_f32_32x32x8_bf16 {vr(d,16)}, {vr(a_,2)}, {vr(b_,2)}, {vr(c,16)}"


def mfma16(d, a_, b_, c):
    cs = vr(c, 4) if c is not None else "0"
    return f"v_mfma_f32_16x16x32_bf16 {vr(d,4)}, {vr(a_,4)}, {vr(b_,4)}, {cs}"


def cstamp(a, i):
    if STAMPS and OPT.get("sm", 0) == 3:
        a(f"s_memrealtime s[{SB+2*i}:{SB+2*i+1}]")
        a(f"s_memtime s[{SB+2*i+2}:{SB+2*i+3}]")


def stamp(a, i, mode=0):
    if STAMPS and (i == 0 or OPT.get("sm", 0) == mode):
        a(f"s_memrealtime s[{SB+2*i}:{SB+2*i+1}]")


SX = [4, 12]
SW = [8, 16]
SWS, SDBG = 20, 24
SWO = [28, 32]
SOUT = 36
sWAVE, sCW, sTB, sM, sKS, sXB, sWB, sLP = 40, 41, 42, 43, 44, 45, 46, 47
T0, T1, T2, T3, T4, T5 = 48, 49, 50, 51, 52, 53
sEQ, sEK = 54, 55
sHEAD, sQB, sQT, sW1K = 56, 57, 58, 59
sVM, sLO = 60, 62
sCS, sONE, sKVB, sXCD, sJ, sROT = 64, 65, 66, 67, 68, 69
sCNT = 70
sKVS = 71
sTAG = 3
sOA1, sOA2, sOB1, sOB2, sWOB, sQA, sAS, sAD = range(28, 36)
sTINY = 46
sBAD = 47


def srd(n):
    return f"s[{n}:{n+3}]"


HS = "sc1"
HST = "sc1"
OUTP = ""


P4 = {n: [n + 4] for n in range(10)}
SCHEDS = {
    0: ([2, 3], {0: [4], 1: [5], 2: [6], 3: [7], 4: [8], 5: [9], 6: [10], 7: [11], 8: [12], 9: [13],
                 10: [14], 11: [15, "S"], 13: ["P", 16, 17], 15: [18], 16: [19, "Z"], 17: []}),
    1: ([], {0: [2, 3], 1: [4], 2: [5], 3: [6], 4: [7], 5: [8], 6: [9], 7: [10], 8: [11], 9: [12],
             10: [13], 11: [14, "S", 15], 13: [16, 17], 15: ["P", 18], 16: [19, "Z"], 17: []}),
    2: ([], {0: [2, 3], 1: [4], 2: [5], 3: [6], 4: [7], 5: [8], 6: [9], 7: [10], 8: [11], 9: [12],
             10: [13, 14], 12: ["S", 15, 16], 14: ["P", 17, 18], 16: [19, "Z"], 18: []}),
    3: ([], {0: [2], 1: [3], 2: [4], 3: [5], 4: [6], 5: [7], 6: [8], 7: [9], 8: [10], 9: [11],
             10: [12, 13], 12: [14, "S", 15], 14: [16, 17, 18], 16: ["P", 19, "Z"], 18: []}),
    4: ([], {0: [2, 3], 1: [4, 5], 3: [6, 7], 5: [8, 9], 7: [10, 11], 9: [12],
             10: [13, 14], 12: ["S", 15, 16], 14: ["P", 17, 18], 16: [19, "Z"], 18: []}),
    6: ([2, 3], {**P4, 10: [14], 11: [15], 12: ["F", "S", 16], 14: [17, 18], 15: [19], 16: ["P", "Z"], 17: []}),
    7: ([2, 3], {**P4, 10: [14], 11: ["F", "S", 15], 13: [16, 17], 15: ["P", 18, 19], 16: ["Z"], 17: []}),
    8: ([2, 3], {**P4, 10: [14], 11: ["F", "S", 15], 13: [16, 17], 14: [18], 15: ["P", 19], 16: ["Z"], 17: []}),
    9: ([2, 3], {**P4, 10: ["S", 14], 12: [15, 16], 14: ["P", 17, 18], 15: [19], 16: ["Z"], 17: []}),
    10: ([2, 3], {**P4, 10: [14], 11: [15], 12: ["F", "S", 16], 14: [17, 18], 15: ["P", 19], 16: ["Z"], 17: []}),
    5: ([], {0: [2, 3], 1: [4], 2: [5], 3: [6], 4: [7], 5: [8], 6: [9], 7: [10, 11], 8: [12], 9: [13],
             10: [14], 11: [15, "S"], 13: ["P", 16, 17], 15: [18], 16: [19, "Z"], 17: []}),
}


def plan():
    pre, sch = SCHEDS[OPT.get("sch", 0)]
    ns = sorted(sch)
    q = {"X": [0], "Y": [1] + pre}
    waits = {}
    done = set()
    assert 0 in sch and 10 in sch and ns[-1] >= 17
    for k, n in enumerate(ns):
        need = set(range(n, ns[k + 1] if k + 1 < len(ns) else 20))
        if "P" in sch[n]:
            need.add("S")
        assert need <= set(q["X"]) | set(q["Y"]), (n, need)
        if "F" in sch[n]:
            need |= set(q["X"])
        need -= done
        for g in "XY":
            idx = [i for i, x in enumerate(q[g]) if x in need]
            if idx:
                done |= set(q[g][:max(idx) + 1])
            waits[g, n] = 8 * (len(q[g]) - 1 - max(idx)) if idx else None
            if "P" in sch[n] and g == "X" and OPT.get("pz", 0):
                waits[g, n] = 0
        for x in sch[n]:
            if isinstance(x, int):
                assert x - 5 <= n - 1, (n, x)
            if x == "Z":
                assert n >= 16 and k + 1 < len(ns)
            if x not in ("P", "Z", "F"):
                q["Y" if n < 10 else "X"].append(x)
    st = [x for x in q["X"] + q["Y"] if isinstance(x, int)]
    assert sorted(st) == list(range(20))
    return pre, sch, ns, waits, min(x for x in q["X"][1:] if isinstance(x, int))


def gen(a):
    PRE, SCH, NS, WAITS, XFIRST = plan()
    a.raw(f".globl {KNAME}\n.p2align 8\n.type {KNAME},@function")
    a.label(KNAME)
    a(f"""
    s_cmp_ge_u32 s2, 256
    s_cbranch_scc1 L_done
    """)
    stamp(a, 0)
    a(f"""
    s_load_dwordx2 s[{SX[1]}:{SX[1]+1}], s[0:1], 24
    s_load_dwordx2 s[{SW[1]}:{SW[1]+1}], s[0:1], 32
    s_load_dwordx2 s[{SX[0]}:{SX[0]+1}], s[0:1], 0
    s_load_dwordx2 s[{SW[0]}:{SW[0]+1}], s[0:1], 8
    s_load_dwordx2 s[{SWO[0]}:{SWO[0]+1}], s[0:1], 16
    s_load_dwordx2 s[{SWO[1]}:{SWO[1]+1}], s[0:1], 40
    s_load_dwordx2 s[{SOUT}:{SOUT+1}], s[0:1], 48
    s_load_dwordx2 s[{SWS}:{SWS+1}], s[0:1], 64
    v_lshrrev_b32 v1, 6, v0
    v_and_b32 v0, 63, v0
    s_and_b32 s{sXCD}, s2, 7
    v_readfirstlane_b32 s{sWAVE}, v1
    s_lshr_b32 s{sJ}, s2, 3
    s_and_b32 s{T0}, s{sXCD}, 1
    s_lshl_b32 s{T0}, s{T0}, 3
    s_and_b32 s{T1}, s{sJ}, 7
    s_add_u32 s{sTB}, s{T0}, s{T1}
    s_lshr_b32 s{T0}, s{sXCD}, 1
    s_lshl_b32 s{T0}, s{T0}, 2
    s_lshr_b32 s{T2}, s{sJ}, 3
    s_add_u32 s{sM}, s{T0}, s{T2}
    """)
    if OPT.get("bal", 1):
        a(f"""
        s_lshr_b32 s{T0}, s{sXCD}, 1
        s_mul_i32 s{T0}, s{T0}, 30
        s_add_u32 s{T0}, s{T0}, s{sJ}
        s_and_b32 s{T1}, s{T0}, 7
        s_lshr_b32 s{T2}, s{T0}, 3
        s_and_b32 s{T0}, s{sXCD}, 1
        s_lshl_b32 s{T0}, s{T0}, 3
        s_add_u32 s{sTB}, s{T0}, s{T1}
        s_lshl_b32 s{T0}, s{sXCD}, 1
        s_add_u32 s{T0}, s{T0}, s{sJ}
        s_sub_u32 s{T0}, s{T0}, 30
        s_cmp_ge_u32 s{sJ}, 30
        s_cselect_b32 s{sM}, 15, s{T2}
        s_cselect_b32 s{sTB}, s{T0}, s{sTB}
        """)
    if OPT.get("ipf", 0):
        a(f"""
        s_cmp_lg_u32 s{sM}, 15
        s_cbranch_scc1 L_noipf
        s_getpc_b64 s[{T4}:{T5}]
        v_lshl_add_u32 v10, v1, 6, v0
        v_min_u32 v10, (L_code_end - L_noipf) / 128 - 1, v10
        v_lshlrev_b32 v10, 7, v10
        v_mov_b32 v11, s{T5}
        v_add_co_u32 v10, vcc, s{T4}, v10
        s_nop 1
        v_addc_co_u32 v11, vcc, 0, v11, vcc
        global_load_dword v200, v[10:11], off
        L_noipf:
        """)
    rm = OPT.get("rot", 2)
    if rm == 0:
        a(f"s_mov_b32 s{sROT}, 0")
    elif rm == 1:
        a(f"""
        s_mul_i32 s{T2}, s{T2}, 3
        s_add_u32 s{sROT}, s{T1}, s{T2}
        s_cmp_ge_u32 s{sROT}, 10
        s_cselect_b32 s{T0}, 10, 0
        s_sub_u32 s{sROT}, s{sROT}, s{T0}
        """)
    elif rm == 2:
        a(f"""
        s_add_u32 s{sROT}, s{T1}, s{T2}
        s_and_b32 s{sROT}, s{sROT}, 1
        s_mul_i32 s{sROT}, s{sROT}, 5
        """)
    else:
        a(f"""
        s_add_u32 s{sROT}, s{T1}, s{T2}
        s_and_b32 s{sROT}, s{sROT}, 3
        s_mul_i32 s{sROT}, s{sROT}, 5
        s_lshr_b32 s{sROT}, s{sROT}, 1
        """)
    a(f"""
    s_and_b32 s{sCW}, s{sWAVE}, 3
    """)
    for n, size in ((SX[0], X_BYTES), (SW[0], WQKV_BYTES), (SX[1], X_BYTES), (SW[1], WQKV_BYTES),
                    (SOUT, OUT_BYTES), (SWS, 0x4000000 if STAMPS else WS_USED)):
        a(f"s_mov_b32 s{n+2}, {size}\ns_mov_b32 s{n+3}, {SRD3}")
    a(f"""
    v_lshrrev_b32 v6, 3, v0
    v_mul_u32_u24 v2, 1280, v6
    v_lshrrev_b32 v7, 4, v0
    v_and_b32 v8, 7, v0
    v_xor_b32 v8, v8, v7
    v_lshl_add_u32 v2, v8, 4, v2
    v_xor_b32 v3, 64, v2
    v_mul_u32_u24 v9, 3840, v7
    v_and_b32 v8, 15, v0
    v_lshlrev_b32 v10, 1, v7
    v_xor_b32 v8, v8, v10
    """)
    a("""
    v_lshl_add_u32 v4, v8, 4, v9
    v_xor_b32 v5, 128, v4
    """)
    a(f"""
    s_lshl_b32 s{T0}, s{sTB}, 7
    s_lshl_b32 s{T1}, s{sCW}, 5
    s_add_u32 s{T0}, s{T0}, s{T1}
    s_mul_i32 s{sXB}, s{T0}, 1280
    s_mul_i32 s{sWB}, s{sCW}, {16*3840}
    s_lshl_b32 s{T0}, s{sM}, 8
    s_add_u32 s{sWB}, s{sWB}, s{T0}
    s_lshl_b32 s{sLP}, s{sCW}, 12
    s_lshr_b32 s{T3}, s{sWAVE}, 2              ; group
    s_add_u32 s{sKS}, s{sROT}, s{T3}
    s_cmp_eq_u32 s{sKS}, 10
    s_cselect_b32 s{sKS}, 0, s{sKS}
    s_lshl_b32 s{T3}, s{T3}, 15
    s_add_u32 s{T3}, s{T3}, s{sLP}
    """)

    def dma_stage(n, sLP=sLP):
        p = 1 - n // 10
        slot = (n % 5) * 32 * K
        out = [f"s_lshl_b32 s{T0}, s{sKS}, 7",
               f"s_add_u32 s{T0}, s{T0}, s{sXB}",
               f"s_mul_i32 s{T1}, s{sKS}, {64*3840}",
               f"s_add_u32 s{T1}, s{T1}, s{sWB}"]
        for i in range(4):
            out += [f"s_add_u32 m0, s{sLP}, {slot + i*1024}",
                    f"s_add_u32 s{T2}, s{T0}, {i*8*1280}",
                    f"buffer_load_dwordx4 v{2 + (i & 1)}, {srd(SX[p])}, s{T2} offen {'nt ' if OPT.get('nt', 0) & 1 else ''}lds",
                    f"s_add_u32 m0, s{sLP}, {slot + 16*K + i*1024}",
                    f"s_add_u32 s{T2}, s{T1}, {i*4*3840}",
                    f"buffer_load_dwordx4 v{4 + (i >> 1)}, {srd(SW[p])}, s{T2} offen {'nt ' if OPT.get('nt', 0) & 2 else ''}lds"]
        out += [f"s_add_u32 s{sKS}, s{sKS}, 1",
                f"s_cmp_eq_u32 s{sKS}, 10",
                f"s_cselect_b32 s{sKS}, 0, s{sKS}"]
        return out

    a("s_waitcnt lgkmcnt(0)")
    stamp(a, 1, 4)
    a(f"s_cmp_eq_u32 s{sM}, 15")
    a("s_cbranch_scc1 L_setup1")
    a(dma_stage(0, T3))
    stamp(a, 2, 4)
    a(f"s_cmp_lt_u32 s{sWAVE}, 4")
    a("s_cbranch_scc1 L_setup1")
    for n in PRE:
        a(dma_stage(n))
    a.label("L_setup1")
    stamp(a, 3, 4)
    a(f"""
    s_lshl_b32 s{T0}, s{sXCD}, 2
    s_and_b32 s{T1}, s{sJ}, 3
    s_add_u32 s{sHEAD}, s{T0}, s{T1}
    s_lshr_b32 s{sQB}, s{sJ}, 2
    s_add_u32 s{T0}, s{SWS}, {EP_OFF}
    s_addc_u32 s{T1}, s{SWS+1}, 0
    s_load_dword s{sTAG}, s[{T0}:{T1}], 0
    """)
    marks = [len(a.l)]
    S = [64, 80, 96, 112]
    O = 208
    OO = [48, 208]
    KL, KH = [128, 132], [240, 242]
    QL, QH = [136, 142], [140, 146]
    VF = [224, 232]
    MD, MF = 32, 48
    VK, VV, VIDX, VDMA, VQ, VOF, VW3, VOUT, VRED = 244, 245, 246, 247, 248, 249, 250, 251, 252
    VOUT2 = 253
    QB_OFF = 1 * K
    CH = [11 * K, 51 * K, 91 * K, 0]
    A_OFF = 40 * K
    WOL = [60 * K, 0]
    SCR = [130 * K, 110 * K]
    OFB = [148, 32]
    ST = [188, 192, 196, 28, 4]

    a(f"""
    v_lshlrev_b32 v{VDMA}, 4, v0
    v_lshrrev_b32 v11, 5, v0               ; h
    v_and_b32 v12, 31, v0                  ; i
    v_and_b32 v13, 3, v12
    v_lshrrev_b32 v14, 3, v12
    v_lshl_add_u32 v13, v14, 2, v13        ; kappa & 15
    v_bfe_u32 v14, v12, 2, 1               ; kappa >> 4
    v_lshlrev_b32 v15, 4, v13
    v_lshl_add_u32 v16, v14, 3, v15
    v_lshl_add_u32 v16, v11, 8, v16
    v_add_u32 v{VK}, {CH[0]}, v16
    v_mul_u32_u24 v16, 20, v11
    v_add_u32 v16, v16, v12
    v_lshlrev_b32 v16, 4, v16
    v_add_u32 v{VV}, {CH[0] + 1280}, v16
    v_and_b32 v15, 15, v12
    v_lshlrev_b32 v15, 4, v15
    v_lshrrev_b32 v16, 4, v12
    v_lshl_add_u32 v15, v16, 3, v15        ; (q&15)*16 + (q>>4)*8
    v_lshl_add_u32 v{VQ}, v11, 8, v15
    v_mov_b32 v{VIDX}, 0xdddddddd
    v_mov_b32 v254, 0
    v_mov_b32 v255, 0
    v_and_b32 v17, 0x1b, v12
    v_cmp_eq_u32 vcc, 24, v17
    v_mov_b32 v16, 0x3f803f80
    s_nop 0
    v_cndmask_b32 v17, 0, v16, vcc
    """)
    for b in range(2):
        a(f"v_mov_b32 v{KH[b]}, 0x3f803f80")
        a(f"v_mov_b32 v{KH[b]+1}, 0x00003f80")
        for i in range(8):
            a(f"v_mov_b32 v{VF[b]+i}, v17")

    def mask_setup():
        out = [["v_lshrrev_b32 v13, 5, v0", "v_lshlrev_b32 v13, 4, v13", "v_and_b32 v12, 31, v0",
                "v_sub_u32 v13, v12, v13", f"v_mov_b32 v14, {NEGBIG}"]]
        for r in range(0, 16, 2):
            out.append([f"v_cmp_le_i32 s[{T0}:{T0+1}], {r}, v13",
                        f"v_cmp_le_i32 s[{T2}:{T2+1}], {r+1}, v13",
                        "s_nop 0",
                        f"v_cndmask_b32 v{MD+r}, v14, 0, s[{T0}:{T0+1}]",
                        f"v_cndmask_b32 v{MF+r}, 0, v14, s[{T0}:{T0+1}]",
                        f"v_cndmask_b32 v{MD+r+1}, v14, 0, s[{T2}:{T2+1}]",
                        f"v_cndmask_b32 v{MF+r+1}, 0, v14, s[{T2}:{T2+1}]"])
        return out

    def g3_setup():
        return [["v_lshrrev_b32 v10, 4, v0",
                 "v_lshlrev_b32 v11, 9, v10",
                 "v_and_b32 v12, 15, v0",
                 f"v_lshl_add_u32 v{VOF}, v12, 4, v11"],
                ["v_mul_u32_u24 v12, 2560, v12",
                 f"v_lshl_add_u32 v{VOUT}, v10, 4, v12",
                 f"v_lshl_add_u32 v{VOUT2}, v10, 3, v12"],
                [f"s_cmp_lt_u32 s{sWAVE}, 4",
                 f"s_cselect_b32 s{T0}, 0, {5*K}",
                 f"s_add_u32 s{T0}, s{T0}, {WOL[0]}",
                 f"v_add_u32 v{VW3}, s{T0}, v{VDMA}",
                 f"s_mul_i32 s{T0}, s{sCW}, 5120",
                 f"v_add_u32 v{VRED}, s{T0}, v{VDMA}"]]

    marks.append(len(a.l))
    a(mask_setup()[:5])
    marks.append(len(a.l))
    a(mask_setup()[5:])
    marks.append(len(a.l))
    a(g3_setup())
    a(f"""
    s_lshl_b32 s{T0}, s{sQB}, 3
    s_add_u32 s{T0}, s{T0}, s{sWAVE}
    s_mul_i32 s{sQA}, s{sHEAD}, 64
    s_add_u32 s{sQA}, s{sQA}, s{T0}
    s_mul_i32 s{sQA}, s{sQA}, 1280
    s_mul_i32 s{T0}, s{T0}, 40960
    s_add_u32 s{T0}, s{T0}, {OW_OFF}
    s_lshl_b32 s{sOA1}, s{sHEAD}, 10
    s_add_u32 s{sOA1}, s{sOA1}, s{T0}
    s_lshr_b32 s{sOA2}, s{sHEAD}, 2
    s_add_u32 s{sOA2}, s{sOA2}, 32
    s_lshl_b32 s{sOA2}, s{sOA2}, 10
    s_add_u32 s{sOA2}, s{sOA2}, s{T0}
    s_and_b32 s{T0}, s{sHEAD}, 1
    s_lshl_b32 s{T0}, s{T0}, 9
    s_add_u32 s{sOA2}, s{sOA2}, s{T0}
    s_and_b32 s{T0}, s{sHEAD}, 2
    s_lshl_b32 s{T0}, s{T0}, 2
    s_add_u32 s{sOA2}, s{sOA2}, s{T0}
    s_lshl_b32 s{T0}, s{sHEAD}, 1
    s_lshr_b32 s{T1}, s{sCW}, 1
    s_add_u32 s{T0}, s{T0}, s{T1}
    s_mul_i32 s{T0}, s{T0}, 40960
    s_and_b32 s{T1}, s{sCW}, 1
    s_lshl_b32 s{T1}, s{T1}, 8
    s_add_u32 s{T0}, s{T0}, s{T1}
    s_add_u32 s{T0}, s{T0}, {OW_OFF}
    s_lshr_b32 s{T1}, s{sWAVE}, 2
    s_lshl_b32 s{sOB2}, s{T1}, 12
    s_add_u32 s{sOB2}, s{sOB2}, s{T0}
    s_add_u32 s{sOB2}, s{sOB2}, {16*2048}
    s_lshl_b32 s{T1}, s{T1}, 14
    s_add_u32 s{sOB1}, s{T0}, s{T1}
    s_mul_i32 s{sWOB}, s{sQB}, 102400
    s_lshl_b32 s{T0}, s{sWAVE}, 10
    s_add_u32 s{sWOB}, s{sWOB}, s{T0}
    s_mul_i32 s{sAS}, s{sQB}, 20480
    s_sub_u32 s{sAS}, s{sAS}, 20480
    s_add_u32 s{sAS}, s{sAS}, s{T0}
    s_mul_i32 s{sAD}, s{sWAVE}, 2560
    s_add_u32 s{sAD}, s{sAD}, {A_OFF}
    """)
    for i in range(16):
        a(f"v_mov_b32 v{O+i}, 0")
    marks.append(len(a.l))

    XA = lambda sg, kk: 14 + sg * 6 + kk
    WA = lambda sg, ct: 14 + sg * 6 + 2 + ct
    a(f"""
    v_and_b32 v6, 15, v0
    v_lshrrev_b32 v8, 1, v6                ; f(row)
    v_xor_b32 v8, v8, v7                   ; o ^ f
    v_lshlrev_b32 v8, 4, v8
    v_lshl_add_u32 v8, v6, 7, v8
    s_lshr_b32 s{T0}, s{sCW}, 1
    s_lshl_b32 s{T0}, s{T0}, 13
    v_add_u32 v{XA(0,0)}, s{T0}, v8
    v_xor_b32 v{XA(0,1)}, 64, v{XA(0,0)}
    v_lshrrev_b32 v8, 2, v0
    v_and_b32 v8, 3, v8                    ; r
    v_lshl_add_u32 v9, v7, 3, v8           ; krow = 8o + r
    v_lshlrev_b32 v9, 8, v9
    v_add_u32 v9, {16*K}, v9
    v_and_b32 v10, 1, v7
    v_lshl_add_u32 v10, v10, 2, v8
    v_lshlrev_b32 v10, 1, v10              ; sigma
    v_bfe_u32 v11, v0, 1, 1                ; c>>1
    s_and_b32 s{T0}, s{sCW}, 1
    s_lshl_b32 s{T0}, s{T0}, 3
    v_or_b32 v11, s{T0}, v11               ; 8cg + (c>>1)
    v_xor_b32 v11, v11, v10
    v_lshl_add_u32 v11, v11, 4, v9
    v_and_b32 v12, 1, v0
    v_lshl_add_u32 v{WA(0,0)}, v12, 3, v11
    v_xor_b32 v{WA(0,1)}, 32, v{WA(0,0)}
    v_xor_b32 v{WA(0,2)}, 64, v{WA(0,0)}
    v_xor_b32 v{WA(0,3)}, 96, v{WA(0,0)}
    """)
    for sg in (1, 2):
        for i in range(6):
            a(f"v_add_u32 v{14+sg*6+i}, {sg*64*K}, v{14+i}")
    marks.append(len(a.l))
    EA = [196, 197, 198, 199]
    a(f"""
    s_lshl_b32 s{T0}, s{sTB}, 2
    s_and_b32 s{T1}, s{sCW}, 2
    s_add_u32 s{T0}, s{T0}, s{T1}
    s_lshr_b32 s{T1}, s{sWAVE}, 2
    s_xor_b32 s{T1}, s{T1}, 1
    s_lshl_b32 s{T1}, s{T1}, 11                ; p*32*64
    s_add_u32 s{T0}, s{T0}, s{T1}
    s_cmp_ge_u32 s{sM}, 5
    s_cselect_b32 s{T2}, 1, 0                  ; K or V
    s_lshl_b32 s{T3}, 1280, s{T2}
    s_mul_i32 s{sEQ}, s{T0}, s{T3}
    s_mul_i32 s{T0}, s{T2}, {KV_OFF}
    s_add_u32 s{sEQ}, s{sEQ}, s{T0}
    s_add_u32 s{sEK}, s{sEQ}, s{T3}
    s_lshl_b32 s{T3}, s{T3}, 6
    s_and_b32 s{T1}, s{sCW}, 1
    s_cmp_ge_u32 s{sM}, 10
    s_cbranch_scc1 L_ea1
    s_mul_i32 s{T0}, s{T2}, 5
    s_sub_u32 s{T0}, s{sM}, s{T0}
    s_lshl_b32 s{T0}, s{T0}, 5
    s_lshl_b32 s{T1}, s{T1}, 4
    s_add_u32 s{T0}, s{T0}, s{T1}
    v_add_u32 v8, s{T0}, v7
    v_lshlrev_b32 v10, 4, v6
    """)
    for ct in range(4):
        a(f"""
        v_add_u32 v9, {4*ct}, v8
        v_mul_u32_u24 v11, 205, v9
        v_lshrrev_b32 v11, 10, v11
        v_mul_u32_u24 v12, 5, v11
        v_sub_u32 v12, v9, v12
        v_mul_lo_u32 v11, v11, s{T3}
        v_lshl_add_u32 v12, v12, 8, v10
        v_add_u32 v{EA[ct]}, v11, v12
        """)
    a(f"""
    s_branch L_ea2
    L_ea1:
    s_sub_u32 s{T0}, s{sM}, 10
    s_lshl_b32 s{T0}, s{T0}, 7
    s_lshl_b32 s{T1}, s{T1}, 6
    s_add_u32 s{T0}, s{T0}, s{T1}
    v_add_u32 v8, s{T0}, v6
    v_mul_u32_u24 v10, 320, v7
    v_add_u32 v10, 1280, v10
    """)
    for ct in range(4):
        a(f"""
        v_add_u32 v9, {16*ct}, v8
        v_mul_u32_u24 v11, 3277, v9
        v_lshrrev_b32 v11, 16, v11
        v_mul_u32_u24 v12, 20, v11
        v_sub_u32 v12, v9, v12
        v_mul_lo_u32 v11, v11, s{T3}
        v_lshl_add_u32 v12, v12, 4, v10
        v_add_u32 v{EA[ct]}, v11, v12
        """)
    a.label("L_ea2")
    marks.append(len(a.l))
    a(f"""
    s_lshl_b32 s{sQT}, s{sQB}, 3
    s_add_u32 s{sQT}, s{sQT}, s{sWAVE}
    s_lshl_b32 s{sW1K}, s{sWAVE}, 10
    s_mov_b32 s{sVM}, 0x000fffff
    s_mov_b32 s{sVM+1}, 0x000fffff
    s_mov_b32 s{sLO}, -1
    s_mov_b32 s{sLO+1}, 0
    s_mov_b32 s{sCS}, {CSCALE}
    s_mov_b32 s{sONE}, 0x3f80
    s_mul_i32 s{sKVB}, s{sHEAD}, 163840
    s_add_u32 s{sKVB}, s{sKVB}, {KV_OFF}
    """)

    ACC = lambda ct, tt: 128 + (ct * 4 + tt) * 4
    XF = lambda buf, tt: 64 + buf * 32 + tt * 4
    WF = lambda buf, ct: 64 + buf * 32 + 16 + ct * 4

    def g1reads(i, kk):
        slot = i % 5
        sg, so = slot >> 1, (slot & 1) * 32 * K
        r = []
        for q in range(4):
            r.append(f"ds_read_b128 {vr(XF(kk,q),4)}, v{XA(sg,kk)} offset:{so + q*2048}")
            for rd in range(2):
                r.append(f"ds_read_b64_tr_b16 {vr(WF(kk,q)+2*rd,2)}, v{WA(sg,q)} offset:{so + kk*8192 + rd*1024}")
        return r

    VPG, VPUB, VPO, VPD = 202, 203, 206, 204
    sPM, sSTR = SDBG, SDBG + 2

    def only_wave(wave):
        lab = a.uniq("L_w")
        a(f"s_cmp_lg_u32 s{sWAVE}, {wave}")
        a(f"s_cbranch_scc1 {lab}")
        return lab

    def publish(kind, p, wave):
        lab = only_wave(wave)
        if kind == 0:
            a(f"""
            v_mov_b32 v1, s{sTAG}
            s_mov_b32 s{T4}, {FL_OFF + p*16384}
            s_mov_b64 exec, s[{sPM}:{sPM+1}]
            buffer_store_dword v1, v{VPUB}, {srd(SWS)}, s{T4} offen sc1
            s_mov_b64 exec, -1
            """)
        else:
            a(f"""
            s_lshl_b32 s{T4}, s{sQB}, 8
            s_lshl_b32 s{T5}, s{sHEAD}, 2
            s_add_u32 s{T4}, s{T4}, s{T5}
            s_add_u32 s{T4}, s{T4}, {FL_OFF + 32768}
            v_mov_b32 v1, s{sTAG}
            s_mov_b64 exec, 1
            buffer_store_dword v1, off, {srd(SWS)}, s{T4} sc1
            s_mov_b64 exec, -1
            """)
        a.label(lab)

    def poll_loads(kind, p):
        if kind == 0:
            return [f"s_mov_b32 s{T3}, {FL_OFF + p*16384}",
                    f"buffer_load_dwordx2 {vr(VPD,2)}, v{VPG}, {srd(SWS)}, s{T3} offen sc1"]
        return [f"s_mov_b32 s{T3}, {FL_OFF + 32768}",
                f"buffer_load_dword v{VPD}, v{VPO}, {srd(SWS)}, s{T3} offen sc1"]

    def poll_issue(kind, p, wave=0):
        lab = only_wave(wave) if wave is not None else a.uniq("L_w")
        a(poll_loads(kind, p))
        a.label(lab)

    def poll_check(kind, p, sleep=8, wave=0, first=0):
        lab = only_wave(wave) if wave is not None else a.uniq("L_w")
        loop = a.uniq("L_spin")
        a(f"s_mov_b32 s{sCNT}, 0x20000")
        a(f"s_waitcnt vmcnt({first})")
        a.label(loop)
        a(f"v_cmp_eq_u32 vcc, s{sTAG}, v{VPD}")
        if kind == 0:
            a(f"v_cmp_eq_u32 s[{T0}:{T0+1}], s{sTAG}, v{VPD+1}")
            a(f"s_orn2_b64 s[{T0}:{T0+1}], s[{T0}:{T0+1}], s[{sSTR}:{sSTR+1}]\ns_and_b64 vcc, vcc, s[{T0}:{T0+1}]")
        a(f"""
        s_cmp_eq_u64 vcc, -1
        s_cbranch_scc1 {lab}
        s_sleep {sleep}
        """)
        a(poll_loads(kind, p))
        a(f"""
        s_sub_u32 s{sCNT}, s{sCNT}, 1
        s_cmp_lg_u32 s{sCNT}, 0
        s_waitcnt vmcnt(0)
        s_cbranch_scc1 {loop}
        """)
        a.label(lab)

    a(f"""
    s_mul_i32 s{T0}, s{sHEAD}, 20
    s_add_u32 s{T1}, s{T0}, 19
    s_lshr_b32 s{T0}, s{T0}, 7
    s_lshr_b32 s{T1}, s{T1}, 7
    s_cmp_lg_u32 s{T0}, s{T1}
    s_cselect_b64 s[{sSTR}:{sSTR+1}], -1, 0
    s_lshl_b32 s{T0}, s{sHEAD}, 9
    v_lshl_add_u32 v{VPG}, v0, 3, s{T0}
    s_mul_i32 s{T0}, s{sM}, 52
    s_lshr_b32 s{T0}, s{T0}, 8                 ; type
    s_mul_i32 s{T1}, s{T0}, 5
    s_sub_u32 s{T1}, s{sM}, s{T1}
    s_mul_i32 s{T2}, s{T1}, 205
    s_lshr_b32 s{T2}, s{T2}, 5
    s_cmp_eq_u32 s{T1}, 2
    s_cselect_b32 s{sPM}, 0x80, 0
    s_or_b32 s{sPM}, s{sPM}, 0x7f
    s_cmp_eq_u32 s{sM}, 15
    s_cselect_b32 s{sPM}, -1, s{sPM}
    s_mov_b32 s{sPM+1}, 0
    s_lshl_b32 s{T2}, s{T2}, 9
    s_lshl_b32 s{T0}, s{T0}, 7
    s_add_u32 s{T2}, s{T2}, s{T0}
    s_lshl_b32 s{T0}, s{sTB}, 3
    s_add_u32 s{T2}, s{T2}, s{T0}
    v_lshl_add_u32 v{VPUB}, v0, 9, s{T2}
    s_min_u32 s{T1}, s{T1}, 1
    s_lshl_b32 s{T1}, s{T1}, 2
    s_mov_b64 exec, 1
    v_add_u32 v{VPUB}, s{T1}, v{VPUB}
    s_mov_b64 exec, -1
    v_and_b32 v8, 31, v0
    v_lshlrev_b32 v8, 2, v8
    s_lshl_b32 s{T0}, s{sXCD}, 8
    v_add_u32 v{VPO}, s{T0}, v8
    """)
    a(f"s_waitcnt lgkmcnt(0)\ns_add_u32 s{sTAG}, s{sTAG}, 0x9e3779b1")
    marks.append(len(a.l))
    late = a.l[marks[0]:marks[4]]
    del a.l[marks[0]:marks[4]]
    late = [re.sub(r"\bv(1[4-7])\b", lambda m: "v%d" % (int(m.group(1)) - 8), x.split(";")[0]).strip() for x in late]
    a(f"s_cmp_eq_u32 s{sM}, 15")
    a("s_cbranch_scc1 L_idle")

    stamp(a, 4, 4)
    a(f"s_cmp_lt_u32 s{sWAVE}, 4")
    a("s_cbranch_scc1 L_xstart")
    for n in NS:
        if n > 10:
            break
        if WAITS["Y", n] is not None:
            a(f"s_waitcnt vmcnt({WAITS['Y', n]})")
        a("s_barrier")
        if n < 10:
            for x in SCH[n]:
                a(dma_stage(x))
    a("s_setprio 3")
    a("s_branch L_compute")
    a.label("L_xstart")
    a(f"""
    s_add_u32 s{sKS}, s{sKS}, {XFIRST - 11}
    s_cmp_ge_u32 s{sKS}, 10
    s_cselect_b32 s{T0}, 10, 0
    s_sub_u32 s{sKS}, s{sKS}, s{T0}
    s_waitcnt vmcnt(0)
    """)
    stamp(a, 5, 4)
    a("s_barrier")
    a.label("L_compute")
    stamp(a, 6, 4)
    stamp(a, 1)
    stamp(a, 1, 1)
    a(g1reads(0, 0))
    a(f"s_cmp_ge_u32 s{sM}, 10")
    a("s_cbranch_scc1 L_comp1")

    def interleave(ms, rs, step):
        per = -(-len(late) // 18)
        ex = late[step * per:(step + 1) * per] if step < 18 else []
        out = []
        ri = xi = 0
        for i, m in enumerate(ms):
            out.append(m)
            if ri < len(rs):
                out.append(rs[ri]); ri += 1
            if i >= 16 - per and xi < len(ex):
                out.append(ex[xi]); xi += 1
        out += rs[ri:] + ex[xi:]
        return out

    for cg in range(2):
        if cg == 1:
            a.label("L_comp1")

        def mm(i, kk):
            out = []
            for ct in range(4):
                for tt in range(4):
                    c = None if (i == 0 and kk == 0) else ACC(ct, tt)
                    if cg == 1:
                        out.append(mfma16(ACC(ct, tt), XF(kk, tt), WF(kk, ct), c))
                    else:
                        out.append(mfma16(ACC(ct, tt), WF(kk, ct), XF(kk, tt), c))
            return out
        for i in range(10):
            a("s_waitcnt lgkmcnt(0)")
            a(interleave(mm(i, 0), g1reads(i, 1), 2 * i))
            wy = WAITS.get(("Y", i + 11))
            a("s_waitcnt lgkmcnt(0)" + (f" vmcnt({wy})" if wy is not None else ""))
            bx, by = (i + 1) in SCH, (i + 11) in SCH
            if bx and by:
                a("s_barrier")
            elif bx or by:
                lab = a.uniq("L_nb")
                a(f"s_cmp_{'ge' if bx else 'lt'}_u32 s{sWAVE}, 4\ns_cbranch_scc1 {lab}\ns_barrier\n{lab}:")
            if i in (1, 3, 5, 7, 9):
                stamp(a, 2 + i // 2, 1)
            a(interleave(mm(i, 1), g1reads(i + 1, 0) if i < 9 else [], 2 * i + 1))
        if cg == 0:
            a("s_branch L_g1epi")
    a.label("L_g1epi")
    stamp(a, 2)

    QS = OPT.get("qs", 0)

    def g1_stores():
        if QS:
            lab = a.uniq("L_qs")
            a(f"s_cmp_ge_u32 s{sM}, 5\ns_cbranch_scc1 {lab}")
            for i in range(64):
                a(f"v_mul_f32 v{128+i}, s{sCS}, v{128+i}")
            a.label(lab)
        t = 64
        for ct in range(4):
            for tp in range(2):
                for h in range(2):
                    s_ = ACC(ct, 2 * tp + h)
                    a(f"v_cvt_pk_bf16_f32 v{t+2*h}, v{s_}, v{s_+1}")
                    a(f"v_cvt_pk_bf16_f32 v{t+2*h+1}, v{s_+2}, v{s_+3}")
                a(f"buffer_store_dwordx4 {vr(t,4)}, v{EA[ct]}, {srd(SWS)}, s{sEQ if tp == 0 else sEK} offen {HST}")
                t += 4
    a(f"s_cmp_lt_u32 s{sWAVE}, 4")
    a("s_cbranch_scc1 L_xload")
    a("v_mov_b32 v10, 0\nv_mov_b32 v11, 1\ns_mov_b64 exec, 1\nds_add_u32 v10, v11 offset:8\ns_mov_b64 exec, -1")
    stamp(a, 7, 1)
    a("s_nop 2")
    DEFER = OPT.get("defer", 3)
    if DEFER:
        for k in range(7, -1, -1):
            for i in range(3, -1, -1):
                a(f"v_cvt_pk_bf16_f32 v{160+4*k+i}, v{128+8*k+2*i}, v{128+8*k+2*i+1}")
    else:
        g1_stores()
    stamp(a, 8, 1)
    a("s_branch L_attn_setup")

    def lds_wait(off, val, sleep=1):
        loop = a.uniq("L_lw")
        a(f"s_mov_b32 s{sCNT}, 0x400000\nv_mov_b32 v10, 0")
        a.label(loop)
        a(f"""
        ds_read_b32 v11, v10 offset:{off}
        s_waitcnt lgkmcnt(0)
        v_readfirstlane_b32 s{T0}, v11
        s_cmp_eq_u32 s{T0}, {val}
        s_cbranch_scc1 {loop}_ok
        s_sleep {sleep}
        s_sub_u32 s{sCNT}, s{sCNT}, 1
        s_cmp_lg_u32 s{sCNT}, 0
        s_cbranch_scc1 {loop}
        {loop}_ok:
        """)

    a.label("L_xload")
    a("s_nop 7")
    for n in NS:
        if n < 10:
            continue
        if n > 10:
            w = WAITS["X", n]
            if n == NS[-1]:
                lab = a.uniq("L_w0")
                a(f"s_waitcnt vmcnt(1) lgkmcnt(0)\ns_cmp_eq_u32 s{sWAVE}, 0\ns_cbranch_scc1 {lab}\ns_waitcnt vmcnt(0)\n{lab}:")
            elif w is not None:
                a(f"s_waitcnt vmcnt({w})")
            a("s_barrier")
        for x in SCH[n]:
            if x == "S":
                stamp(a, 7, 1)
                g1_stores()
                stamp(a, 8, 1)
            elif x == "F":
                pass
            elif x == "P":
                stamp(a, 9, 1)
                publish(0, 1, 1)
            elif x == "Z":
                stamp(a, 10, 1)
                assert SCH[n][-1] == "Z" and NS[-2] == n
                poll_issue(0, 1)
                a("v_mov_b32 v10, 0\nv_mov_b32 v11, 0\nds_write_b64 v10, v[10:11]\nds_write_b64 v10, v[10:11] offset:8")
            else:
                a(dma_stage(x))
    stamp(a, 3)
    stamp(a, 11, 1)
    poll_check(0, 1, sleep=4)
    lab = only_wave(0)
    a("v_mov_b32 v10, 0\nv_mov_b32 v11, 1\nds_write_b32 v10, v11")
    a.label(lab)
    lds_wait(0, 1)

    def first_loads(part):
        a(f"s_add_u32 s{T0}, s{sKVB}, s{sW1K}")
        if part == 0:
            a(f"""
            s_mul_i32 s{T3}, s{sHEAD}, 81920
            s_mul_i32 s{T4}, s{sQB}, 10240
            s_add_u32 s{T3}, s{T3}, s{T4}
            s_add_u32 s{T3}, s{T3}, s{sW1K}
            """)
            for j in range(3):
                lab = None
                if j == 2:
                    lab = a.uniq("L_q")
                    a(f"s_cmp_ge_u32 s{sWAVE}, 2\ns_cbranch_scc1 {lab}")
                a(f"""
                s_add_u32 m0, s{sW1K}, {QB_OFF + j*4096}
                s_add_u32 s{T2}, s{T3}, {QW_OFF + 32*81920 + j*4096}
                buffer_load_dwordx4 v{VDMA}, {srd(SWS)}, s{T2} offen {HS} lds
                """)
                if lab:
                    a.label(lab)
        for j in range(5 * part, 5 * part + 5):
            a(f"""
            s_add_u32 m0, s{sW1K}, {CH[0] + j*4096}
            s_add_u32 s{T2}, s{T0}, {32*163840 + j*4096}
            buffer_load_dwordx4 v{VDMA}, {srd(SWS)}, s{T2} offen {HS} lds
            """)
    a.label("L_x1")
    first_loads(0)
    a.label("L_x2")
    stamp(a, 4)
    stamp(a, 12, 1)
    first_loads(1)
    a.label("L_attn_setup")
    def scale_q(p):
        for r in [QL[p] + i for i in range(4)] + [QH[p], QH[p] + 1]:
            a(f"""
            v_lshlrev_b32 v15, 16, v{r}
            v_and_b32 v16, 0xffff0000, v{r}
            v_mul_f32 v15, s{sCS}, v15
            v_mul_f32 v16, s{sCS}, v16
            v_cvt_pk_bf16_f32 v{r}, v15, v16
            """)
        reset_m(p)

    def reset_m(p):
        a(f"""
        v_mov_b32 v15, 0x3f800000
        v_cndmask_b32 v{QH[p]}, 0, v{QH[p]}, s[{sLO}:{sLO+1}]
        v_cndmask_b32 v{QH[p]+1}, v15, v{QH[p]+1}, s[{sLO}:{sLO+1}]
        """)

    def set_m(p, M):
        a(f"""
        v_mov_b32 v15, v{M}
        s_nop 1
        v_permlane32_swap_b32 v15, v{M}
        s_nop 1
        v_max_f32 v15, v15, v{M}
        v_sub_f32 v15, 0, v15                  ; -m
        v_and_b32 v16, 0xffff0000, v15         ; hi
        v_sub_f32 v17, v15, v16
        v_and_b32 v18, 0xffff0000, v17         ; mid
        v_sub_f32 v17, v17, v18                ; lo
        v_lshrrev_b32 v16, 16, v16
        v_or_b32 v16, v16, v18
        v_lshrrev_b32 v17, 16, v17
        v_or_b32 v17, 0x3f800000, v17
        v_cndmask_b32 v{QH[p]}, v16, v{QH[p]}, s[{sLO}:{sLO+1}]
        v_cndmask_b32 v{QH[p]+1}, v17, v{QH[p]+1}, s[{sLO}:{sLO+1}]
        """)

    def set_m_fast(p, M, delta):
        a(f"""
        v_mov_b32 v15, v{M}
        s_nop 1
        v_permlane32_swap_b32 v15, v{M}
        s_nop 1
        v_max_f32 v15, v15, v{M}
        v_sub_f32 v15, {f32bits(-float(delta)) if delta else 0}, v15
        v_lshrrev_b32 v15, 16, v15
        v_cndmask_b32 v{QH[p]}, v15, v{QH[p]}, s[{sLO}:{sLO+1}]
        """)

    def kreads(buf, off, restore=True):
        return [f"ds_read2st64_b64 {vr(KL[buf],4)}, v{VK} offset0:{off//512} offset1:{off//512+1}",
                f"s_mov_b64 exec, s[{sLO}:{sLO+1}]",
                f"ds_read_b64 {vr(KH[buf],2)}, v{VK} offset:{off+1024}"] + (["s_mov_b64 exec, -1"] if restore else [])

    def vreads(buf, off):
        return [f"s_mov_b64 exec, s[{sVM}:{sVM+1}]",
                f"ds_read_b128 {vr(VF[buf],4)}, v{VV} offset:{off}",
                f"ds_read_b128 {vr(VF[buf]+4,4)}, v{VV} offset:{off+640}",
                "s_mov_b64 exec, -1"]

    def qk(Sd, buf, p, C=None):
        return [mfma32(Sd, KL[buf], QL[p], C), mfma32k8(Sd, KH[buf], QH[p], Sd)]

    def pv(Ss, buf, o):
        return [f"v_smfmac_f32_32x32x32_bf16 {vr(o,16)}, {vr(VF[buf],4)}, {vr(Ss,8)}, v{VIDX}",
                f"v_smfmac_f32_32x32x32_bf16 {vr(o,16)}, {vr(VF[buf]+4,4)}, {vr(Ss+8,8)}, v{VIDX}"]

    def cap(fn, *args):
        keep, a.l = a.l, []
        fn(*args)
        out, a.l = [x.strip() for x in a.l], keep
        return out

    def exps(Ss):
        return [f"v_exp_f32 v{Ss+i}, v{Ss+i}" for i in range(16)]

    def maxtree(M, Ss, first):
        out = []
        if first:
            out.append(f"v_max3_f32 v{M}, v{Ss}, v{Ss+1}, v{Ss+2}")
            rest = list(range(3, 16))
        else:
            rest = list(range(16))
        while len(rest) >= 2:
            out.append(f"v_max3_f32 v{M}, v{M}, v{Ss+rest[0]}, v{Ss+rest[1]}")
            rest = rest[2:]
        if rest:
            out.append(f"v_max_f32 v{M}, v{M}, v{Ss+rest[0]}")
        return out

    def zero_o(p):
        for i in range(16):
            a(f"v_mov_b32 v{OO[p]+i}, 0")

    def o_addr(p):
        return f"""
        s_add_u32 s{T1}, s{sOA1}, {p*64*40960}
        s_add_u32 s{T2}, s{sOA2}, {p*64*40960}
        """

    def o_store():
        return f"""
        buffer_store_dwordx4 v[20:23], v{VDMA}, {srd(SWS)}, s{T1} offen {HST}
        s_mov_b64 exec, s[{sLO}:{sLO+1}]
        buffer_store_dwordx2 v[24:25], v{VDMA}, {srd(SWS)}, s{T2} offen {HST}
        s_mov_b64 exec, -1
        """

    def epilogue(p):
        o = OO[p]
        a(f"v_rcp_f32 v15, v{o+12}")
        a(o_addr(p))
        for i in range(12):
            a(f"v_mul_f32 v{o+i}, v{o+i}, v15")
        for i in range(6):
            a(f"v_cvt_pk_bf16_f32 v{20+i}, v{o+2*i}, v{o+2*i+1}")
        a(o_store())

    def finite(p):
        o = OO[p]
        a("v_mov_b32 v17, 0x7f800000")
        a(f"v_maximum3_f32 v15, abs(v{o}), abs(v{o+1}), abs(v{o+2})")
        a(f"v_maximum3_f32 v16, abs(v{o+3}), abs(v{o+4}), abs(v{o+5})")
        for i in range(3):
            a(f"v_maximum3_f32 v{15+(i&1)}, v{15+(i&1)}, abs(v{o+6+2*i}), abs(v{o+7+2*i})")
        a(f"v_maximum3_f32 v15, v15, v16, abs(v{o+12})")
        a("v_cmp_nlt_f32 vcc, v15, v17")
        a(f"v_cmp_gt_f32 s[{T4}:{T5}], s{sTINY}, v{OO[p]+12}")
        a(f"s_or_b64 vcc, vcc, s[{T4}:{T5}]")

    def pen(reg, u):
        return [f"s_cmp_ge_u32 s{sQT}, {8 - u}",
                f"s_cselect_b32 s{T0}, s{sONE}, {(NEGBIG & 0xffff0000) | 0x3f80}",
                f"v_mov_b32 v{reg+1}, s{T0}"]

    def tile_step(t, n, pf, koff, voff, cmask, extra_k=None, hooks=None, midprio=None):
        a("s_waitcnt lgkmcnt(0)")
        rd = []
        if extra_k and t + 2 < n:
            rd += extra_k(t & 1, t + 2)
        if t + 2 < n:
            rd += kreads(t & 1, koff(t + 2), restore=(t >= n))
        if t < n:
            rd += vreads(t & 1, voff(t))
        q = qk(S[(t + 1) & 3], (t + 1) & 1, pf(t + 1), cmask(t + 1)) if t + 1 < n else []
        pp = pv(S[(t - 1) & 3], (t - 1) & 1, OO[pf(t - 1)]) if t >= 1 else []
        e = exps(S[t & 3]) if t < n else []
        if t == 0:
            a("s_nop 10")
        ms = q + pp
        if not e:
            a(["s_nop 1"] + ms)
            return
        order = OPT.get("ord", 1)
        if len(ms) == 4:
            ms = [ms, [q[0], pp[0], q[1], pp[1]], [q[0], pp[0], pp[1], q[1]]][order]
        rpos, roff = divmod(OPT.get("rp", 2), 10)
        hooks = hooks or []
        hp = [i for i in range(4) if i != rpos]
        nh = (len(hooks) + 2) // 3
        for i in range(4):
            if i == 2 and midprio is not None:
                a(f"s_setprio {midprio}")
            if i < len(ms):
                a(ms[i])
            if i == rpos:
                a(e[4 * i:4 * i + roff] + rd + e[4 * i + roff:4 * i + 4])
            else:
                a(e[4 * i:4 * i + 2])
                k = hp.index(i)
                for hk in hooks[k * nh:(k + 1) * nh]:
                    a(hk)
                a(e[4 * i + 2:4 * i + 4])
        if order == 2 and len(ms) == 4:
            a("s_nop 4")

    def wo_piece(p, q0, ldsbase, cond=None):
        o = [f"s_add_u32 m0, s{sW1K}, {ldsbase & 0xffffffff}",
             f"s_add_u32 s{T1}, s{sWOB}, {WP_OFF + p*819200 + q0*1024}",
             f"buffer_load_dwordx4 v{VDMA}, {srd(SWS)}, s{T1} offen {HS} lds"]
        if cond is not None:
            lab = a.uniq("L_wo")
            o = [f"s_cmp_ge_u32 s{sWAVE}, {cond}", f"s_cbranch_scc1 {lab}"] + o + [f"{lab}:"]
        return o

    def wo_rnd(p, q0, cnt=8):
        return wo_piece(p, q0, WOL[p] + q0 * 1024, cond=None if cnt == 8 else cnt)

    def o_load(p, i):
        d = OFB[p] + 4 * i
        if i < 8:
            return [f"s_add_u32 s{T5}, s{sOB1}, {p*64*40960 + (i>>1)*4096}",
                    f"buffer_load_dwordx4 {vr(d,4)}, v{VOF}, {srd(SWS)}, s{T5} offen offset:{(i&1)*2048} {HS}"]
        return [f"s_add_u32 s{T5}, s{sOB2}, {p*64*40960}",
                f"buffer_load_dwordx4 {vr(d,4)}, v{VOF}, {srd(SWS)}, s{T5} offen offset:{(i-8)*2048} {HS}"]

    lab = a.uniq("L_xl")
    a(f"s_cmp_ge_u32 s{sWAVE}, 4\ns_cbranch_scc1 {lab}")
    TWO = OPT.get("two", 0)
    a(f"s_waitcnt vmcnt({5 if TWO else 0})\nv_mov_b32 v10, 0\nv_mov_b32 v11, 1\ns_mov_b64 exec, 1\nds_add_u32 v10, v11 offset:4\ns_mov_b64 exec, -1")
    a(f"s_branch {lab}_j")
    a.label(lab)
    lds_wait(8, 4)
    a.label(lab + "_j")
    lds_wait(4, 4)
    stamp(a, 5)
    stamp(a, 13, 1)
    a(f"""
    s_mul_i32 s{T0}, s{sWAVE}, 1280
    s_add_u32 s{T0}, s{T0}, {QB_OFF}
    v_add_u32 v15, s{T0}, v{VQ}
    ds_read2st64_b64 {vr(QL[1],4)}, v15 offset0:0 offset1:1
    ds_read_b64 {vr(QH[1],2)}, v15 offset:1024
    s_add_u32 s{sKVS}, s{sKVB}, s{sW1K}
    s_mov_b32 s{sTINY}, {f32bits(2.0 ** -64)}
    """)
    a(kreads(0, 0))
    a(kreads(1, 2560))
    a("s_waitcnt lgkmcnt(4)")
    if QS:
        assert DEFER
        reset_m(1)
        a("s_nop 0")
    else:
        scale_q(1)
    a("s_waitcnt lgkmcnt(2)")
    a(qk(S[0], 0, 1))
    a("s_nop 15")
    a(maxtree(19, S[0], True))
    set_m_fast(1, 19, 0)
    a("s_nop 1")
    a(qk(S[0], 0, 1))

    def dmaX(j):
        lab = a.uniq("L_dx")
        return [f"s_cmp_ge_u32 s{sWAVE}, 4", f"s_cbranch_scc1 {lab}",
                f"s_add_u32 m0, s{sW1K}, {CH[1] + j*4096}",
                f"s_add_u32 s{T2}, s{sKVS}, {32*163840 + 40960 + j*4096}",
                f"buffer_load_dwordx4 v{VDMA}, {srd(SWS)}, s{T2} offen {HS} lds", f"{lab}:"]

    def dmaY(j):
        lab = a.uniq("L_dy")
        return [f"s_cmp_lt_u32 s{sWAVE}, 4", f"s_cbranch_scc1 {lab}",
                f"s_add_u32 m0, s{sW1K}, {CH[1] + j*4096 - 4096}",
                f"s_add_u32 s{T2}, s{sKVS}, {32*163840 + 40960 + j*4096 - 4096}",
                f"buffer_load_dwordx4 v{VDMA}, {srd(SWS)}, s{T2} offen {HS} lds", f"{lab}:"]

    def dma3(r):
        c, rr = 2 + r // 5, r % 5
        return [f"s_add_u32 m0, s{sW1K}, {CH[c] + rr*8192}",
                f"s_add_u32 s{T2}, s{sKVS}, {32*163840 + c*40960 + rr*8192}",
                f"buffer_load_dwordx4 v{VDMA}, {srd(SWS)}, s{T2} offen {HS} lds"]

    def dmaA(j):
        return [f"s_add_u32 s{T1}, s{sAS}, {j*8192}"] + ([f"s_max_i32 s{T1}, s{T1}, 0"] if j < 3 else []) + [
                f"s_add_u32 m0, s{sW1K}, {A_OFF + j*8192}",
                f"s_add_u32 s{T1}, s{T1}, s{sKVB}",
                f"buffer_load_dwordx4 v{VDMA}, {srd(SWS)}, s{T1} offen {HS} lds"]

    qa_loads = [f"buffer_load_dwordx2 {vr(QL[0],2)}, v{VQ}, {srd(SWS)}, s{sQA} offen {HS}",
                f"buffer_load_dwordx2 {vr(QL[0]+2,2)}, v{VQ}, {srd(SWS)}, s{sQA} offen offset:512 {HS}",
                f"s_mov_b64 exec, s[{sLO}:{sLO+1}]",
                f"buffer_load_dwordx2 {vr(QH[0],2)}, v{VQ}, {srd(SWS)}, s{sQA} offen offset:1024 {HS}",
                "s_mov_b64 exec, -1"]
    assert QW_OFF == 0

    NT, AP = 73, OPT.get("ap", 52)
    ST0, ST1, KLT, KHT, VKT = 148, 164, 180, 184, 186
    sq = cap(scale_q, 0)

    def kt_reads(u):
        return [f"ds_read2st64_b64 {vr(KLT,4)}, v{VKT} offset0:{5*u} offset1:{5*u+1}",
                f"s_mov_b64 exec, s[{sLO}:{sLO+1}]",
                f"ds_read_b64 {vr(KHT,2)}, v{VKT} offset:{u*2560+1024}",
                "s_mov_b64 exec, -1"]

    XB = OPT.get("xb", 42)
    xh = {XB: [sq[:10], sq[10:20], [f"s_cmp_eq_u32 s{sQT}, 0", f"s_cselect_b32 s{T0}, 2560, 0", f"s_add_u32 s{T0}, s{T0}, s{sAD}",
                                    f"s_sub_u32 s{T0}, s{T0}, {CH[2]}", f"v_add_u32 v{VKT}, s{T0}, v{VK}",
                                    f"v_mov_b32 v{KHT}, 0x3f803f80", f"v_mov_b32 v{KHT+1}, 0x3f80"]],
          XB + 1: [sq[20:30], sq[30:], kt_reads(7)],
          XB + 2: [[f"s_cmp_eq_u32 s{sQT}, 0", "s_cbranch_scc1 L_mp0", mfma32(ST0, KLT, QL[0], None), "s_branch L_mp1",
                    "L_mp0:", mfma32(ST0, KLT, QL[0], MD), "L_mp1:"], [mfma32k8(ST0, KHT, QH[0], ST0)]],
          XB + 3: [[], maxtree(19, ST0, True)[:4], maxtree(19, ST0, True)[4:]],
          XB + 4: [cap(set_m_fast, 0, 19, 32)[:5], cap(set_m_fast, 0, 19, 32)[5:]],
          AP: [[f"v_mfma_f32_32x32x8_bf16 {vr(OO[0],16)}, v[254:255], v[254:255], 0"]]}
    assert XB < 46
    EA_ = AP + 10
    ep = cap(epilogue, 0)
    xh[EA_] = [cap(finite, 0)[:4], cap(finite, 0)[4:] + ["s_cmp_lg_u64 vcc, 0", f"s_cselect_b32 s{sBAD}, 1, 0"], ep[:9]]
    xh[EA_ + 1] = [ep[9:21] + [f"s_cmp_lg_u32 s{sBAD}, 0", "s_cbranch_scc1 L_nostA"] + ep[21:] + ["L_nostA:"]]
    assert ep[21].startswith("buffer_store") and ep[8].startswith("v_mul")
    isA = lambda u: AP <= u < AP + 9
    pf = lambda u: 0 if isA(u) else 1
    off = lambda u: (u - AP) * 2560 if isA(u) else ((u if u < AP else u - 9) & 15) * 2560
    cm = lambda u: MF if u == AP else (MD if u == AP + 8 else None)

    def xk(b, u):
        if isA(u):
            return pen(KH[b], u - AP)
        if u == AP + 9:
            return pen(KH[b], 8)
        return []
    E3 = EA_ + 2
    latew = [wo_rnd(0, 0), wo_rnd(0, 8), wo_rnd(0, 16, 4), wo_rnd(1, 40), wo_rnd(1, 48), wo_rnd(1, 56, 4)]
    PC = OPT.get("pc", 68)
    nper = -(-10 // (NT - PC))
    for t in range(NT + 1):
        hooks = []
        if t < 10:
            hooks = [dmaY(t)]
            ks = t - (DEFER - 1)
            if DEFER and 0 <= ks < 8:
                lab = a.uniq("L_ys")
                hooks.append([f"s_cmp_lt_u32 s{sWAVE}, 4", f"s_cbranch_scc1 {lab}", f"s_cmp_eq_u32 s{sM}, 15", f"s_cbranch_scc1 {lab}",
                              f"buffer_store_dwordx4 {vr(160+4*ks,4)}, v{EA[ks>>1]}, {srd(SWS)}, s{sEQ if (ks & 1) == 0 else sEK} offen {HST}", f"{lab}:"])
        if t == 2 and TWO:
            lab = a.uniq("L_x3")
            a(f"s_cmp_ge_u32 s{sWAVE}, 4\ns_cbranch_scc1 {lab}")
            a("s_waitcnt vmcnt(0)\nv_mov_b32 v10, 0\nv_mov_b32 v11, 1\ns_mov_b64 exec, 1\nds_add_u32 v10, v11 offset:12\ns_mov_b64 exec, -1")
            a.label(lab)
        if t == 6 and TWO:
            lds_wait(12, 4)
        if t == 14:
            a("s_waitcnt vmcnt(0) lgkmcnt(0)\ns_barrier")
            stamp(a, 6)
            cstamp(a, 1)
            stamp(a, 14, 1)
            publish(0, 0, 4)
        if t == 14:
            hooks = [[f"v_mov_b32 v{20+i}, -1" for i in range(6)], o_addr(0), o_store()]
        if t == 15:
            hooks = [o_addr(1), o_store()]
        if 16 <= t < 26:
            hooks = [dma3(t - 16)]
        if t == 27:
            poll_issue(0, 0)
        if t == 30:
            poll_check(0, 0)
            a("s_waitcnt vmcnt(0) lgkmcnt(0)\ns_barrier")
            publish(1, 0, 1)
            stamp(a, 7)
            cstamp(a, 3)
            hooks = [qa_loads]
        if 31 <= t < 36:
            hooks = [dmaA((t - 31 + 4) % 5)]
        if 36 <= t < 41:
            k = t - 36
            hooks = [[f"s_add_u32 s{T1}, s{sWOB}, {WP_OFF + 819200 + (60 + 8*k)*1024}",
                      f"buffer_load_dwordx4 {vr(ST[k],4)}, v{VDMA}, {srd(SWS)}, s{T1} offen {HS}"]]
        if t == XB:
            a("s_waitcnt vmcnt(5)\ns_barrier")
        if t == 46:
            poll_issue(1, 0)
        if t == 49:
            poll_check(1, 0)
            a("s_waitcnt lgkmcnt(0)\ns_barrier")
            stamp(a, 8)
            cstamp(a, 5)
        if 49 <= t < 59:
            hooks = [wo_rnd(0, 20 + 8 * (t - 49))]
        if t == E3:
            a("s_barrier")
            stamp(a, 10)
            cstamp(a, 7)
            stamp(a, 3, 2)
        if E3 <= t < E3 + 3:
            hooks = latew[2 * (t - E3):2 * (t - E3) + 2]
        if PC <= t < NT:
            assert not hooks
            hooks = [o_load(0, i) for i in range((t - PC) * nper, min(10, (t - PC + 1) * nper))]
        if t in xh:
            hx = xh[t] + [[]] * (3 - len(xh[t]))
            assert len(hooks) <= 1
            hooks = [hx[0], hx[1], hx[2] + (hooks[0] if hooks else [])]
        P0 = OPT.get("p0", 2)
        if t < P0:
            a("s_nop 0")
        elif t < 14 and OPT.get("pq", 0):
            a(f"s_setprio {3 - min(3, (t - P0) * 4 // (14 - P0))}")
        else:
            t0 = max(x for x in (P0, 14, 30, XB, 49, E3) if x <= t)
            a(f"s_setprio {3 - (t - t0) % 4}")
        if t + 2 in (16, 32, 48):
            c = (t + 2) // 16
            a(f"v_add_u32 v{VK}, {(CH[c] - CH[c - 1]) & 0xffffffff}, v{VK}")
        if t in (16, 32, 48):
            c = t // 16
            a(f"v_add_u32 v{VV}, {(CH[c] - CH[c - 1]) & 0xffffffff}, v{VV}")
        for reg, tt in ((VK, t + 2), (VV, t)):
            if tt == AP:
                a(f"v_add_u32 v{reg}, s{sAD}, v{reg}")
            if tt == AP + 9:
                a(f"v_subrev_u32 v{reg}, s{sAD}, v{reg}")
        if t == 64:
            stamp(a, 9)
            stamp(a, 1, 2)
        tile_step(t, NT, pf, off, off, cm, extra_k=xk, hooks=hooks)
    a("s_setprio 0")
    a(f"s_cmp_lg_u32 s{sBAD}, 0")
    a("s_cbranch_scc1 L_slowA")
    a.label("L_chkB")
    a("s_nop 8")
    finite(1)
    a("s_nop 4")
    a("s_cbranch_vccnz L_slowB")
    a.label("L_epiB")
    epilogue(1)
    stamp(a, 11)
    stamp(a, 7, 2)

    GA = [208, 148]
    GW = lambda buf, ct: 72 + buf * 20 + 4 * ct
    FT = 168
    retries = []

    def g3reads(i):
        return [f"ds_read_b128 {vr(GW(i%3,ct),4)}, v{VW3 if i < 6 else 12} offset:{((i % 6)*10+ct)*1024}" for ct in range(5)]

    def part_out(p):
        a(f"v_add_u32 v10, {SCR[p]}, v{VRED}")
        for ct in range(5):
            a(f"ds_write_b128 v10, {vr(GA[p]+4*ct,4)} offset:{ct*1024}")

    def finish(p, extra=0):
        a(f"v_add_u32 v10, {SCR[p]}, v{VRED}")
        for ct in range(5):
            a(f"ds_read_b128 {vr(FT+4*ct,4)}, v10 offset:{ct*1024}")
        a(f"""
        s_lshl_b32 s{T0}, s{sHEAD}, 2
        s_add_u32 s{T0}, s{T0}, s{sCW}
        s_mul_i32 s{T0}, s{T0}, {16*2560}
        s_mul_i32 s{T1}, s{sQB}, 160
        s_add_u32 s{T0}, s{T0}, s{T1}
        s_add_u32 s{T0}, s{T0}, {p*1280}
        """)
        for g, (lo, hi) in enumerate(((0, 8), (8, 16), (16, 20))):
            a(f"s_waitcnt lgkmcnt({[3, 1, 0][g]})")
            for i in range(lo, hi):
                a(f"v_add_f32 v{FT+i}, v{FT+i}, v{GA[p]+i}")
            for i in range(lo // 2, hi // 2):
                a(f"v_cvt_pk_bf16_f32 v{FT+20+i}, v{FT+2*i}, v{FT+2*i+1}")
            a(f"buffer_store_dwordx{4 if g < 2 else 2} {vr(FT+20+4*g, 4 if g < 2 else 2)}, v{VOUT if g < 2 else VOUT2}, {srd(SOUT)}, s{T0} offen offset:{64*g} {OUTP if (p == 0 or OPT.get('outb', 0)) else ''}")

    def o_check(p, i, n):
        d = OFB[p] + 4 * i
        a(f"""
        s_waitcnt vmcnt({n})
        L_gw{p}_{i}:
        v_max3_u32 v10, v{d}, v{d+1}, v{d+2}
        v_max_u32 v10, v10, v{d+3}
        v_cmp_eq_u32 vcc, -1, v10
        s_cbranch_vccnz L_gr{p}_{i}
        L_gc{p}_{i}:
        """)
        retries.append((p, i))

    a(f"s_mov_b32 s{sCNT}, 0x20000")
    F, L = 0, 1
    OI = OPT.get("oi", 9)
    a(f"v_add_u32 v12, {60*K}, v{VW3}")
    a("s_waitcnt vmcnt(12)")
    a("s_barrier")
    stamp(a, 8, 2)
    a(g3reads(0))
    a(g3reads(1))
    young = 2
    nd = no = 0
    for i in range(10):
        o_check(F, i, 9 - i + young)
        a(f"s_waitcnt lgkmcnt({5 if i < 9 else 0})")
        rs = g3reads(i + 2) if i < 8 else []
        for ct in range(5):
            a(mfma16(GA[F] + 4 * ct, GW(i % 3, ct), OFB[F] + 4 * i, None if i == 0 else GA[F] + 4 * ct))
            a(rs[ct:ct + 1])
        if nd < 5:
            a(wo_rnd(L, 8 * nd))
            nd += 1; young += 1
        if i >= OI:
            n = -(-10 // (10 - OI))
            for k in range(no, min(10, no + n)):
                a(o_load(L, k)); young += 1
            no = min(10, no + n)
    assert OI >= 5
    stamp(a, 2, 2)
    if OI <= 10:
        for k in range(no, 10):
            a(o_load(L, k))
    a(f"""
    v_mov_b32 v12, v{VW3}
    v_add_u32 v{VW3}, {(WOL[L] - WOL[F]) & 0xffffffff}, v{VW3}
    s_add_u32 s{T0}, s{sW1K}, {WOL[L] + 60*K}
    v_add_u32 v11, s{T0}, v{VDMA}
    s_waitcnt vmcnt({10 if OI <= 10 else 0})
    s_barrier
    """)
    assert WOL[F] == WOL[L] + 60 * K
    stamp(a, 9, 2)
    if OI > 10:
        for k in range(10):
            a(o_load(L, k))
    for k in range(5):
        a(f"ds_write_b128 v11, {vr(ST[k],4)} offset:{k*8192}")
    a(f"s_cmp_lt_u32 s{sWAVE}, 4\ns_cbranch_scc1 L_pb1")
    part_out(F)
    a.label("L_pb1")
    stamp(a, 12)
    stamp(a, 13)
    stamp(a, 12, 2)
    a(g3reads(0))
    a(g3reads(1))
    R2 = OPT.get("r2", 1)
    for i in range(10):
        d = OFB[L] + 4 * i
        if i == R2:
            a("s_barrier")
            a(f"s_cmp_ge_u32 s{sWAVE}, 4\ns_cbranch_scc1 L_pb2")
            finish(F, extra=0)
            a.label("L_pb2")
        o_check(L, i, 9 - i)
        a(f"s_waitcnt lgkmcnt({5 if i < 9 else 0})")
        rs = g3reads(i + 2) if i < 8 else []
        for ct in range(5):
            a(mfma16(GA[L] + 4 * ct, GW(i % 3, ct), d, None if i == 0 else GA[L] + 4 * ct))
            a(rs[ct:ct + 1])
    assert 1 <= R2 <= 4
    stamp(a, 13, 2)
    a(f"s_cmp_lt_u32 s{sWAVE}, 4\ns_cbranch_scc1 L_fin1")
    a("s_nop 2")
    part_out(L)
    a("s_waitcnt lgkmcnt(0)\ns_barrier\ns_branch L_fin2")
    a.label("L_fin1")
    a("s_barrier")
    finish(L)
    a.label("L_fin2")
    lab = only_wave(4)
    a(f"""
    s_cmp_lg_u32 s2, 0
    s_cbranch_scc1 {lab}
    v_mov_b32 v1, s{sTAG}
    s_mov_b32 s{T4}, {EP_OFF}
    s_mov_b64 exec, 1
    buffer_store_dword v1, off, {srd(SWS)}, s{T4} sc1
    s_mov_b64 exec, -1
    """)
    a.label(lab)
    if STAMPS:
        a("s_waitcnt vmcnt(0)")
        stamp(a, 14)
        stamp(a, 14, 2)
        a("s_waitcnt lgkmcnt(0)")
        a(f"""
        s_lshl_b32 s{T0}, s2, 4
        s_add_u32 s{T0}, s{T0}, s{sWAVE}
        s_lshl_b32 s{T0}, s{T0}, 7
        s_add_u32 s{T0}, s{T0}, {STAMP_OFF}
        s_mov_b64 exec, 1
        """)
        for i in range(15):
            a(f"v_mov_b32 v1, s{SB+2*i}")
            a(f"buffer_store_dword v1, off, {srd(SWS)}, s{T0} offset:{4*i}")
    if OPT.get("pad"):
        if "padwg" in OPT:
            a(f"s_cmp_lg_u32 s2, {OPT['padwg']}\ns_cbranch_scc1 L_done")
            a(f"s_cmp_lg_u32 s{sWAVE}, 0\ns_cbranch_scc1 L_done")
        a(f"""
        L_pad:
        s_memrealtime s[{T0}:{T1}]
        s_waitcnt lgkmcnt(0)
        s_sub_u32 s{T0}, s{T0}, s{SB + 2*OPT.get('padst', 0)}
        s_cmp_lt_u32 s{T0}, {OPT["pad"]}
        s_cbranch_scc1 L_pad
        """)
    a.label("L_done")
    a("s_endpgm")

    for p, i in retries:
        a.label(f"L_gr{p}_{i}")
        a(f"""
        s_sub_u32 s{sCNT}, s{sCNT}, 1
        s_cmp_eq_u32 s{sCNT}, 0
        s_cbranch_scc1 L_gq{p}_{i}
        s_waitcnt vmcnt(0)
        s_sleep 1
        """)
        for k in range(i, 10):
            a(o_load(p, k))
        a(f"s_waitcnt vmcnt({9 - i if p == L else 0})")
        a(f"s_branch L_gw{p}_{i}")
        a.label(f"L_gq{p}_{i}")
        a(f"s_mov_b32 s{sCNT}, 1\ns_branch L_gc{p}_{i}")

    a.label("L_idle")
    a(f"""
    s_cmp_ge_u32 s{sTB}, 8
    s_cselect_b32 s{SX[0]}, s{SWO[1]}, s{SWO[0]}
    s_cselect_b32 s{SX[0]+1}, s{SWO[1]+1}, s{SWO[0]+1}
    s_mov_b32 s{SX[0]+2}, {WO_BYTES}
    """)
    a(late)
    G3D = [128, 129, 130, 131, 132]
    for i in range(5):
        a([f"v_add_u32 v10, {64*i}, v0",
           "v_mul_u32_u24 v11, 6554, v10",
           "v_lshrrev_b32 v11, 16, v11",
           "v_mul_u32_u24 v12, 10, v11",
           "v_sub_u32 v12, v10, v12",
           "v_mul_u32_u24 v11, 1280, v11",
           f"v_lshl_add_u32 v{G3D[i]}, v12, 4, v11"])
    a(f"""
    s_and_b32 s{T0}, s{sTB}, 7
    s_mul_i32 s{T0}, s{T0}, 160
    s_mul_i32 s{T1}, s{sWAVE}, {32*1280}
    s_add_u32 s{T0}, s{T0}, s{T1}
    s_mul_i32 s{T1}, s{sWAVE}, 5120
    """)
    for rnd in range(3):
        lab = a.uniq("L_id")
        if rnd == 2:
            a(f"s_cmp_ge_u32 s{sWAVE}, 4\ns_cbranch_scc1 {lab}")
        a(f"s_add_u32 s{T2}, s{T0}, {rnd*256*1280}")
        for i in range(5):
            a(f"s_add_u32 m0, s{T1}, {K + rnd*8*5120 + i*1024}\ns_nop 0")
            a(f"buffer_load_dwordx4 v{G3D[i]}, {srd(SX[0])}, s{T2} offen lds")
        a.label(lab)
    a(f"""
    v_lshrrev_b32 v10, 5, v0
    v_bfe_u32 v11, v0, 4, 1
    v_bfe_u32 v12, v0, 2, 2
    v_and_b32 v13, 3, v0
    v_lshlrev_b32 v136, 3, v13
    v_lshlrev_b32 v13, 4, v13
    v_add_u32 v13, {K}, v13
    v_mul_u32_u24 v14, 20, v10
    v_lshl_add_u32 v14, v11, 2, v14
    v_add_u32 v14, v14, v12
    v_mul_u32_u24 v14, 160, v14
    v_add_u32 v133, v14, v13
    v_mul_u32_u24 v14, 80, v10
    v_mul_u32_u24 v11, 20, v11
    v_add3_u32 v14, v14, v11, v12
    v_add_u32 v14, 16, v14
    v_mul_u32_u24 v14, 160, v14
    v_add_u32 v134, v14, v13
    s_mul_i32 s{T0}, s{sWAVE}, 6400
    v_add_u32 v133, s{T0}, v133
    s_mul_i32 s{T0}, s{sWAVE}, 25600
    v_add_u32 v134, s{T0}, v134
    v_lshlrev_b32 v135, 4, v0
    v_sub_u32 v137, v133, v136
    v_sub_u32 v138, v134, v136
    v_mov_b32 v10, 0
    v_mov_b32 v11, 0
    v_mov_b32 v12, 4
    ds_write_b64 v10, v[10:11]
    ds_write_b32 v10, v12 offset:8
    ds_write_b32 v10, v10 offset:12
    s_mul_i32 s{T0}, s{sTB}, 102400
    s_add_u32 s{T0}, s{T0}, {WP_OFF}
    s_mul_i32 s{T1}, s{sWAVE}, 10240
    s_add_u32 s{T1}, s{T1}, s{T0}              ; kh=0, i=w
    s_lshr_b32 s{T2}, s{sWAVE}, 1
    s_mul_i32 s{T2}, s{T2}, 5120
    s_and_b32 s{T3}, s{sWAVE}, 1
    s_mul_i32 s{T3}, s{T3}, 10240
    s_add_u32 s{T2}, s{T2}, s{T3}
    s_add_u32 s{T2}, s{T2}, s{T0}
    s_add_u32 s{T2}, s{T2}, {8*10240}
    s_waitcnt vmcnt(0) lgkmcnt(0)
    s_barrier
    """)
    for rnd in range(3):
        lab = a.uniq("L_id")
        if rnd == 2:
            a(f"s_cmp_ge_u32 s{sWAVE}, 4\ns_cbranch_scc1 {lab}")
        base = 64 + rnd * 20
        for ct in range(5):
            for rd in range(2):
                if rnd < 2:
                    a(f"ds_read_b64_tr_b16 {vr(base+4*ct+2*rd,2)}, v{133 if ct < 4 else 137} offset:{rnd*51200 + rd*1280 + (ct>>1)*64 + (ct&1)*8}")
                else:
                    a(f"ds_read_b64_tr_b16 {vr(base+4*ct+2*rd,2)}, v{134 if ct < 4 else 138} offset:{rd*6400 + (ct>>1)*64 + (ct&1)*8}")
        a("s_waitcnt lgkmcnt(0)")
        if rnd == 1:
            a(f"s_add_u32 s{T1}, s{T1}, 5120")
        sreg = T1 if rnd < 2 else T2
        for ct in range(5):
            if ct == 4:
                a(f"s_add_u32 s{T3}, s{sreg}, 4096")
                a(f"buffer_store_dwordx4 {vr(base+4*ct,4)}, v135, {srd(SWS)}, s{T3} offen {HST}")
            else:
                a(f"buffer_store_dwordx4 {vr(base+4*ct,4)}, v135, {srd(SWS)}, s{sreg} offen offset:{ct*1024} {HST}")
        a.label(lab)
    a("s_waitcnt vmcnt(0)\ns_barrier")
    publish(0, 0, 1)
    publish(0, 1, 2)
    a(f"v_add_u32 v{VPUB}, 4, v{VPUB}")
    publish(0, 0, 3)
    publish(0, 1, 4)
    poll_issue(0, 1)
    poll_check(0, 1, sleep=OPT.get('isl', 32))
    a("s_barrier")
    a(f"s_cmp_ge_u32 s{sWAVE}, 4")
    a("s_cbranch_scc1 L_attn_setup")
    a("s_branch L_x1")

    def gk():
        return f"""
        buffer_load_dwordx2 {vr(KL[0],2)}, v{VK}, {srd(SWS)}, s{T2} offen {HS}
        buffer_load_dwordx2 {vr(KL[0]+2,2)}, v{VK}, {srd(SWS)}, s{T2} offen offset:512 {HS}
        s_mov_b64 exec, s[{sLO}:{sLO+1}]
        buffer_load_dwordx2 {vr(KH[0],2)}, v{VK}, {srd(SWS)}, s{T2} offen offset:1024 {HS}
        """

    def gv():
        return f"""
        s_mov_b64 exec, s[{sVM}:{sVM+1}]
        buffer_load_dwordx4 {vr(VF[0],4)}, v{VV}, {srd(SWS)}, s{T2} offen {HS}
        buffer_load_dwordx4 {vr(VF[0]+4,4)}, v{VV}, {srd(SWS)}, s{T2} offen offset:640 {HS}
        """
    assert CH[3] == 0

    def slow_tile(p, second, C):
        a(gk())
        if second:
            a(gv())
        a("s_mov_b64 exec, -1\ns_waitcnt vmcnt(0)")
        a(qk(S[0], 0, p, C))
        a("s_nop 15")
        if second:
            a(exps(S[0]))
            a("s_nop 1")
            a(pv(S[0], 0, OO[p]))
        else:
            a(maxtree(19, S[0], False))

    a.label("L_slowA")
    a("s_nop 15")
    MF2 = S[1]
    for i in range(16):
        a(f"v_sub_f32 v{MF2+i}, {NEGBIG}, v{MD+i}")
    reset_m(0)
    a("v_mov_b32 v19, 0xff800000")
    for second in (0, 1):
        for u in range(9):
            a(pen(KH[0], u))
            a(f"""
            s_add_i32 s{T2}, s{sQT}, {u - 8}
            s_max_i32 s{T2}, s{T2}, 0
            s_mul_i32 s{T2}, s{T2}, 2560
            s_add_u32 s{T2}, s{T2}, s{sKVB}
            """)
            slow_tile(0, second, MF2 if u == 0 else (MD if u == 8 else None))
        if not second:
            set_m(0, 19)
            zero_o(0)
    a("s_nop 15")
    epilogue(0)
    a("s_branch L_chkB")

    a.label("L_slowB")
    reset_m(1)
    a("v_mov_b32 v19, 0xff800000")
    a(f"s_add_u32 s{T3}, s{sKVB}, {33*163840}")
    for second in (0, 1):
        a(f"s_sub_u32 s{T2}, s{T3}, 163840")
        a.label(f"L_slow{second}")
        slow_tile(1, second, None)
        a(f"""
        s_add_u32 s{T2}, s{T2}, 2560
        s_cmp_lt_u32 s{T2}, s{T3}
        s_cbranch_scc1 L_slow{second}
        """)
        if not second:
            set_m(1, 19)
            zero_o(1)
    a("s_nop 15\ns_branch L_epiB")
    a.label("L_code_end")


def main(out):
    global HST, HS, OUTP
    OUTP = ["", "nt", "sc1", "sc0 sc1"][OPT.get("outp", 0)]
    HST = ["sc1", "", "sc0 sc1", "nt", "sc1 nt"][OPT.get("st", 0)]
    HS = ["sc1", ""][OPT.get("ld", 0)]
    a = Asm()
    hdr = open(f"cdna_kernels/{NAME}.s.ref").read().split("\n")
    keep = [l for l in hdr if l.startswith(";") and "@launch" not in l]
    for l in keep:
        a.raw(l)
    a.raw(f"; @launch grid=(256,1,1) block=(512,1,1) lds={LDS_BYTES}")
    a.raw('.amdgcn_target "amdgcn-amd-amdhsa--gfx950"')
    a.raw(".text")
    gen(a)
    a.raw('.section .rodata,"a"')
    a.raw(".p2align 6")
    a.raw(f""".amdhsa_kernel {KNAME}
  .amdhsa_next_free_vgpr 256
  .amdhsa_next_free_sgpr {102 if STAMPS else 72}
  .amdhsa_accum_offset 256
  .amdhsa_group_segment_fixed_size 0
  .amdhsa_kernarg_size 72
  .amdhsa_user_sgpr_count 2
  .amdhsa_user_sgpr_kernarg_segment_ptr 1
  .amdhsa_system_sgpr_workgroup_id_x 1
.end_amdhsa_kernel""")
    open(out, "w").write(a.text())


if __name__ == "__main__":
    if "--stamps" in sys.argv:
        STAMPS = True
        sys.argv.remove("--stamps")
    for x in list(sys.argv):
        if x.startswith("-D"):
            k, _, v = x[2:].partition("=")
            OPT[k] = int(v) if v else 1
            sys.argv.remove(x)
    main(sys.argv[1] if len(sys.argv) > 1 else f"cdna_kernels/{NAME}.s")
```

```python
import sys, struct, re

NAME = "concat_heads__sliding_block__softmax_full_mha__prompt"
KNAME = NAME + "_kernel"

QW_OFF = 0x000000
KV_OFF = 0x500000
OW_OFF = 0xF00000
FL_OFF = 0x1400000
EP_OFF = 0x1409000
WP_OFF = 0x1500000
WS_USED = 0x1700000
X_BYTES = 2048 * 640 * 2
WQKV_BYTES = 640 * 1920 * 2
WO_BYTES = 640 * 640 * 2
OUT_BYTES = 2048 * 1280 * 2
SRD3 = 0x00020000
LDS_BYTES = 163840
K = 1024

STAMPS = False
STAMP_OFF = 0x2000000
SB = 72
OPT = {}


def f32bits(x):
    return struct.unpack("<I", struct.pack("<f", x))[0]


NEGBIG = f32bits(-1e30)
CSCALE = f32bits((20 ** -0.5) * 1.4426950408889634)


class Asm:
    def __init__(self):
        self.l = []
        self.n = 0

    def __call__(self, s):
        if isinstance(s, (list, tuple)):
            for x in s:
                self(x)
            return
        for line in s.strip("\n").split("\n"):
            line = line.strip()
            if line:
                self.l.append(("" if line.endswith(":") else "    ") + line)

    def label(self, s):
        self.l.append(s + ":")

    def raw(self, s):
        self.l.append(s)

    def uniq(self, p):
        self.n += 1
        return f"{p}_{self.n}"

    def text(self):
        return "\n".join(self.l) + "\n"


def vr(a, n):
    return f"v[{a}:{a + n - 1}]"


def mfma32(d, a_, b_, c):
    cs = vr(c, 16) if c is not None else "0"
    return f"v_mfma_f32_32x32x16_bf16 {vr(d,16)}, {vr(a_,4)}, {vr(b_,4)}, {cs}"


def mfma32k8(d, a_, b_, c):
    return f"v_mfma_f32_32x32x8_bf16 {vr(d,16)}, {vr(a_,2)}, {vr(b_,2)}, {vr(c,16)}"


def mfma16(d, a_, b_, c):
    cs = vr(c, 4) if c is not None else "0"
    return f"v_mfma_f32_16x16x32_bf16 {vr(d,4)}, {vr(a_,4)}, {vr(b_,4)}, {cs}"


def cstamp(a, i):
    if STAMPS and OPT.get("sm", 0) == 3:
        a(f"s_memrealtime s[{SB+2*i}:{SB+2*i+1}]")
        a(f"s_memtime s[{SB+2*i+2}:{SB+2*i+3}]")


def stamp(a, i, mode=0):
    if STAMPS and (i == 0 or OPT.get("sm", 0) == mode):
        a(f"s_memrealtime s[{SB+2*i}:{SB+2*i+1}]")


SX = [4, 12]
SW = [8, 16]
SWS, SDBG = 20, 24
SWO = [28, 32]
SOUT = 36
sWAVE, sCW, sTB, sM, sKS, sXB, sWB, sLP = 40, 41, 42, 43, 44, 45, 46, 47
T0, T1, T2, T3, T4, T5 = 48, 49, 50, 51, 52, 53
sEQ, sEK = 54, 55
sHEAD, sQB, sQT, sW1K = 56, 57, 58, 59
sVM, sLO = 60, 62
sCS, sONE, sKVB, sXCD, sJ, sROT = 64, 65, 66, 67, 68, 69
sCNT = 70
sKVS = 71
sTAG = 3
sOA1, sOA2, sOB1, sOB2, sWOB, sQA, sAS, sAD = range(28, 36)
sTINY = 46
sBAD = 47


def srd(n):
    return f"s[{n}:{n+3}]"


HS = "sc1"
HST = "sc1"
OUTP = ""


P4 = {n: [n + 4] for n in range(10)}
P3 = {0: [2, 3], **{n: [n + 3] for n in range(1, 10)}}
SCHEDS = {
    0: ([2, 3], {0: [4], 1: [5], 2: [6], 3: [7], 4: [8], 5: [9], 6: [10], 7: [11], 8: [12], 9: [13],
                 10: [14], 11: [15, "S"], 13: ["P", 16, 17], 15: [18], 16: [19, "Z"], 17: []}),
    1: ([], {0: [2, 3], 1: [4], 2: [5], 3: [6], 4: [7], 5: [8], 6: [9], 7: [10], 8: [11], 9: [12],
             10: [13], 11: [14, "S", 15], 13: [16, 17], 15: ["P", 18], 16: [19, "Z"], 17: []}),
    2: ([], {0: [2, 3], 1: [4], 2: [5], 3: [6], 4: [7], 5: [8], 6: [9], 7: [10], 8: [11], 9: [12],
             10: [13, 14], 12: ["S", 15, 16], 14: ["P", 17, 18], 16: [19, "Z"], 18: []}),
    3: ([], {0: [2], 1: [3], 2: [4], 3: [5], 4: [6], 5: [7], 6: [8], 7: [9], 8: [10], 9: [11],
             10: [12, 13], 12: [14, "S", 15], 14: [16, 17, 18], 16: ["P", 19, "Z"], 18: []}),
    4: ([], {0: [2, 3], 1: [4, 5], 3: [6, 7], 5: [8, 9], 7: [10, 11], 9: [12],
             10: [13, 14], 12: ["S", 15, 16], 14: ["P", 17, 18], 16: [19, "Z"], 18: []}),
    6: ([2, 3], {**P4, 10: [14], 11: [15], 12: ["F", "S", 16], 14: [17, 18], 15: [19], 16: ["P", "Z"], 17: []}),
    7: ([2, 3], {**P4, 10: [14], 11: ["F", "S", 15], 13: [16, 17], 15: ["P", 18, 19], 16: ["Z"], 17: []}),
    8: ([2, 3], {**P4, 10: [14], 11: ["F", "S", 15], 13: [16, 17], 14: [18], 15: ["P", 19], 16: ["Z"], 17: []}),
    9: ([2, 3], {**P4, 10: ["S", 14], 12: [15, 16], 14: ["P", 17, 18], 15: [19], 16: ["Z"], 17: []}),
    10: ([2, 3], {**P4, 10: [14], 11: [15], 12: ["F", "S", 16], 14: [17, 18], 15: ["P", 19], 16: ["Z"], 17: []}),
    11: ([], {**P3, 10: [13, 14], 11: [15, "S"], 13: ["P", 16, 17], 15: [18], 16: [19, "Z"], 17: []}),
    12: ([], {**P3, 10: [13, 14, "S"], 12: [15, 16], 13: ["P", 17], 15: [18, 19], 16: ["Z"], 17: []}),
    13: ([2], {0: [3, 4], **{n: [n + 4] for n in range(1, 10)}, 10: [14], 11: [15, "S"], 13: ["P", 16, 17], 15: [18], 16: [19, "Z"], 17: []}),
    14: ([2, 3], {**P4, 10: [14], 11: [15, "S"], 13: ["P", 16, 17], 15: [18, 19], 16: ["Z"], 17: []}),
    15: ([2, 3], {**P4, 10: [14, "S"], 12: [15, 16], 13: ["P", 17], 15: [18, 19], 16: ["Z"], 17: []}),
    5: ([], {0: [2, 3], 1: [4], 2: [5], 3: [6], 4: [7], 5: [8], 6: [9], 7: [10, 11], 8: [12], 9: [13],
             10: [14], 11: [15, "S"], 13: ["P", 16, 17], 15: [18], 16: [19, "Z"], 17: []}),
}


def plan():
    pre, sch = SCHEDS[OPT.get("sch", 0)]
    ns = sorted(sch)
    q = {"X": [0], "Y": [1] + pre}
    waits = {}
    done = set()
    assert 0 in sch and 10 in sch and ns[-1] >= 17
    for k, n in enumerate(ns):
        need = set(range(n, ns[k + 1] if k + 1 < len(ns) else 20))
        if "P" in sch[n]:
            need.add("S")
        assert need <= set(q["X"]) | set(q["Y"]), (n, need)
        if "F" in sch[n]:
            need |= set(q["X"])
        need -= done
        for g in "XY":
            idx = [i for i, x in enumerate(q[g]) if x in need]
            if idx:
                done |= set(q[g][:max(idx) + 1])
            waits[g, n] = 8 * (len(q[g]) - 1 - max(idx)) if idx else None
            if "P" in sch[n] and g == "X" and OPT.get("pz", 0):
                waits[g, n] = 0
        for x in sch[n]:
            if isinstance(x, int):
                assert x - 5 <= n - 1, (n, x)
            if x == "Z":
                assert n >= 16 and k + 1 < len(ns)
            if x not in ("P", "Z", "F"):
                q["Y" if n < 10 else "X"].append(x)
    st = [x for x in q["X"] + q["Y"] if isinstance(x, int)]
    assert sorted(st) == list(range(20))
    return pre, sch, ns, waits, min(x for x in q["X"][1:] if isinstance(x, int))


def gen(a):
    PRE, SCH, NS, WAITS, XFIRST = plan()
    a.raw(f".globl {KNAME}\n.p2align 8\n.type {KNAME},@function")
    a.label(KNAME)
    a(f"""
    s_cmp_ge_u32 s2, 256
    s_cbranch_scc1 L_done
    """)
    stamp(a, 0)
    a(f"""
    s_load_dwordx2 s[{SX[1]}:{SX[1]+1}], s[0:1], 24
    s_load_dwordx2 s[{SW[1]}:{SW[1]+1}], s[0:1], 32
    s_load_dwordx2 s[{SX[0]}:{SX[0]+1}], s[0:1], 0
    s_load_dwordx2 s[{SW[0]}:{SW[0]+1}], s[0:1], 8
    s_load_dwordx2 s[{SWO[0]}:{SWO[0]+1}], s[0:1], 16
    s_load_dwordx2 s[{SWO[1]}:{SWO[1]+1}], s[0:1], 40
    s_load_dwordx2 s[{SOUT}:{SOUT+1}], s[0:1], 48
    s_load_dwordx2 s[{SWS}:{SWS+1}], s[0:1], 64
    v_lshrrev_b32 v1, 6, v0
    v_and_b32 v0, 63, v0
    s_and_b32 s{sXCD}, s2, 7
    v_readfirstlane_b32 s{sWAVE}, v1
    s_lshr_b32 s{sJ}, s2, 3
    s_and_b32 s{T0}, s{sXCD}, 1
    s_lshl_b32 s{T0}, s{T0}, 3
    s_and_b32 s{T1}, s{sJ}, 7
    s_add_u32 s{sTB}, s{T0}, s{T1}
    s_lshr_b32 s{T0}, s{sXCD}, 1
    s_lshl_b32 s{T0}, s{T0}, 2
    s_lshr_b32 s{T2}, s{sJ}, 3
    s_add_u32 s{sM}, s{T0}, s{T2}
    """)
    if OPT.get("bal", 1):
        a(f"""
        s_lshr_b32 s{T0}, s{sXCD}, 1
        s_mul_i32 s{T0}, s{T0}, 30
        s_add_u32 s{T0}, s{T0}, s{sJ}
        s_and_b32 s{T1}, s{T0}, 7
        s_lshr_b32 s{T2}, s{T0}, 3
        s_and_b32 s{T0}, s{sXCD}, 1
        s_lshl_b32 s{T0}, s{T0}, 3
        s_add_u32 s{sTB}, s{T0}, s{T1}
        s_lshl_b32 s{T0}, s{sXCD}, 1
        s_add_u32 s{T0}, s{T0}, s{sJ}
        s_sub_u32 s{T0}, s{T0}, 30
        s_cmp_ge_u32 s{sJ}, 30
        s_cselect_b32 s{sM}, 15, s{T2}
        s_cselect_b32 s{sTB}, s{T0}, s{sTB}
        """)
    if OPT.get("ipf", 0):
        a(f"""
        s_cmp_lg_u32 s{sM}, 15
        s_cbranch_scc1 L_noipf
        s_getpc_b64 s[{T4}:{T5}]
        v_lshl_add_u32 v10, v1, 6, v0
        v_min_u32 v10, (L_code_end - L_noipf) / 128 - 1, v10
        v_lshlrev_b32 v10, 7, v10
        v_mov_b32 v11, s{T5}
        v_add_co_u32 v10, vcc, s{T4}, v10
        s_nop 1
        v_addc_co_u32 v11, vcc, 0, v11, vcc
        global_load_dword v200, v[10:11], off
        L_noipf:
        """)
    rm = OPT.get("rot", 2)
    if rm == 0:
        a(f"s_mov_b32 s{sROT}, 0")
    elif rm == 1:
        a(f"""
        s_mul_i32 s{T2}, s{T2}, 3
        s_add_u32 s{sROT}, s{T1}, s{T2}
        s_cmp_ge_u32 s{sROT}, 10
        s_cselect_b32 s{T0}, 10, 0
        s_sub_u32 s{sROT}, s{sROT}, s{T0}
        """)
    elif rm == 2:
        a(f"""
        s_add_u32 s{sROT}, s{T1}, s{T2}
        s_and_b32 s{sROT}, s{sROT}, 1
        s_mul_i32 s{sROT}, s{sROT}, 5
        """)
    else:
        a(f"""
        s_add_u32 s{sROT}, s{T1}, s{T2}
        s_and_b32 s{sROT}, s{sROT}, 3
        s_mul_i32 s{sROT}, s{sROT}, 5
        s_lshr_b32 s{sROT}, s{sROT}, 1
        """)
    a(f"""
    s_and_b32 s{sCW}, s{sWAVE}, 3
    """)
    for n, size in ((SX[0], X_BYTES), (SW[0], WQKV_BYTES), (SX[1], X_BYTES), (SW[1], WQKV_BYTES),
                    (SOUT, OUT_BYTES), (SWS, 0x4000000 if STAMPS else WS_USED)):
        a(f"s_mov_b32 s{n+2}, {size}\ns_mov_b32 s{n+3}, {SRD3}")
    a(f"""
    v_lshrrev_b32 v6, 3, v0
    v_mul_u32_u24 v2, 1280, v6
    v_lshrrev_b32 v7, 4, v0
    v_and_b32 v8, 7, v0
    v_xor_b32 v8, v8, v7
    v_lshl_add_u32 v2, v8, 4, v2
    v_xor_b32 v3, 64, v2
    v_mul_u32_u24 v9, 3840, v7
    v_and_b32 v8, 15, v0
    v_lshlrev_b32 v10, 1, v7
    v_xor_b32 v8, v8, v10
    """)
    a("""
    v_lshl_add_u32 v4, v8, 4, v9
    v_xor_b32 v5, 128, v4
    """)
    a(f"""
    s_lshl_b32 s{T0}, s{sTB}, 7
    s_lshl_b32 s{T1}, s{sCW}, 5
    s_add_u32 s{T0}, s{T0}, s{T1}
    s_mul_i32 s{sXB}, s{T0}, 1280
    s_mul_i32 s{sWB}, s{sCW}, {16*3840}
    s_lshl_b32 s{T0}, s{sM}, 8
    s_add_u32 s{sWB}, s{sWB}, s{T0}
    s_lshl_b32 s{sLP}, s{sCW}, 12
    s_lshr_b32 s{T3}, s{sWAVE}, 2              ; group
    s_add_u32 s{sKS}, s{sROT}, s{T3}
    s_cmp_eq_u32 s{sKS}, 10
    s_cselect_b32 s{sKS}, 0, s{sKS}
    s_lshl_b32 s{T3}, s{T3}, 15
    s_add_u32 s{T3}, s{T3}, s{sLP}
    """)

    def dma_stage(n, sLP=sLP):
        p = 1 - n // 10
        slot = (n % 5) * 32 * K
        out = [f"s_lshl_b32 s{T0}, s{sKS}, 7",
               f"s_add_u32 s{T0}, s{T0}, s{sXB}",
               f"s_mul_i32 s{T1}, s{sKS}, {64*3840}",
               f"s_add_u32 s{T1}, s{T1}, s{sWB}"]
        for i in range(4):
            out += [f"s_add_u32 m0, s{sLP}, {slot + i*1024}",
                    f"s_add_u32 s{T2}, s{T0}, {i*8*1280}",
                    f"buffer_load_dwordx4 v{2 + (i & 1)}, {srd(SX[p])}, s{T2} offen {'nt ' if OPT.get('nt', 0) & 1 else ''}lds",
                    f"s_add_u32 m0, s{sLP}, {slot + 16*K + i*1024}",
                    f"s_add_u32 s{T2}, s{T1}, {i*4*3840}",
                    f"buffer_load_dwordx4 v{4 + (i >> 1)}, {srd(SW[p])}, s{T2} offen {'nt ' if OPT.get('nt', 0) & 2 else ''}lds"]
        out += [f"s_add_u32 s{sKS}, s{sKS}, 1",
                f"s_cmp_eq_u32 s{sKS}, 10",
                f"s_cselect_b32 s{sKS}, 0, s{sKS}"]
        return out

    a("s_waitcnt lgkmcnt(0)")
    stamp(a, 1, 4)
    a(f"s_cmp_eq_u32 s{sM}, 15")
    a("s_cbranch_scc1 L_setup1")
    a(dma_stage(0, T3))
    stamp(a, 2, 4)
    a(f"s_cmp_lt_u32 s{sWAVE}, 4")
    a("s_cbranch_scc1 L_setup1")
    for n in PRE:
        a(dma_stage(n))
    a.label("L_setup1")
    stamp(a, 3, 4)
    a(f"""
    s_lshl_b32 s{T0}, s{sXCD}, 2
    s_and_b32 s{T1}, s{sJ}, 3
    s_add_u32 s{sHEAD}, s{T0}, s{T1}
    s_lshr_b32 s{sQB}, s{sJ}, 2
    s_add_u32 s{T0}, s{SWS}, {EP_OFF}
    s_addc_u32 s{T1}, s{SWS+1}, 0
    s_load_dword s{sTAG}, s[{T0}:{T1}], 0
    """)
    marks = [len(a.l)]
    S = [64, 80, 96, 112]
    O = 208
    OO = [48, 208]
    KL, KH = [128, 132], [240, 242]
    QL, QH = [136, 142], [140, 146]
    VF = [224, 232]
    MD, MF = 32, 48
    VK, VV, VIDX, VDMA, VQ, VOF, VW3, VOUT, VRED = 244, 245, 246, 247, 248, 249, 250, 251, 252
    VOUT2 = 253
    QB_OFF = 1 * K
    CH = [11 * K, 51 * K, 91 * K, 0]
    A_OFF = 40 * K
    WOL = [60 * K, 0]
    SCR = [130 * K, 110 * K]
    OFB = [148, 32]
    ST = [188, 192, 196, 28, 4]

    a(f"""
    v_lshlrev_b32 v{VDMA}, 4, v0
    v_lshrrev_b32 v11, 5, v0               ; h
    v_and_b32 v12, 31, v0                  ; i
    v_and_b32 v13, 3, v12
    v_lshrrev_b32 v14, 3, v12
    v_lshl_add_u32 v13, v14, 2, v13        ; kappa & 15
    v_bfe_u32 v14, v12, 2, 1               ; kappa >> 4
    v_lshlrev_b32 v15, 4, v13
    v_lshl_add_u32 v16, v14, 3, v15
    v_lshl_add_u32 v16, v11, 8, v16
    v_add_u32 v{VK}, {CH[0]}, v16
    v_mul_u32_u24 v16, 20, v11
    v_add_u32 v16, v16, v12
    v_lshlrev_b32 v16, 4, v16
    v_add_u32 v{VV}, {CH[0] + 1280}, v16
    v_and_b32 v15, 15, v12
    v_lshlrev_b32 v15, 4, v15
    v_lshrrev_b32 v16, 4, v12
    v_lshl_add_u32 v15, v16, 3, v15        ; (q&15)*16 + (q>>4)*8
    v_lshl_add_u32 v{VQ}, v11, 8, v15
    v_mov_b32 v{VIDX}, 0xdddddddd
    v_mov_b32 v254, 0
    v_mov_b32 v255, 0
    v_and_b32 v17, 0x1b, v12
    v_cmp_eq_u32 vcc, 24, v17
    v_mov_b32 v16, 0x3f803f80
    s_nop 0
    v_cndmask_b32 v17, 0, v16, vcc
    """)
    for b in range(2):
        a(f"v_mov_b32 v{KH[b]}, 0x3f803f80")
        a(f"v_mov_b32 v{KH[b]+1}, 0x00003f80")
        for i in range(8):
            a(f"v_mov_b32 v{VF[b]+i}, v17")

    def mask_setup():
        out = [["v_lshrrev_b32 v13, 5, v0", "v_lshlrev_b32 v13, 4, v13", "v_and_b32 v12, 31, v0",
                "v_sub_u32 v13, v12, v13", f"v_mov_b32 v14, {NEGBIG}"]]
        for r in range(0, 16, 2):
            out.append([f"v_cmp_le_i32 s[{T0}:{T0+1}], {r}, v13",
                        f"v_cmp_le_i32 s[{T2}:{T2+1}], {r+1}, v13",
                        "s_nop 0",
                        f"v_cndmask_b32 v{MD+r}, v14, 0, s[{T0}:{T0+1}]",
                        f"v_cndmask_b32 v{MF+r}, 0, v14, s[{T0}:{T0+1}]",
                        f"v_cndmask_b32 v{MD+r+1}, v14, 0, s[{T2}:{T2+1}]",
                        f"v_cndmask_b32 v{MF+r+1}, 0, v14, s[{T2}:{T2+1}]"])
        return out

    def g3_setup():
        return [["v_lshrrev_b32 v10, 4, v0",
                 "v_lshlrev_b32 v11, 9, v10",
                 "v_and_b32 v12, 15, v0",
                 f"v_lshl_add_u32 v{VOF}, v12, 4, v11"],
                ["v_mul_u32_u24 v12, 2560, v12",
                 f"v_lshl_add_u32 v{VOUT}, v10, 4, v12",
                 f"v_lshl_add_u32 v{VOUT2}, v10, 3, v12"],
                [f"s_cmp_lt_u32 s{sWAVE}, 4",
                 f"s_cselect_b32 s{T0}, 0, {5*K}",
                 f"s_add_u32 s{T0}, s{T0}, {WOL[0]}",
                 f"v_add_u32 v{VW3}, s{T0}, v{VDMA}",
                 f"s_mul_i32 s{T0}, s{sCW}, 5120",
                 f"v_add_u32 v{VRED}, s{T0}, v{VDMA}"]]

    marks.append(len(a.l))
    a(mask_setup()[:5])
    marks.append(len(a.l))
    a(mask_setup()[5:])
    marks.append(len(a.l))
    a(g3_setup())
    a(f"""
    s_lshl_b32 s{T0}, s{sQB}, 3
    s_add_u32 s{T0}, s{T0}, s{sWAVE}
    s_mul_i32 s{sQA}, s{sHEAD}, 64
    s_add_u32 s{sQA}, s{sQA}, s{T0}
    s_mul_i32 s{sQA}, s{sQA}, 1280
    s_mul_i32 s{T0}, s{T0}, 40960
    s_add_u32 s{T0}, s{T0}, {OW_OFF}
    s_lshl_b32 s{sOA1}, s{sHEAD}, 10
    s_add_u32 s{sOA1}, s{sOA1}, s{T0}
    s_lshr_b32 s{sOA2}, s{sHEAD}, 2
    s_add_u32 s{sOA2}, s{sOA2}, 32
    s_lshl_b32 s{sOA2}, s{sOA2}, 10
    s_add_u32 s{sOA2}, s{sOA2}, s{T0}
    s_and_b32 s{T0}, s{sHEAD}, 1
    s_lshl_b32 s{T0}, s{T0}, 9
    s_add_u32 s{sOA2}, s{sOA2}, s{T0}
    s_and_b32 s{T0}, s{sHEAD}, 2
    s_lshl_b32 s{T0}, s{T0}, 2
    s_add_u32 s{sOA2}, s{sOA2}, s{T0}
    s_lshl_b32 s{T0}, s{sHEAD}, 1
    s_lshr_b32 s{T1}, s{sCW}, 1
    s_add_u32 s{T0}, s{T0}, s{T1}
    s_mul_i32 s{T0}, s{T0}, 40960
    s_and_b32 s{T1}, s{sCW}, 1
    s_lshl_b32 s{T1}, s{T1}, 8
    s_add_u32 s{T0}, s{T0}, s{T1}
    s_add_u32 s{T0}, s{T0}, {OW_OFF}
    s_lshr_b32 s{T1}, s{sWAVE}, 2
    s_lshl_b32 s{sOB2}, s{T1}, 12
    s_add_u32 s{sOB2}, s{sOB2}, s{T0}
    s_add_u32 s{sOB2}, s{sOB2}, {16*2048}
    s_lshl_b32 s{T1}, s{T1}, 14
    s_add_u32 s{sOB1}, s{T0}, s{T1}
    s_mul_i32 s{sWOB}, s{sQB}, 102400
    s_lshl_b32 s{T0}, s{sWAVE}, 10
    s_add_u32 s{sWOB}, s{sWOB}, s{T0}
    s_mul_i32 s{sAS}, s{sQB}, 20480
    s_sub_u32 s{sAS}, s{sAS}, 20480
    s_add_u32 s{sAS}, s{sAS}, s{T0}
    s_mul_i32 s{sAD}, s{sWAVE}, 2560
    s_add_u32 s{sAD}, s{sAD}, {A_OFF}
    """)
    for i in range(16):
        a(f"v_mov_b32 v{O+i}, 0")
    marks.append(len(a.l))

    XA = lambda sg, kk: 14 + sg * 6 + kk
    WA = lambda sg, ct: 14 + sg * 6 + 2 + ct
    a(f"""
    v_and_b32 v6, 15, v0
    v_lshrrev_b32 v8, 1, v6                ; f(row)
    v_xor_b32 v8, v8, v7                   ; o ^ f
    v_lshlrev_b32 v8, 4, v8
    v_lshl_add_u32 v8, v6, 7, v8
    s_lshr_b32 s{T0}, s{sCW}, 1
    s_lshl_b32 s{T0}, s{T0}, 13
    v_add_u32 v{XA(0,0)}, s{T0}, v8
    v_xor_b32 v{XA(0,1)}, 64, v{XA(0,0)}
    v_lshrrev_b32 v8, 2, v0
    v_and_b32 v8, 3, v8                    ; r
    v_lshl_add_u32 v9, v7, 3, v8           ; krow = 8o + r
    v_lshlrev_b32 v9, 8, v9
    v_add_u32 v9, {16*K}, v9
    v_and_b32 v10, 1, v7
    v_lshl_add_u32 v10, v10, 2, v8
    v_lshlrev_b32 v10, 1, v10              ; sigma
    v_bfe_u32 v11, v0, 1, 1                ; c>>1
    s_and_b32 s{T0}, s{sCW}, 1
    s_lshl_b32 s{T0}, s{T0}, 3
    v_or_b32 v11, s{T0}, v11               ; 8cg + (c>>1)
    v_xor_b32 v11, v11, v10
    v_lshl_add_u32 v11, v11, 4, v9
    v_and_b32 v12, 1, v0
    v_lshl_add_u32 v{WA(0,0)}, v12, 3, v11
    v_xor_b32 v{WA(0,1)}, 32, v{WA(0,0)}
    v_xor_b32 v{WA(0,2)}, 64, v{WA(0,0)}
    v_xor_b32 v{WA(0,3)}, 96, v{WA(0,0)}
    """)
    for sg in (1, 2):
        for i in range(6):
            a(f"v_add_u32 v{14+sg*6+i}, {sg*64*K}, v{14+i}")
    marks.append(len(a.l))
    EA = [196, 197, 198, 199]
    a(f"""
    s_lshl_b32 s{T0}, s{sTB}, 2
    s_and_b32 s{T1}, s{sCW}, 2
    s_add_u32 s{T0}, s{T0}, s{T1}
    s_lshr_b32 s{T1}, s{sWAVE}, 2
    s_xor_b32 s{T1}, s{T1}, 1
    s_lshl_b32 s{T1}, s{T1}, 11                ; p*32*64
    s_add_u32 s{T0}, s{T0}, s{T1}
    s_cmp_ge_u32 s{sM}, 5
    s_cselect_b32 s{T2}, 1, 0                  ; K or V
    s_lshl_b32 s{T3}, 1280, s{T2}
    s_mul_i32 s{sEQ}, s{T0}, s{T3}
    s_mul_i32 s{T0}, s{T2}, {KV_OFF}
    s_add_u32 s{sEQ}, s{sEQ}, s{T0}
    s_add_u32 s{sEK}, s{sEQ}, s{T3}
    s_lshl_b32 s{T3}, s{T3}, 6
    s_and_b32 s{T1}, s{sCW}, 1
    s_cmp_ge_u32 s{sM}, 10
    s_cbranch_scc1 L_ea1
    s_mul_i32 s{T0}, s{T2}, 5
    s_sub_u32 s{T0}, s{sM}, s{T0}
    s_lshl_b32 s{T0}, s{T0}, 5
    s_lshl_b32 s{T1}, s{T1}, 4
    s_add_u32 s{T0}, s{T0}, s{T1}
    v_add_u32 v8, s{T0}, v7
    v_lshlrev_b32 v10, 4, v6
    """)
    for ct in range(4):
        a(f"""
        v_add_u32 v9, {4*ct}, v8
        v_mul_u32_u24 v11, 205, v9
        v_lshrrev_b32 v11, 10, v11
        v_mul_u32_u24 v12, 5, v11
        v_sub_u32 v12, v9, v12
        v_mul_lo_u32 v11, v11, s{T3}
        v_lshl_add_u32 v12, v12, 8, v10
        v_add_u32 v{EA[ct]}, v11, v12
        """)
    a(f"""
    s_branch L_ea2
    L_ea1:
    s_sub_u32 s{T0}, s{sM}, 10
    s_lshl_b32 s{T0}, s{T0}, 7
    s_lshl_b32 s{T1}, s{T1}, 6
    s_add_u32 s{T0}, s{T0}, s{T1}
    v_add_u32 v8, s{T0}, v6
    v_mul_u32_u24 v10, 320, v7
    v_add_u32 v10, 1280, v10
    """)
    for ct in range(4):
        a(f"""
        v_add_u32 v9, {16*ct}, v8
        v_mul_u32_u24 v11, 3277, v9
        v_lshrrev_b32 v11, 16, v11
        v_mul_u32_u24 v12, 20, v11
        v_sub_u32 v12, v9, v12
        v_mul_lo_u32 v11, v11, s{T3}
        v_lshl_add_u32 v12, v12, 4, v10
        v_add_u32 v{EA[ct]}, v11, v12
        """)
    a.label("L_ea2")
    marks.append(len(a.l))
    a(f"""
    s_lshl_b32 s{sQT}, s{sQB}, 3
    s_add_u32 s{sQT}, s{sQT}, s{sWAVE}
    s_lshl_b32 s{sW1K}, s{sWAVE}, 10
    s_mov_b32 s{sVM}, 0x000fffff
    s_mov_b32 s{sVM+1}, 0x000fffff
    s_mov_b32 s{sLO}, -1
    s_mov_b32 s{sLO+1}, 0
    s_mov_b32 s{sCS}, {CSCALE}
    s_mov_b32 s{sONE}, 0x3f80
    s_mul_i32 s{sKVB}, s{sHEAD}, 163840
    s_add_u32 s{sKVB}, s{sKVB}, {KV_OFF}
    """)

    ACC = lambda ct, tt: 128 + (ct * 4 + tt) * 4
    XF = lambda buf, tt: 64 + buf * 32 + tt * 4
    WF = lambda buf, ct: 64 + buf * 32 + 16 + ct * 4

    def g1reads(i, kk):
        slot = i % 5
        sg, so = slot >> 1, (slot & 1) * 32 * K
        r = []
        for q in range(4):
            r.append(f"ds_read_b128 {vr(XF(kk,q),4)}, v{XA(sg,kk)} offset:{so + q*2048}")
            for rd in range(2):
                r.append(f"ds_read_b64_tr_b16 {vr(WF(kk,q)+2*rd,2)}, v{WA(sg,q)} offset:{so + kk*8192 + rd*1024}")
        return r

    VPG, VPUB, VPO, VPD = 202, 203, 206, 204
    sPM, sSTR = SDBG, SDBG + 2

    def only_wave(wave):
        lab = a.uniq("L_w")
        a(f"s_cmp_lg_u32 s{sWAVE}, {wave}")
        a(f"s_cbranch_scc1 {lab}")
        return lab

    def publish(kind, p, wave):
        lab = only_wave(wave)
        if kind == 0:
            a(f"""
            v_mov_b32 v1, s{sTAG}
            s_mov_b32 s{T4}, {FL_OFF + p*16384}
            s_mov_b64 exec, s[{sPM}:{sPM+1}]
            buffer_store_dword v1, v{VPUB}, {srd(SWS)}, s{T4} offen sc1
            s_mov_b64 exec, -1
            """)
        else:
            a(f"""
            s_lshl_b32 s{T4}, s{sQB}, 8
            s_lshl_b32 s{T5}, s{sHEAD}, 2
            s_add_u32 s{T4}, s{T4}, s{T5}
            s_add_u32 s{T4}, s{T4}, {FL_OFF + 32768}
            v_mov_b32 v1, s{sTAG}
            s_mov_b64 exec, 1
            buffer_store_dword v1, off, {srd(SWS)}, s{T4} sc1
            s_mov_b64 exec, -1
            """)
        a.label(lab)

    def poll_loads(kind, p):
        if kind == 0:
            return [f"s_mov_b32 s{T3}, {FL_OFF + p*16384}",
                    f"buffer_load_dwordx2 {vr(VPD,2)}, v{VPG}, {srd(SWS)}, s{T3} offen sc1"]
        return [f"s_mov_b32 s{T3}, {FL_OFF + 32768}",
                f"buffer_load_dword v{VPD}, v{VPO}, {srd(SWS)}, s{T3} offen sc1"]

    def poll_issue(kind, p, wave=0):
        lab = only_wave(wave) if wave is not None else a.uniq("L_w")
        a(poll_loads(kind, p))
        a.label(lab)

    def poll_check(kind, p, sleep=8, wave=0, first=0):
        lab = only_wave(wave) if wave is not None else a.uniq("L_w")
        loop = a.uniq("L_spin")
        a(f"s_mov_b32 s{sCNT}, 0x20000")
        a(f"s_waitcnt vmcnt({first})")
        a.label(loop)
        a(f"v_cmp_eq_u32 vcc, s{sTAG}, v{VPD}")
        if kind == 0:
            a(f"v_cmp_eq_u32 s[{T0}:{T0+1}], s{sTAG}, v{VPD+1}")
            a(f"s_orn2_b64 s[{T0}:{T0+1}], s[{T0}:{T0+1}], s[{sSTR}:{sSTR+1}]\ns_and_b64 vcc, vcc, s[{T0}:{T0+1}]")
            if p == 1:
                a("s_or_b32 vcc_hi, vcc_hi, 0xffff0000")
        a(f"""
        s_cmp_eq_u64 vcc, -1
        s_cbranch_scc1 {lab}
        s_sleep {sleep}
        """)
        a(poll_loads(kind, p))
        a(f"""
        s_sub_u32 s{sCNT}, s{sCNT}, 1
        s_cmp_lg_u32 s{sCNT}, 0
        s_waitcnt vmcnt(0)
        s_cbranch_scc1 {loop}
        """)
        a.label(lab)

    a(f"""
    s_mul_i32 s{T0}, s{sHEAD}, 20
    s_add_u32 s{T1}, s{T0}, 19
    s_lshr_b32 s{T0}, s{T0}, 7
    s_lshr_b32 s{T1}, s{T1}, 7
    s_cmp_lg_u32 s{T0}, s{T1}
    s_cselect_b64 s[{sSTR}:{sSTR+1}], -1, 0
    s_lshl_b32 s{T0}, s{sHEAD}, 9
    v_lshl_add_u32 v{VPG}, v0, 3, s{T0}
    s_mul_i32 s{T0}, s{sM}, 52
    s_lshr_b32 s{T0}, s{T0}, 8                 ; type
    s_mul_i32 s{T1}, s{T0}, 5
    s_sub_u32 s{T1}, s{sM}, s{T1}
    s_mul_i32 s{T2}, s{T1}, 205
    s_lshr_b32 s{T2}, s{T2}, 5
    s_cmp_eq_u32 s{T1}, 2
    s_cselect_b32 s{sPM}, 0x80, 0
    s_or_b32 s{sPM}, s{sPM}, 0x7f
    s_cmp_eq_u32 s{sM}, 15
    s_cselect_b32 s{sPM}, -1, s{sPM}
    s_mov_b32 s{sPM+1}, 0
    s_lshl_b32 s{T2}, s{T2}, 9
    s_lshl_b32 s{T0}, s{T0}, 7
    s_add_u32 s{T2}, s{T2}, s{T0}
    s_lshl_b32 s{T0}, s{sTB}, 3
    s_add_u32 s{T2}, s{T2}, s{T0}
    v_lshl_add_u32 v{VPUB}, v0, 9, s{T2}
    s_min_u32 s{T1}, s{T1}, 1
    s_lshl_b32 s{T1}, s{T1}, 2
    s_mov_b64 exec, 1
    v_add_u32 v{VPUB}, s{T1}, v{VPUB}
    s_mov_b64 exec, -1
    v_and_b32 v8, 31, v0
    v_lshlrev_b32 v8, 2, v8
    s_lshl_b32 s{T0}, s{sXCD}, 8
    v_add_u32 v{VPO}, s{T0}, v8
    """)
    a(f"s_waitcnt lgkmcnt(0)\ns_add_u32 s{sTAG}, s{sTAG}, 0x9e3779b1")
    marks.append(len(a.l))
    late = a.l[marks[0]:marks[4]]
    del a.l[marks[0]:marks[4]]
    late = [re.sub(r"\bv(1[4-7])\b", lambda m: "v%d" % (int(m.group(1)) - 8), x.split(";")[0]).strip() for x in late]
    a(f"s_cmp_eq_u32 s{sM}, 15")
    a("s_cbranch_scc1 L_idle")

    stamp(a, 4, 4)
    a(f"s_cmp_lt_u32 s{sWAVE}, 4")
    a("s_cbranch_scc1 L_xstart")
    for n in NS:
        if n > 10:
            break
        if WAITS["Y", n] is not None:
            a(f"s_waitcnt vmcnt({WAITS['Y', n]})")
        a("s_barrier")
        if n < 10:
            for x in SCH[n]:
                a(dma_stage(x))
    a("s_setprio 3")
    a("s_branch L_compute")
    a.label("L_xstart")
    a(f"""
    s_add_u32 s{sKS}, s{sKS}, {XFIRST - 11}
    s_cmp_ge_u32 s{sKS}, 10
    s_cselect_b32 s{T0}, 10, 0
    s_sub_u32 s{sKS}, s{sKS}, s{T0}
    s_waitcnt vmcnt(0)
    """)
    stamp(a, 5, 4)
    a("s_barrier")
    a.label("L_compute")
    stamp(a, 6, 4)
    stamp(a, 1)
    stamp(a, 1, 1)
    a(g1reads(0, 0))
    a(f"s_cmp_ge_u32 s{sM}, 10")
    a("s_cbranch_scc1 L_comp1")

    def interleave(ms, rs, step):
        per = -(-len(late) // 18)
        ex = late[step * per:(step + 1) * per] if step < 18 else []
        out = []
        ri = xi = 0
        for i, m in enumerate(ms):
            out.append(m)
            if ri < len(rs):
                out.append(rs[ri]); ri += 1
            if i >= 16 - per and xi < len(ex):
                out.append(ex[xi]); xi += 1
        out += rs[ri:] + ex[xi:]
        return out

    for cg in range(2):
        if cg == 1:
            a.label("L_comp1")

        def mm(i, kk):
            out = []
            for ct in range(4):
                for tt in range(4):
                    c = None if (i == 0 and kk == 0) else ACC(ct, tt)
                    if cg == 1:
                        out.append(mfma16(ACC(ct, tt), XF(kk, tt), WF(kk, ct), c))
                    else:
                        out.append(mfma16(ACC(ct, tt), WF(kk, ct), XF(kk, tt), c))
            return out
        for i in range(10):
            a("s_waitcnt lgkmcnt(0)")
            a(interleave(mm(i, 0), g1reads(i, 1), 2 * i))
            wy = WAITS.get(("Y", i + 11))
            a("s_waitcnt lgkmcnt(0)" + (f" vmcnt({wy})" if wy is not None else ""))
            bx, by = (i + 1) in SCH, (i + 11) in SCH
            if bx and by:
                a("s_barrier")
            elif bx or by:
                lab = a.uniq("L_nb")
                a(f"s_cmp_{'ge' if bx else 'lt'}_u32 s{sWAVE}, 4\ns_cbranch_scc1 {lab}\ns_barrier\n{lab}:")
            if i in (1, 3, 5, 7, 9):
                stamp(a, 2 + i // 2, 1)
            a(interleave(mm(i, 1), g1reads(i + 1, 0) if i < 9 else [], 2 * i + 1))
        if cg == 0:
            a("s_branch L_g1epi")
    a.label("L_g1epi")
    stamp(a, 2)

    QS = OPT.get("qs", 0)

    def g1_stores():
        if QS:
            lab = a.uniq("L_qs")
            a(f"s_cmp_ge_u32 s{sM}, 5\ns_cbranch_scc1 {lab}")
            for i in range(64):
                a(f"v_mul_f32 v{128+i}, s{sCS}, v{128+i}")
            a.label(lab)
        t = 64
        for ct in range(4):
            for tp in range(2):
                for h in range(2):
                    s_ = ACC(ct, 2 * tp + h)
                    a(f"v_cvt_pk_bf16_f32 v{t+2*h}, v{s_}, v{s_+1}")
                    a(f"v_cvt_pk_bf16_f32 v{t+2*h+1}, v{s_+2}, v{s_+3}")
                a(f"buffer_store_dwordx4 {vr(t,4)}, v{EA[ct]}, {srd(SWS)}, s{sEQ if tp == 0 else sEK} offen {HST}")
                t += 4
    a(f"s_cmp_lt_u32 s{sWAVE}, 4")
    a("s_cbranch_scc1 L_xload")
    a("v_mov_b32 v10, 0\nv_mov_b32 v11, 1\ns_mov_b64 exec, 1\nds_add_u32 v10, v11 offset:8\ns_mov_b64 exec, -1")
    stamp(a, 7, 1)
    a("s_nop 2")
    DEFER = OPT.get("defer", 3)
    if DEFER:
        for k in range(7, -1, -1):
            for i in range(3, -1, -1):
                a(f"v_cvt_pk_bf16_f32 v{160+4*k+i}, v{128+8*k+2*i}, v{128+8*k+2*i+1}")
    else:
        g1_stores()
    stamp(a, 8, 1)
    a("s_branch L_attn_setup")

    def lds_wait(off, val, sleep=1):
        loop = a.uniq("L_lw")
        a(f"s_mov_b32 s{sCNT}, 0x400000\nv_mov_b32 v10, 0")
        a.label(loop)
        a(f"""
        ds_read_b32 v11, v10 offset:{off}
        s_waitcnt lgkmcnt(0)
        v_readfirstlane_b32 s{T0}, v11
        s_cmp_eq_u32 s{T0}, {val}
        s_cbranch_scc1 {loop}_ok
        s_sleep {sleep}
        s_sub_u32 s{sCNT}, s{sCNT}, 1
        s_cmp_lg_u32 s{sCNT}, 0
        s_cbranch_scc1 {loop}
        {loop}_ok:
        """)

    a.label("L_xload")
    a("s_nop 7")
    for n in NS:
        if n < 10:
            continue
        if n > 10:
            w = WAITS["X", n]
            if n == NS[-1]:
                lab = a.uniq("L_w0")
                a(f"s_waitcnt vmcnt(1) lgkmcnt(0)\ns_cmp_eq_u32 s{sWAVE}, 0\ns_cbranch_scc1 {lab}\ns_waitcnt vmcnt(0)\n{lab}:")
            elif w is not None:
                a(f"s_waitcnt vmcnt({w})")
            a("s_barrier")
        for x in SCH[n]:
            if x == "S":
                stamp(a, 7, 1)
                g1_stores()
                stamp(a, 8, 1)
            elif x == "F":
                pass
            elif x == "P":
                stamp(a, 9, 1)
                publish(0, 1, 1)
            elif x == "Z":
                stamp(a, 10, 1)
                assert SCH[n][-1] == "Z" and NS[-2] == n
                poll_issue(0, 1)
                a("v_mov_b32 v10, 0\nv_mov_b32 v11, 0\nds_write_b64 v10, v[10:11]\nds_write_b64 v10, v[10:11] offset:8")
            else:
                a(dma_stage(x))
    stamp(a, 3)
    stamp(a, 11, 1)
    poll_check(0, 1, sleep=4)
    lab = only_wave(0)
    a("v_mov_b32 v10, 0\nv_mov_b32 v11, 1\nds_write_b32 v10, v11")
    a.label(lab)
    lds_wait(0, 1)

    def first_loads(part):
        a(f"s_add_u32 s{T0}, s{sKVB}, s{sW1K}")
        if part == 0:
            a(f"""
            s_mul_i32 s{T3}, s{sHEAD}, 81920
            s_mul_i32 s{T4}, s{sQB}, 10240
            s_add_u32 s{T3}, s{T3}, s{T4}
            s_add_u32 s{T3}, s{T3}, s{sW1K}
            """)
            for j in range(3):
                lab = None
                if j == 2:
                    lab = a.uniq("L_q")
                    a(f"s_cmp_ge_u32 s{sWAVE}, 2\ns_cbranch_scc1 {lab}")
                a(f"""
                s_add_u32 m0, s{sW1K}, {QB_OFF + j*4096}
                s_add_u32 s{T2}, s{T3}, {QW_OFF + 32*81920 + j*4096}
                buffer_load_dwordx4 v{VDMA}, {srd(SWS)}, s{T2} offen {HS} lds
                """)
                if lab:
                    a.label(lab)
        for j in range(5 * part, 5 * part + 5):
            a(f"""
            s_add_u32 m0, s{sW1K}, {CH[0] + j*4096}
            s_add_u32 s{T2}, s{T0}, {32*163840 + j*4096}
            buffer_load_dwordx4 v{VDMA}, {srd(SWS)}, s{T2} offen {HS} lds
            """)
    a.label("L_x1")
    first_loads(0)
    a.label("L_x2")
    stamp(a, 4)
    stamp(a, 12, 1)
    first_loads(1)
    a.label("L_attn_setup")
    def scale_q(p):
        for r in [QL[p] + i for i in range(4)] + [QH[p], QH[p] + 1]:
            a(f"""
            v_lshlrev_b32 v15, 16, v{r}
            v_and_b32 v16, 0xffff0000, v{r}
            v_mul_f32 v15, s{sCS}, v15
            v_mul_f32 v16, s{sCS}, v16
            v_cvt_pk_bf16_f32 v{r}, v15, v16
            """)
        reset_m(p)

    def reset_m(p):
        a(f"""
        v_mov_b32 v15, 0x3f800000
        v_cndmask_b32 v{QH[p]}, 0, v{QH[p]}, s[{sLO}:{sLO+1}]
        v_cndmask_b32 v{QH[p]+1}, v15, v{QH[p]+1}, s[{sLO}:{sLO+1}]
        """)

    def set_m(p, M):
        a(f"""
        v_mov_b32 v15, v{M}
        s_nop 1
        v_permlane32_swap_b32 v15, v{M}
        s_nop 1
        v_max_f32 v15, v15, v{M}
        v_sub_f32 v15, 0, v15                  ; -m
        v_and_b32 v16, 0xffff0000, v15         ; hi
        v_sub_f32 v17, v15, v16
        v_and_b32 v18, 0xffff0000, v17         ; mid
        v_sub_f32 v17, v17, v18                ; lo
        v_lshrrev_b32 v16, 16, v16
        v_or_b32 v16, v16, v18
        v_lshrrev_b32 v17, 16, v17
        v_or_b32 v17, 0x3f800000, v17
        v_cndmask_b32 v{QH[p]}, v16, v{QH[p]}, s[{sLO}:{sLO+1}]
        v_cndmask_b32 v{QH[p]+1}, v17, v{QH[p]+1}, s[{sLO}:{sLO+1}]
        """)

    def set_m_fast(p, M, delta):
        a(f"""
        v_mov_b32 v15, v{M}
        s_nop 1
        v_permlane32_swap_b32 v15, v{M}
        s_nop 1
        v_max_f32 v15, v15, v{M}
        v_sub_f32 v15, {f32bits(-float(delta)) if delta else 0}, v15
        v_lshrrev_b32 v15, 16, v15
        v_cndmask_b32 v{QH[p]}, v15, v{QH[p]}, s[{sLO}:{sLO+1}]
        """)

    def kreads(buf, off, restore=True):
        return [f"ds_read2st64_b64 {vr(KL[buf],4)}, v{VK} offset0:{off//512} offset1:{off//512+1}",
                f"s_mov_b64 exec, s[{sLO}:{sLO+1}]",
                f"ds_read_b64 {vr(KH[buf],2)}, v{VK} offset:{off+1024}"] + (["s_mov_b64 exec, -1"] if restore else [])

    def vreads(buf, off):
        return [f"s_mov_b64 exec, s[{sVM}:{sVM+1}]",
                f"ds_read_b128 {vr(VF[buf],4)}, v{VV} offset:{off}",
                f"ds_read_b128 {vr(VF[buf]+4,4)}, v{VV} offset:{off+640}",
                "s_mov_b64 exec, -1"]

    def qk(Sd, buf, p, C=None):
        return [mfma32(Sd, KL[buf], QL[p], C), mfma32k8(Sd, KH[buf], QH[p], Sd)]

    def pv(Ss, buf, o):
        return [f"v_smfmac_f32_32x32x32_bf16 {vr(o,16)}, {vr(VF[buf],4)}, {vr(Ss,8)}, v{VIDX}",
                f"v_smfmac_f32_32x32x32_bf16 {vr(o,16)}, {vr(VF[buf]+4,4)}, {vr(Ss+8,8)}, v{VIDX}"]

    def cap(fn, *args):
        keep, a.l = a.l, []
        fn(*args)
        out, a.l = [x.strip() for x in a.l], keep
        return out

    def exps(Ss):
        return [f"v_exp_f32 v{Ss+i}, v{Ss+i}" for i in range(16)]

    def maxtree(M, Ss, first):
        out = []
        if first:
            out.append(f"v_max3_f32 v{M}, v{Ss}, v{Ss+1}, v{Ss+2}")
            rest = list(range(3, 16))
        else:
            rest = list(range(16))
        while len(rest) >= 2:
            out.append(f"v_max3_f32 v{M}, v{M}, v{Ss+rest[0]}, v{Ss+rest[1]}")
            rest = rest[2:]
        if rest:
            out.append(f"v_max_f32 v{M}, v{M}, v{Ss+rest[0]}")
        return out

    def zero_o(p):
        for i in range(16):
            a(f"v_mov_b32 v{OO[p]+i}, 0")

    def o_addr(p):
        return f"""
        s_add_u32 s{T1}, s{sOA1}, {p*64*40960}
        s_add_u32 s{T2}, s{sOA2}, {p*64*40960}
        """

    def o_store():
        return f"""
        buffer_store_dwordx4 v[20:23], v{VDMA}, {srd(SWS)}, s{T1} offen {HST}
        s_mov_b64 exec, s[{sLO}:{sLO+1}]
        buffer_store_dwordx2 v[24:25], v{VDMA}, {srd(SWS)}, s{T2} offen {HST}
        s_mov_b64 exec, -1
        """

    def epilogue(p):
        o = OO[p]
        a(f"v_rcp_f32 v15, v{o+12}")
        a(o_addr(p))
        for i in range(12):
            a(f"v_mul_f32 v{o+i}, v{o+i}, v15")
        for i in range(6):
            a(f"v_cvt_pk_bf16_f32 v{20+i}, v{o+2*i}, v{o+2*i+1}")
        a(o_store())

    def finite(p):
        o = OO[p]
        a("v_mov_b32 v17, 0x7f800000")
        a(f"v_maximum3_f32 v15, abs(v{o}), abs(v{o+1}), abs(v{o+2})")
        a(f"v_maximum3_f32 v16, abs(v{o+3}), abs(v{o+4}), abs(v{o+5})")
        for i in range(3):
            a(f"v_maximum3_f32 v{15+(i&1)}, v{15+(i&1)}, abs(v{o+6+2*i}), abs(v{o+7+2*i})")
        a(f"v_maximum3_f32 v15, v15, v16, abs(v{o+12})")
        a("v_cmp_nlt_f32 vcc, v15, v17")
        a(f"v_cmp_gt_f32 s[{T4}:{T5}], s{sTINY}, v{OO[p]+12}")
        a(f"s_or_b64 vcc, vcc, s[{T4}:{T5}]")

    def pen(reg, u):
        return [f"s_cmp_ge_u32 s{sQT}, {8 - u}",
                f"s_cselect_b32 s{T0}, s{sONE}, {(NEGBIG & 0xffff0000) | 0x3f80}",
                f"v_mov_b32 v{reg+1}, s{T0}"]

    def tile_step(t, n, pf, koff, voff, cmask, extra_k=None, hooks=None, midprio=None):
        a("s_waitcnt lgkmcnt(0)")
        rd = []
        if extra_k and t + 2 < n:
            rd += extra_k(t & 1, t + 2)
        if t + 2 < n:
            rd += kreads(t & 1, koff(t + 2), restore=(t >= n))
        if t < n:
            rd += vreads(t & 1, voff(t))
        q = qk(S[(t + 1) & 3], (t + 1) & 1, pf(t + 1), cmask(t + 1)) if t + 1 < n else []
        pp = pv(S[(t - 1) & 3], (t - 1) & 1, OO[pf(t - 1)]) if t >= 1 else []
        e = exps(S[t & 3]) if t < n else []
        if t == 0:
            a("s_nop 10")
        ms = q + pp
        if not e:
            a(["s_nop 1"] + ms)
            return
        order = OPT.get("ord", 1)
        if len(ms) == 4:
            ms = [ms, [q[0], pp[0], q[1], pp[1]], [q[0], pp[0], pp[1], q[1]]][order]
        rpos, roff = divmod(OPT.get("rp", 2), 10)
        hooks = hooks or []
        hp = [i for i in range(4) if i != rpos]
        nh = (len(hooks) + 2) // 3
        for i in range(4):
            if i == 2 and midprio is not None:
                a(f"s_setprio {midprio}")
            if i < len(ms):
                a(ms[i])
            if i == rpos:
                a(e[4 * i:4 * i + roff] + rd + e[4 * i + roff:4 * i + 4])
            else:
                a(e[4 * i:4 * i + 2])
                k = hp.index(i)
                for hk in hooks[k * nh:(k + 1) * nh]:
                    a(hk)
                a(e[4 * i + 2:4 * i + 4])
        if order == 2 and len(ms) == 4:
            a("s_nop 4")

    def wo_piece(p, q0, ldsbase, cond=None):
        o = [f"s_add_u32 m0, s{sW1K}, {ldsbase & 0xffffffff}",
             f"s_add_u32 s{T1}, s{sWOB}, {WP_OFF + p*819200 + q0*1024}",
             f"buffer_load_dwordx4 v{VDMA}, {srd(SWS)}, s{T1} offen {HS} lds"]
        if cond is not None:
            lab = a.uniq("L_wo")
            o = [f"s_cmp_ge_u32 s{sWAVE}, {cond}", f"s_cbranch_scc1 {lab}"] + o + [f"{lab}:"]
        return o

    def wo_rnd(p, q0, cnt=8):
        return wo_piece(p, q0, WOL[p] + q0 * 1024, cond=None if cnt == 8 else cnt)

    def o_load(p, i):
        d = OFB[p] + 4 * i
        if i < 8:
            return [f"s_add_u32 s{T5}, s{sOB1}, {p*64*40960 + (i>>1)*4096}",
                    f"buffer_load_dwordx4 {vr(d,4)}, v{VOF}, {srd(SWS)}, s{T5} offen offset:{(i&1)*2048} {HS}"]
        return [f"s_add_u32 s{T5}, s{sOB2}, {p*64*40960}",
                f"buffer_load_dwordx4 {vr(d,4)}, v{VOF}, {srd(SWS)}, s{T5} offen offset:{(i-8)*2048} {HS}"]

    lab = a.uniq("L_xl")
    a(f"s_cmp_ge_u32 s{sWAVE}, 4\ns_cbranch_scc1 {lab}")
    TWO = OPT.get("two", 0)
    a(f"s_waitcnt vmcnt({5 if TWO else 0})\nv_mov_b32 v10, 0\nv_mov_b32 v11, 1\ns_mov_b64 exec, 1\nds_add_u32 v10, v11 offset:4\ns_mov_b64 exec, -1")
    a(f"s_branch {lab}_j")
    a.label(lab)
    lds_wait(8, 4)
    a.label(lab + "_j")
    lds_wait(4, 4)
    stamp(a, 5)
    stamp(a, 13, 1)
    a(f"""
    s_mul_i32 s{T0}, s{sWAVE}, 1280
    s_add_u32 s{T0}, s{T0}, {QB_OFF}
    v_add_u32 v15, s{T0}, v{VQ}
    ds_read2st64_b64 {vr(QL[1],4)}, v15 offset0:0 offset1:1
    ds_read_b64 {vr(QH[1],2)}, v15 offset:1024
    s_add_u32 s{sKVS}, s{sKVB}, s{sW1K}
    s_mov_b32 s{sTINY}, {f32bits(2.0 ** -64)}
    """)
    a(kreads(0, 0))
    a(kreads(1, 2560))
    a("s_waitcnt lgkmcnt(4)")
    if QS:
        assert DEFER
        reset_m(1)
        a("s_nop 0")
    else:
        scale_q(1)
    a("s_waitcnt lgkmcnt(2)")
    a(qk(S[0], 0, 1))
    a("s_nop 15")
    a(maxtree(19, S[0], True))
    set_m_fast(1, 19, 0)
    a("s_nop 1")
    a(qk(S[0], 0, 1))

    def dmaX(j):
        lab = a.uniq("L_dx")
        return [f"s_cmp_ge_u32 s{sWAVE}, 4", f"s_cbranch_scc1 {lab}",
                f"s_add_u32 m0, s{sW1K}, {CH[1] + j*4096}",
                f"s_add_u32 s{T2}, s{sKVS}, {32*163840 + 40960 + j*4096}",
                f"buffer_load_dwordx4 v{VDMA}, {srd(SWS)}, s{T2} offen {HS} lds", f"{lab}:"]

    def dmaY(j):
        lab = a.uniq("L_dy")
        return [f"s_cmp_lt_u32 s{sWAVE}, 4", f"s_cbranch_scc1 {lab}",
                f"s_add_u32 m0, s{sW1K}, {CH[1] + j*4096 - 4096}",
                f"s_add_u32 s{T2}, s{sKVS}, {32*163840 + 40960 + j*4096 - 4096}",
                f"buffer_load_dwordx4 v{VDMA}, {srd(SWS)}, s{T2} offen {HS} lds", f"{lab}:"]

    def dma3(r):
        c, rr = 2 + r // 5, r % 5
        return [f"s_add_u32 m0, s{sW1K}, {CH[c] + rr*8192}",
                f"s_add_u32 s{T2}, s{sKVS}, {32*163840 + c*40960 + rr*8192}",
                f"buffer_load_dwordx4 v{VDMA}, {srd(SWS)}, s{T2} offen {HS} lds"]

    def dmaA(j):
        return [f"s_add_u32 s{T1}, s{sAS}, {j*8192}"] + ([f"s_max_i32 s{T1}, s{T1}, 0"] if j < 3 else []) + [
                f"s_add_u32 m0, s{sW1K}, {A_OFF + j*8192}",
                f"s_add_u32 s{T1}, s{T1}, s{sKVB}",
                f"buffer_load_dwordx4 v{VDMA}, {srd(SWS)}, s{T1} offen {HS} lds"]

    qa_loads = [f"buffer_load_dwordx2 {vr(QL[0],2)}, v{VQ}, {srd(SWS)}, s{sQA} offen {HS}",
                f"buffer_load_dwordx2 {vr(QL[0]+2,2)}, v{VQ}, {srd(SWS)}, s{sQA} offen offset:512 {HS}",
                f"s_mov_b64 exec, s[{sLO}:{sLO+1}]",
                f"buffer_load_dwordx2 {vr(QH[0],2)}, v{VQ}, {srd(SWS)}, s{sQA} offen offset:1024 {HS}",
                "s_mov_b64 exec, -1"]
    assert QW_OFF == 0

    NT, AP = 73, OPT.get("ap", 52)
    ST0, ST1, KLT, KHT, VKT = 148, 164, 180, 184, 186
    sq = cap(scale_q, 0)

    def kt_reads(u):
        return [f"ds_read2st64_b64 {vr(KLT,4)}, v{VKT} offset0:{5*u} offset1:{5*u+1}",
                f"s_mov_b64 exec, s[{sLO}:{sLO+1}]",
                f"ds_read_b64 {vr(KHT,2)}, v{VKT} offset:{u*2560+1024}",
                "s_mov_b64 exec, -1"]

    XB = OPT.get("xb", 42)
    xh = {XB: [sq[:10], sq[10:20], [f"s_cmp_eq_u32 s{sQT}, 0", f"s_cselect_b32 s{T0}, 2560, 0", f"s_add_u32 s{T0}, s{T0}, s{sAD}",
                                    f"s_sub_u32 s{T0}, s{T0}, {CH[2]}", f"v_add_u32 v{VKT}, s{T0}, v{VK}",
                                    f"v_mov_b32 v{KHT}, 0x3f803f80", f"v_mov_b32 v{KHT+1}, 0x3f80"]],
          XB + 1: [sq[20:30], sq[30:], kt_reads(7)],
          XB + 2: [[f"s_cmp_eq_u32 s{sQT}, 0", "s_cbranch_scc1 L_mp0", mfma32(ST0, KLT, QL[0], None), "s_branch L_mp1",
                    "L_mp0:", mfma32(ST0, KLT, QL[0], MD), "L_mp1:"], [mfma32k8(ST0, KHT, QH[0], ST0)]],
          XB + 3: [[], maxtree(19, ST0, True)[:4], maxtree(19, ST0, True)[4:]],
          XB + 4: [cap(set_m_fast, 0, 19, 32)[:5], cap(set_m_fast, 0, 19, 32)[5:]],
          AP: [[f"v_mfma_f32_32x32x8_bf16 {vr(OO[0],16)}, v[254:255], v[254:255], 0"]]}
    assert XB < 46
    EA_ = AP + 10
    ep = cap(epilogue, 0)
    xh[EA_] = [cap(finite, 0)[:4], cap(finite, 0)[4:] + ["s_cmp_lg_u64 vcc, 0", f"s_cselect_b32 s{sBAD}, 1, 0"], ep[:9]]
    xh[EA_ + 1] = [ep[9:21] + [f"s_cmp_lg_u32 s{sBAD}, 0", "s_cbranch_scc1 L_nostA"] + ep[21:] + ["L_nostA:"]]
    assert ep[21].startswith("buffer_store") and ep[8].startswith("v_mul")
    isA = lambda u: AP <= u < AP + 9
    pf = lambda u: 0 if isA(u) else 1
    off = lambda u: (u - AP) * 2560 if isA(u) else ((u if u < AP else u - 9) & 15) * 2560
    cm = lambda u: MF if u == AP else (MD if u == AP + 8 else None)

    def xk(b, u):
        if isA(u):
            return pen(KH[b], u - AP)
        if u == AP + 9:
            return pen(KH[b], 8)
        return []
    E3 = EA_ + 2
    latew = [wo_rnd(0, 0), wo_rnd(0, 8), wo_rnd(0, 16, 4), wo_rnd(1, 40), wo_rnd(1, 48), wo_rnd(1, 56, 4)]
    PC = OPT.get("pc", 68)
    nper = -(-10 // (NT - PC))
    for t in range(NT + 1):
        hooks = []
        if t < 10:
            hooks = [dmaY(t)]
            ks = t - (DEFER - 1)
            if DEFER and 0 <= ks < 8:
                lab = a.uniq("L_ys")
                hooks.append([f"s_cmp_lt_u32 s{sWAVE}, 4", f"s_cbranch_scc1 {lab}", f"s_cmp_eq_u32 s{sM}, 15", f"s_cbranch_scc1 {lab}",
                              f"buffer_store_dwordx4 {vr(160+4*ks,4)}, v{EA[ks>>1]}, {srd(SWS)}, s{sEQ if (ks & 1) == 0 else sEK} offen {HST}", f"{lab}:"])
        if t == 2 and TWO:
            lab = a.uniq("L_x3")
            a(f"s_cmp_ge_u32 s{sWAVE}, 4\ns_cbranch_scc1 {lab}")
            a("s_waitcnt vmcnt(0)\nv_mov_b32 v10, 0\nv_mov_b32 v11, 1\ns_mov_b64 exec, 1\nds_add_u32 v10, v11 offset:12\ns_mov_b64 exec, -1")
            a.label(lab)
        if t == 6 and TWO:
            lds_wait(12, 4)
        if t == 14:
            a("s_waitcnt vmcnt(0) lgkmcnt(0)\ns_barrier")
            stamp(a, 6)
            cstamp(a, 1)
            stamp(a, 14, 1)
            publish(0, 0, 4)
        if t == 14:
            hooks = [[f"v_mov_b32 v{20+i}, -1" for i in range(6)], o_addr(0), o_store()]
        if t == 15:
            hooks = [o_addr(1), o_store()]
        if 16 <= t < 26:
            hooks = [dma3(t - 16)]
        if t == 27:
            poll_issue(0, 0)
        if t == 30:
            poll_check(0, 0)
            a("s_waitcnt vmcnt(0) lgkmcnt(0)\ns_barrier")
            publish(1, 0, 1)
            stamp(a, 7)
            cstamp(a, 3)
            hooks = [qa_loads]
        if 31 <= t < 36:
            hooks = [dmaA((t - 31 + 4) % 5)]
        if 36 <= t < 41:
            k = t - 36
            hooks = [[f"s_add_u32 s{T1}, s{sWOB}, {WP_OFF + 819200 + (60 + 8*k)*1024}",
                      f"buffer_load_dwordx4 {vr(ST[k],4)}, v{VDMA}, {srd(SWS)}, s{T1} offen {HS}"]]
        if t == XB:
            a("s_waitcnt vmcnt(5)\ns_barrier")
        if t == 46:
            poll_issue(1, 0)
        if t == 49:
            poll_check(1, 0)
            a("s_waitcnt lgkmcnt(0)\ns_barrier")
            stamp(a, 8)
            cstamp(a, 5)
        if 49 <= t < 59:
            hooks = [wo_rnd(0, 20 + 8 * (t - 49))]
        if t == E3:
            a("s_barrier")
            stamp(a, 10)
            cstamp(a, 7)
            stamp(a, 3, 2)
        if E3 <= t < E3 + 3:
            hooks = latew[2 * (t - E3):2 * (t - E3) + 2]
        if PC <= t < NT:
            assert not hooks
            hooks = [o_load(0, i) for i in range((t - PC) * nper, min(10, (t - PC + 1) * nper))]
        if t in xh:
            hx = xh[t] + [[]] * (3 - len(xh[t]))
            assert len(hooks) <= 1
            hooks = [hx[0], hx[1], hx[2] + (hooks[0] if hooks else [])]
        P0 = OPT.get("p0", 2)
        if t < P0:
            a("s_nop 0")
        elif t < 14 and OPT.get("pq", 0):
            a(f"s_setprio {3 - min(3, (t - P0) * 4 // (14 - P0))}")
        else:
            t0 = max(x for x in (P0, 14, 30, XB, 49, E3) if x <= t)
            a(f"s_setprio {3 - (t - t0) % 4}")
        if t + 2 in (16, 32, 48):
            c = (t + 2) // 16
            a(f"v_add_u32 v{VK}, {(CH[c] - CH[c - 1]) & 0xffffffff}, v{VK}")
        if t in (16, 32, 48):
            c = t // 16
            a(f"v_add_u32 v{VV}, {(CH[c] - CH[c - 1]) & 0xffffffff}, v{VV}")
        for reg, tt in ((VK, t + 2), (VV, t)):
            if tt == AP:
                a(f"v_add_u32 v{reg}, s{sAD}, v{reg}")
            if tt == AP + 9:
                a(f"v_subrev_u32 v{reg}, s{sAD}, v{reg}")
        if t == 64:
            stamp(a, 9)
            stamp(a, 1, 2)
        tile_step(t, NT, pf, off, off, cm, extra_k=xk, hooks=hooks)
    a("s_setprio 0")
    a(f"s_cmp_lg_u32 s{sBAD}, 0")
    a("s_cbranch_scc1 L_slowA")
    a.label("L_chkB")
    a("s_nop 8")
    finite(1)
    a("s_nop 4")
    a("s_cbranch_vccnz L_slowB")
    a.label("L_epiB")
    epilogue(1)
    stamp(a, 11)
    stamp(a, 7, 2)

    GA = [208, 148]
    GW = lambda buf, ct: 72 + buf * 20 + 4 * ct
    FT = 168
    retries = []

    def g3reads(i):
        return [f"ds_read_b128 {vr(GW(i%3,ct),4)}, v{VW3 if i < 6 else 12} offset:{((i % 6)*10+ct)*1024}" for ct in range(5)]

    GRP = ((0, 1), (2, 3), (4,))

    def part_out(p, gs=(0, 1, 2)):
        a(f"v_add_u32 v10, {SCR[p]}, v{VRED}")
        for ct in sum([GRP[g] for g in gs], ()):
            a(f"ds_write_b128 v10, {vr(GA[p]+4*ct,4)} offset:{ct*1024}")

    def out_addr(p):
        a(f"""
        s_lshl_b32 s{T0}, s{sHEAD}, 2
        s_add_u32 s{T0}, s{T0}, s{sCW}
        s_mul_i32 s{T0}, s{T0}, {16*2560}
        s_mul_i32 s{T1}, s{sQB}, 160
        s_add_u32 s{T0}, s{T0}, s{T1}
        s_add_u32 s{T0}, s{T0}, {p*1280}
        """)

    def finish(p, gs=(0, 1, 2), addr=True):
        if addr:
            a(f"v_add_u32 v10, {SCR[p]}, v{VRED}")
        cts = sum([GRP[g] for g in gs], ())
        for ct in cts:
            a(f"ds_read_b128 {vr(FT+4*ct,4)}, v10 offset:{ct*1024}")
        if addr:
            out_addr(p)
        left = len(cts)
        for g in gs:
            left -= len(GRP[g])
            lo, hi = 4 * GRP[g][0], 4 * GRP[g][-1] + 4
            a(f"s_waitcnt lgkmcnt({left})")
            for i in range(lo, hi):
                a(f"v_add_f32 v{FT+i}, v{FT+i}, v{GA[p]+i}")
            for i in range(lo // 2, hi // 2):
                a(f"v_cvt_pk_bf16_f32 v{FT+20+i}, v{FT+2*i}, v{FT+2*i+1}")
            a(f"buffer_store_dwordx{4 if g < 2 else 2} {vr(FT+20+4*g, 4 if g < 2 else 2)}, v{VOUT if g < 2 else VOUT2}, {srd(SOUT)}, s{T0} offen offset:{64*g}")

    def o_check(p, i, n):
        d = OFB[p] + 4 * i
        a(f"""
        s_waitcnt vmcnt({n})
        L_gw{p}_{i}:
        v_max3_u32 v10, v{d}, v{d+1}, v{d+2}
        v_max_u32 v10, v10, v{d+3}
        v_cmp_eq_u32 vcc, -1, v10
        s_cbranch_vccnz L_gr{p}_{i}
        L_gc{p}_{i}:
        """)
        retries.append((p, i))

    a(f"s_mov_b32 s{sCNT}, 0x20000")
    F, L = 0, 1
    OI = OPT.get("oi", 9)
    a(f"v_add_u32 v12, {60*K}, v{VW3}")
    a("s_waitcnt vmcnt(12)")
    a("s_barrier")
    stamp(a, 8, 2)
    a(g3reads(0))
    a(g3reads(1))
    young = 2
    nd = no = 0
    for i in range(10):
        o_check(F, i, 9 - i + young)
        a(f"s_waitcnt lgkmcnt({5 if i < 9 else 0})")
        rs = g3reads(i + 2) if i < 8 else []
        for ct in range(5):
            a(mfma16(GA[F] + 4 * ct, GW(i % 3, ct), OFB[F] + 4 * i, None if i == 0 else GA[F] + 4 * ct))
            a(rs[ct:ct + 1])
        if nd < 5:
            a(wo_rnd(L, 8 * nd))
            nd += 1; young += 1
        if i >= OI:
            n = -(-10 // (10 - OI))
            for k in range(no, min(10, no + n)):
                a(o_load(L, k)); young += 1
            no = min(10, no + n)
    assert OI >= 5
    stamp(a, 2, 2)
    if OI <= 10:
        for k in range(no, 10):
            a(o_load(L, k))
    a(f"""
    v_mov_b32 v12, v{VW3}
    v_add_u32 v{VW3}, {(WOL[L] - WOL[F]) & 0xffffffff}, v{VW3}
    s_add_u32 s{T0}, s{sW1K}, {WOL[L] + 60*K}
    v_add_u32 v11, s{T0}, v{VDMA}
    s_waitcnt vmcnt({10 if OI <= 10 else 0})
    s_barrier
    """)
    assert WOL[F] == WOL[L] + 60 * K
    stamp(a, 9, 2)
    if OI > 10:
        for k in range(10):
            a(o_load(L, k))
    for k in range(5):
        a(f"ds_write_b128 v11, {vr(ST[k],4)} offset:{k*8192}")
    a(f"s_cmp_lt_u32 s{sWAVE}, 4\ns_cbranch_scc1 L_pb1")
    part_out(F)
    a.label("L_pb1")
    stamp(a, 12)
    stamp(a, 13)
    stamp(a, 12, 2)
    a(g3reads(0))
    a(g3reads(1))
    R2 = OPT.get("r2", 1)
    for i in range(10):
        d = OFB[L] + 4 * i
        if i == R2:
            a("s_barrier")
            a(f"s_cmp_ge_u32 s{sWAVE}, 4\ns_cbranch_scc1 L_pb2")
            finish(F)
            a.label("L_pb2")
        o_check(L, i, 9 - i)
        a(f"s_waitcnt lgkmcnt({5 if i < 9 else 0})")
        rs = g3reads(i + 2) if i < 8 else []
        for ct in range(5):
            a(mfma16(GA[L] + 4 * ct, GW(i % 3, ct), d, None if i == 0 else GA[L] + 4 * ct))
            a(rs[ct:ct + 1])
    assert 1 <= R2 <= 4
    stamp(a, 13, 2)
    if OPT.get("sym", 1):
        out_addr(L)
        a(f"s_cmp_lt_u32 s{sWAVE}, 4\ns_cbranch_scc1 L_fin1")
        part_out(L, (0, 2))
        a("s_waitcnt lgkmcnt(0)\ns_barrier")
        finish(L, (1,), addr=False)
        a("s_branch L_fin2")
        a.label("L_fin1")
        part_out(L, (1,))
        a("s_waitcnt lgkmcnt(0)\ns_barrier")
        finish(L, (0, 2), addr=False)
        a.label("L_fin2")
    else:
        a(f"s_cmp_lt_u32 s{sWAVE}, 4\ns_cbranch_scc1 L_fin1")
        a("s_nop 2")
        part_out(L)
        a("s_waitcnt lgkmcnt(0)\ns_barrier\ns_branch L_fin2")
        a.label("L_fin1")
        a("s_barrier")
        finish(L)
        a.label("L_fin2")
    lab = only_wave(4)
    a(f"""
    s_cmp_lg_u32 s2, 0
    s_cbranch_scc1 {lab}
    v_mov_b32 v1, s{sTAG}
    s_mov_b32 s{T4}, {EP_OFF}
    s_mov_b64 exec, 1
    buffer_store_dword v1, off, {srd(SWS)}, s{T4} sc1
    s_mov_b64 exec, -1
    """)
    a.label(lab)
    if STAMPS:
        a("s_waitcnt vmcnt(0)")
        stamp(a, 14)
        stamp(a, 14, 2)
        a("s_waitcnt lgkmcnt(0)")
        a(f"""
        s_lshl_b32 s{T0}, s2, 4
        s_add_u32 s{T0}, s{T0}, s{sWAVE}
        s_lshl_b32 s{T0}, s{T0}, 7
        s_add_u32 s{T0}, s{T0}, {STAMP_OFF}
        s_mov_b64 exec, 1
        """)
        for i in range(15):
            a(f"v_mov_b32 v1, s{SB+2*i}")
            a(f"buffer_store_dword v1, off, {srd(SWS)}, s{T0} offset:{4*i}")
    if OPT.get("pad"):
        if "padwg" in OPT:
            a(f"s_cmp_lg_u32 s2, {OPT['padwg']}\ns_cbranch_scc1 L_done")
            a(f"s_cmp_lg_u32 s{sWAVE}, 0\ns_cbranch_scc1 L_done")
        a(f"""
        L_pad:
        s_memrealtime s[{T0}:{T1}]
        s_waitcnt lgkmcnt(0)
        s_sub_u32 s{T0}, s{T0}, s{SB + 2*OPT.get('padst', 0)}
        s_cmp_lt_u32 s{T0}, {OPT["pad"]}
        s_cbranch_scc1 L_pad
        """)
    a.label("L_done")
    a("s_endpgm")

    for p, i in retries:
        a.label(f"L_gr{p}_{i}")
        a(f"""
        s_sub_u32 s{sCNT}, s{sCNT}, 1
        s_cmp_eq_u32 s{sCNT}, 0
        s_cbranch_scc1 L_gq{p}_{i}
        s_waitcnt vmcnt(0)
        s_sleep 1
        """)
        for k in range(i, 10):
            a(o_load(p, k))
        a(f"s_waitcnt vmcnt({9 - i if p == L else 0})")
        a(f"s_branch L_gw{p}_{i}")
        a.label(f"L_gq{p}_{i}")
        a(f"s_mov_b32 s{sCNT}, 1\ns_branch L_gc{p}_{i}")

    a.label("L_idle")
    PF = OPT.get("pf", 0)
    if PF:
        a(f"""
        v_mul_u32_u24 v64, 1280, v0
        v_lshrrev_b32 v65, 3, v0
        v_mul_u32_u24 v65, 3840, v65
        v_and_b32 v66, 7, v0
        v_lshl_add_u32 v65, v66, 7, v65
        v_lshrrev_b32 v66, 1, v0
        v_mul_u32_u24 v66, 3840, v66
        v_and_b32 v67, 1, v0
        v_lshl_add_u32 v66, v67, 7, v66
        s_and_b32 s{T0}, s{sXCD}, 1
        s_lshl_b32 s{T0}, s{T0}, 3
        s_add_u32 s{T0}, s{T0}, s{sWAVE}
        s_mul_i32 s{T0}, s{T0}, 163840
        s_and_b32 s{T3}, s{sJ}, 1
        s_mul_i32 s{T1}, s{T3}, 640
        s_add_u32 s{T0}, s{T0}, s{T1}
        s_lshr_b32 s{T1}, s{sXCD}, 1
        s_mul_i32 s{T1}, s{T1}, 30
        s_lshr_b32 s{T1}, s{T1}, 3
        s_lshl_b32 s{T1}, s{T1}, 8
        s_mul_i32 s{T3}, s{T3}, {320*3840}
        s_add_u32 s{T1}, s{T1}, s{T3}
        s_mul_i32 s{T3}, s{sWAVE}, {8*3840}
        s_add_u32 s{T1}, s{T1}, s{T3}
        """)
        for ks in range(PF):
            a(f"""
            s_add_u32 s{T2}, s{T0}, {ks*128}
            buffer_load_dword v68, v64, {srd(SX[0])}, s{T2} offen
            s_add_u32 s{T2}, s{T0}, {ks*128 + 64*1280}
            buffer_load_dword v68, v64, {srd(SX[0])}, s{T2} offen
            s_add_u32 s{T2}, s{T1}, {ks*64*3840}
            buffer_load_dword v68, v65, {srd(SW[0])}, s{T2} offen
            s_mov_b64 exec, 0xffff
            buffer_load_dword v68, v66, {srd(SW[0])}, s{T2} offen offset:1024
            s_mov_b64 exec, -1
            """)
    a(f"""
    s_cmp_ge_u32 s{sTB}, 8
    s_cselect_b32 s{SX[0]}, s{SWO[1]}, s{SWO[0]}
    s_cselect_b32 s{SX[0]+1}, s{SWO[1]+1}, s{SWO[0]+1}
    s_mov_b32 s{SX[0]+2}, {WO_BYTES}
    """)
    a(late)
    G3D = [128, 129, 130, 131, 132]
    for i in range(5):
        a([f"v_add_u32 v10, {64*i}, v0",
           "v_mul_u32_u24 v11, 6554, v10",
           "v_lshrrev_b32 v11, 16, v11",
           "v_mul_u32_u24 v12, 10, v11",
           "v_sub_u32 v12, v10, v12",
           "v_mul_u32_u24 v11, 1280, v11",
           f"v_lshl_add_u32 v{G3D[i]}, v12, 4, v11"])
    a(f"""
    s_and_b32 s{T0}, s{sTB}, 7
    s_mul_i32 s{T0}, s{T0}, 160
    s_mul_i32 s{T1}, s{sWAVE}, {32*1280}
    s_add_u32 s{T0}, s{T0}, s{T1}
    s_mul_i32 s{T1}, s{sWAVE}, 5120
    """)
    for rnd in range(3):
        lab = a.uniq("L_id")
        if rnd == 2:
            a(f"s_cmp_ge_u32 s{sWAVE}, 4\ns_cbranch_scc1 {lab}")
        a(f"s_add_u32 s{T2}, s{T0}, {rnd*256*1280}")
        for i in range(5):
            a(f"s_add_u32 m0, s{T1}, {K + rnd*8*5120 + i*1024}\ns_nop 0")
            a(f"buffer_load_dwordx4 v{G3D[i]}, {srd(SX[0])}, s{T2} offen lds")
        a.label(lab)
    a(f"""
    v_lshrrev_b32 v10, 5, v0
    v_bfe_u32 v11, v0, 4, 1
    v_bfe_u32 v12, v0, 2, 2
    v_and_b32 v13, 3, v0
    v_lshlrev_b32 v136, 3, v13
    v_lshlrev_b32 v13, 4, v13
    v_add_u32 v13, {K}, v13
    v_mul_u32_u24 v14, 20, v10
    v_lshl_add_u32 v14, v11, 2, v14
    v_add_u32 v14, v14, v12
    v_mul_u32_u24 v14, 160, v14
    v_add_u32 v133, v14, v13
    v_mul_u32_u24 v14, 80, v10
    v_mul_u32_u24 v11, 20, v11
    v_add3_u32 v14, v14, v11, v12
    v_add_u32 v14, 16, v14
    v_mul_u32_u24 v14, 160, v14
    v_add_u32 v134, v14, v13
    s_mul_i32 s{T0}, s{sWAVE}, 6400
    v_add_u32 v133, s{T0}, v133
    s_mul_i32 s{T0}, s{sWAVE}, 25600
    v_add_u32 v134, s{T0}, v134
    v_lshlrev_b32 v135, 4, v0
    v_sub_u32 v137, v133, v136
    v_sub_u32 v138, v134, v136
    v_mov_b32 v10, 0
    v_mov_b32 v11, 0
    v_mov_b32 v12, 4
    ds_write_b64 v10, v[10:11]
    ds_write_b32 v10, v12 offset:8
    ds_write_b32 v10, v10 offset:12
    s_mul_i32 s{T0}, s{sTB}, 102400
    s_add_u32 s{T0}, s{T0}, {WP_OFF}
    s_mul_i32 s{T1}, s{sWAVE}, 10240
    s_add_u32 s{T1}, s{T1}, s{T0}              ; kh=0, i=w
    s_lshr_b32 s{T2}, s{sWAVE}, 1
    s_mul_i32 s{T2}, s{T2}, 5120
    s_and_b32 s{T3}, s{sWAVE}, 1
    s_mul_i32 s{T3}, s{T3}, 10240
    s_add_u32 s{T2}, s{T2}, s{T3}
    s_add_u32 s{T2}, s{T2}, s{T0}
    s_add_u32 s{T2}, s{T2}, {8*10240}
    s_waitcnt vmcnt(0) lgkmcnt(0)
    s_barrier
    """)
    stamp(a, 1)
    for rnd in range(3):
        lab = a.uniq("L_id")
        if rnd == 2:
            a(f"s_cmp_ge_u32 s{sWAVE}, 4\ns_cbranch_scc1 {lab}")
        base = 64 + rnd * 20
        for ct in range(5):
            for rd in range(2):
                if rnd < 2:
                    a(f"ds_read_b64_tr_b16 {vr(base+4*ct+2*rd,2)}, v{133 if ct < 4 else 137} offset:{rnd*51200 + rd*1280 + (ct>>1)*64 + (ct&1)*8}")
                else:
                    a(f"ds_read_b64_tr_b16 {vr(base+4*ct+2*rd,2)}, v{134 if ct < 4 else 138} offset:{rd*6400 + (ct>>1)*64 + (ct&1)*8}")
        a("s_waitcnt lgkmcnt(0)")
        if rnd == 1:
            a(f"s_add_u32 s{T1}, s{T1}, 5120")
        sreg = T1 if rnd < 2 else T2
        for ct in range(5):
            if ct == 4:
                a(f"s_add_u32 s{T3}, s{sreg}, 4096")
                a(f"buffer_store_dwordx4 {vr(base+4*ct,4)}, v135, {srd(SWS)}, s{T3} offen {HST}")
            else:
                a(f"buffer_store_dwordx4 {vr(base+4*ct,4)}, v135, {srd(SWS)}, s{sreg} offen offset:{ct*1024} {HST}")
        a.label(lab)
    a("s_waitcnt vmcnt(0)\ns_barrier")
    stamp(a, 2)
    publish(0, 0, 1)
    publish(0, 1, 2)
    a(f"v_add_u32 v{VPUB}, 4, v{VPUB}")
    publish(0, 0, 3)
    publish(0, 1, 4)
    poll_issue(0, 1)
    poll_check(0, 1, sleep=OPT.get('isl', 12))
    a("s_barrier")
    stamp(a, 3)
    a(f"s_cmp_ge_u32 s{sWAVE}, 4")
    a("s_cbranch_scc1 L_attn_setup")
    a("s_branch L_x1")

    def gk():
        return f"""
        buffer_load_dwordx2 {vr(KL[0],2)}, v{VK}, {srd(SWS)}, s{T2} offen {HS}
        buffer_load_dwordx2 {vr(KL[0]+2,2)}, v{VK}, {srd(SWS)}, s{T2} offen offset:512 {HS}
        s_mov_b64 exec, s[{sLO}:{sLO+1}]
        buffer_load_dwordx2 {vr(KH[0],2)}, v{VK}, {srd(SWS)}, s{T2} offen offset:1024 {HS}
        """

    def gv():
        return f"""
        s_mov_b64 exec, s[{sVM}:{sVM+1}]
        buffer_load_dwordx4 {vr(VF[0],4)}, v{VV}, {srd(SWS)}, s{T2} offen {HS}
        buffer_load_dwordx4 {vr(VF[0]+4,4)}, v{VV}, {srd(SWS)}, s{T2} offen offset:640 {HS}
        """
    assert CH[3] == 0

    def slow_tile(p, second, C):
        a(gk())
        if second:
            a(gv())
        a("s_mov_b64 exec, -1\ns_waitcnt vmcnt(0)")
        a(qk(S[0], 0, p, C))
        a("s_nop 15")
        if second:
            a(exps(S[0]))
            a("s_nop 1")
            a(pv(S[0], 0, OO[p]))
        else:
            a(maxtree(19, S[0], False))

    a.label("L_slowA")
    a("s_nop 15")
    MF2 = S[1]
    for i in range(16):
        a(f"v_sub_f32 v{MF2+i}, {NEGBIG}, v{MD+i}")
    reset_m(0)
    a("v_mov_b32 v19, 0xff800000")
    for second in (0, 1):
        for u in range(9):
            a(pen(KH[0], u))
            a(f"""
            s_add_i32 s{T2}, s{sQT}, {u - 8}
            s_max_i32 s{T2}, s{T2}, 0
            s_mul_i32 s{T2}, s{T2}, 2560
            s_add_u32 s{T2}, s{T2}, s{sKVB}
            """)
            slow_tile(0, second, MF2 if u == 0 else (MD if u == 8 else None))
        if not second:
            set_m(0, 19)
            zero_o(0)
    a("s_nop 15")
    epilogue(0)
    a("s_branch L_chkB")

    a.label("L_slowB")
    reset_m(1)
    a("v_mov_b32 v19, 0xff800000")
    a(f"s_add_u32 s{T3}, s{sKVB}, {33*163840}")
    for second in (0, 1):
        a(f"s_sub_u32 s{T2}, s{T3}, 163840")
        a.label(f"L_slow{second}")
        slow_tile(1, second, None)
        a(f"""
        s_add_u32 s{T2}, s{T2}, 2560
        s_cmp_lt_u32 s{T2}, s{T3}
        s_cbranch_scc1 L_slow{second}
        """)
        if not second:
            set_m(1, 19)
            zero_o(1)
    a("s_nop 15\ns_branch L_epiB")
    a.label("L_code_end")


def main(out):
    global HST, HS, OUTP
    OUTP = ["", "nt", "sc1", "sc0 sc1"][OPT.get("outp", 0)]
    HST = ["sc1", "", "sc0 sc1", "nt", "sc1 nt"][OPT.get("st", 0)]
    HS = ["sc1", ""][OPT.get("ld", 0)]
    a = Asm()
    hdr = open(f"cdna_kernels/{NAME}.s.ref").read().split("\n")
    keep = [l for l in hdr if l.startswith(";") and "@launch" not in l]
    for l in keep:
        a.raw(l)
    a.raw(f"; @launch grid=(256,1,1) block=(512,1,1) lds={LDS_BYTES}")
    a.raw('.amdgcn_target "amdgcn-amd-amdhsa--gfx950"')
    a.raw(".text")
    gen(a)
    a.raw('.section .rodata,"a"')
    a.raw(".p2align 6")
    a.raw(f""".amdhsa_kernel {KNAME}
  .amdhsa_next_free_vgpr 256
  .amdhsa_next_free_sgpr {102 if STAMPS else 72}
  .amdhsa_accum_offset 256
  .amdhsa_group_segment_fixed_size 0
  .amdhsa_kernarg_size 72
  .amdhsa_user_sgpr_count 2
  .amdhsa_user_sgpr_kernarg_segment_ptr 1
  .amdhsa_system_sgpr_workgroup_id_x 1
.end_amdhsa_kernel""")
    open(out, "w").write(a.text())


if __name__ == "__main__":
    if "--stamps" in sys.argv:
        STAMPS = True
        sys.argv.remove("--stamps")
    for x in list(sys.argv):
        if x.startswith("-D"):
            k, _, v = x[2:].partition("=")
            OPT[k] = int(v) if v else 1
            sys.argv.remove(x)
    main(sys.argv[1] if len(sys.argv) > 1 else f"cdna_kernels/{NAME}.s")
```
